```python
import torch

def _softmax(x, axis=-1):
    return torch.softmax(x, dim=axis)
def _gelu(x):
    return torch.nn.functional.gelu(x, approximate="tanh")
def _silu(x):
    return torch.nn.functional.silu(x)
def _sigmoid(x):
    return torch.sigmoid(x)
def _layernorm(x, axis=-1, eps=1e-5):
    m = x.mean(dim=axis, keepdim=True)
    v = x.var(dim=axis, keepdim=True, unbiased=False)
    return (x - m) / torch.sqrt(v + eps)
def _scatter_add(tgt, idx, src, axis=0):
    return tgt.clone().index_add_(axis, idx, src)
def _segment_sum(src, seg, n):
    out = torch.zeros((n,) + src.shape[1:], dtype=src.dtype)
    return out.index_add_(0, seg, src)
def _pad(x, pw):
    flat = tuple(v for pair in reversed(pw) for v in pair)
    return torch.nn.functional.pad(x, flat)

kernel_name = 'concat_heads__sliding_local_dilated__sliding_block__prompt'

def setup_inputs():

    _w = (lambda a: (lambda t: t.to(torch.bfloat16) if t.is_floating_point() else t)(torch.as_tensor(a)))
    def _A_setup():
        B, S, D = 1, 2048, 640
        return {
            "x": _w((lambda *s: torch.randn(*s, dtype=torch.bfloat16) * 0.2)(B, S, D)),
            "wqkv": _w((lambda *s: torch.randn(*s, dtype=torch.bfloat16) * 0.2)(D, 3 * D)),
            "wo": _w((lambda *s: torch.randn(*s, dtype=torch.bfloat16) * 0.05)(D, D)),
        }
    _A_in = _A_setup()

    def _B_setup():
        B, S, D = 1, 2048, 640
        return {
            "x": _w((lambda *s: torch.randn(*s, dtype=torch.bfloat16) * 0.2)(B, S, D)),
            "wqkv": _w((lambda *s: torch.randn(*s, dtype=torch.bfloat16) * 0.2)(D, 3 * D)),
            "wo": _w((lambda *s: torch.randn(*s, dtype=torch.bfloat16) * 0.05)(D, D)),
        }
    _B_in = _B_setup()

    return {
        "A_x": _A_in["x"],
        "A_wqkv": _A_in["wqkv"],
        "A_wo": _A_in["wo"],
        "B_x": _B_in["x"],
        "B_wqkv": _B_in["wqkv"],
        "B_wo": _B_in["wo"],
    }

def reference(A_x, A_wqkv, A_wo, B_x, B_wqkv, B_wo):
    def _A_ref(x, wqkv, wo):
        B, S, D = x.shape
        H = 32; Dh = D // H
        W, dil = 8, 2
        qkv = (lambda x, *d: x.permute(*d))((x @ wqkv).reshape(B, S, 3, H, Dh), 2, 0, 3, 1, 4)
        q, k, v = qkv[0], qkv[1], qkv[2]
        scale = Dh ** -0.5
        pos = torch.arange(S)
        off = torch.arange(W) * dil
        idx = pos[:, None] - off[None, :]
        mask = idx >= 0
        idx_c = torch.where(mask, idx, 0).reshape(-1)
        kg = k[:, :, idx_c, :].reshape(B, H, S, W, Dh)
        vg = v[:, :, idx_c, :].reshape(B, H, S, W, Dh)
        logits = torch.einsum("bhsd,bhswd->bhsw", q, kg) * scale
        logits = torch.where(mask[None, None, :, :], logits, -1e9)
        attn = _softmax(logits, axis=-1)
        o = torch.einsum("bhsw,bhswd->bhsd", attn, vg)
        return (lambda x, *d: x.permute(*d))(o, 0, 2, 1, 3).reshape(B, S, D) @ wo

    def _B_ref(x, wqkv, wo):
        B, S, D = x.shape
        H = 32; Dh = D // H; W = 256
        qkv = (lambda x, *d: x.permute(*d))((x @ wqkv).reshape(B, S, 3, H, Dh), 2, 0, 3, 1, 4)
        q, k, v = qkv[0], qkv[1], qkv[2]
        scores = torch.einsum("bhqd,bhkd->bhqk", q, k) * (Dh ** -0.5)
        idx = torch.arange(S)
        mask = (idx[:, None] - idx[None, :] >= 0) & (idx[:, None] - idx[None, :] < W)
        scores = torch.where(mask[None, None], scores, -1e9)
        p = _softmax(scores, axis=-1)
        o = torch.einsum("bhqk,bhkd->bhqd", p, v)
        return (lambda x, *d: x.permute(*d))(o, 0, 2, 1, 3).reshape(B, S, D) @ wo

    a = _A_ref(A_x, A_wqkv, A_wo)
    b = _B_ref(B_x, B_wqkv, B_wo)
    return torch.concatenate([a, b], axis=-1)
```

```python
import sys, math, struct

REF = 'concat_heads__sliding_local_dilated__sliding_block__prompt.s.ref'
HDR = [l for l in open(REF).read().split('\n')
       if l.startswith(';') and '@launch' not in l and 'Override' not in l and 'grid=ceil' not in l]

QK_TILE = 640
V_TILE = 768
Q_OFF = 0
K_OFF = 32 * 128 * QK_TILE
V_OFF = 2 * K_OFF
QKV_BYTES = V_OFF + 32 * 128 * V_TILE
O_BASE = 2 * QKV_BYTES
O_BYTES = 2048 * 640 * 2

def f32bits(x): return struct.unpack('<I', struct.pack('<f', x))[0]

class Asm:
    def __init__(self):
        self.out = []
        self.kernels = []
        self.launches = []
        self.lds_q = []
    def __call__(self, s):
        for l in s.split('\n'):
            l = l.strip()
            if 'noload' in DBG and l.endswith(' lds'): continue
            if 'nomfma' in DBG and l.startswith('v_mfma'): continue
            if 'nods' in DBG and l.startswith('ds_read'): continue
            if 'nostore' in DBG and l.startswith('buffer_store') and 's[8:11]' not in l: continue
            if l: self.out.append('    ' + l if not l.endswith(':') else l)
    def begin(self, name):
        self.out.append(f".globl {name}\n.p2align 8\n.type {name},@function\n{name}:")
        self.cur = name
    def end(self, vgpr, sgpr, grid, block, lds):
        self.kernels.append((self.cur, vgpr, sgpr))
        self.launches.append((self.cur, grid, block, lds))
    def lds(self, s, tag):
        self(s); self.lds_q.append(tag)
    def lds_wait(self, tag):
        idx = [i for i, t in enumerate(self.lds_q) if t == tag]
        if not idx: return
        n = len(self.lds_q) - 1 - idx[-1]
        assert n <= 15, n
        self(f"s_waitcnt lgkmcnt({n})")
        self.lds_q = self.lds_q[idx[-1] + 1:]
    def lds_drain(self):
        self("s_waitcnt lgkmcnt(0)"); self.lds_q = []
    def text(self, order=None):
        o = list(HDR)
        ls = self.launches if order is None else [l for n in order for l in self.launches if l[0] == n]
        for (n, g, b, lds) in ls:
            o.append(f"; @launch kernel={n} grid=({g},1,1) block=({b},1,1) lds={lds}")
        o.append('.amdgcn_target "amdgcn-amd-amdhsa--gfx950"\n.text')
        o += self.out
        o.append('.section .rodata,"a"')
        for (n, vgpr, sgpr) in self.kernels:
            o.append(f""".p2align 6
.amdhsa_kernel {n}
  .amdhsa_next_free_vgpr {vgpr}
  .amdhsa_next_free_sgpr {sgpr}
  .amdhsa_accum_offset {(vgpr + 3) // 4 * 4}
  .amdhsa_group_segment_fixed_size 0
  .amdhsa_kernarg_size 72
  .amdhsa_user_sgpr_count 2
  .amdhsa_user_sgpr_kernarg_segment_ptr 1
  .amdhsa_system_sgpr_workgroup_id_x 1
.end_amdhsa_kernel""")
        return '\n'.join(o) + '\n'

STAMP = False
DBG = set()
STAMP_OFF = 30 << 20
def stamp(A, i):
    if STAMP:
        A(f"s_memtime s[{74+2*i}:{75+2*i}]")
        if i == 0: A("s_memrealtime s[96:97]")
def stamp_flush(A, n, wsreg, kidx):
    if not STAMP: return
    A(f"""
    s_waitcnt lgkmcnt(0) vmcnt(0)
    s_memtime s[{74+2*n}:{75+2*n}]
    s_memrealtime s[{76+2*n}:{77+2*n}]
    s_load_dwordx2 s[4:5], s[0:1], 64
    s_waitcnt lgkmcnt(0)
    s_add_u32 s4, s4, {STAMP_OFF + kidx*262144}
    s_addc_u32 s5, s5, 0
    s_mov_b32 s8, s4
    s_and_b32 s9, s5, 0xffff
    s_mov_b32 s10, 262144
    s_mov_b32 s11, 0x20000
    v_lshrrev_b32 v0, 6, v0
    s_lshl_b32 s6, s2, 3
    v_add_u32 v0, s6, v0
    v_lshlrev_b32 v0, 6, v0
    """)
    A(f"v_mov_b32 v1, s96\nbuffer_store_dword v1, v0, s[8:11], 0 offen offset:60")
    for i in range(n + 2):
        A(f"v_mov_b32 v1, s{74+2*i}\nbuffer_store_dword v1, v0, s[8:11], 0 offen offset:{4*i}")

def vr(a, n=1):
    return f"v{a}" if n == 1 else f"v[{a}:{a+n-1}]"

def srd(A, d, lo, hi, nbytes):
    A(f"s_mov_b32 s{d}, s{lo}\ns_and_b32 s{d+1}, s{hi}, 0xffff\ns_mov_b32 s{d+2}, {nbytes}\ns_mov_b32 s{d+3}, 0x20000")

SLOT = 49152
XOFF = 32768
def gen_k1(A):
    A.begin("qkv_kernel")
    A("""
    s_cmp_ge_u32 s2, 256
    s_cbranch_scc1 K1_end
    """)
    stamp(A, 0)
    A("""
    s_and_b32 s3, s2, 7
    s_lshr_b32 s4, s2, 3
    s_lshr_b32 s5, s3, 2
    s_mul_i32 s6, s5, 24
    s_add_u32 s8, s0, s6
    s_addc_u32 s9, s1, 0
    s_load_dwordx4 s[12:15], s[8:9], 0
    s_load_dwordx2 s[30:31], s[0:1], 64
    v_lshrrev_b32 v1, 6, v0
    s_bfe_u32 s6, s3, 0x10001
    s_and_b32 s7, s3, 1
    s_and_b32 s10, s4, 7
    s_lshr_b32 s11, s4, 3
    v_readfirstlane_b32 s28, v1
    s_lshl_b32 s6, s6, 3
    s_add_u32 s6, s6, s10
    s_lshl_b32 s7, s7, 2
    s_add_u32 s7, s7, s11
    v_and_b32 v1, 63, v0
    s_cmp_lt_u32 s28, 4
    s_cbranch_scc1 K1_consumer
    """)
    A("""
    s_sub_u32 s28, s28, 4
    s_lshl_b32 s29, s11, 1
    s_add_u32 s29, s29, s10
    s_cmp_ge_u32 s29, 10
    s_cselect_b32 s32, 10, 0
    s_sub_u32 s29, s29, s32
    s_mul_i32 s33, s7, 480
    s_lshl_b32 s34, s28, 9
    s_mov_b32 s35, 0x8888889
    """)
    for i in range(8):
        A(f"""
        v_add_u32 v2, s34, v1
        v_add_u32 v2, {i*64}, v2
        v_mul_hi_u32 v3, v2, s35
        v_mul_u32_u24 v4, 30, v3
        v_sub_u32 v4, v2, v4
        v_bfe_u32 v5, v3, 2, 2
        v_lshlrev_b32 v5, 3, v5
        v_bfe_u32 v6, v3, 4, 1
        v_lshl_add_u32 v5, v6, 2, v5
        v_and_b32 v6, 35, v3
        v_add_u32 v5, v5, v6
        v_mul_u32_u24 v5, 3840, v5
        v_lshl_add_u32 v5, v4, 4, v5
        v_add_u32 v5, s33, v5
        v_mov_b32 v6, 0x7ffff000
        v_cmp_gt_u32 vcc, 1920, v2
        s_nop 1
        v_cndmask_b32 v{8+i}, v6, v5, vcc
        """)
    A("""
    s_lshl_b32 s36, s6, 7
    s_lshl_b32 s37, s28, 5
    s_add_u32 s36, s36, s37
    v_lshrrev_b32 v2, 3, v1
    v_add_u32 v2, s36, v2
    s_movk_i32 s37, 1280
    v_mul_lo_u32 v2, v2, s37
    v_and_b32 v3, 7, v1
    v_lshrrev_b32 v4, 4, v1
    v_xor_b32 v3, v3, v4
    v_lshl_add_u32 v16, v3, 4, v2
    v_xor_b32 v3, 4, v3
    v_lshl_add_u32 v17, v3, 4, v2
    v_add_u32 v17, 10240, v17
    v_add_u32 v18, 20480, v16
    v_add_u32 v19, 20480, v17
    s_lshl_b32 s38, s28, 13
    s_lshl_b32 s39, s28, 12
    s_add_u32 s39, s39, %d
    s_mov_b32 s40, 0
    s_waitcnt lgkmcnt(0)
    """ % XOFF)
    srd(A, 16, 12, 13, 2621440)
    srd(A, 20, 14, 15, 2457600)
    def issue():
        A("""
        s_mul_i32 s41, s29, 245760
        s_lshl_b32 s42, s29, 7
        s_add_u32 s43, s40, s38
        s_add_u32 s44, s40, s39
        """)
        for i in range(8):
            A(f"s_add_u32 m0, s43, {i*1024}\ns_nop 0\nbuffer_load_dwordx4 v{8+i}, s[20:23], s41 offen lds")
            if i % 2 == 1:
                j = i // 2
                A(f"s_add_u32 m0, s44, {j*1024}\ns_nop 0\nbuffer_load_dwordx4 v{16+j}, s[16:19], s42 offen lds")
        A(f"""
        s_add_u32 s29, s29, 1
        s_cmp_eq_u32 s29, 10
        s_cselect_b32 s29, 0, s29
        s_add_u32 s40, s40, {SLOT}
        s_cmp_eq_u32 s40, {3*SLOT}
        s_cselect_b32 s40, 0, s40
        """)
    issue()
    A("s_mov_b32 s45, 0")
    A("K1_lloop:")
    issue()
    A("""
    s_waitcnt vmcnt(12)
    s_barrier
    s_add_u32 s45, s45, 1
    s_cmp_lt_u32 s45, 9
    s_cbranch_scc1 K1_lloop
    s_waitcnt vmcnt(0)
    s_barrier
    s_endpgm
    """)
    A("K1_consumer:")
    ACC = 0
    ACC = 8; WR = 128; XF = 168; AW0 = 184; AX0 = 185; AX1 = 186; AW = 187; AXa = 188; AXb = 189
    def acc(grp, t, rt): return ACC + ((grp * 5 + t) * 2 + rt) * 4
    A(f"""
    v_lshrrev_b32 v2, 2, v1
    v_mul_u32_u24 v2, 480, v2
    v_and_b32 v3, 3, v1
    v_mul_u32_u24 v3, 40, v3
    v_add_u32 v{AW0}, v2, v3
    v_and_b32 v2, 15, v1
    v_lshrrev_b32 v3, 4, v1
    v_lshrrev_b32 v4, 1, v2
    v_xor_b32 v3, v3, v4
    s_lshl_b32 s34, s28, 12
    s_add_u32 s34, s34, {XOFF}
    v_lshlrev_b32 v2, 7, v2
    v_add_u32 v2, s34, v2
    v_lshl_add_u32 v{AX0}, v3, 4, v2
    v_xor_b32 v3, 4, v3
    v_lshl_add_u32 v{AX1}, v3, 4, v2
    """)
    for r in range(ACC, XF + 16):
        A(f"v_mov_b32 v{r}, 0")
    A("s_mov_b32 s40, 0\ns_mov_b32 s45, 0")
    stamp(A, 1)
    A("K1_cloop:")
    A.lds_q = []
    A("s_barrier")
    if STAMP:
        for it, sl in ((0, 2), (1, 3), (5, 4)):
            A(f"s_cmp_lg_u32 s45, {it}\ns_cbranch_scc1 K1_st{it}")
            stamp(A, sl)
            A(f"K1_st{it}:")
    A(f"""
    v_add_u32 v{AW}, s40, v{AW0}
    v_add_u32 v{AXa}, s40, v{AX0}
    v_add_u32 v{AXb}, s40, v{AX1}
    """)
    units = [(sub, grp, t) for sub in range(2) for grp in range(3) for t in range(5)]
    def rd(u):
        sub, grp, t = units[u]
        b = WR + (u % 10) * 4
        for hf in range(2):
            off = (sub * 32 + hf * 16) * 480 + grp * 160 + 8 * t
            A.lds(f"ds_read_b64_tr_b16 {vr(b + 2*hf, 2)}, v{AW} offset:{off}", ('w', u))
    def rdx(sub):
        for rt in range(2):
            A.lds(f"ds_read_b128 {vr(XF + (sub*2+rt)*4, 4)}, v{AXa if sub == 0 else AXb} offset:{rt*2048}", ('x', sub))
    def mm(u, prev=False):
        sub, grp, t = units[u]
        b = WR + (u % 10) * 4
        if not prev:
            A.lds_wait(('x', sub))
            A.lds_wait(('w', u))
        for rt in range(2):
            a = acc(grp, t, rt)
            A(f"v_mfma_f32_16x16x32_bf16 {vr(a,4)}, {vr(b,4)}, {vr(XF + (sub*2+rt)*4, 4)}, {vr(a,4)}")
    P = 4
    rdx(0)
    nxt = 0
    for step in range(30):
        nread = 2 if step < 2 else 1
        for _ in range(nread):
            if nxt < 30:
                rd(nxt); nxt += 1
        if step == 8: rdx(1)
        if step < P: mm(30 - P + step, prev=True)
        else: mm(step - P)
    A.lds_drain()
    A(f"""
    s_add_u32 s40, s40, {SLOT}
    s_cmp_eq_u32 s40, {3*SLOT}
    s_cselect_b32 s40, 0, s40
    s_add_u32 s45, s45, 1
    s_cmp_lt_u32 s45, 10
    s_cbranch_scc1 K1_cloop
    """)
    for u in range(30 - P, 30): mm(u, prev=True)
    stamp(A, 5)
    A(f"""
    s_mul_i32 s32, s5, {QKV_BYTES}
    s_add_u32 s30, s30, s32
    s_addc_u32 s31, s31, 0
    """)
    srd(A, 24, 30, 31, QKV_BYTES)
    A(f"""
    v_and_b32 v2, 15, v1
    v_lshrrev_b32 v3, 4, v1
    s_lshl_b32 s32, s6, 3
    s_lshl_b32 s33, s28, 1
    s_add_u32 s32, s32, s33
    v_lshlrev_b32 v3, 7, v3
    v_add_u32 v3, s32, v3
    v_mul_u32_u24 v4, {QK_TILE}, v3
    v_mul_u32_u24 v5, {V_TILE}, v3
    v_lshl_add_u32 v6, v2, 3, v4
    v_lshl_add_u32 v4, v2, 4, v4
    v_lshl_add_u32 v5, v2, 4, v5
    v_mov_b32 v{WR+10}, 0x3f803f80
    v_mov_b32 v{WR+11}, 0x3f803f80
    v_mov_b32 v{WR+22}, 0x3f803f80
    v_mov_b32 v{WR+23}, 0x3f803f80
    s_mul_i32 s33, s7, 12
    """)
    for grp in range(3):
        A(f"""
        s_add_u32 s34, s33, {4*grp}
        s_mul_i32 s35, s34, {128*QK_TILE}
        s_sub_u32 s36, s34, 64
        s_mul_i32 s36, s36, {128*V_TILE}
        s_add_u32 s36, s36, {V_OFF}
        """)
        for rt in range(2):
            T = WR + rt * 12
            for t in range(5):
                a = acc(grp, t, rt)
                A(f"v_cvt_pk_bf16_f32 v{T+2*t}, v{a}, v{a+1}\nv_cvt_pk_bf16_f32 v{T+2*t+1}, v{a+2}, v{a+3}")
        A(f"s_cmp_ge_u32 s34, 64\ns_cbranch_scc1 K1_ev{grp}")
        for rt in range(2):
            T = WR + rt * 12
            A(f"buffer_store_dwordx4 {vr(T,4)}, v4, s[24:27], s35 offen offset:{rt*QK_TILE} sc1")
            A(f"buffer_store_dwordx4 {vr(T+4,4)}, v4, s[24:27], s35 offen offset:{rt*QK_TILE+256} sc1")
            A(f"buffer_store_dwordx2 {vr(T+8,2)}, v6, s[24:27], s35 offen offset:{rt*QK_TILE+512} sc1")
        A(f"s_branch K1_ed{grp}\nK1_ev{grp}:")
        for rt in range(2):
            T = WR + rt * 12
            for p in range(3):
                A(f"buffer_store_dwordx4 {vr(T+4*p,4)}, v5, s[24:27], s36 offen offset:{rt*V_TILE+256*p} sc1")
        A(f"K1_ed{grp}:\ns_nop 1")
    stamp(A, 6)
    stamp_flush(A, 7, 30, 0)
    A("K1_end:\ns_endpgm")
    A.end(192, 102 if STAMP else 48, 256, 512, 3 * SLOT)


BLK = 1536
L_BV = 0
L_AV = 16 * BLK
L_BK = 26 * BLK
L_AK = 42 * BLK
K2_LDS = 52 * BLK + 1024
SCALE_L2E = (20 ** -0.5) * math.log2(math.e)

def gen_k2(A):
    A.begin("attn_kernel")
    A("""
    s_cmp_ge_u32 s2, 256
    s_cbranch_scc1 K2_end
    """)
    stamp(A, 0)
    A("""
    s_load_dwordx2 s[30:31], s[0:1], 64
    s_and_b32 s3, s2, 31
    s_lshr_b32 s4, s2, 5
    v_lshrrev_b32 v1, 6, v0
    v_and_b32 v2, 63, v0
    s_nop 0
    v_readfirstlane_b32 s28, v1
    """)
    A(f"""
    v_and_b32 v3, 15, v2
    v_bfe_u32 v4, v2, 4, 1
    v_mul_u32_u24 v4, {QK_TILE}, v4
    v_lshl_add_u32 v5, v3, 4, v4
    v_lshl_add_u32 v6, v3, 3, v4
    v_add_u32 v6, 512, v6
    v_cmp_gt_u32 vcc, 32, v2
    v_add_u32 v7, 256, v5
    v_add_u32 v8, {2*QK_TILE}, v5
    v_add_u32 v9, {2*QK_TILE}, v7
    v_add_u32 v10, {2*QK_TILE}, v6
    v_cndmask_b32 v12, v7, v5, vcc
    v_cndmask_b32 v13, v8, v6, vcc
    v_cndmask_b32 v14, v10, v9, vcc
    """)
    A("s_mov_b32 s35, 0x15555556")
    for ty in range(3):
        A(f"""
        v_add_u32 v3, {ty*64}, v2
        v_mul_hi_u32 v4, v3, s35
        v_mul_u32_u24 v5, 12, v4
        v_sub_u32 v5, v3, v5
        v_lshrrev_b32 v6, 2, v5
        v_and_b32 v5, 3, v5
        v_lshl_add_u32 v5, v4, 2, v5
        v_lshrrev_b32 v7, 4, v5
        v_mul_u32_u24 v7, {V_TILE}, v7
        v_and_b32 v5, 15, v5
        v_lshl_add_u32 v7, v5, 4, v7
        v_lshl_add_u32 v{15+ty}, v6, 8, v7
        """)
    A(f"""
    s_waitcnt lgkmcnt(0)
    s_add_u32 s32, s30, {QKV_BYTES}
    s_addc_u32 s33, s31, 0
    """)
    srd(A, 16, 30, 31, QKV_BYTES)
    srd(A, 20, 32, 33, QKV_BYTES)
    A(f"""
    s_add_u32 s32, s30, {O_BASE}
    s_addc_u32 s33, s31, 0
    """)
    srd(A, 24, 32, 33, 2 * O_BYTES)
    A(f"""
    s_lshl_b32 s34, s3, 7
    s_lshl_b32 s35, s4, 4
    s_add_u32 s34, s34, s35
    s_lshl_b32 s36, s28, 2
    """)
    def dma_unit(srdn, areg, tile_bytes, reg_off, tile_delta, lds_base):
        A(f"""
        s_add_u32 s37, s34, s38
        s_add_i32 s37, s37, {tile_delta}
        s_mul_i32 s37, s37, {tile_bytes}
        s_add_u32 s37, s37, {reg_off}
        s_mul_i32 s39, s38, 768
        """)
        for ty in range(3):
            A(f"s_add_u32 m0, s39, {lds_base + ty*1024}\ns_nop 0\nbuffer_load_dwordx4 v{areg+ty}, s[{srdn}:{srdn+3}], s37 offen lds")
    A("s_mov_b32 s38, s36\ns_cmp_ge_u32 s28, 5\ns_cbranch_scc1 K2_noak")
    dma_unit(16, 12, QK_TILE, K_OFF, -4, L_AK)
    A("K2_noak:\ns_cmp_lt_u32 s28, 3\ns_cbranch_scc1 K2_noav\ns_sub_u32 s38, s36, 12")
    dma_unit(16, 15, V_TILE, V_OFF, -4, L_AV)
    A("K2_noav:\ns_mov_b32 s38, s36")
    dma_unit(20, 12, QK_TILE, K_OFF, -16, L_BK)
    dma_unit(20, 15, V_TILE, V_OFF, -16, L_BV)
    QA = 20; QB = 28
    A(f"""
    v_and_b32 v3, 15, v2
    v_bfe_u32 v4, v2, 4, 1
    v_lshrrev_b32 v5, 5, v2
    s_lshl_b32 s37, s28, 1
    s_add_u32 s37, s37, s34
    v_add_u32 v4, s37, v4
    v_mul_u32_u24 v4, {QK_TILE}, v4
    v_lshl_add_u32 v6, v3, 4, v4
    v_lshl_add_u32 v6, v5, 8, v6
    v_lshl_add_u32 v7, v3, 3, v4
    v_mov_b32 v8, 0x7ffff000
    v_cmp_gt_u32 vcc, 32, v2
    v_mov_b32 v{QA+6}, 0
    v_mov_b32 v{QA+7}, 0
    v_cndmask_b32 v7, v8, v7, vcc
    v_mov_b32 v{QB+6}, 0
    v_mov_b32 v{QB+7}, 0
    buffer_load_dwordx4 {vr(QA,4)}, v6, s[16:19], 0 offen
    buffer_load_dwordx2 {vr(QA+4,2)}, v7, s[16:19], 0 offen offset:512
    buffer_load_dwordx4 {vr(QB,4)}, v6, s[20:23], 0 offen
    buffer_load_dwordx2 {vr(QB+4,2)}, v7, s[20:23], 0 offen offset:512
    """)
    MS = 40
    A(f"""
    v_and_b32 v9, 31, v2
    v_lshlrev_b32 v10, 2, v5
    v_sub_u32 v10, v9, v10
    """)
    for r in range(16):
        kc = (r & 3) + 8 * (r >> 2)
        A(f"v_cmp_le_i32 s[{MS+2*r}:{MS+2*r+1}], {kc}, v10")
    PM = 36
    A("v_mov_b32 v11, 0xffff\nv_mov_b32 v3, 0xffff0000\nv_mov_b32 v4, 0")
    for j in range(8):
        A(f"v_cndmask_b32 v6, v4, v11, s[{MS+4*j}:{MS+4*j+1}]")
        A(f"v_cndmask_b32 v7, v4, v3, s[{MS+4*j+2}:{MS+4*j+3}]")
        A(f"v_or_b32 v{PM+j}, v6, v7")
    AK = 44; AV = 45
    A(f"""
    s_mul_i32 s37, s28, {BLK}
    v_lshlrev_b32 v{AK}, 4, v2
    v_add_u32 v{AK}, s37, v{AK}
    v_add_u32 v{AK}, {L_BK}, v{AK}
    v_and_b32 v3, 3, v2
    v_bfe_u32 v4, v2, 2, 2
    v_bfe_u32 v6, v2, 4, 1
    v_lshrrev_b32 v7, 1, v3
    v_lshlrev_b32 v7, 6, v7
    v_and_b32 v8, 1, v3
    v_lshl_add_u32 v7, v8, 3, v7
    v_cmp_eq_u32 vcc, 0, v3
    v_mov_b32 v8, 136
    v_mov_b32 v11, 128
    v_cndmask_b32 v8, v8, v11, vcc
    v_cmp_eq_u32 vcc, 0, v6
    s_nop 1
    v_cndmask_b32 v7, v8, v7, vcc
    v_lshl_add_u32 v7, v4, 4, v7
    v_mul_u32_u24 v8, 192, v5
    v_add_u32 v7, v7, v8
    v_add_u32 v{AV}, s37, v7
    """)
    OA = 46
    A(f"""
    s_lshl_b32 s37, s4, 4
    s_lshl_b32 s38, s28, 1
    s_add_u32 s37, s37, s38
    v_bfe_u32 v3, v2, 4, 1
    v_add_u32 v3, s37, v3
    v_mul_u32_u24 v3, 20480, v3
    v_and_b32 v4, 15, v2
    v_lshl_add_u32 v3, v4, 4, v3
    s_mul_i32 s38, s3, 5
    v_add_u32 v4, s38, v5
    v_lshrrev_b32 v6, 1, v4
    v_and_b32 v7, 1, v4
    v_lshl_add_u32 v6, v6, 8, v3
    v_lshl_add_u32 v{OA}, v7, 3, v6
    v_add_u32 v{OA+1}, 256, v{OA}
    v_add_u32 v6, 512, v{OA}
    v_mov_b32 v8, 0x7ffff000
    v_cmp_gt_u32 vcc, 32, v2
    s_mov_b32 s72, {f32bits(SCALE_L2E)}
    s_mov_b32 s73, 0xff800000
    v_cndmask_b32 v{OA+2}, v8, v6, vcc
    """)
    stamp(A, 1)
    A("s_waitcnt vmcnt(0)\ns_barrier")
    stamp(A, 2)
    S = 64
    KF = 208
    VF = 224
    O = 240
    M = 50; MC = 51; T0 = 52; T1 = 53
    def qk(nblk, lds_k, Q, skipcheck):
        reads = [(b, i) for b in range(nblk) for i in range(2)]
        def rd(n):
            b, i = reads[n]
            A.lds(f"ds_read_b128 {vr(KF + (n % 4)*4, 4)}, v{AK} offset:{lds_k - L_BK + b*BLK + i*1024}", ('k', n))
        for n in range(min(3, len(reads))): rd(n)
        for n, (b, i) in enumerate(reads):
            if n + 3 < len(reads): rd(n + 3)
            A.lds_wait(('k', n))
            c = "0" if i == 0 else vr(S + 16*b, 16)
            A(f"v_mfma_f32_32x32x16_bf16 {vr(S+16*b,16)}, {vr(KF+(n%4)*4,4)}, {vr(Q+4*i,4)}, {c}")
    def softmax(regs):
        A(f"v_max3_f32 v{M}, v{regs[0]}, v{regs[1]}, v{regs[2]}")
        A(f"v_max3_f32 v{T0}, v{regs[3]}, v{regs[4]}, v{regs[5]}")
        rest = regs[6:]
        i = 0; tog = 0
        while i < len(rest):
            d = M if tog == 0 else T0
            A(f"v_max3_f32 v{d}, v{d}, v{rest[i]}, v{rest[i+1]}")
            i += 2; tog ^= 1
        A(f"""
        v_max_f32 v{M}, v{M}, v{T0}
        v_mov_b32 v{T0}, v{M}
        s_nop 1
        v_permlane32_swap_b32 v{M}, v{T0}
        s_nop 1
        v_max_f32 v{M}, v{M}, v{T0}
        v_mul_f32 v{MC}, s72, v{M}
        """)
        for r in regs:
            A(f"v_fma_f32 v{r}, v{r}, s72, -v{MC}")
        for r in regs:
            A(f"v_exp_f32 v{r}, v{r}")
        A("s_nop 0")
        for i in range(0, len(regs), 8):
            for j in range(4):
                A(f"v_cvt_pk_bf16_f32 v{regs[i]+j}, v{regs[i+2*j]}, v{regs[i+2*j+1]}")
    def pv(blocks, lds_v):
        reads = [(bi, i) for bi in range(len(blocks)) for i in range(2)]
        def rd(n):
            bi, i = reads[n]
            for t in range(2):
                A.lds(f"ds_read_b64_tr_b16 {vr(VF + (n % 4)*4 + 2*t, 2)}, v{AV} offset:{lds_v + blocks[bi][0]*BLK + (2*i+t)*384}", ('v', n))
        for n in range(min(3, len(reads))): rd(n)
        for n, (bi, i) in enumerate(reads):
            if n + 3 < len(reads): rd(n + 3)
            A.lds_wait(('v', n))
            c = "0" if n == 0 else vr(O, 16)
            A(f"v_mfma_f32_32x32x16_bf16 {vr(O,16)}, {vr(VF+(n%4)*4,4)}, {vr(blocks[bi][1]+8*i,4)}, {c}")
    def finish(osoff):
        A(f"s_nop 7\ns_nop 3\nv_rcp_f32 v{T0}, v{O+12}\ns_nop 0")
        for r in range(12):
            A(f"v_mul_f32 v{O+r}, v{O+r}, v{T0}")
        for j in range(6):
            A(f"v_cvt_pk_bf16_f32 v{O+j}, v{O+2*j}, v{O+2*j+1}")
        A(f"s_mov_b32 s37, {osoff}")
        for j in range(3):
            A(f"buffer_store_dwordx2 {vr(O+2*j,2)}, v{OA+j}, s[24:27], s37 offen sc1")
    def merge_split(first, last):
        pass
    qk(2, L_AK + BLK, QA, None)
    A("s_nop 7\ns_nop 3")
    A(f"s_or_b32 s37, s4, s28\ns_cmp_lg_u32 s37, 0\ns_cbranch_scc1 K2_a_ok")
    for r in range(16): A(f"v_mov_b32 v{S+r}, s73")
    A("K2_a_ok:")
    for r in range(16):
        A(f"v_cndmask_b32 v{S+r}, v{S+r}, v{S+16+r}, s[{MS+2*r}:{MS+2*r+1}]")
    A(f"v_mov_b32 v{T1}, s73")
    for r in range(16):
        kc = (r & 3) + 8 * (r >> 2)
        A(f"v_subrev_u32 v{T0}, {kc}, v10\nv_and_b32 v{T0}, 17, v{T0}\nv_cmp_eq_u32 vcc, 0, v{T0}\ns_nop 1\nv_cndmask_b32 v{S+r}, v{T1}, v{S+r}, vcc")
    softmax([S + r for r in range(16)])
    for j in range(8):
        p = S + (j >> 2) * 8 + (j & 3)
        A(f"v_and_b32 v{p+16}, v{p}, v{PM+j}")
        A(f"v_bfi_b32 v{p}, v{PM+j}, 0, v{p}")
    A("s_nop 1")
    pv([(1, S), (2, S + 16)], L_AV)
    finish(0)
    stamp(A, 3)
    qk(9, L_BK, QB, None)
    A("s_nop 7\ns_nop 3")
    A("s_cmp_lg_u32 s4, 0\ns_cbranch_scc1 K2_b_ok")
    for b in range(8):
        A(f"s_add_u32 s37, s28, {b}\ns_cmp_ge_u32 s37, 8\ns_cbranch_scc1 K2_b_ok")
        for r in range(16): A(f"v_mov_b32 v{S+16*b+r}, s73")
    A("K2_b_ok:")
    for r in range(16):
        A(f"v_cndmask_b32 v{S+r}, v{S+r}, v{S+128+r}, s[{MS+2*r}:{MS+2*r+1}]")
    stamp(A, 4)
    softmax([S + r for r in range(128)])
    for j in range(8):
        p = S + (j >> 2) * 8 + (j & 3)
        A(f"v_and_b32 v{p+128}, v{p}, v{PM+j}")
        A(f"v_bfi_b32 v{p}, v{PM+j}, 0, v{p}")
    A("s_nop 1")
    stamp(A, 5)
    pv([(b, S + 16*b) for b in range(9)], L_BV)
    finish(O_BYTES)
    stamp(A, 6)
    stamp_flush(A, 7, 30, 1)
    A("K2_end:\ns_endpgm")
    A.end(256, 102, 256, 512, K2_LDS)

def gen_k3(A):
    A.begin("proj_kernel")
    A("""
    s_cmp_ge_u32 s2, 256
    s_cbranch_scc1 K3_end
    """)
    stamp(A, 0)
    A("""
    s_and_b32 s3, s2, 7
    s_lshr_b32 s4, s2, 3
    s_lshr_b32 s5, s3, 2
    s_mul_i32 s6, s5, 24
    s_add_u32 s8, s0, s6
    s_addc_u32 s9, s1, 0
    s_load_dwordx2 s[12:13], s[8:9], 16
    s_load_dwordx2 s[14:15], s[0:1], 48
    s_load_dwordx2 s[30:31], s[0:1], 64
    v_lshrrev_b32 v1, 6, v0
    s_bfe_u32 s6, s3, 0x10001
    s_and_b32 s7, s3, 1
    s_and_b32 s10, s4, 7
    s_lshr_b32 s11, s4, 3
    v_readfirstlane_b32 s28, v1
    s_lshl_b32 s6, s6, 3
    s_add_u32 s6, s6, s10
    s_lshl_b32 s7, s7, 2
    s_add_u32 s7, s7, s11
    v_and_b32 v1, 63, v0
    s_mul_i32 s33, s7, 160
    s_mov_b32 s35, 0x1999999a
    """)
    WA = 2
    for i in range(5):
        A(f"""
        v_add_u32 v8, {i*64}, v1
        v_mul_hi_u32 v9, v8, s35
        v_mul_u32_u24 v10, 10, v9
        v_sub_u32 v10, v8, v10
        v_bfe_u32 v11, v9, 2, 2
        v_lshlrev_b32 v11, 3, v11
        v_bfe_u32 v12, v9, 4, 1
        v_lshl_add_u32 v11, v12, 2, v11
        v_and_b32 v12, 3, v9
        v_add_u32 v11, v11, v12
        v_mul_u32_u24 v11, 1280, v11
        v_lshl_add_u32 v11, v10, 4, v11
        v_add_u32 v{WA+i}, s33, v11
        """)
    A(f"""
    s_lshl_b32 s32, s6, 3
    s_lshl_b32 s34, s28, 1
    s_add_u32 s32, s32, s34
    s_mul_i32 s36, s32, 20480
    s_mul_i32 s37, s5, {O_BYTES}
    s_add_u32 s36, s36, s37
    v_lshlrev_b32 v7, 4, v1
    v_add_u32 v7, s36, v7
    s_waitcnt lgkmcnt(0)
    s_add_u32 s30, s30, {O_BASE}
    s_addc_u32 s31, s31, 0
    """)
    srd(A, 16, 12, 13, 819200)
    srd(A, 20, 30, 31, 2 * O_BYTES)
    srd(A, 24, 14, 15, 2048 * 1280 * 2)
    OF = 64
    ACC = 16
    WR = 224
    def of(ks, rt): return OF + (ks * 2 + rt) * 4
    A("s_mul_i32 s38, s28, 40960\ns_mul_i32 s39, s28, 5120")
    for p in range(5):
        A(f"s_add_u32 s40, s38, {p*4*40960}")
        for i in range(5):
            A(f"s_add_u32 m0, s39, {p*4*5120 + i*1024}\ns_nop 0\nbuffer_load_dwordx4 v{WA+i}, s[16:19], s40 offen lds")
        for ks in range(4*p, 4*p+4):
            for rt in range(2):
                off = rt * 20480 + ks * 1024
                A(f"s_mov_b32 s41, {off}\nbuffer_load_dwordx4 {vr(of(ks,rt),4)}, v7, s[20:23], s41 offen")
    AW = 8
    A(f"""
    v_lshrrev_b32 v9, 2, v1
    v_mul_u32_u24 v9, 160, v9
    v_and_b32 v10, 3, v1
    v_mul_u32_u24 v10, 40, v10
    v_add_u32 v{AW}, v9, v10
    v_add_u32 v{AW+1}, 51200, v{AW}
    """)
    for r in range(40): A(f"v_mov_b32 v{ACC+r}, 0")
    stamp(A, 1)
    for p in range(5):
        A(f"s_waitcnt vmcnt({13*(4-p)})\ns_barrier")
        if p == 0: stamp(A, 2)
        units = [(ks, t) for ks in range(4*p, 4*p+4) for t in range(5)]
        def rd(n):
            ks, t = units[n]
            b = WR + (n % 8) * 4
            for hf in range(2):
                off = (ks * 32 + hf * 16) * 160 + 8 * t
                a = AW
                if off >= 51200: off -= 51200; a = AW + 1
                A.lds(f"ds_read_b64_tr_b16 {vr(b+2*hf,2)}, v{a} offset:{off}", ('w', n))
        LA = 5
        for n in range(LA): rd(n)
        for n, (ks, t) in enumerate(units):
            if n + LA < len(units): rd(n + LA)
            A.lds_wait(('w', n))
            b = WR + (n % 8) * 4
            for rt in range(2):
                a = ACC + (t * 2 + rt) * 4
                A(f"v_mfma_f32_16x16x32_bf16 {vr(a,4)}, {vr(b,4)}, {vr(of(ks,rt),4)}, {vr(a,4)}")
    stamp(A, 3)
    A(f"""
    v_and_b32 v2, 15, v1
    v_lshrrev_b32 v3, 4, v1
    s_lshl_b32 s32, s6, 7
    s_lshl_b32 s34, s28, 5
    s_add_u32 s32, s32, s34
    v_add_u32 v2, s32, v2
    v_mul_u32_u24 v2, 2560, v2
    v_mul_u32_u24 v3, 40, v3
    v_add_u32 v2, v2, v3
    s_mul_i32 s34, s5, 1280
    s_add_u32 s34, s34, s33
    v_add_u32 v2, s34, v2
    v_add_u32 v3, 40960, v2
    s_nop 3
    """)
    for rt in range(2):
        T = OF + rt * 12
        for t in range(5):
            a = ACC + (t * 2 + rt) * 4
            A(f"v_cvt_pk_bf16_f32 v{T+2*t}, v{a}, v{a+1}\nv_cvt_pk_bf16_f32 v{T+2*t+1}, v{a+2}, v{a+3}")
        A(f"buffer_store_dwordx4 {vr(T,4)}, v{2+rt}, s[24:27], 0 offen")
        A(f"buffer_store_dwordx4 {vr(T+4,4)}, v{2+rt}, s[24:27], 0 offen offset:16")
        A(f"buffer_store_dwordx2 {vr(T+8,2)}, v{2+rt}, s[24:27], 0 offen offset:32")
    stamp(A, 4)
    stamp_flush(A, 5, 30, 2)
    A("K3_end:\ns_endpgm")
    A.end(256, 102, 256, 256, 102400)

if __name__ == '__main__':
    if '--stamp' in sys.argv: STAMP = True
    for a in sys.argv[1:]:
        if a.startswith('--dbg='): DBG.update(a[6:].split(','))
    A = Asm()
    gen_k1(A)
    gen_k2(A)
    gen_k3(A)
    sys.stdout.write(A.text())
```

```python
import sys, math, struct

REF = 'concat_heads__sliding_local_dilated__sliding_block__prompt.s.ref'
HDR = [l for l in open(REF).read().split('\n')
       if l.startswith(';') and '@launch' not in l and 'Override' not in l and 'grid=ceil' not in l]

QK_TILE = 640
V_TILE = 768
Q_OFF = 0
K_OFF = 32 * 128 * QK_TILE
V_OFF = 2 * K_OFF
QKV_BYTES = V_OFF + 32 * 128 * V_TILE
O_BASE = 2 * QKV_BYTES
O_BYTES = 2048 * 640 * 2

def f32bits(x): return struct.unpack('<I', struct.pack('<f', x))[0]

class Asm:
    def __init__(self):
        self.out = []
        self.kernels = []
        self.launches = []
        self.lds_q = []
    def __call__(self, s):
        for l in s.split('\n'):
            l = l.strip()
            if 'noload' in DBG and l.endswith(' lds'): continue
            if 'nomfma' in DBG and l.startswith('v_mfma'): continue
            if 'nods' in DBG and l.startswith('ds_read'): continue
            if 'nostore' in DBG and l.startswith('buffer_store') and 's[8:11]' not in l: continue
            if l: self.out.append('    ' + l if not l.endswith(':') else l)
    def begin(self, name):
        self.out.append(f".globl {name}\n.p2align 8\n.type {name},@function\n{name}:")
        self.cur = name
    def end(self, vgpr, sgpr, grid, block, lds):
        self.kernels.append((self.cur, vgpr, sgpr))
        self.launches.append((self.cur, grid, block, lds))
    def lds(self, s, tag):
        self(s); self.lds_q.append(tag)
    def lds_wait(self, tag):
        idx = [i for i, t in enumerate(self.lds_q) if t == tag]
        if not idx: return
        n = len(self.lds_q) - 1 - idx[-1]
        assert n <= 15, n
        self(f"s_waitcnt lgkmcnt({n})")
        self.lds_q = self.lds_q[idx[-1] + 1:]
    def lds_drain(self):
        self("s_waitcnt lgkmcnt(0)"); self.lds_q = []
    def text(self, order=None):
        o = list(HDR)
        ls = self.launches if order is None else [l for n in order for l in self.launches if l[0] == n]
        for (n, g, b, lds) in ls:
            o.append(f"; @launch kernel={n} grid=({g},1,1) block=({b},1,1) lds={lds}")
        o.append('.amdgcn_target "amdgcn-amd-amdhsa--gfx950"\n.text')
        o += self.out
        o.append('.section .rodata,"a"')
        for (n, vgpr, sgpr) in self.kernels:
            o.append(f""".p2align 6
.amdhsa_kernel {n}
  .amdhsa_next_free_vgpr {vgpr}
  .amdhsa_next_free_sgpr {sgpr}
  .amdhsa_accum_offset {(vgpr + 3) // 4 * 4}
  .amdhsa_group_segment_fixed_size 0
  .amdhsa_kernarg_size 72
  .amdhsa_user_sgpr_count 2
  .amdhsa_user_sgpr_kernarg_segment_ptr 1
  .amdhsa_system_sgpr_workgroup_id_x 1
.end_amdhsa_kernel""")
        return '\n'.join(o) + '\n'

STAMP = False
DBG = set()
STAMP_OFF = 30 << 20
def stamp(A, i):
    if STAMP:
        A(f"s_memtime s[{74+2*i}:{75+2*i}]")
        if i == 0: A("s_memrealtime s[96:97]")
def stamp_flush(A, n, wsreg, kidx):
    if not STAMP: return
    A(f"""
    s_waitcnt lgkmcnt(0) vmcnt(0)
    s_memtime s[{74+2*n}:{75+2*n}]
    s_memrealtime s[{76+2*n}:{77+2*n}]
    s_load_dwordx2 s[4:5], s[0:1], 64
    s_waitcnt lgkmcnt(0)
    s_add_u32 s4, s4, {STAMP_OFF + kidx*262144}
    s_addc_u32 s5, s5, 0
    s_mov_b32 s8, s4
    s_and_b32 s9, s5, 0xffff
    s_mov_b32 s10, 262144
    s_mov_b32 s11, 0x20000
    v_lshrrev_b32 v0, 6, v0
    s_lshl_b32 s6, s2, 3
    v_add_u32 v0, s6, v0
    v_lshlrev_b32 v0, 6, v0
    """)
    A(f"v_mov_b32 v1, s96\nbuffer_store_dword v1, v0, s[8:11], 0 offen offset:60")
    for i in range(n + 2):
        A(f"v_mov_b32 v1, s{74+2*i}\nbuffer_store_dword v1, v0, s[8:11], 0 offen offset:{4*i}")

def vr(a, n=1):
    return f"v{a}" if n == 1 else f"v[{a}:{a+n-1}]"

def srd(A, d, lo, hi, nbytes):
    A(f"s_mov_b32 s{d}, s{lo}\ns_and_b32 s{d+1}, s{hi}, 0xffff\ns_mov_b32 s{d+2}, {nbytes}\ns_mov_b32 s{d+3}, 0x20000")

SLOT = 49152
XOFF = 32768
def gen_k1(A):
    A.begin("qkv_kernel")
    A("""
    s_cmp_ge_u32 s2, 256
    s_cbranch_scc1 K1_end
    """)
    stamp(A, 0)
    A("""
    s_and_b32 s3, s2, 7
    s_lshr_b32 s4, s2, 3
    s_lshr_b32 s5, s3, 2
    s_mul_i32 s6, s5, 24
    s_add_u32 s8, s0, s6
    s_addc_u32 s9, s1, 0
    s_load_dwordx4 s[12:15], s[8:9], 0
    s_load_dwordx2 s[30:31], s[0:1], 64
    v_lshrrev_b32 v1, 6, v0
    s_bfe_u32 s6, s3, 0x10001
    s_and_b32 s7, s3, 1
    s_and_b32 s10, s4, 7
    s_lshr_b32 s11, s4, 3
    v_readfirstlane_b32 s28, v1
    s_lshl_b32 s6, s6, 3
    s_add_u32 s6, s6, s10
    s_lshl_b32 s7, s7, 2
    s_add_u32 s7, s7, s11
    v_and_b32 v1, 63, v0
    s_cmp_lt_u32 s28, 4
    s_cbranch_scc1 K1_consumer
    """)
    A("""
    s_sub_u32 s28, s28, 4
    s_lshl_b32 s29, s11, 1
    s_add_u32 s29, s29, s10
    s_cmp_ge_u32 s29, 10
    s_cselect_b32 s32, 10, 0
    s_sub_u32 s29, s29, s32
    s_mul_i32 s33, s7, 480
    s_lshl_b32 s34, s28, 9
    s_mov_b32 s35, 0x8888889
    """)
    for i in range(8):
        A(f"""
        v_add_u32 v2, s34, v1
        v_add_u32 v2, {i*64}, v2
        v_mul_hi_u32 v3, v2, s35
        v_mul_u32_u24 v4, 30, v3
        v_sub_u32 v4, v2, v4
        v_bfe_u32 v5, v3, 2, 2
        v_lshlrev_b32 v5, 3, v5
        v_bfe_u32 v6, v3, 4, 1
        v_lshl_add_u32 v5, v6, 2, v5
        v_and_b32 v6, 35, v3
        v_add_u32 v5, v5, v6
        v_mul_u32_u24 v5, 3840, v5
        v_lshl_add_u32 v5, v4, 4, v5
        v_add_u32 v5, s33, v5
        v_mov_b32 v6, 0x7ffff000
        v_cmp_gt_u32 vcc, 1920, v2
        s_nop 1
        v_cndmask_b32 v{8+i}, v6, v5, vcc
        """)
    A("""
    s_lshl_b32 s36, s6, 7
    s_lshl_b32 s37, s28, 5
    s_add_u32 s36, s36, s37
    v_lshrrev_b32 v2, 3, v1
    v_add_u32 v2, s36, v2
    s_movk_i32 s37, 1280
    v_mul_lo_u32 v2, v2, s37
    v_and_b32 v3, 7, v1
    v_lshrrev_b32 v4, 4, v1
    v_xor_b32 v3, v3, v4
    v_lshl_add_u32 v16, v3, 4, v2
    v_xor_b32 v3, 4, v3
    v_lshl_add_u32 v17, v3, 4, v2
    v_add_u32 v17, 10240, v17
    v_add_u32 v18, 20480, v16
    v_add_u32 v19, 20480, v17
    s_lshl_b32 s38, s28, 13
    s_lshl_b32 s39, s28, 12
    s_add_u32 s39, s39, %d
    s_mov_b32 s40, 0
    s_waitcnt lgkmcnt(0)
    """ % XOFF)
    srd(A, 16, 12, 13, 2621440)
    srd(A, 20, 14, 15, 2457600)
    def issue():
        A("""
        s_mul_i32 s41, s29, 245760
        s_lshl_b32 s42, s29, 7
        s_add_u32 s43, s40, s38
        s_add_u32 s44, s40, s39
        """)
        for i in range(8):
            A(f"s_add_u32 m0, s43, {i*1024}\ns_nop 0\nbuffer_load_dwordx4 v{8+i}, s[20:23], s41 offen lds")
            if i % 2 == 1:
                j = i // 2
                A(f"s_add_u32 m0, s44, {j*1024}\ns_nop 0\nbuffer_load_dwordx4 v{16+j}, s[16:19], s42 offen lds")
        A(f"""
        s_add_u32 s29, s29, 1
        s_cmp_eq_u32 s29, 10
        s_cselect_b32 s29, 0, s29
        s_add_u32 s40, s40, {SLOT}
        s_cmp_eq_u32 s40, {3*SLOT}
        s_cselect_b32 s40, 0, s40
        """)
    issue()
    A("s_mov_b32 s45, 0")
    A("K1_lloop:")
    issue()
    A("""
    s_waitcnt vmcnt(12)
    s_barrier
    s_add_u32 s45, s45, 1
    s_cmp_lt_u32 s45, 9
    s_cbranch_scc1 K1_lloop
    s_waitcnt vmcnt(0)
    s_barrier
    s_endpgm
    """)
    A("K1_consumer:")
    ACC = 0
    ACC = 8; WR = 128; XF = 168; AW0 = 184; AX0 = 185; AX1 = 186; AW = 187; AXa = 188; AXb = 189
    def acc(grp, t, rt): return ACC + ((grp * 5 + t) * 2 + rt) * 4
    A(f"""
    v_lshrrev_b32 v2, 2, v1
    v_mul_u32_u24 v2, 480, v2
    v_and_b32 v3, 3, v1
    v_mul_u32_u24 v3, 40, v3
    v_add_u32 v{AW0}, v2, v3
    v_and_b32 v2, 15, v1
    v_lshrrev_b32 v3, 4, v1
    v_lshrrev_b32 v4, 1, v2
    v_xor_b32 v3, v3, v4
    s_lshl_b32 s34, s28, 12
    s_add_u32 s34, s34, {XOFF}
    v_lshlrev_b32 v2, 7, v2
    v_add_u32 v2, s34, v2
    v_lshl_add_u32 v{AX0}, v3, 4, v2
    v_xor_b32 v3, 4, v3
    v_lshl_add_u32 v{AX1}, v3, 4, v2
    """)
    for r in range(ACC, XF + 16):
        A(f"v_mov_b32 v{r}, 0")
    A("s_mov_b32 s40, 0\ns_mov_b32 s45, 0")
    stamp(A, 1)
    A("K1_cloop:")
    A.lds_q = []
    A("s_barrier")
    if STAMP:
        for it, sl in ((0, 2), (1, 3), (5, 4)):
            A(f"s_cmp_lg_u32 s45, {it}\ns_cbranch_scc1 K1_st{it}")
            stamp(A, sl)
            A(f"K1_st{it}:")
    A(f"""
    v_add_u32 v{AW}, s40, v{AW0}
    v_add_u32 v{AXa}, s40, v{AX0}
    v_add_u32 v{AXb}, s40, v{AX1}
    """)
    units = [(sub, grp, t) for sub in range(2) for grp in range(3) for t in range(5)]
    def rd(u):
        sub, grp, t = units[u]
        b = WR + (u % 10) * 4
        for hf in range(2):
            off = (sub * 32 + hf * 16) * 480 + grp * 160 + 8 * t
            A.lds(f"ds_read_b64_tr_b16 {vr(b + 2*hf, 2)}, v{AW} offset:{off}", ('w', u))
    def rdx(sub):
        for rt in range(2):
            A.lds(f"ds_read_b128 {vr(XF + (sub*2+rt)*4, 4)}, v{AXa if sub == 0 else AXb} offset:{rt*2048}", ('x', sub))
    def mm(u, prev=False):
        sub, grp, t = units[u]
        b = WR + (u % 10) * 4
        if not prev:
            A.lds_wait(('x', sub))
            A.lds_wait(('w', u))
        for rt in range(2):
            a = acc(grp, t, rt)
            A(f"v_mfma_f32_16x16x32_bf16 {vr(a,4)}, {vr(b,4)}, {vr(XF + (sub*2+rt)*4, 4)}, {vr(a,4)}")
    P = 4
    rdx(0)
    nxt = 0
    for step in range(30):
        nread = 2 if step < 2 else 1
        for _ in range(nread):
            if nxt < 30:
                rd(nxt); nxt += 1
        if step == 8: rdx(1)
        if step < P: mm(30 - P + step, prev=True)
        else: mm(step - P)
    A.lds_drain()
    A(f"""
    s_add_u32 s40, s40, {SLOT}
    s_cmp_eq_u32 s40, {3*SLOT}
    s_cselect_b32 s40, 0, s40
    s_add_u32 s45, s45, 1
    s_cmp_lt_u32 s45, 10
    s_cbranch_scc1 K1_cloop
    """)
    for u in range(30 - P, 30): mm(u, prev=True)
    stamp(A, 5)
    A(f"""
    s_mul_i32 s32, s5, {QKV_BYTES}
    s_add_u32 s30, s30, s32
    s_addc_u32 s31, s31, 0
    """)
    srd(A, 24, 30, 31, QKV_BYTES)
    A(f"""
    v_and_b32 v2, 15, v1
    v_lshrrev_b32 v3, 4, v1
    s_lshl_b32 s32, s6, 3
    s_lshl_b32 s33, s28, 1
    s_add_u32 s32, s32, s33
    v_lshlrev_b32 v3, 7, v3
    v_add_u32 v3, s32, v3
    v_mul_u32_u24 v4, {QK_TILE}, v3
    v_mul_u32_u24 v5, {V_TILE}, v3
    v_lshl_add_u32 v6, v2, 3, v4
    v_lshl_add_u32 v4, v2, 4, v4
    v_lshl_add_u32 v5, v2, 4, v5
    v_mov_b32 v{WR+10}, 0x3f803f80
    v_mov_b32 v{WR+11}, 0x3f803f80
    v_mov_b32 v{WR+22}, 0x3f803f80
    v_mov_b32 v{WR+23}, 0x3f803f80
    s_mul_i32 s33, s7, 12
    """)
    for grp in range(3):
        A(f"""
        s_add_u32 s34, s33, {4*grp}
        s_mul_i32 s35, s34, {128*QK_TILE}
        s_sub_u32 s36, s34, 64
        s_mul_i32 s36, s36, {128*V_TILE}
        s_add_u32 s36, s36, {V_OFF}
        """)
        for rt in range(2):
            T = WR + rt * 12
            for t in range(5):
                a = acc(grp, t, rt)
                A(f"v_cvt_pk_bf16_f32 v{T+2*t}, v{a}, v{a+1}\nv_cvt_pk_bf16_f32 v{T+2*t+1}, v{a+2}, v{a+3}")
        A(f"s_cmp_ge_u32 s34, 64\ns_cbranch_scc1 K1_ev{grp}")
        for rt in range(2):
            T = WR + rt * 12
            A(f"buffer_store_dwordx4 {vr(T,4)}, v4, s[24:27], s35 offen offset:{rt*QK_TILE} sc1")
            A(f"buffer_store_dwordx4 {vr(T+4,4)}, v4, s[24:27], s35 offen offset:{rt*QK_TILE+256} sc1")
            A(f"buffer_store_dwordx2 {vr(T+8,2)}, v6, s[24:27], s35 offen offset:{rt*QK_TILE+512} sc1")
        A(f"s_branch K1_ed{grp}\nK1_ev{grp}:")
        for rt in range(2):
            T = WR + rt * 12
            for p in range(3):
                A(f"buffer_store_dwordx4 {vr(T+4*p,4)}, v5, s[24:27], s36 offen offset:{rt*V_TILE+256*p} sc1")
        A(f"K1_ed{grp}:\ns_nop 1")
    stamp(A, 6)
    stamp_flush(A, 7, 30, 0)
    A("K1_end:\ns_endpgm")
    A.end(192, 102 if STAMP else 48, 256, 512, 3 * SLOT)


BLK = 1536
L_BV = 0
L_AV = 16 * BLK
L_BK = 26 * BLK
L_AK = 42 * BLK
K2_LDS = 52 * BLK + 1024
SCALE_L2E = (20 ** -0.5) * math.log2(math.e)

def gen_k2(A):
    A.begin("attn_kernel")
    A("""
    s_cmp_ge_u32 s2, 256
    s_cbranch_scc1 K2_end
    """)
    stamp(A, 0)
    A("""
    s_load_dwordx2 s[30:31], s[0:1], 64
    s_and_b32 s3, s2, 31
    s_lshr_b32 s4, s2, 5
    v_lshrrev_b32 v1, 6, v0
    v_and_b32 v2, 63, v0
    s_nop 0
    v_readfirstlane_b32 s28, v1
    """)
    A(f"""
    v_and_b32 v3, 15, v2
    v_bfe_u32 v4, v2, 4, 1
    v_mul_u32_u24 v4, {QK_TILE}, v4
    v_lshl_add_u32 v5, v3, 4, v4
    v_lshl_add_u32 v6, v3, 3, v4
    v_add_u32 v6, 512, v6
    v_cmp_gt_u32 vcc, 32, v2
    v_add_u32 v7, 256, v5
    v_add_u32 v8, {2*QK_TILE}, v5
    v_add_u32 v9, {2*QK_TILE}, v7
    v_add_u32 v10, {2*QK_TILE}, v6
    v_cndmask_b32 v12, v7, v5, vcc
    v_cndmask_b32 v13, v8, v6, vcc
    v_cndmask_b32 v14, v10, v9, vcc
    """)
    A("s_mov_b32 s35, 0x15555556")
    for ty in range(3):
        A(f"""
        v_add_u32 v3, {ty*64}, v2
        v_mul_hi_u32 v4, v3, s35
        v_mul_u32_u24 v5, 12, v4
        v_sub_u32 v5, v3, v5
        v_lshrrev_b32 v6, 2, v5
        v_and_b32 v5, 3, v5
        v_lshl_add_u32 v5, v4, 2, v5
        v_lshrrev_b32 v7, 4, v5
        v_mul_u32_u24 v7, {V_TILE}, v7
        v_and_b32 v5, 15, v5
        v_lshl_add_u32 v7, v5, 4, v7
        v_lshl_add_u32 v{15+ty}, v6, 8, v7
        """)
    A(f"""
    s_waitcnt lgkmcnt(0)
    s_add_u32 s32, s30, {QKV_BYTES}
    s_addc_u32 s33, s31, 0
    """)
    srd(A, 16, 30, 31, QKV_BYTES)
    srd(A, 20, 32, 33, QKV_BYTES)
    A(f"""
    s_add_u32 s32, s30, {O_BASE}
    s_addc_u32 s33, s31, 0
    """)
    srd(A, 24, 32, 33, 2 * O_BYTES)
    A(f"""
    s_lshl_b32 s34, s3, 7
    s_lshl_b32 s35, s4, 4
    s_add_u32 s34, s34, s35
    s_lshl_b32 s36, s28, 2
    """)
    def dma_unit(srdn, areg, tile_bytes, reg_off, tile_delta, lds_base):
        A(f"""
        s_add_u32 s37, s34, s38
        s_add_i32 s37, s37, {tile_delta}
        s_mul_i32 s37, s37, {tile_bytes}
        s_add_u32 s37, s37, {reg_off}
        s_mul_i32 s39, s38, 768
        """)
        for ty in range(3):
            A(f"s_add_u32 m0, s39, {lds_base + ty*1024}\ns_nop 0\nbuffer_load_dwordx4 v{areg+ty}, s[{srdn}:{srdn+3}], s37 offen lds")
    A("s_mov_b32 s38, s36\ns_cmp_ge_u32 s28, 5\ns_cbranch_scc1 K2_noak")
    dma_unit(16, 12, QK_TILE, K_OFF, -4, L_AK)
    A("K2_noak:\ns_cmp_lt_u32 s28, 3\ns_cbranch_scc1 K2_noav\ns_sub_u32 s38, s36, 12")
    dma_unit(16, 15, V_TILE, V_OFF, -4, L_AV)
    A("K2_noav:\ns_mov_b32 s38, s36")
    dma_unit(20, 12, QK_TILE, K_OFF, -16, L_BK)
    dma_unit(20, 15, V_TILE, V_OFF, -16, L_BV)
    QA = 20; QB = 28
    A(f"""
    v_and_b32 v3, 15, v2
    v_bfe_u32 v4, v2, 4, 1
    v_lshrrev_b32 v5, 5, v2
    s_lshl_b32 s37, s28, 1
    s_add_u32 s37, s37, s34
    v_add_u32 v4, s37, v4
    v_mul_u32_u24 v4, {QK_TILE}, v4
    v_lshl_add_u32 v6, v3, 4, v4
    v_lshl_add_u32 v6, v5, 8, v6
    v_lshl_add_u32 v7, v3, 3, v4
    v_mov_b32 v8, 0x7ffff000
    v_cmp_gt_u32 vcc, 32, v2
    v_mov_b32 v{QA+6}, 0
    v_mov_b32 v{QA+7}, 0
    v_cndmask_b32 v7, v8, v7, vcc
    v_mov_b32 v{QB+6}, 0
    v_mov_b32 v{QB+7}, 0
    buffer_load_dwordx4 {vr(QA,4)}, v6, s[16:19], 0 offen
    buffer_load_dwordx2 {vr(QA+4,2)}, v7, s[16:19], 0 offen offset:512
    buffer_load_dwordx4 {vr(QB,4)}, v6, s[20:23], 0 offen
    buffer_load_dwordx2 {vr(QB+4,2)}, v7, s[20:23], 0 offen offset:512
    """)
    MS = 40
    A(f"""
    v_and_b32 v9, 31, v2
    v_lshlrev_b32 v10, 2, v5
    v_sub_u32 v10, v9, v10
    """)
    for r in range(16):
        kc = (r & 3) + 8 * (r >> 2)
        A(f"v_cmp_le_i32 s[{MS+2*r}:{MS+2*r+1}], {kc}, v10")
    PM = 36
    A("v_mov_b32 v11, 0xffff\nv_mov_b32 v3, 0xffff0000\nv_mov_b32 v4, 0")
    for j in range(8):
        A(f"v_cndmask_b32 v6, v4, v11, s[{MS+4*j}:{MS+4*j+1}]")
        A(f"v_cndmask_b32 v7, v4, v3, s[{MS+4*j+2}:{MS+4*j+3}]")
        A(f"v_or_b32 v{PM+j}, v6, v7")
    AK = 44; AV = 45
    A(f"""
    s_mul_i32 s37, s28, {BLK}
    v_lshlrev_b32 v{AK}, 4, v2
    v_add_u32 v{AK}, s37, v{AK}
    v_add_u32 v{AK}, {L_BK}, v{AK}
    v_and_b32 v3, 3, v2
    v_bfe_u32 v4, v2, 2, 2
    v_bfe_u32 v6, v2, 4, 1
    v_lshrrev_b32 v7, 1, v3
    v_lshlrev_b32 v7, 6, v7
    v_and_b32 v8, 1, v3
    v_lshl_add_u32 v7, v8, 3, v7
    v_cmp_eq_u32 vcc, 0, v3
    v_mov_b32 v8, 136
    v_mov_b32 v11, 128
    v_cndmask_b32 v8, v8, v11, vcc
    v_cmp_eq_u32 vcc, 0, v6
    s_nop 1
    v_cndmask_b32 v7, v8, v7, vcc
    v_lshl_add_u32 v7, v4, 4, v7
    v_mul_u32_u24 v8, 192, v5
    v_add_u32 v7, v7, v8
    v_add_u32 v{AV}, s37, v7
    """)
    OA = 46
    A(f"""
    s_lshl_b32 s37, s4, 4
    s_lshl_b32 s38, s28, 1
    s_add_u32 s37, s37, s38
    v_bfe_u32 v3, v2, 4, 1
    v_add_u32 v3, s37, v3
    v_mul_u32_u24 v3, 20480, v3
    v_and_b32 v4, 15, v2
    v_lshl_add_u32 v3, v4, 4, v3
    s_mul_i32 s38, s3, 5
    v_add_u32 v4, s38, v5
    v_lshrrev_b32 v6, 1, v4
    v_and_b32 v7, 1, v4
    v_lshl_add_u32 v6, v6, 8, v3
    v_lshl_add_u32 v{OA}, v7, 3, v6
    v_add_u32 v{OA+1}, 256, v{OA}
    v_add_u32 v6, 512, v{OA}
    v_mov_b32 v8, 0x7ffff000
    v_cmp_gt_u32 vcc, 32, v2
    s_mov_b32 s72, {f32bits(SCALE_L2E)}
    s_mov_b32 s73, 0xff800000
    v_cndmask_b32 v{OA+2}, v8, v6, vcc
    """)
    stamp(A, 1)
    A("s_waitcnt vmcnt(0)\ns_barrier")
    stamp(A, 2)
    S = 64
    KF = 208
    VF = 224
    O = 240
    M = 50; MC = 51; T0 = 52; T1 = 53
    def qk(nblk, lds_k, Q, skipcheck):
        reads = [(b, i) for b in range(nblk) for i in range(2)]
        def rd(n):
            b, i = reads[n]
            A.lds(f"ds_read_b128 {vr(KF + (n % 4)*4, 4)}, v{AK} offset:{lds_k - L_BK + b*BLK + i*1024}", ('k', n))
        for n in range(min(3, len(reads))): rd(n)
        for n, (b, i) in enumerate(reads):
            if n + 3 < len(reads): rd(n + 3)
            A.lds_wait(('k', n))
            c = "0" if i == 0 else vr(S + 16*b, 16)
            A(f"v_mfma_f32_32x32x16_bf16 {vr(S+16*b,16)}, {vr(KF+(n%4)*4,4)}, {vr(Q+4*i,4)}, {c}")
    def softmax(regs):
        A(f"v_max3_f32 v{M}, v{regs[0]}, v{regs[1]}, v{regs[2]}")
        A(f"v_max3_f32 v{T0}, v{regs[3]}, v{regs[4]}, v{regs[5]}")
        rest = regs[6:]
        i = 0; tog = 0
        while i < len(rest):
            d = M if tog == 0 else T0
            A(f"v_max3_f32 v{d}, v{d}, v{rest[i]}, v{rest[i+1]}")
            i += 2; tog ^= 1
        A(f"""
        v_max_f32 v{M}, v{M}, v{T0}
        v_mov_b32 v{T0}, v{M}
        s_nop 1
        v_permlane32_swap_b32 v{M}, v{T0}
        s_nop 1
        v_max_f32 v{M}, v{M}, v{T0}
        v_mul_f32 v{MC}, s72, v{M}
        """)
        for r in regs:
            A(f"v_fma_f32 v{r}, v{r}, s72, -v{MC}")
        for r in regs:
            A(f"v_exp_f32 v{r}, v{r}")
        A("s_nop 0")
        for i in range(0, len(regs), 8):
            for j in range(4):
                A(f"v_cvt_pk_bf16_f32 v{regs[i]+j}, v{regs[i+2*j]}, v{regs[i+2*j+1]}")
    def pv(blocks, lds_v):
        reads = [(bi, i) for bi in range(len(blocks)) for i in range(2)]
        def rd(n):
            bi, i = reads[n]
            for t in range(2):
                A.lds(f"ds_read_b64_tr_b16 {vr(VF + (n % 4)*4 + 2*t, 2)}, v{AV} offset:{lds_v + blocks[bi][0]*BLK + (2*i+t)*384}", ('v', n))
        for n in range(min(3, len(reads))): rd(n)
        for n, (bi, i) in enumerate(reads):
            if n + 3 < len(reads): rd(n + 3)
            A.lds_wait(('v', n))
            c = "0" if n == 0 else vr(O, 16)
            A(f"v_mfma_f32_32x32x16_bf16 {vr(O,16)}, {vr(VF+(n%4)*4,4)}, {vr(blocks[bi][1]+8*i,4)}, {c}")
    def finish(osoff):
        A(f"s_nop 7\ns_nop 3\nv_rcp_f32 v{T0}, v{O+12}\ns_nop 0")
        for r in range(12):
            A(f"v_mul_f32 v{O+r}, v{O+r}, v{T0}")
        for j in range(6):
            A(f"v_cvt_pk_bf16_f32 v{O+j}, v{O+2*j}, v{O+2*j+1}")
        A(f"s_mov_b32 s37, {osoff}")
        for j in range(3):
            A(f"buffer_store_dwordx2 {vr(O+2*j,2)}, v{OA+j}, s[24:27], s37 offen sc1")
    def merge_split(first, last):
        pass
    qk(2, L_AK + BLK, QA, None)
    A("s_nop 7\ns_nop 3")
    A(f"s_or_b32 s37, s4, s28\ns_cmp_lg_u32 s37, 0\ns_cbranch_scc1 K2_a_ok")
    for r in range(16): A(f"v_mov_b32 v{S+r}, s73")
    A("K2_a_ok:")
    for r in range(16):
        A(f"v_cndmask_b32 v{S+r}, v{S+r}, v{S+16+r}, s[{MS+2*r}:{MS+2*r+1}]")
    A(f"v_mov_b32 v{T1}, s73")
    for r in range(16):
        kc = (r & 3) + 8 * (r >> 2)
        A(f"v_subrev_u32 v{T0}, {kc}, v10\nv_and_b32 v{T0}, 17, v{T0}\nv_cmp_eq_u32 vcc, 0, v{T0}\ns_nop 1\nv_cndmask_b32 v{S+r}, v{T1}, v{S+r}, vcc")
    softmax([S + r for r in range(16)])
    for j in range(8):
        p = S + (j >> 2) * 8 + (j & 3)
        A(f"v_and_b32 v{p+16}, v{p}, v{PM+j}")
        A(f"v_bfi_b32 v{p}, v{PM+j}, 0, v{p}")
    A("s_nop 1")
    pv([(1, S), (2, S + 16)], L_AV)
    finish(0)
    stamp(A, 3)
    qk(9, L_BK, QB, None)
    A("s_nop 7\ns_nop 3")
    A("s_cmp_lg_u32 s4, 0\ns_cbranch_scc1 K2_b_ok")
    for b in range(8):
        A(f"s_add_u32 s37, s28, {b}\ns_cmp_ge_u32 s37, 8\ns_cbranch_scc1 K2_b_ok")
        for r in range(16): A(f"v_mov_b32 v{S+16*b+r}, s73")
    A("K2_b_ok:")
    for r in range(16):
        A(f"v_cndmask_b32 v{S+r}, v{S+r}, v{S+128+r}, s[{MS+2*r}:{MS+2*r+1}]")
    stamp(A, 4)
    softmax([S + r for r in range(128)])
    for j in range(8):
        p = S + (j >> 2) * 8 + (j & 3)
        A(f"v_and_b32 v{p+128}, v{p}, v{PM+j}")
        A(f"v_bfi_b32 v{p}, v{PM+j}, 0, v{p}")
    A("s_nop 1")
    stamp(A, 5)
    pv([(b, S + 16*b) for b in range(9)], L_BV)
    finish(O_BYTES)
    stamp(A, 6)
    stamp_flush(A, 7, 30, 1)
    A("K2_end:\ns_endpgm")
    A.end(256, 102, 256, 512, K2_LDS)

def gen_k3(A):
    A.begin("proj_kernel")
    A("""
    s_cmp_ge_u32 s2, 256
    s_cbranch_scc1 K3_end
    """)
    stamp(A, 0)
    A("""
    s_and_b32 s3, s2, 7
    s_lshr_b32 s4, s2, 3
    s_lshr_b32 s5, s3, 2
    s_mul_i32 s6, s5, 24
    s_add_u32 s8, s0, s6
    s_addc_u32 s9, s1, 0
    s_load_dwordx2 s[12:13], s[8:9], 16
    s_load_dwordx2 s[14:15], s[0:1], 48
    s_load_dwordx2 s[30:31], s[0:1], 64
    v_lshrrev_b32 v1, 6, v0
    s_bfe_u32 s6, s3, 0x10001
    s_and_b32 s7, s3, 1
    s_and_b32 s10, s4, 7
    s_lshr_b32 s11, s4, 3
    v_readfirstlane_b32 s28, v1
    s_lshl_b32 s6, s6, 3
    s_add_u32 s6, s6, s10
    s_lshl_b32 s7, s7, 2
    s_add_u32 s7, s7, s11
    v_and_b32 v1, 63, v0
    s_mul_i32 s33, s7, 160
    s_mov_b32 s35, 0x1999999a
    """)
    WA = 2
    for i in range(5):
        A(f"""
        v_add_u32 v8, {i*64}, v1
        v_mul_hi_u32 v9, v8, s35
        v_mul_u32_u24 v10, 10, v9
        v_sub_u32 v10, v8, v10
        v_bfe_u32 v11, v9, 2, 2
        v_lshlrev_b32 v11, 3, v11
        v_bfe_u32 v12, v9, 4, 1
        v_lshl_add_u32 v11, v12, 2, v11
        v_and_b32 v12, 3, v9
        v_add_u32 v11, v11, v12
        v_mul_u32_u24 v11, 1280, v11
        v_lshl_add_u32 v11, v10, 4, v11
        v_add_u32 v{WA+i}, s33, v11
        """)
    A(f"""
    s_lshl_b32 s32, s6, 3
    s_lshl_b32 s34, s28, 1
    s_add_u32 s32, s32, s34
    s_mul_i32 s36, s32, 20480
    s_mul_i32 s37, s5, {O_BYTES}
    s_add_u32 s36, s36, s37
    v_lshlrev_b32 v7, 4, v1
    v_add_u32 v7, s36, v7
    s_waitcnt lgkmcnt(0)
    s_add_u32 s30, s30, {O_BASE}
    s_addc_u32 s31, s31, 0
    """)
    srd(A, 16, 12, 13, 819200)
    srd(A, 20, 30, 31, 2 * O_BYTES)
    srd(A, 24, 14, 15, 2048 * 1280 * 2)
    OF = 64
    ACC = 16
    WR = 224
    def of(ks, rt): return OF + (ks * 2 + rt) * 4
    A("s_mul_i32 s38, s28, 40960\ns_mul_i32 s39, s28, 5120")
    for p in range(5):
        A(f"s_add_u32 s40, s38, {p*4*40960}")
        for i in range(5):
            A(f"s_add_u32 m0, s39, {p*4*5120 + i*1024}\ns_nop 0\nbuffer_load_dwordx4 v{WA+i}, s[16:19], s40 offen lds")
        for ks in range(4*p, 4*p+4):
            for rt in range(2):
                off = rt * 20480 + ks * 1024
                A(f"s_mov_b32 s41, {off}\nbuffer_load_dwordx4 {vr(of(ks,rt),4)}, v7, s[20:23], s41 offen")
    AW = 8
    A(f"""
    v_lshrrev_b32 v9, 2, v1
    v_mul_u32_u24 v9, 160, v9
    v_and_b32 v10, 3, v1
    v_mul_u32_u24 v10, 40, v10
    v_add_u32 v{AW}, v9, v10
    v_add_u32 v{AW+1}, 51200, v{AW}
    """)
    for r in range(40): A(f"v_mov_b32 v{ACC+r}, 0")
    stamp(A, 1)
    for p in range(5):
        A(f"s_waitcnt vmcnt({13*(4-p)})\ns_barrier")
        if p == 0: stamp(A, 2)
        units = [(ks, t) for ks in range(4*p, 4*p+4) for t in range(5)]
        def rd(n):
            ks, t = units[n]
            b = WR + (n % 8) * 4
            for hf in range(2):
                off = (ks * 32 + hf * 16) * 160 + 8 * t
                a = AW
                if off >= 51200: off -= 51200; a = AW + 1
                A.lds(f"ds_read_b64_tr_b16 {vr(b+2*hf,2)}, v{a} offset:{off}", ('w', n))
        LA = 5
        for n in range(LA): rd(n)
        for n, (ks, t) in enumerate(units):
            if n + LA < len(units): rd(n + LA)
            A.lds_wait(('w', n))
            b = WR + (n % 8) * 4
            for rt in range(2):
                a = ACC + (t * 2 + rt) * 4
                A(f"v_mfma_f32_16x16x32_bf16 {vr(a,4)}, {vr(b,4)}, {vr(of(ks,rt),4)}, {vr(a,4)}")
    stamp(A, 3)
    A(f"""
    v_and_b32 v2, 15, v1
    v_lshrrev_b32 v3, 4, v1
    s_lshl_b32 s32, s6, 7
    s_lshl_b32 s34, s28, 5
    s_add_u32 s32, s32, s34
    v_add_u32 v2, s32, v2
    v_mul_u32_u24 v2, 2560, v2
    v_mul_u32_u24 v3, 40, v3
    v_add_u32 v2, v2, v3
    s_mul_i32 s34, s5, 1280
    s_add_u32 s34, s34, s33
    v_add_u32 v2, s34, v2
    v_add_u32 v3, 40960, v2
    s_nop 3
    """)
    for rt in range(2):
        T = OF + rt * 12
        for t in range(5):
            a = ACC + (t * 2 + rt) * 4
            A(f"v_cvt_pk_bf16_f32 v{T+2*t}, v{a}, v{a+1}\nv_cvt_pk_bf16_f32 v{T+2*t+1}, v{a+2}, v{a+3}")
        A(f"buffer_store_dwordx4 {vr(T,4)}, v{2+rt}, s[24:27], 0 offen")
        A(f"buffer_store_dwordx4 {vr(T+4,4)}, v{2+rt}, s[24:27], 0 offen offset:16")
        A(f"buffer_store_dwordx2 {vr(T+8,2)}, v{2+rt}, s[24:27], 0 offen offset:32")
    stamp(A, 4)
    stamp_flush(A, 5, 30, 2)
    A("K3_end:\ns_endpgm")
    A.end(256, 102, 256, 256, 102400)

def gen_empty(A):
    A.begin("empty_kernel")
    A("s_endpgm")
    A.end(8, 16, 256, 256, 0)

if __name__ == '__main__':
    if '--stamp' in sys.argv: STAMP = True
    for a in sys.argv[1:]:
        if a.startswith('--dbg='): DBG.update(a[6:].split(','))
    A = Asm()
    gen_k1(A)
    gen_k2(A)
    gen_k3(A)
    order = None
    for a in sys.argv[1:]:
        if a.startswith('--order='): order = [x + '_kernel' for x in a[8:].split(',')]
    if order and 'empty_kernel' in order: gen_empty(A)
    sys.stdout.write(A.text(order))
```

```python
import sys, math, struct

REF = 'concat_heads__sliding_local_dilated__sliding_block__prompt.s.ref'
HDR = [l for l in open(REF).read().split('\n')
       if l.startswith(';') and '@launch' not in l and 'Override' not in l and 'grid=ceil' not in l]

QK_TILE = 640
V_TILE = 768
Q_OFF = 0
K_OFF = 32 * 128 * QK_TILE
V_OFF = 2 * K_OFF
QKV_BYTES = V_OFF + 32 * 128 * V_TILE
O_BASE = 2 * QKV_BYTES
O_BYTES = 2048 * 640 * 2

def f32bits(x): return struct.unpack('<I', struct.pack('<f', x))[0]

class Asm:
    def __init__(self):
        self.out = []
        self.kernels = []
        self.launches = []
        self.lds_q = []
    def __call__(self, s):
        for l in s.split('\n'):
            l = l.strip()
            if 'noload' in DBG and l.endswith(' lds'): continue
            if 'nomfma' in DBG and l.startswith('v_mfma'): continue
            if 'nods' in DBG and l.startswith('ds_read'): continue
            if 'nostore' in DBG and l.startswith('buffer_store') and 's[8:11]' not in l: continue
            if l: self.out.append('    ' + l if not l.endswith(':') else l)
    def begin(self, name):
        self.out.append(f".globl {name}\n.p2align 8\n.type {name},@function\n{name}:")
        self.cur = name
    def end(self, vgpr, sgpr, grid, block, lds):
        self.kernels.append((self.cur, vgpr, sgpr))
        self.launches.append((self.cur, grid, block, lds))
    def lds(self, s, tag):
        self(s); self.lds_q.append(tag)
    def lds_wait(self, tag):
        idx = [i for i, t in enumerate(self.lds_q) if t == tag]
        if not idx: return
        n = len(self.lds_q) - 1 - idx[-1]
        assert n <= 15, n
        self(f"s_waitcnt lgkmcnt({n})")
        self.lds_q = self.lds_q[idx[-1] + 1:]
    def lds_drain(self):
        self("s_waitcnt lgkmcnt(0)"); self.lds_q = []
    def text(self, order=None):
        o = list(HDR)
        ls = self.launches if order is None else [l for n in order for l in self.launches if l[0] == n]
        for (n, g, b, lds) in ls:
            o.append(f"; @launch kernel={n} grid=({g},1,1) block=({b},1,1) lds={lds}")
        o.append('.amdgcn_target "amdgcn-amd-amdhsa--gfx950"\n.text')
        o += self.out
        o.append('.section .rodata,"a"')
        for (n, vgpr, sgpr) in self.kernels:
            o.append(f""".p2align 6
.amdhsa_kernel {n}
  .amdhsa_next_free_vgpr {vgpr}
  .amdhsa_next_free_sgpr {sgpr}
  .amdhsa_accum_offset {(vgpr + 3) // 4 * 4}
  .amdhsa_group_segment_fixed_size 0
  .amdhsa_kernarg_size 72
  .amdhsa_user_sgpr_count 2
  .amdhsa_user_sgpr_kernarg_segment_ptr 1
  .amdhsa_system_sgpr_workgroup_id_x 1
.end_amdhsa_kernel""")
        return '\n'.join(o) + '\n'

STAMP = False
DBG = set()
STAMP_OFF = 30 << 20
def stamp(A, i):
    if STAMP:
        A(f"s_memtime s[{74+2*i}:{75+2*i}]")
        if i == 0: A("s_memrealtime s[96:97]")
def stamp_flush(A, n, wsreg, kidx):
    if not STAMP: return
    A(f"""
    s_waitcnt lgkmcnt(0) vmcnt(0)
    s_memtime s[{74+2*n}:{75+2*n}]
    s_memrealtime s[{76+2*n}:{77+2*n}]
    s_load_dwordx2 s[4:5], s[0:1], 64
    s_waitcnt lgkmcnt(0)
    s_add_u32 s4, s4, {STAMP_OFF + kidx*262144}
    s_addc_u32 s5, s5, 0
    s_mov_b32 s8, s4
    s_and_b32 s9, s5, 0xffff
    s_mov_b32 s10, 262144
    s_mov_b32 s11, 0x20000
    v_lshrrev_b32 v0, 6, v0
    s_lshl_b32 s6, s2, 3
    v_add_u32 v0, s6, v0
    v_lshlrev_b32 v0, 6, v0
    """)
    A(f"v_mov_b32 v1, s96\nbuffer_store_dword v1, v0, s[8:11], 0 offen offset:60")
    for i in range(n + 2):
        A(f"v_mov_b32 v1, s{74+2*i}\nbuffer_store_dword v1, v0, s[8:11], 0 offen offset:{4*i}")

def vr(a, n=1):
    return f"v{a}" if n == 1 else f"v[{a}:{a+n-1}]"

def srd(A, d, lo, hi, nbytes):
    A(f"s_mov_b32 s{d}, s{lo}\ns_and_b32 s{d+1}, s{hi}, 0xffff\ns_mov_b32 s{d+2}, {nbytes}\ns_mov_b32 s{d+3}, 0x20000")

SLOT = 49152
XOFF = 32768
def gen_k1(A):
    A.begin("qkv_kernel")
    A("""
    s_cmp_ge_u32 s2, 256
    s_cbranch_scc1 K1_end
    """)
    stamp(A, 0)
    A("""
    s_and_b32 s3, s2, 7
    s_lshr_b32 s4, s2, 3
    s_lshr_b32 s5, s3, 2
    s_mul_i32 s6, s5, 24
    s_add_u32 s8, s0, s6
    s_addc_u32 s9, s1, 0
    s_load_dwordx4 s[12:15], s[8:9], 0
    s_load_dwordx2 s[30:31], s[0:1], 64
    v_lshrrev_b32 v1, 6, v0
    s_bfe_u32 s6, s3, 0x10001
    s_and_b32 s7, s3, 1
    s_and_b32 s10, s4, 7
    s_lshr_b32 s11, s4, 3
    v_readfirstlane_b32 s28, v1
    s_lshl_b32 s6, s6, 3
    s_add_u32 s6, s6, s10
    s_lshl_b32 s7, s7, 2
    s_add_u32 s7, s7, s11
    v_and_b32 v1, 63, v0
    s_cmp_lt_u32 s28, 4
    s_cbranch_scc1 K1_consumer
    """)
    A("""
    s_sub_u32 s28, s28, 4
    s_lshl_b32 s29, s11, 1
    s_add_u32 s29, s29, s10
    s_cmp_ge_u32 s29, 10
    s_cselect_b32 s32, 10, 0
    s_sub_u32 s29, s29, s32
    s_mul_i32 s33, s7, 480
    s_lshl_b32 s34, s28, 9
    s_mov_b32 s35, 0x8888889
    """)
    for i in range(8):
        A(f"""
        v_add_u32 v2, s34, v1
        v_add_u32 v2, {i*64}, v2
        v_mul_hi_u32 v3, v2, s35
        v_mul_u32_u24 v4, 30, v3
        v_sub_u32 v4, v2, v4
        v_bfe_u32 v5, v3, 2, 2
        v_lshlrev_b32 v5, 3, v5
        v_bfe_u32 v6, v3, 4, 1
        v_lshl_add_u32 v5, v6, 2, v5
        v_and_b32 v6, 35, v3
        v_add_u32 v5, v5, v6
        v_mul_u32_u24 v5, 3840, v5
        v_lshl_add_u32 v5, v4, 4, v5
        v_add_u32 v5, s33, v5
        v_mov_b32 v6, 0x7ffff000
        v_cmp_gt_u32 vcc, 1920, v2
        s_nop 1
        v_cndmask_b32 v{8+i}, v6, v5, vcc
        """)
    A("""
    s_lshl_b32 s36, s6, 7
    s_lshl_b32 s37, s28, 5
    s_add_u32 s36, s36, s37
    v_lshrrev_b32 v2, 3, v1
    v_add_u32 v2, s36, v2
    s_movk_i32 s37, 1280
    v_mul_lo_u32 v2, v2, s37
    v_and_b32 v3, 7, v1
    v_lshrrev_b32 v4, 4, v1
    v_xor_b32 v3, v3, v4
    v_lshl_add_u32 v16, v3, 4, v2
    v_xor_b32 v3, 4, v3
    v_lshl_add_u32 v17, v3, 4, v2
    v_add_u32 v17, 10240, v17
    v_add_u32 v18, 20480, v16
    v_add_u32 v19, 20480, v17
    s_lshl_b32 s38, s28, 13
    s_lshl_b32 s39, s28, 12
    s_add_u32 s39, s39, %d
    s_mov_b32 s40, 0
    s_waitcnt lgkmcnt(0)
    """ % XOFF)
    srd(A, 16, 12, 13, 2621440)
    srd(A, 20, 14, 15, 2457600)
    def issue():
        A("""
        s_mul_i32 s41, s29, 245760
        s_lshl_b32 s42, s29, 7
        s_add_u32 s43, s40, s38
        s_add_u32 s44, s40, s39
        """)
        for i in range(8):
            A(f"s_add_u32 m0, s43, {i*1024}\ns_nop 0\nbuffer_load_dwordx4 v{8+i}, s[20:23], s41 offen lds")
            if i % 2 == 1:
                j = i // 2
                A(f"s_add_u32 m0, s44, {j*1024}\ns_nop 0\nbuffer_load_dwordx4 v{16+j}, s[16:19], s42 offen lds")
        A(f"""
        s_add_u32 s29, s29, 1
        s_cmp_eq_u32 s29, 10
        s_cselect_b32 s29, 0, s29
        s_add_u32 s40, s40, {SLOT}
        s_cmp_eq_u32 s40, {3*SLOT}
        s_cselect_b32 s40, 0, s40
        """)
    issue()
    A("s_mov_b32 s45, 0")
    A("K1_lloop:")
    issue()
    A("""
    s_waitcnt vmcnt(12)
    s_barrier
    s_add_u32 s45, s45, 1
    s_cmp_lt_u32 s45, 9
    s_cbranch_scc1 K1_lloop
    s_waitcnt vmcnt(0)
    s_barrier
    s_endpgm
    """)
    A("K1_consumer:")
    ACC = 0
    ACC = 8; WR = 128; XF = 168; AW0 = 184; AX0 = 185; AX1 = 186; AW = 187; AXa = 188; AXb = 189
    def acc(grp, t, rt): return ACC + ((grp * 5 + t) * 2 + rt) * 4
    A(f"""
    v_lshrrev_b32 v2, 2, v1
    v_mul_u32_u24 v2, 480, v2
    v_and_b32 v3, 3, v1
    v_mul_u32_u24 v3, 40, v3
    v_add_u32 v{AW0}, v2, v3
    v_and_b32 v2, 15, v1
    v_lshrrev_b32 v3, 4, v1
    v_lshrrev_b32 v4, 1, v2
    v_xor_b32 v3, v3, v4
    s_lshl_b32 s34, s28, 12
    s_add_u32 s34, s34, {XOFF}
    v_lshlrev_b32 v2, 7, v2
    v_add_u32 v2, s34, v2
    v_lshl_add_u32 v{AX0}, v3, 4, v2
    v_xor_b32 v3, 4, v3
    v_lshl_add_u32 v{AX1}, v3, 4, v2
    """)
    for r in range(ACC, XF + 16):
        A(f"v_mov_b32 v{r}, 0")
    A("s_mov_b32 s40, 0\ns_mov_b32 s45, 0")
    stamp(A, 1)
    A("K1_cloop:")
    A.lds_q = []
    A("s_barrier")
    if STAMP:
        for it, sl in ((0, 2), (1, 3), (5, 4)):
            A(f"s_cmp_lg_u32 s45, {it}\ns_cbranch_scc1 K1_st{it}")
            stamp(A, sl)
            A(f"K1_st{it}:")
    A(f"""
    v_add_u32 v{AW}, s40, v{AW0}
    v_add_u32 v{AXa}, s40, v{AX0}
    v_add_u32 v{AXb}, s40, v{AX1}
    """)
    units = [(sub, grp, t) for sub in range(2) for grp in range(3) for t in range(5)]
    def rd(u):
        sub, grp, t = units[u]
        b = WR + (u % 10) * 4
        for hf in range(2):
            off = (sub * 32 + hf * 16) * 480 + grp * 160 + 8 * t
            A.lds(f"ds_read_b64_tr_b16 {vr(b + 2*hf, 2)}, v{AW} offset:{off}", ('w', u))
    def rdx(sub):
        for rt in range(2):
            A.lds(f"ds_read_b128 {vr(XF + (sub*2+rt)*4, 4)}, v{AXa if sub == 0 else AXb} offset:{rt*2048}", ('x', sub))
    def mm(u, prev=False):
        sub, grp, t = units[u]
        b = WR + (u % 10) * 4
        if not prev:
            A.lds_wait(('x', sub))
            A.lds_wait(('w', u))
        for rt in range(2):
            a = acc(grp, t, rt)
            A(f"v_mfma_f32_16x16x32_bf16 {vr(a,4)}, {vr(b,4)}, {vr(XF + (sub*2+rt)*4, 4)}, {vr(a,4)}")
    P = 4
    rdx(0)
    nxt = 0
    for step in range(30):
        nread = 2 if step < 2 else 1
        for _ in range(nread):
            if nxt < 30:
                rd(nxt); nxt += 1
        if step == 8: rdx(1)
        if step < P: mm(30 - P + step, prev=True)
        else: mm(step - P)
    A.lds_drain()
    A(f"""
    s_add_u32 s40, s40, {SLOT}
    s_cmp_eq_u32 s40, {3*SLOT}
    s_cselect_b32 s40, 0, s40
    s_add_u32 s45, s45, 1
    s_cmp_lt_u32 s45, 10
    s_cbranch_scc1 K1_cloop
    """)
    for u in range(30 - P, 30): mm(u, prev=True)
    stamp(A, 5)
    A(f"""
    s_mul_i32 s32, s5, {QKV_BYTES}
    s_add_u32 s30, s30, s32
    s_addc_u32 s31, s31, 0
    """)
    srd(A, 24, 30, 31, QKV_BYTES)
    A(f"""
    v_and_b32 v2, 15, v1
    v_lshrrev_b32 v3, 4, v1
    s_lshl_b32 s32, s6, 3
    s_lshl_b32 s33, s28, 1
    s_add_u32 s32, s32, s33
    v_lshlrev_b32 v3, 7, v3
    v_add_u32 v3, s32, v3
    v_mul_u32_u24 v4, {QK_TILE}, v3
    v_mul_u32_u24 v5, {V_TILE}, v3
    v_lshl_add_u32 v6, v2, 3, v4
    v_lshl_add_u32 v4, v2, 4, v4
    v_lshl_add_u32 v5, v2, 4, v5
    v_mov_b32 v{WR+10}, 0x3f803f80
    v_mov_b32 v{WR+11}, 0x3f803f80
    v_mov_b32 v{WR+22}, 0x3f803f80
    v_mov_b32 v{WR+23}, 0x3f803f80
    s_mul_i32 s33, s7, 12
    """)
    for grp in range(3):
        A(f"""
        s_add_u32 s34, s33, {4*grp}
        s_mul_i32 s35, s34, {128*QK_TILE}
        s_sub_u32 s36, s34, 64
        s_mul_i32 s36, s36, {128*V_TILE}
        s_add_u32 s36, s36, {V_OFF}
        """)
        for rt in range(2):
            T = WR + rt * 12
            for t in range(5):
                a = acc(grp, t, rt)
                A(f"v_cvt_pk_bf16_f32 v{T+2*t}, v{a}, v{a+1}\nv_cvt_pk_bf16_f32 v{T+2*t+1}, v{a+2}, v{a+3}")
        A(f"s_cmp_ge_u32 s34, 64\ns_cbranch_scc1 K1_ev{grp}")
        for rt in range(2):
            T = WR + rt * 12
            A(f"buffer_store_dwordx4 {vr(T,4)}, v4, s[24:27], s35 offen offset:{rt*QK_TILE} sc1")
            A(f"buffer_store_dwordx4 {vr(T+4,4)}, v4, s[24:27], s35 offen offset:{rt*QK_TILE+256} sc1")
            A(f"buffer_store_dwordx2 {vr(T+8,2)}, v6, s[24:27], s35 offen offset:{rt*QK_TILE+512} sc1")
        A(f"s_branch K1_ed{grp}\nK1_ev{grp}:")
        for rt in range(2):
            T = WR + rt * 12
            for p in range(3):
                A(f"buffer_store_dwordx4 {vr(T+4*p,4)}, v5, s[24:27], s36 offen offset:{rt*V_TILE+256*p} sc1")
        A(f"K1_ed{grp}:\ns_nop 1")
    stamp(A, 6)
    stamp_flush(A, 7, 30, 0)
    A("K1_end:\ns_endpgm")
    A.end(192, 102 if STAMP else 48, 256, 512, 3 * SLOT)


BLK = 1536
L_BV = 0
L_AV = 16 * BLK
L_BK = 26 * BLK
L_AK = 42 * BLK
K2_LDS = 52 * BLK + 1024
SCALE_L2E = (20 ** -0.5) * math.log2(math.e)

def gen_k2(A):
    A.begin("attn_kernel")
    A("""
    s_cmp_ge_u32 s2, 256
    s_cbranch_scc1 K2_end
    """)
    stamp(A, 0)
    A("""
    s_load_dwordx2 s[30:31], s[0:1], 64
    s_and_b32 s3, s2, 31
    s_lshr_b32 s4, s2, 5
    v_lshrrev_b32 v1, 6, v0
    v_and_b32 v2, 63, v0
    s_nop 0
    v_readfirstlane_b32 s28, v1
    """)
    A(f"""
    v_and_b32 v3, 15, v2
    v_bfe_u32 v4, v2, 4, 1
    v_mul_u32_u24 v4, {QK_TILE}, v4
    v_lshl_add_u32 v5, v3, 4, v4
    v_lshl_add_u32 v6, v3, 3, v4
    v_add_u32 v6, 512, v6
    v_cmp_gt_u32 vcc, 32, v2
    v_add_u32 v7, 256, v5
    v_add_u32 v8, {2*QK_TILE}, v5
    v_add_u32 v9, {2*QK_TILE}, v7
    v_add_u32 v10, {2*QK_TILE}, v6
    v_cndmask_b32 v12, v7, v5, vcc
    v_cndmask_b32 v13, v8, v6, vcc
    v_cndmask_b32 v14, v10, v9, vcc
    """)
    A("s_mov_b32 s35, 0x15555556")
    for ty in range(3):
        A(f"""
        v_add_u32 v3, {ty*64}, v2
        v_mul_hi_u32 v4, v3, s35
        v_mul_u32_u24 v5, 12, v4
        v_sub_u32 v5, v3, v5
        v_lshrrev_b32 v6, 2, v5
        v_and_b32 v5, 3, v5
        v_lshl_add_u32 v5, v4, 2, v5
        v_lshrrev_b32 v7, 4, v5
        v_mul_u32_u24 v7, {V_TILE}, v7
        v_and_b32 v5, 15, v5
        v_lshl_add_u32 v7, v5, 4, v7
        v_lshl_add_u32 v{15+ty}, v6, 8, v7
        """)
    A(f"""
    s_waitcnt lgkmcnt(0)
    s_add_u32 s32, s30, {QKV_BYTES}
    s_addc_u32 s33, s31, 0
    """)
    srd(A, 16, 30, 31, QKV_BYTES)
    srd(A, 20, 32, 33, QKV_BYTES)
    A(f"""
    s_add_u32 s32, s30, {O_BASE}
    s_addc_u32 s33, s31, 0
    """)
    srd(A, 24, 32, 33, 2 * O_BYTES)
    A(f"""
    s_lshl_b32 s34, s3, 7
    s_lshl_b32 s35, s4, 4
    s_add_u32 s34, s34, s35
    s_lshl_b32 s36, s28, 2
    """)
    def dma_unit(srdn, areg, tile_bytes, reg_off, tile_delta, lds_base):
        A(f"""
        s_add_u32 s37, s34, s38
        s_add_i32 s37, s37, {tile_delta}
        s_mul_i32 s37, s37, {tile_bytes}
        s_add_u32 s37, s37, {reg_off}
        s_mul_i32 s39, s38, 768
        """)
        for ty in range(3):
            A(f"s_add_u32 m0, s39, {lds_base + ty*1024}\ns_nop 0\nbuffer_load_dwordx4 v{areg+ty}, s[{srdn}:{srdn+3}], s37 offen lds")
    A("s_mov_b32 s38, s36\ns_cmp_ge_u32 s28, 5\ns_cbranch_scc1 K2_noak")
    dma_unit(16, 12, QK_TILE, K_OFF, -4, L_AK)
    A("K2_noak:\ns_cmp_lt_u32 s28, 3\ns_cbranch_scc1 K2_noav\ns_sub_u32 s38, s36, 12")
    dma_unit(16, 15, V_TILE, V_OFF, -4, L_AV)
    A("K2_noav:\ns_mov_b32 s38, s36")
    dma_unit(20, 12, QK_TILE, K_OFF, -16, L_BK)
    dma_unit(20, 15, V_TILE, V_OFF, -16, L_BV)
    QA = 20; QB = 28
    A(f"""
    v_and_b32 v3, 15, v2
    v_bfe_u32 v4, v2, 4, 1
    v_lshrrev_b32 v5, 5, v2
    s_lshl_b32 s37, s28, 1
    s_add_u32 s37, s37, s34
    v_add_u32 v4, s37, v4
    v_mul_u32_u24 v4, {QK_TILE}, v4
    v_lshl_add_u32 v6, v3, 4, v4
    v_lshl_add_u32 v6, v5, 8, v6
    v_lshl_add_u32 v7, v3, 3, v4
    v_mov_b32 v8, 0x7ffff000
    v_cmp_gt_u32 vcc, 32, v2
    v_mov_b32 v{QA+6}, 0
    v_mov_b32 v{QA+7}, 0
    v_cndmask_b32 v7, v8, v7, vcc
    v_mov_b32 v{QB+6}, 0
    v_mov_b32 v{QB+7}, 0
    buffer_load_dwordx4 {vr(QA,4)}, v6, s[16:19], 0 offen
    buffer_load_dwordx2 {vr(QA+4,2)}, v7, s[16:19], 0 offen offset:512
    buffer_load_dwordx4 {vr(QB,4)}, v6, s[20:23], 0 offen
    buffer_load_dwordx2 {vr(QB+4,2)}, v7, s[20:23], 0 offen offset:512
    """)
    MS = 40
    A(f"""
    v_and_b32 v9, 31, v2
    v_lshlrev_b32 v10, 2, v5
    v_sub_u32 v10, v9, v10
    """)
    for r in range(16):
        kc = (r & 3) + 8 * (r >> 2)
        A(f"v_cmp_le_i32 s[{MS+2*r}:{MS+2*r+1}], {kc}, v10")
    PM = 36
    A("v_mov_b32 v11, 0xffff\nv_mov_b32 v3, 0xffff0000\nv_mov_b32 v4, 0")
    for j in range(8):
        A(f"v_cndmask_b32 v6, v4, v11, s[{MS+4*j}:{MS+4*j+1}]")
        A(f"v_cndmask_b32 v7, v4, v3, s[{MS+4*j+2}:{MS+4*j+3}]")
        A(f"v_or_b32 v{PM+j}, v6, v7")
    AK = 44; AV = 45
    A(f"""
    s_mul_i32 s37, s28, {BLK}
    v_lshlrev_b32 v{AK}, 4, v2
    v_add_u32 v{AK}, s37, v{AK}
    v_add_u32 v{AK}, {L_BK}, v{AK}
    v_and_b32 v3, 3, v2
    v_bfe_u32 v4, v2, 2, 2
    v_bfe_u32 v6, v2, 4, 1
    v_lshrrev_b32 v7, 1, v3
    v_lshlrev_b32 v7, 6, v7
    v_and_b32 v8, 1, v3
    v_lshl_add_u32 v7, v8, 3, v7
    v_cmp_eq_u32 vcc, 0, v3
    v_mov_b32 v8, 136
    v_mov_b32 v11, 128
    v_cndmask_b32 v8, v8, v11, vcc
    v_cmp_eq_u32 vcc, 0, v6
    s_nop 1
    v_cndmask_b32 v7, v8, v7, vcc
    v_lshl_add_u32 v7, v4, 4, v7
    v_mul_u32_u24 v8, 192, v5
    v_add_u32 v7, v7, v8
    v_add_u32 v{AV}, s37, v7
    """)
    OA = 46
    A(f"""
    s_lshl_b32 s37, s4, 4
    s_lshl_b32 s38, s28, 1
    s_add_u32 s37, s37, s38
    v_bfe_u32 v3, v2, 4, 1
    v_add_u32 v3, s37, v3
    v_mul_u32_u24 v3, 20480, v3
    v_and_b32 v4, 15, v2
    v_lshl_add_u32 v3, v4, 4, v3
    s_mul_i32 s38, s3, 5
    v_add_u32 v4, s38, v5
    v_lshrrev_b32 v6, 1, v4
    v_and_b32 v7, 1, v4
    v_lshl_add_u32 v6, v6, 8, v3
    v_lshl_add_u32 v{OA}, v7, 3, v6
    v_add_u32 v{OA+1}, 256, v{OA}
    v_add_u32 v6, 512, v{OA}
    v_mov_b32 v8, 0x7ffff000
    v_cmp_gt_u32 vcc, 32, v2
    s_mov_b32 s72, {f32bits(SCALE_L2E)}
    s_mov_b32 s73, 0xff800000
    v_cndmask_b32 v{OA+2}, v8, v6, vcc
    """)
    stamp(A, 1)
    A("s_waitcnt vmcnt(0)\ns_barrier")
    stamp(A, 2)
    S = 64
    KF = 208
    VF = 224
    O = 240
    M = 50; MC = 51; T0 = 52; T1 = 53
    def qk(nblk, lds_k, Q, skipcheck):
        reads = [(b, i) for b in range(nblk) for i in range(2)]
        def rd(n):
            b, i = reads[n]
            A.lds(f"ds_read_b128 {vr(KF + (n % 4)*4, 4)}, v{AK} offset:{lds_k - L_BK + b*BLK + i*1024}", ('k', n))
        for n in range(min(3, len(reads))): rd(n)
        for n, (b, i) in enumerate(reads):
            if n + 3 < len(reads): rd(n + 3)
            A.lds_wait(('k', n))
            c = "0" if i == 0 else vr(S + 16*b, 16)
            A(f"v_mfma_f32_32x32x16_bf16 {vr(S+16*b,16)}, {vr(KF+(n%4)*4,4)}, {vr(Q+4*i,4)}, {c}")
    def softmax(regs):
        A(f"v_max3_f32 v{M}, v{regs[0]}, v{regs[1]}, v{regs[2]}")
        A(f"v_max3_f32 v{T0}, v{regs[3]}, v{regs[4]}, v{regs[5]}")
        rest = regs[6:]
        i = 0; tog = 0
        while i < len(rest):
            d = M if tog == 0 else T0
            A(f"v_max3_f32 v{d}, v{d}, v{rest[i]}, v{rest[i+1]}")
            i += 2; tog ^= 1
        A(f"""
        v_max_f32 v{M}, v{M}, v{T0}
        v_mov_b32 v{T0}, v{M}
        s_nop 1
        v_permlane32_swap_b32 v{M}, v{T0}
        s_nop 1
        v_max_f32 v{M}, v{M}, v{T0}
        v_mul_f32 v{MC}, s72, v{M}
        """)
        for r in regs:
            A(f"v_fma_f32 v{r}, v{r}, s72, -v{MC}")
        for r in regs:
            A(f"v_exp_f32 v{r}, v{r}")
        A("s_nop 0")
        for i in range(0, len(regs), 8):
            for j in range(4):
                A(f"v_cvt_pk_bf16_f32 v{regs[i]+j}, v{regs[i+2*j]}, v{regs[i+2*j+1]}")
    def pv(blocks, lds_v):
        reads = [(bi, i) for bi in range(len(blocks)) for i in range(2)]
        def rd(n):
            bi, i = reads[n]
            for t in range(2):
                A.lds(f"ds_read_b64_tr_b16 {vr(VF + (n % 4)*4 + 2*t, 2)}, v{AV} offset:{lds_v + blocks[bi][0]*BLK + (2*i+t)*384}", ('v', n))
        for n in range(min(3, len(reads))): rd(n)
        for n, (bi, i) in enumerate(reads):
            if n + 3 < len(reads): rd(n + 3)
            A.lds_wait(('v', n))
            c = "0" if n == 0 else vr(O, 16)
            A(f"v_mfma_f32_32x32x16_bf16 {vr(O,16)}, {vr(VF+(n%4)*4,4)}, {vr(blocks[bi][1]+8*i,4)}, {c}")
    def finish(osoff):
        A(f"s_nop 7\ns_nop 3\nv_rcp_f32 v{T0}, v{O+12}\ns_nop 0")
        for r in range(12):
            A(f"v_mul_f32 v{O+r}, v{O+r}, v{T0}")
        for j in range(6):
            A(f"v_cvt_pk_bf16_f32 v{O+j}, v{O+2*j}, v{O+2*j+1}")
        A(f"s_mov_b32 s37, {osoff}")
        for j in range(3):
            A(f"buffer_store_dwordx2 {vr(O+2*j,2)}, v{OA+j}, s[24:27], s37 offen sc1")
    def merge_split(first, last):
        pass
    qk(2, L_AK + BLK, QA, None)
    A("s_nop 7\ns_nop 3")
    A(f"s_or_b32 s37, s4, s28\ns_cmp_lg_u32 s37, 0\ns_cbranch_scc1 K2_a_ok")
    for r in range(16): A(f"v_mov_b32 v{S+r}, s73")
    A("K2_a_ok:")
    for r in range(16):
        A(f"v_cndmask_b32 v{S+r}, v{S+r}, v{S+16+r}, s[{MS+2*r}:{MS+2*r+1}]")
    A(f"v_mov_b32 v{T1}, s73")
    for r in range(16):
        kc = (r & 3) + 8 * (r >> 2)
        A(f"v_subrev_u32 v{T0}, {kc}, v10\nv_and_b32 v{T0}, 17, v{T0}\nv_cmp_eq_u32 vcc, 0, v{T0}\ns_nop 1\nv_cndmask_b32 v{S+r}, v{T1}, v{S+r}, vcc")
    softmax([S + r for r in range(16)])
    for j in range(8):
        p = S + (j >> 2) * 8 + (j & 3)
        A(f"v_and_b32 v{p+16}, v{p}, v{PM+j}")
        A(f"v_bfi_b32 v{p}, v{PM+j}, 0, v{p}")
    A("s_nop 1")
    pv([(1, S), (2, S + 16)], L_AV)
    finish(0)
    stamp(A, 3)
    qk(9, L_BK, QB, None)
    A("s_nop 7\ns_nop 3")
    A("s_cmp_lg_u32 s4, 0\ns_cbranch_scc1 K2_b_ok")
    for b in range(8):
        A(f"s_add_u32 s37, s28, {b}\ns_cmp_ge_u32 s37, 8\ns_cbranch_scc1 K2_b_ok")
        for r in range(16): A(f"v_mov_b32 v{S+16*b+r}, s73")
    A("K2_b_ok:")
    for r in range(16):
        A(f"v_cndmask_b32 v{S+r}, v{S+r}, v{S+128+r}, s[{MS+2*r}:{MS+2*r+1}]")
    stamp(A, 4)
    softmax([S + r for r in range(128)])
    for j in range(8):
        p = S + (j >> 2) * 8 + (j & 3)
        A(f"v_and_b32 v{p+128}, v{p}, v{PM+j}")
        A(f"v_bfi_b32 v{p}, v{PM+j}, 0, v{p}")
    A("s_nop 1")
    stamp(A, 5)
    pv([(b, S + 16*b) for b in range(9)], L_BV)
    finish(O_BYTES)
    stamp(A, 6)
    stamp_flush(A, 7, 30, 1)
    A("K2_end:\ns_endpgm")
    A.end(256, 102, 256, 512, K2_LDS)

def gen_k3(A):
    A.begin("proj_kernel")
    A("""
    s_cmp_ge_u32 s2, 256
    s_cbranch_scc1 K3_end
    """)
    stamp(A, 0)
    A("""
    s_and_b32 s3, s2, 7
    s_lshr_b32 s4, s2, 3
    s_lshr_b32 s5, s3, 2
    s_mul_i32 s6, s5, 24
    s_add_u32 s8, s0, s6
    s_addc_u32 s9, s1, 0
    s_load_dwordx2 s[12:13], s[8:9], 16
    s_load_dwordx2 s[14:15], s[0:1], 48
    s_load_dwordx2 s[30:31], s[0:1], 64
    v_lshrrev_b32 v1, 6, v0
    s_bfe_u32 s6, s3, 0x10001
    s_and_b32 s7, s3, 1
    s_and_b32 s10, s4, 7
    s_lshr_b32 s11, s4, 3
    v_readfirstlane_b32 s28, v1
    s_lshl_b32 s6, s6, 3
    s_add_u32 s6, s6, s10
    s_lshl_b32 s7, s7, 2
    s_add_u32 s7, s7, s11
    v_and_b32 v1, 63, v0
    s_mul_i32 s33, s7, 160
    s_mov_b32 s35, 0x1999999a
    """)
    WA = 2
    for i in range(5):
        A(f"""
        v_add_u32 v8, {i*64}, v1
        v_mul_hi_u32 v9, v8, s35
        v_mul_u32_u24 v10, 10, v9
        v_sub_u32 v10, v8, v10
        v_bfe_u32 v11, v9, 2, 2
        v_lshlrev_b32 v11, 3, v11
        v_bfe_u32 v12, v9, 4, 1
        v_lshl_add_u32 v11, v12, 2, v11
        v_and_b32 v12, 3, v9
        v_add_u32 v11, v11, v12
        v_mul_u32_u24 v11, 1280, v11
        v_lshl_add_u32 v11, v10, 4, v11
        v_add_u32 v{WA+i}, s33, v11
        """)
    A(f"""
    s_lshl_b32 s32, s6, 3
    s_lshl_b32 s34, s28, 1
    s_add_u32 s32, s32, s34
    s_mul_i32 s36, s32, 20480
    s_mul_i32 s37, s5, {O_BYTES}
    s_add_u32 s36, s36, s37
    v_lshlrev_b32 v7, 4, v1
    v_add_u32 v7, s36, v7
    s_waitcnt lgkmcnt(0)
    s_add_u32 s30, s30, {O_BASE}
    s_addc_u32 s31, s31, 0
    """)
    srd(A, 16, 12, 13, 819200)
    srd(A, 20, 30, 31, 2 * O_BYTES)
    srd(A, 24, 14, 15, 2048 * 1280 * 2)
    OF = 64
    ACC = 16
    WR = 224
    def of(ks, rt): return OF + (ks * 2 + rt) * 4
    A("s_mul_i32 s38, s28, 40960\ns_mul_i32 s39, s28, 5120")
    for p in range(5):
        A(f"s_add_u32 s40, s38, {p*4*40960}")
        for i in range(5):
            A(f"s_add_u32 m0, s39, {p*4*5120 + i*1024}\ns_nop 0\nbuffer_load_dwordx4 v{WA+i}, s[16:19], s40 offen lds")
        for ks in range(4*p, 4*p+4):
            for rt in range(2):
                off = rt * 20480 + ks * 1024
                A(f"s_mov_b32 s41, {off}\nbuffer_load_dwordx4 {vr(of(ks,rt),4)}, v7, s[20:23], s41 offen")
    AW = 8
    A(f"""
    v_lshrrev_b32 v9, 2, v1
    v_mul_u32_u24 v9, 160, v9
    v_and_b32 v10, 3, v1
    v_mul_u32_u24 v10, 40, v10
    v_add_u32 v{AW}, v9, v10
    v_add_u32 v{AW+1}, 51200, v{AW}
    """)
    for r in range(40): A(f"v_mov_b32 v{ACC+r}, 0")
    stamp(A, 1)
    for p in range(5):
        A(f"s_waitcnt vmcnt({13*(4-p)})\ns_barrier")
        if p == 0: stamp(A, 2)
        units = [(ks, t) for ks in range(4*p, 4*p+4) for t in range(5)]
        def rd(n):
            ks, t = units[n]
            b = WR + (n % 8) * 4
            for hf in range(2):
                off = (ks * 32 + hf * 16) * 160 + 8 * t
                a = AW
                if off >= 51200: off -= 51200; a = AW + 1
                A.lds(f"ds_read_b64_tr_b16 {vr(b+2*hf,2)}, v{a} offset:{off}", ('w', n))
        LA = 5
        for n in range(LA): rd(n)
        for n, (ks, t) in enumerate(units):
            if n + LA < len(units): rd(n + LA)
            A.lds_wait(('w', n))
            b = WR + (n % 8) * 4
            for rt in range(2):
                a = ACC + (t * 2 + rt) * 4
                A(f"v_mfma_f32_16x16x32_bf16 {vr(a,4)}, {vr(b,4)}, {vr(of(ks,rt),4)}, {vr(a,4)}")
    stamp(A, 3)
    A(f"""
    v_and_b32 v2, 15, v1
    v_lshrrev_b32 v3, 4, v1
    s_lshl_b32 s32, s6, 7
    s_lshl_b32 s34, s28, 5
    s_add_u32 s32, s32, s34
    v_add_u32 v2, s32, v2
    v_mul_u32_u24 v2, 2560, v2
    v_mul_u32_u24 v3, 40, v3
    v_add_u32 v2, v2, v3
    s_mul_i32 s34, s5, 1280
    s_add_u32 s34, s34, s33
    v_add_u32 v2, s34, v2
    v_add_u32 v3, 40960, v2
    s_nop 3
    """)
    for rt in range(2):
        T = OF + rt * 12
        for t in range(5):
            a = ACC + (t * 2 + rt) * 4
            A(f"v_cvt_pk_bf16_f32 v{T+2*t}, v{a}, v{a+1}\nv_cvt_pk_bf16_f32 v{T+2*t+1}, v{a+2}, v{a+3}")
        A(f"buffer_store_dwordx4 {vr(T,4)}, v{2+rt}, s[24:27], 0 offen")
        A(f"buffer_store_dwordx4 {vr(T+4,4)}, v{2+rt}, s[24:27], 0 offen offset:16")
        A(f"buffer_store_dwordx2 {vr(T+8,2)}, v{2+rt}, s[24:27], 0 offen offset:32")
    stamp(A, 4)
    stamp_flush(A, 5, 30, 2)
    A("K3_end:\ns_endpgm")
    A.end(256, 102, 256, 256, 102400)

def gen_empty(A):
    A.begin("empty_kernel")
    A("s_endpgm")
    A.end(8, 16, 256, 256, 0)

def gen_code(A, kb):
    A.begin(f"code{kb}_kernel")
    for i in range(kb*128):
        A(f"v_add3_u32 v{1+i%6}, v0, v0, v0")
    A("s_endpgm")
    A.end(8, 16, 256, 256, 0)

def gen_coldread(A):
    A.begin("coldread_kernel")
    A("""
    s_cmp_ge_u32 s2, 256
    s_cbranch_scc1 CR_end
    s_load_dwordx2 s[12:13], s[0:1], 64
    s_waitcnt lgkmcnt(0)
    s_add_u32 s12, s12, 0x4000000
    s_addc_u32 s13, s13, 0
    """)
    srd(A, 16, 12, 13, 256*40960)
    A("s_mul_i32 s4, s2, 40960\nv_lshlrev_b32 v1, 4, v0\nv_add_u32 v1, s4, v1")
    for i in range(10):
        A(f"s_mov_b32 s28, {i*4096}\nbuffer_load_dwordx4 v[{8+4*i}:{11+4*i}], v1, s[16:19], s28 offen")
    A("s_waitcnt vmcnt(0)\nCR_end:\ns_endpgm")
    A.end(64, 32, 256, 256, 0)

def gen_pretouch(A):
    A.begin("pretouch_kernel")
    A("""
    s_cmp_ge_u32 s2, 256
    s_cbranch_scc1 PT_end
    s_and_b32 s3, s2, 3
    s_lshr_b32 s4, s2, 2
    s_lshr_b32 s5, s3, 1
    s_mul_i32 s5, s5, 24
    s_and_b32 s6, s3, 1
    s_lshl_b32 s6, s6, 3
    s_add_u32 s6, s5, s6
    s_add_u32 s8, s0, s6
    s_addc_u32 s9, s1, 0
    s_load_dwordx2 s[12:13], s[8:9], 0
    s_add_u32 s8, s0, s5
    s_addc_u32 s9, s1, 0
    s_load_dwordx2 s[14:15], s[8:9], 16
    s_and_b32 s6, s3, 1
    s_cmp_eq_u32 s6, 0
    s_mov_b32 s7, 2457600
    s_cselect_b32 s7, 2621440, s7
    s_waitcnt lgkmcnt(0)
    s_mov_b32 s16, s12
    s_and_b32 s17, s13, 0xffff
    s_mov_b32 s18, s7
    s_mov_b32 s19, 0x20000
    """)
    srd(A, 20, 14, 15, 819200)
    A("s_mul_i32 s10, s4, 40960\nv_lshlrev_b32 v1, 4, v0\nv_add_u32 v2, s10, v1")
    for i in range(10):
        A(f"s_mov_b32 s28, {i*4096}\nbuffer_load_dwordx4 v[{8+4*i}:{11+4*i}], v2, s[16:19], s28 offen")
    A("s_lshl_b32 s10, s4, 1\ns_add_u32 s10, s10, s6\ns_mul_i32 s10, s10, 8192\nv_add_u32 v2, s10, v1")
    for i in range(2):
        A(f"s_mov_b32 s28, {i*4096}\nbuffer_load_dwordx4 v[{48+4*i}:{51+4*i}], v2, s[20:23], s28 offen")
    A("s_waitcnt vmcnt(0)\nPT_end:\ns_endpgm")
    A.end(64, 32, 256, 256, 0)

if __name__ == '__main__':
    if '--stamp' in sys.argv: STAMP = True
    for a in sys.argv[1:]:
        if a.startswith('--dbg='): DBG.update(a[6:].split(','))
    A = Asm()
    gen_k1(A)
    gen_k2(A)
    gen_k3(A)
    order = None
    for a in sys.argv[1:]:
        if a.startswith('--order='): order = [x + '_kernel' for x in a[8:].split(',')]
    if order and 'empty_kernel' in order: gen_empty(A)
    if order and 'code16_kernel' in order: gen_code(A, 16)
    if order and 'coldread_kernel' in order: gen_coldread(A)
    if order and 'pretouch_kernel' in order: gen_pretouch(A)
    sys.stdout.write(A.text(order))
```

```python
import sys, math, struct

REF = 'concat_heads__sliding_local_dilated__sliding_block__prompt.s.ref'
HDR = [l for l in open(REF).read().split('\n')
       if l.startswith(';') and '@launch' not in l and 'Override' not in l and 'grid=ceil' not in l]
MAIN = "concat_heads__sliding_local_dilated__sliding_block__prompt_kernel"

QK_TILE = 640
V_TILE = 768
K_OFF = 32 * 128 * QK_TILE
V_OFF = 2 * K_OFF
QKV_BYTES = V_OFF + 32 * 128 * V_TILE
O_BASE = 2 * QKV_BYTES
O_BYTES = 2048 * 640 * 2
FLAG_BASE = 24 << 20
OOB = 0x7ffff000

STAMP = False
DBG = set()
STAMP_OFF = 30 << 20
FUSED = False

def f32bits(x): return struct.unpack('<I', struct.pack('<f', x))[0]
SCALE_L2E = (20 ** -0.5) * math.log2(math.e)

class Asm:
    def __init__(self):
        self.out = []; self.kernels = []; self.launches = []; self.lds_q = []
    def __call__(self, s):
        for l in s.split('\n'):
            l = l.strip()
            if not l: continue
            if 'noload' in DBG and l.startswith('buffer_load') and ' lds' in l: continue
            if 'nomfma' in DBG and l.startswith('v_mfma'): continue
            if 'nods' in DBG and l.startswith('ds_read'): continue
            if 'nowait' in DBG and l.startswith('s_waitcnt lgkmcnt(') and not l.endswith('(0)'): continue
            if 'halfds' in DBG and l.startswith('ds_read_b64_tr') and (int(l.split('[')[1].split(':')[0]) % 4 == 2): continue
            if 'nobar' in DBG and l.startswith('s_barrier'): continue
            if 'nostore' in DBG and l.startswith('buffer_store') and 's[8:11]' not in l: continue
            self.out.append(l if l.endswith(':') else '    ' + l)
    def begin(self, name):
        self.out.append(f".globl {name}\n.p2align 8\n.type {name},@function\n{name}:")
        self.cur = name
    def end(self, vgpr, sgpr, grid, block, lds):
        self.kernels.append((self.cur, vgpr, sgpr))
        self.launches.append((self.cur, grid, block, lds))
    def lds(self, s, tag):
        self(s); self.lds_q.append(tag)
    def lds_wait(self, *tags):
        idx = [i for i, t in enumerate(self.lds_q) if t in tags]
        if not idx: return
        n = len(self.lds_q) - 1 - idx[-1]
        assert n <= 15, n
        self(f"s_waitcnt lgkmcnt({n})")
        self.lds_q = self.lds_q[idx[-1] + 1:]
    def lds_drain(self):
        self("s_waitcnt lgkmcnt(0)"); self.lds_q = []
    def text(self, order=None):
        o = list(HDR)
        ls = self.launches if order is None else [l for n in order for l in self.launches if l[0] == n]
        if len(ls) == 1 and ls[0][0] == MAIN:
            (n, g, b, lds) = ls[0]
            o.append(f"; @launch grid=({g},1,1) block=({b},1,1) lds={lds}")
        else:
            for (n, g, b, lds) in ls:
                o.append(f"; @launch kernel={n} grid=({g},1,1) block=({b},1,1) lds={lds}")
        o.append('.amdgcn_target "amdgcn-amd-amdhsa--gfx950"\n.text')
        o += self.out
        o.append('.section .rodata,"a"')
        for (n, vgpr, sgpr) in self.kernels:
            o.append(f""".p2align 6
.amdhsa_kernel {n}
  .amdhsa_next_free_vgpr {vgpr}
  .amdhsa_next_free_sgpr {sgpr}
  .amdhsa_accum_offset {(vgpr + 3) // 4 * 4}
  .amdhsa_group_segment_fixed_size 0
  .amdhsa_kernarg_size 72
  .amdhsa_user_sgpr_count 2
  .amdhsa_user_sgpr_kernarg_segment_ptr 1
  .amdhsa_system_sgpr_workgroup_id_x 1
.end_amdhsa_kernel""")
        return '\n'.join(o) + '\n'

def vr(a, n=1): return f"v{a}" if n == 1 else f"v[{a}:{a+n-1}]"

def stamp(A, i):
    if STAMP and i < 100:
        A(f"s_memtime s[100:101]\ns_waitcnt lgkmcnt(0)\nv_writelane_b32 v255, s100, {i}")
        A.lds_q = []
        if i == 0:
            A("s_memrealtime s[100:101]\ns_waitcnt lgkmcnt(0)\nv_writelane_b32 v255, s100, 31")
def stamp_flush(A, n, kidx):
    if not STAMP: return
    A("s_waitcnt lgkmcnt(0) vmcnt(0)")
    stamp(A, n)
    A(f"""
    s_memrealtime s[100:101]
    s_waitcnt lgkmcnt(0)
    v_writelane_b32 v255, s100, {n+1}
    s_add_u32 s4, s48, {STAMP_OFF + kidx*524288}
    s_addc_u32 s5, s49, 0
    s_mov_b32 s8, s4
    s_and_b32 s9, s5, 0xffff
    s_mov_b32 s10, 524288
    s_mov_b32 s11, 0x20000
    s_lshl_b32 s6, s2, 4
    s_add_u32 s6, s6, s28
    s_lshl_b32 s6, s6, 7
    v_lshlrev_b32 v0, 2, v1
    v_add_u32 v0, s6, v0
    v_mov_b32 v2, {OOB}
    v_cmp_gt_u32 vcc, 32, v1
    s_nop 1
    v_cndmask_b32 v0, v2, v0, vcc
    buffer_store_dword v255, v0, s[8:11], 0 offen
    """)

def srd(A, d, lo, hi, nbytes):
    A(f"s_mov_b32 s{d}, s{lo}\ns_and_b32 s{d+1}, s{hi}, 0xffff\ns_mov_b32 s{d+2}, {nbytes}\ns_mov_b32 s{d+3}, 0x20000")

def prologue(A, endlabel):
    A(f"""
    s_cmp_ge_u32 s2, 256
    s_cbranch_scc1 {endlabel}
    s_load_dwordx16 s[32:47], s[0:1], 0
    s_load_dwordx2 s[48:49], s[0:1], 64
    v_lshrrev_b32 v2, 6, v0
    v_and_b32 v1, 63, v0
    s_and_b32 s3, s2, 7
    s_lshr_b32 s4, s2, 3
    v_readfirstlane_b32 s28, v2
    s_lshr_b32 s5, s3, 2
    s_bfe_u32 s6, s3, 0x10001
    s_and_b32 s7, s3, 1
    s_and_b32 s10, s4, 7
    s_lshr_b32 s11, s4, 3
    s_lshl_b32 s6, s6, 3
    s_add_u32 s6, s6, s10
    s_lshl_b32 s7, s7, 2
    s_add_u32 s7, s7, s11
    """)

PIECE = 1056
P1_LOOK = 5
XOFF = 32 * PIECE
SLOT = XOFF + 16384
P1_LDS = 3 * SLOT

def phase1(A, done_label):
    A("s_cmp_lt_u32 s28, 4\ns_cbranch_scc1 P1_consumer")
    A(f"""
    s_sub_u32 s29, s28, 4
    v_lshrrev_b32 v2, 5, v1
    v_and_b32 v3, 31, v1
    v_mul_u32_u24 v2, 15360, v2
    v_lshl_add_u32 v2, v3, 4, v2
    v_mov_b32 v4, {OOB}
    v_cmp_gt_u32 vcc, 30, v3
    v_lshrrev_b32 v5, 3, v1
    v_mul_u32_u24 v5, 1280, v5
    v_cndmask_b32 v8, v4, v2, vcc
    v_and_b32 v3, 7, v1
    v_lshrrev_b32 v4, 4, v1
    v_xor_b32 v3, v3, v4
    v_lshl_add_u32 v9, v3, 4, v5
    v_xor_b32 v3, 4, v3
    v_lshl_add_u32 v10, v3, 4, v5
    s_lshl_b32 s12, s11, 1
    s_add_u32 s12, s12, s10
    s_cmp_ge_u32 s12, 10
    s_cselect_b32 s13, 10, 0
    s_sub_u32 s12, s12, s13
    s_mul_i32 s13, s29, {8*3840}
    s_mul_i32 s14, s7, 480
    s_add_u32 s13, s13, s14
    s_lshl_b32 s14, s6, 7
    s_lshl_b32 s15, s29, 5
    s_add_u32 s14, s14, s15
    s_mul_i32 s14, s14, 1280
    s_mul_i32 s30, s29, {4*PIECE}
    s_lshl_b32 s31, s29, 12
    s_add_u32 s31, s31, {XOFF}
    s_mul_i32 s26, s12, 245760
    s_add_u32 s26, s26, s13
    s_lshl_b32 s27, s12, 7
    s_add_u32 s27, s27, s14
    s_mov_b32 s25, 0
    s_mov_b32 s51, 0
    s_cmp_eq_u32 s5, 0
    s_waitcnt lgkmcnt(0)
    s_cselect_b32 s16, s32, s38
    s_cselect_b32 s17, s33, s39
    s_cselect_b32 s20, s34, s40
    s_cselect_b32 s21, s35, s41
    s_and_b32 s17, s17, 0xffff
    s_mov_b32 s18, 2621440
    s_mov_b32 s19, 0x20000
    s_and_b32 s21, s21, 0xffff
    s_mov_b32 s22, 2457600
    s_mov_b32 s23, 0x20000
    """)
    def wpiece(sub, r):
        A(f"s_add_u32 m0, s30, {(sub*16 + r)*PIECE}\ns_add_u32 s50, s26, {(32*sub + r)*3840}\nbuffer_load_dwordx4 v8, s[20:23], s50 offen lds")
    def xpiece(j):
        A(f"s_add_u32 m0, s31, {j*1024}\ns_add_u32 s50, s27, {j*8*1280}\nbuffer_load_dwordx4 v{9 + (j & 1)}, s[16:19], s50 offen lds")
    def F():
        xpiece(0); wpiece(0, 0); xpiece(1); wpiece(0, 1); xpiece(2); xpiece(3)
    def S():
        wpiece(0, 2); wpiece(0, 3)
        for r in range(4): wpiece(1, r)
    stamp(A, 1)
    A("s_branch P1_lf")
    A("P1_lloop:")
    S()
    A(f"""
    s_add_u32 s12, s12, 1
    s_cmp_eq_u32 s12, 10
    s_cselect_b32 s12, 0, s12
    s_mul_i32 s26, s12, 245760
    s_add_u32 s26, s26, s13
    s_lshl_b32 s27, s12, 7
    s_add_u32 s27, s27, s14
    s_add_u32 s25, s25, 1
    s_cmp_eq_u32 s25, 3
    s_cselect_b32 s25, 0, s25
    s_cselect_b32 s50, {-2*SLOT & 0xffffffff}, {SLOT}
    s_add_u32 s30, s30, s50
    s_add_u32 s31, s31, s50
    s_add_u32 s51, s51, 1
    s_cmp_eq_u32 s51, 10
    s_cbranch_scc1 P1_llast
    P1_lf:
    """.replace(f"s_cselect_b32 s50, {-2*SLOT & 0xffffffff}, {SLOT}", f"s_mov_b32 s50, {SLOT}\ns_cselect_b32 s50, {-2*SLOT & 0xffffffff}, s50"))
    F()
    A("s_cmp_eq_u32 s51, 0\ns_cbranch_scc1 P1_lloop")
    if STAMP:
        for it, sl in ((1, 2), (2, 4), (6, 6)):
            A(f"s_cmp_lg_u32 s51, {it}\ns_cbranch_scc1 P1_lst{it}")
            stamp(A, sl)
            A("s_waitcnt vmcnt(6)")
            stamp(A, sl + 1)
            A(f"P1_lst{it}:")
    A("""
    s_waitcnt vmcnt(6)
    s_barrier
    s_branch P1_lloop
    P1_llast:
    s_waitcnt vmcnt(0)
    s_barrier
    """)
    if STAMP and not FUSED: stamp_flush(A, 8, 3)
    A(f"s_branch {done_label}")
    A("P1_consumer:")
    ACC = 8; WR = 128; XF = 168; AW0 = 184; AX0 = 185; AX1 = 186; AW = 187; AXa = 188; AXb = 189
    def acc(grp, t, rt): return ACC + ((grp * 5 + t) * 2 + rt) * 4
    A(f"""
    v_lshrrev_b32 v2, 2, v1
    v_mul_u32_u24 v2, {PIECE}, v2
    v_and_b32 v3, 3, v1
    v_mul_u32_u24 v3, 40, v3
    v_add_u32 v{AW0}, v2, v3
    v_and_b32 v2, 15, v1
    v_lshrrev_b32 v3, 4, v1
    v_lshrrev_b32 v4, 1, v2
    v_xor_b32 v3, v3, v4
    s_lshl_b32 s12, s28, 12
    s_add_u32 s12, s12, {XOFF}
    v_lshlrev_b32 v2, 7, v2
    v_add_u32 v2, s12, v2
    v_lshl_add_u32 v{AX0}, v3, 4, v2
    v_xor_b32 v3, 4, v3
    v_lshl_add_u32 v{AX1}, v3, 4, v2
    v_mov_b32 v{AW}, v{AW0}
    v_mov_b32 v{AXa}, v{AX0}
    v_mov_b32 v{AXb}, v{AX1}
    """)
    for r in range(ACC, XF + 16, 2):
        A(f"v_pk_mov_b32 v[{r}:{r+1}], 0, 0")
    A("s_mov_b32 s25, 0\ns_mov_b32 s51, 0")
    if FUSED: epoch_get(A)
    stamp(A, 1)
    units = [(sub, grp, t) for sub in range(2) for grp in range(3) for t in range(5)]
    def rd(u, hf):
        sub, grp, t = units[u]
        b = WR + (u % 10) * 4
        off = sub * 16 * PIECE + hf * 512 + grp * 160 + 8 * t
        A.lds(f"ds_read_b64_tr_b16 {vr(b + 2*hf, 2)}, v{AW} offset:{off}", ('w', u))
    def rdx(sub, rt):
        A.lds(f"ds_read_b128 {vr(XF + (sub*2+rt)*4, 4)}, v{AXa if sub == 0 else AXb} offset:{rt*2048}", ('x', sub))
    def mm(u, rt):
        sub, grp, t = units[u]
        b = WR + (u % 10) * 4
        a = acc(grp, t, rt)
        A(f"v_mfma_f32_16x16x32_bf16 {vr(a,4)}, {vr(b,4)}, {vr(XF + (sub*2+rt)*4, 4)}, {vr(a,4)}")
    L = P1_LOOK
    def body(emit):
        save = A.out
        if not emit: A.out = []
        for step in range(30):
            u = (step - L) % 30
            gen_ = 1 if step >= L else 0
            A.lds_wait(('x', units[u][0]) if gen_ else ('px', units[u][0]), ('w', u) if gen_ else ('pw', u))
            mm(u, 0)
            if step == 0: rdx(0, 0)
            if step == L + 2: rdx(1, 0)
            rd(step, 0)
            if step == 26:
                A(f"s_add_u32 s25, s25, {SLOT}\ns_cmp_eq_u32 s25, {3*SLOT}\ns_cselect_b32 s25, 0, s25")
            if step == 27:
                A(f"v_add_u32 v{AXa}, s25, v{AX0}")
            if step == 28:
                A(f"v_add_u32 v{AXb}, s25, v{AX1}")
            mm(u, 1)
            if step == 0: rdx(0, 1)
            if step == L + 2: rdx(1, 1)
            rd(step, 1)
            if step == 28:
                A("s_add_u32 s51, s51, 1\ns_cmp_lt_u32 s51, 10")
        A(f"v_add_u32 v{AW}, s25, v{AW0}")
        A.lds_q = [('p' + t[0], t[1]) for t in A.lds_q]
        if not emit: A.out = save
    A.lds_q = []
    body(False)
    A("P1_cloop:")
    A("s_barrier")
    if STAMP:
        q = A.lds_q
        for it, sl in ((0, 2), (1, 3), (5, 4)):
            if 'nolstamp' in DBG: break
            A(f"s_cmp_lg_u32 s51, {it}\ns_cbranch_scc1 P1_st{it}")
            stamp(A, sl)
            A(f"P1_st{it}:")
        A.lds_q = q
    body(True)
    A("s_cbranch_scc1 P1_cloop")
    for u in range(30 - L, 30):
        A.lds_wait(('pw', u))
        mm(u, 0); mm(u, 1)
    stamp(A, 5)
    A(f"""
    s_mul_i32 s12, s5, {QKV_BYTES}
    s_add_u32 s12, s48, s12
    s_addc_u32 s13, s49, 0
    """)
    srd(A, 24, 12, 13, QKV_BYTES)
    A(f"""
    v_and_b32 v2, 15, v1
    v_lshrrev_b32 v3, 4, v1
    s_lshl_b32 s12, s6, 3
    s_lshl_b32 s13, s28, 1
    s_add_u32 s12, s12, s13
    v_lshlrev_b32 v3, 7, v3
    v_add_u32 v3, s12, v3
    v_mul_u32_u24 v4, {QK_TILE}, v3
    v_mul_u32_u24 v5, {V_TILE}, v3
    v_lshl_add_u32 v6, v2, 3, v4
    v_lshl_add_u32 v4, v2, 4, v4
    v_lshl_add_u32 v5, v2, 4, v5
    v_mov_b32 v7, {f32bits(SCALE_L2E)}
    s_mul_i32 s13, s7, 12
    """)
    for grp in range(3):
        TB = WR + 40 + 24 * (grp & 1) if False else (WR if grp % 2 == 0 else 190)
        A(f"""
        s_add_u32 s14, s13, {4*grp}
        s_mul_i32 s15, s14, {128*QK_TILE}
        s_sub_u32 s16, s14, 64
        s_mul_i32 s16, s16, {128*V_TILE}
        s_add_u32 s16, s16, {V_OFF}
        s_cmp_ge_u32 s14, 32
        s_cbranch_scc1 P1_ns{grp}
        """)
        for r in range(acc(grp, 0, 0), acc(grp, 0, 0) + 40):
            A(f"v_mul_f32 v{r}, v7, v{r}")
        A(f"P1_ns{grp}:")
        for rt in range(2):
            T = TB + rt * 12
            for t in range(5):
                a = acc(grp, t, rt)
                A(f"v_cvt_pk_bf16_f32 v{T+2*t}, v{a}, v{a+1}\nv_cvt_pk_bf16_f32 v{T+2*t+1}, v{a+2}, v{a+3}")
        A(f"s_cmp_ge_u32 s14, 64\ns_cbranch_scc1 P1_ev{grp}")
        for rt in range(2):
            T = TB + rt * 12
            A(f"buffer_store_dwordx4 {vr(T,4)}, v4, s[24:27], s15 offen offset:{rt*QK_TILE} sc1")
            A(f"buffer_store_dwordx4 {vr(T+4,4)}, v4, s[24:27], s15 offen offset:{rt*QK_TILE+256} sc1")
            A(f"buffer_store_dwordx2 {vr(T+8,2)}, v6, s[24:27], s15 offen offset:{rt*QK_TILE+512} sc1")
        A(f"s_branch P1_ed{grp}\nP1_ev{grp}:")
        for rt in range(2):
            T = TB + rt * 12
            A(f"v_mov_b32 v{T+10}, 0x3f803f80\nv_mov_b32 v{T+11}, 0x3f803f80")
            for p in range(3):
                A(f"buffer_store_dwordx4 {vr(T+4*p,4)}, v5, s[24:27], s16 offen offset:{rt*V_TILE+256*p} sc1")
        A(f"P1_ed{grp}:")
    stamp(A, 6)


EP = 250
EP_LDS = P1_LDS
FUSED_LDS = P1_LDS + 64
SPIN_LIMIT = 1 << 17

def flag_srd(A):
    A(f"s_add_u32 s94, s48, {FLAG_BASE}\ns_addc_u32 s95, s49, 0")
    srd(A, 96, 94, 95, 4096)

def epoch_get(A):
    A(f"""
    s_cmp_lg_u32 s28, 0
    s_cbranch_scc1 EP_skip
    s_memrealtime s[94:95]
    v_mov_b32 v246, 0
    v_mov_b32 v247, 0
    v_mov_b32 v248, 0
    s_waitcnt lgkmcnt(0)
    s_mov_b32 s96, s46
    s_and_b32 s97, s47, 0xffff
    s_mov_b32 s98, 256
    s_mov_b32 s99, 0x20000
    s_or_b32 s94, s94, 1
    v_mov_b32 v244, s94
    v_mov_b32 v245, s95
    v_mov_b32 v{EP}, s94
    v_mov_b32 v{EP+1}, s95
    s_mov_b64 s[94:95], exec
    s_mov_b64 exec, 1
    buffer_atomic_cmpswap_x2 v[244:247], v248, s[96:99], 0 offen sc0 sc1
    s_mov_b64 exec, s[94:95]
    EP_skip:
    """)

def epoch_share(A):
    A(f"""
    s_cmp_lg_u32 s28, 0
    s_cbranch_scc1 EP_skip2
    v_readfirstlane_b32 s94, v244
    v_readfirstlane_b32 s95, v245
    s_nop 1
    s_or_b32 s96, s94, s95
    s_cbranch_scc0 EP_mine
    v_mov_b32 v{EP}, s94
    v_mov_b32 v{EP+1}, s95
    EP_mine:
    v_mov_b32 v12, {EP_LDS}
    s_nop 0
    ds_write_b64 v12, v[{EP}:{EP+1}]
    s_waitcnt lgkmcnt(0)
    EP_skip2:
    """)

def epoch_read(A):
    A(f"v_mov_b32 v12, {EP_LDS}\ns_nop 0\nds_read_b64 v[{EP}:{EP+1}], v12\ns_waitcnt lgkmcnt(0)")

def flag_set(A, wave, idx_sreg, base, tag):
    A(f"""
    s_cmp_lg_u32 s28, {wave}
    s_cbranch_scc1 FS_{tag}
    """)
    flag_srd(A)
    A(f"""
    s_lshl_b32 s94, s{idx_sreg}, 3
    v_mov_b32 v12, s94
    s_mov_b64 s[94:95], exec
    s_mov_b64 exec, 1
    buffer_store_dwordx2 v[{EP}:{EP+1}], v12, s[96:99], 0 offen offset:{base} sc1
    s_mov_b64 exec, s[94:95]
    FS_{tag}:
    """)

def poll(A, vaddr, vtmp, base, tag):
    A(f"""
    s_mov_b32 s94, 0
    PL_{tag}:
    buffer_load_dwordx2 v[{vtmp}:{vtmp+1}], v{vaddr}, s[96:99], 0 offen offset:{base} sc1
    s_waitcnt vmcnt(0)
    v_cmp_ne_u64 vcc, v[{vtmp}:{vtmp+1}], v[{EP}:{EP+1}]
    s_add_u32 s94, s94, 1
    s_nop 0
    s_cmp_eq_u64 vcc, 0
    s_cbranch_scc1 PD_{tag}
    s_sleep 2
    s_cmp_lt_u32 s94, {SPIN_LIMIT}
    s_cbranch_scc1 PL_{tag}
    PD_{tag}:
    """)

def sync_wait1(A):
    A(f"""
    s_cmp_lg_u32 s28, 4
    s_cbranch_scc1 SW1_skip
    v_min_u32 v2, 23, v1
    v_cmp_lt_u32 vcc, 11, v2
    v_mov_b32 v3, 12
    v_mov_b32 v4, 0
    v_cndmask_b32 v3, v4, v3, vcc
    v_sub_u32 v2, v2, v3
    v_mov_b32 v6, 128
    v_cndmask_b32 v3, v4, v6, vcc
    v_lshrrev_b32 v4, 2, v2
    v_and_b32 v2, 3, v2
    s_lshl_b32 s94, s4, 1
    s_sub_u32 s94, s94, 2
    v_add_u32 v2, s94, v2
    v_max_i32 v2, 0, v2
    v_lshl_add_u32 v3, v2, 3, v3
    v_lshlrev_b32 v4, 5, v4
    v_add_u32 v4, s3, v4
    v_mul_u32_u24 v4, 43, v4
    v_lshrrev_b32 v4, 9, v4
    v_add_u32 v3, v3, v4
    v_lshlrev_b32 v3, 3, v3
    """)
    flag_srd(A)
    stamp(A, 20)
    poll(A, 3, 6, 0, "s1")
    stamp(A, 21)
    A("SW1_skip:\ns_barrier")
    stamp(A, 22)

def sync_wait2(A):
    A(f"""
    s_lshr_b32 s94, s6, 1
    s_lshl_b32 s94, s94, 5
    v_and_b32 v2, 31, v1
    v_add_u32 v2, s94, v2
    v_lshlrev_b32 v2, 3, v2
    """)
    flag_srd(A)
    stamp(A, 24)
    poll(A, 2, 4, 2048, "s2")
    stamp(A, 25)

BLK = 1536
L_BV = 0
L_AV = 16 * BLK
L_BK = 26 * BLK
L_AK = 42 * BLK
P2_LDS = 52 * BLK + 1024

def phase2(A, sb):
    A(f"""
    s_and_b32 s3, s2, 31
    s_lshr_b32 s4, s2, 5
    v_and_b32 v3, 15, v1
    v_bfe_u32 v4, v1, 4, 1
    v_mul_u32_u24 v4, {QK_TILE}, v4
    v_lshl_add_u32 v5, v3, 4, v4
    v_lshl_add_u32 v6, v3, 3, v4
    v_add_u32 v6, 504, v6
    v_cmp_gt_u32 vcc, 32, v1
    v_add_u32 v7, 256, v5
    v_add_u32 v8, {2*QK_TILE}, v5
    v_add_u32 v9, {2*QK_TILE}, v7
    v_add_u32 v10, {2*QK_TILE}, v6
    v_cndmask_b32 v12, v7, v5, vcc
    v_cndmask_b32 v13, v8, v6, vcc
    v_cndmask_b32 v14, v10, v9, vcc
    s_mov_b32 s12, 0x15555556
    """)
    for ty in range(3):
        A(f"""
        v_add_u32 v3, {ty*64}, v1
        v_mul_hi_u32 v4, v3, s12
        v_mul_u32_u24 v5, 12, v4
        v_sub_u32 v5, v3, v5
        v_lshrrev_b32 v6, 2, v5
        v_and_b32 v5, 3, v5
        v_lshl_add_u32 v5, v4, 2, v5
        v_lshrrev_b32 v7, 4, v5
        v_mul_u32_u24 v7, {V_TILE}, v7
        v_and_b32 v5, 15, v5
        v_lshl_add_u32 v7, v5, 4, v7
        v_lshl_add_u32 v{15+ty}, v6, 8, v7
        """)
    QA = 20; QB = 28
    A(f"""
    s_lshl_b32 s14, s3, 7
    s_lshl_b32 s15, s4, 4
    s_add_u32 s14, s14, s15
    v_and_b32 v3, 15, v1
    v_bfe_u32 v4, v1, 4, 1
    v_lshrrev_b32 v5, 5, v1
    s_lshl_b32 s15, s28, 1
    s_add_u32 s15, s15, s14
    v_add_u32 v4, s15, v4
    v_mul_u32_u24 v4, {QK_TILE}, v4
    v_lshl_add_u32 v18, v3, 4, v4
    v_lshl_add_u32 v18, v5, 8, v18
    v_lshl_add_u32 v7, v3, 3, v4
    v_mov_b32 v8, {OOB}
    v_mov_b32 v{QA+4}, 0
    v_mov_b32 v{QA+5}, 0
    v_cndmask_b32 v19, v8, v7, vcc
    v_mov_b32 v{QB+4}, 0
    v_mov_b32 v{QB+5}, 0
    s_waitcnt lgkmcnt(0)
    s_add_u32 s12, s48, {QKV_BYTES}
    s_addc_u32 s13, s49, 0
    """)
    srd(A, 16, 48, 49, QKV_BYTES)
    srd(A, 20, 12, 13, QKV_BYTES)
    if FUSED:
        sync_wait1(A)
    def dma_unit(srdn, areg, tile_bytes, reg_off, tile_delta, lds_base):
        A(f"""
        s_lshl_b32 s30, s4, 4
        s_add_u32 s30, s30, s29
        s_add_u32 s31, s14, s29
        s_add_i32 s31, s31, {tile_delta}
        s_mul_i32 s31, s31, {tile_bytes}
        s_add_u32 s31, s31, {reg_off}
        s_cmp_lt_u32 s30, {-tile_delta}
        s_cselect_b32 s31, 0x70000000, s31
        s_mul_i32 s30, s29, 768
        """)
        for ty in range(3):
            A(f"s_add_u32 m0, s30, {lds_base + ty*1024}\ns_nop 0\nbuffer_load_dwordx4 v{areg+ty}, s[{srdn}:{srdn+3}], s31 offen sc1 lds")
    A(f"""
    buffer_load_dwordx4 {vr(QA,4)}, v18, s[16:19], 0 offen sc1
    buffer_load_dwordx2 {vr(QA+6,2)}, v19, s[16:19], 0 offen offset:512 sc1
    """)
    A("s_lshl_b32 s29, s28, 2\ns_cmp_ge_u32 s28, 5\ns_cbranch_scc1 P2_noak")
    dma_unit(16, 12, QK_TILE, K_OFF, -4, L_AK)
    A("P2_noak:\ns_cmp_lt_u32 s28, 3\ns_cbranch_scc1 P2_noav\ns_sub_u32 s29, s29, 12")
    dma_unit(16, 15, V_TILE, V_OFF, -4, L_AV)
    A("P2_noav:\ns_lshl_b32 s29, s28, 2")
    A(f"""
    buffer_load_dwordx4 {vr(QB,4)}, v18, s[20:23], 0 offen sc1
    buffer_load_dwordx2 {vr(QB+6,2)}, v19, s[20:23], 0 offen offset:512 sc1
    """)
    dma_unit(20, 12, QK_TILE, K_OFF, -16, L_BK)
    dma_unit(20, 15, V_TILE, V_OFF, -16, L_BV)
    stamp(A, 23)
    A(f"""
    s_add_u32 s12, s48, {O_BASE}
    s_addc_u32 s13, s49, 0
    """)
    srd(A, 24, 12, 13, 2 * O_BYTES)
    MS = 52
    PM = 36; NPM = 44; AK = 52; AV = 53; OA = 54; NEGM = 57; T0 = 58; T1 = 59; QD = 60; NINF = 61
    CA = 64; CB = 80; S0 = 96; SA = 112; SB = 128; PA = 144; PB = 152; KF = 160; VF = 176; O = 192; P2 = 208
    A(f"""
    v_and_b32 v9, 31, v1
    v_lshlrev_b32 v10, 2, v5
    v_sub_u32 v{QD}, v9, v10
    v_mov_b32 v{NINF}, 0xff800000
    """)
    for r in range(16):
        kc = (r & 3) + 8 * (r >> 2)
        A(f"v_cmp_le_i32 s[{MS+2*r}:{MS+2*r+1}], {kc}, v{QD}")
    A("v_mov_b32 v11, 0xffff\nv_mov_b32 v3, 0xffff0000\nv_mov_b32 v4, 0")
    for j in range(8):
        A(f"v_cndmask_b32 v6, v4, v11, s[{MS+4*j}:{MS+4*j+1}]")
        A(f"v_cndmask_b32 v7, v4, v3, s[{MS+4*j+2}:{MS+4*j+3}]")
        A(f"v_or_b32 v{PM+j}, v6, v7\nv_not_b32 v{NPM+j}, v{PM+j}")
    A(f"""
    s_mul_i32 s12, s28, {BLK}
    v_lshlrev_b32 v{AK}, 4, v1
    v_add_u32 v{AK}, s12, v{AK}
    v_add_u32 v{AK}, {L_BK}, v{AK}
    v_and_b32 v3, 3, v1
    v_bfe_u32 v4, v1, 2, 2
    v_bfe_u32 v6, v1, 4, 1
    v_lshrrev_b32 v7, 1, v3
    v_lshlrev_b32 v7, 6, v7
    v_and_b32 v8, 1, v3
    v_lshl_add_u32 v7, v8, 3, v7
    v_cmp_eq_u32 vcc, 0, v3
    v_mov_b32 v8, 136
    v_mov_b32 v11, 128
    v_cndmask_b32 v8, v8, v11, vcc
    v_cmp_eq_u32 vcc, 0, v6
    s_nop 1
    v_cndmask_b32 v7, v8, v7, vcc
    v_lshl_add_u32 v7, v4, 4, v7
    v_mul_u32_u24 v8, 192, v5
    v_add_u32 v7, v7, v8
    v_add_u32 v{AV}, s12, v7
    s_lshl_b32 s12, s4, 4
    s_lshl_b32 s13, s28, 1
    s_add_u32 s12, s12, s13
    v_bfe_u32 v3, v1, 4, 1
    v_add_u32 v3, s12, v3
    v_mul_u32_u24 v3, 20480, v3
    v_and_b32 v4, 15, v1
    v_lshl_add_u32 v3, v4, 4, v3
    s_mul_i32 s13, s3, 5
    v_add_u32 v4, s13, v5
    v_lshrrev_b32 v6, 1, v4
    v_and_b32 v7, 1, v4
    v_lshl_add_u32 v6, v6, 8, v3
    v_lshl_add_u32 v{OA}, v7, 3, v6
    v_add_u32 v{OA+1}, 256, v{OA}
    v_add_u32 v6, 512, v{OA}
    v_mov_b32 v8, {OOB}
    v_cmp_gt_u32 vcc, 32, v1
    s_mov_b32 s84, {f32bits(2.0**-64)}
    s_mov_b32 s85, {f32bits(2.0**64)}
    v_cndmask_b32 v{OA+2}, v8, v6, vcc
    s_sub_u32 s86, 8, s28
    s_cmp_eq_u32 s4, 0
    s_cselect_b32 s86, s86, -1
    s_or_b32 s87, s4, s28
    """)
    def rdK(lds_k, b, slot):
        for i in range(2):
            A.lds(f"ds_read_b128 {vr(KF + slot*8 + 4*i, 4)}, v{AK} offset:{lds_k - L_BK + b*BLK + i*1024}", ('k', lds_k, b))
    def rdV(lds_v, b, slot):
        for i in range(4):
            A.lds(f"ds_read_b64_tr_b16 {vr(VF + slot*8 + 2*i, 2)}, v{AV} offset:{lds_v + b*BLK + i*384}", ('v', lds_v, b))
    def qk(i, slot, Q, dst, C):
        c = vr(C, 16) if i == 0 else vr(dst, 16)
        A(f"v_mfma_f32_32x32x16_bf16 {vr(dst,16)}, {vr(KF+slot*8+4*i,4)}, {vr(Q+4*i,4)}, {c}")
    def pv(i, slot, Preg, first=False):
        c = "0" if first else vr(O, 16)
        A(f"v_mfma_f32_32x32x16_bf16 {vr(O,16)}, {vr(VF+slot*8+4*i,4)}, {vr(Preg+4*i,4)}, {c}")
    def cvt(S, Pd, j):
        A(f"v_cvt_pk_bf16_f32 v{Pd+j}, v{S+2*j}, v{S+2*j+1}")
    def finish(osoff, tag, flagreg):
        A(f"s_nop 7\ns_nop 3\nv_rcp_f32 v{T0}, v{O+12}")
        A(f"v_add_f32 v{T1}, |v{O}|, |v{O+1}|")
        for r in range(2, 12):
            A(f"v_add_f32 v{T1}, v{T1}, |v{O+r}|")
        A(f"""
        v_cmp_le_f32 s[88:89], s84, v{O+12}
        v_cmp_ge_f32 s[90:91], s85, v{O+12}
        v_cmp_gt_f32 vcc, -v{NINF}, v{T1}
        """)
        for r in range(12):
            A(f"v_mul_f32 v{O+r}, v{O+r}, v{T0}")
        A(f"""
        s_and_b64 s[88:89], s[88:89], s[90:91]
        s_and_b64 s[88:89], s[88:89], vcc
        s_or_b32 s90, s{flagreg}, 0
        s_cbranch_scc1 P2_{tag}_ok
        s_cmp_eq_u64 s[88:89], exec
        s_cbranch_scc0 P2_{tag}_fb
        P2_{tag}_ok:
        """)
        for j in range(6):
            A(f"v_cvt_pk_bf16_f32 v{O+j}, v{O+2*j}, v{O+2*j+1}")
        A(f"s_mov_b32 s12, {osoff}")
        for j in range(3):
            A(f"buffer_store_dwordx2 {vr(O+2*j,2)}, v{OA+j}, s[24:27], s12 offen sc1")
    def build_CA():
        for r in range(16):
            kc = (r & 3) + 8 * (r >> 2)
            A(f"v_subrev_u32 v{T0}, {kc}, v{QD}\nv_and_b32 v{T0}, 17, v{T0}\nv_cmp_eq_u32 s[88:89], 0, v{T0}\ns_nop 1\nv_cndmask_b32 v{CA+r}, v{NINF}, v{NEGM}, s[88:89]")
    A(f"v_mov_b32 v{NEGM}, 0\ns_mov_b32 s92, 0\ns_mov_b32 s93, 0")
    build_CA()
    stamp(A, sb + 0)
    A("s_waitcnt vmcnt(0)\ns_barrier")
    stamp(A, sb + 1)
    A("P2_a_start:")
    A.lds_q = []
    rdK(L_AK, 1, 0); rdK(L_AK, 2, 1); rdV(L_AV, 1, 0); rdV(L_AV, 2, 1)
    A.lds_wait(('k', L_AK, 1))
    qk(0, 0, QA, SA, CA); qk(1, 0, QA, SA, CA)
    A.lds_wait(('k', L_AK, 2))
    qk(0, 1, QA, SB, CA); qk(1, 1, QA, SB, CA)
    A("s_cmp_lg_u32 s87, 0\ns_nop 7\ns_cbranch_scc1 P2_a_val\ns_nop 3")
    for r in range(16): A(f"v_mov_b32 v{SA+r}, v{NINF}")
    A("P2_a_val:\ns_nop 3")
    for r in range(16):
        A(f"v_cndmask_b32 v{SA+r}, v{SA+r}, v{SB+r}, s[{MS+2*r}:{MS+2*r+1}]")
    A("s_cmp_eq_u32 s92, 1\ns_cbranch_scc1 P2_a_max")
    for r in range(16): A(f"v_exp_f32 v{SA+r}, v{SA+r}")
    A("s_nop 0")
    for j in range(8): cvt(SA, PA, j)
    for j in range(8):
        A(f"v_and_b32 v{PB+j}, v{PA+j}, v{PM+j}\nv_and_b32 v{PA+j}, v{PA+j}, v{NPM+j}")
    A.lds_wait(('v', L_AV, 2))
    A("s_nop 0")
    pv(0, 0, PA, True); pv(1, 0, PA); pv(0, 1, PB); pv(1, 1, PB)
    finish(0, 'a', 92)
    stamp(A, sb + 2)
    A(f"v_mov_b32 v{NEGM}, 0")
    A("P2_b_start:")
    A.lds_q = []
    rdK(L_BK, 0, 0); rdK(L_BK, 1, 1)
    A("s_cmp_eq_u32 s4, 0\ns_cselect_b64 s[88:89], exec, 0\ns_nop 1")
    for r in range(16): A(f"v_cndmask_b32 v{CB+r}, v{NEGM}, v{NINF}, s[88:89]")
    def cb_switch(b):
        A(f"s_cmp_lg_u32 s86, {b}\ns_cbranch_scc1 P2_cb{b}\ns_nop 7")
        for r in range(16): A(f"v_mov_b32 v{CB+r}, v{NEGM}")
        A(f"s_nop 1\nP2_cb{b}:")
    A.lds_wait(('k', L_BK, 0))
    qk(0, 0, QB, S0, CB); qk(1, 0, QB, S0, CB)
    rdK(L_BK, 2, 0)
    cb_switch(1)
    A.lds_wait(('k', L_BK, 1))
    qk(0, 1, QB, SA, CB); qk(1, 1, QB, SA, CB)
    rdV(L_BV, 1, 1)
    A("s_cmp_eq_u32 s93, 1\ns_cbranch_scc1 P2_b_max")
    cb_switch(2)
    A("s_nop 7")
    for b in range(1, 8):
        Sc, Sn = (SA, SB) if b % 2 == 1 else (SB, SA)
        Pc, Pp = (PA, PB) if b % 2 == 1 else (PB, PA)
        A.lds_wait(('k', L_BK, b + 1))
        qk(0, (b + 1) % 2, QB, Sn, CB)
        for r in range(0, 4): A(f"v_exp_f32 v{Sc+r}, v{Sc+r}")
        qk(1, (b + 1) % 2, QB, Sn, CB)
        if b + 2 <= 8: rdK(L_BK, b + 2, b % 2)
        for r in range(4, 8): A(f"v_exp_f32 v{Sc+r}, v{Sc+r}")
        if b > 1:
            A.lds_wait(('v', L_BV, b - 1))
            pv(0, (b - 1) % 2, Pp, first=(b == 2))
        for r in range(8, 12): A(f"v_exp_f32 v{Sc+r}, v{Sc+r}")
        if b > 1:
            pv(1, (b - 1) % 2, Pp)
        nb = b + 1 if b < 7 else 0
        rdV(L_BV, nb, (b + 1) % 2)
        for r in range(12, 16): A(f"v_exp_f32 v{Sc+r}, v{Sc+r}")
        for j in range(8): cvt(Sc, Pc, j)
        if b + 2 <= 8: cb_switch(b + 2)
    for r in range(16):
        A(f"v_cndmask_b32 v{S0+r}, v{S0+r}, v{SB+r}, s[{MS+2*r}:{MS+2*r+1}]")
        if r == 3:
            A.lds_wait(('v', L_BV, 7)); pv(0, 1, PA)
        if r == 11:
            pv(1, 1, PA); rdV(L_BV, 8, 1)
    for r in range(16): A(f"v_exp_f32 v{S0+r}, v{S0+r}")
    A("s_nop 0")
    for j in range(8): cvt(S0, PB, j)
    for j in range(8):
        A(f"v_and_b32 v{P2+j}, v{PB+j}, v{PM+j}\nv_and_b32 v{PB+j}, v{PB+j}, v{NPM+j}")
    A.lds_wait(('v', L_BV, 8))
    A("s_nop 0")
    pv(0, 0, PB); pv(1, 0, PB); pv(0, 1, P2); pv(1, 1, P2)
    finish(O_BYTES, 'b', 93)
    stamp(A, sb + 3)
    A("s_branch P2_done")
    def rowmax_finish(regs_done_in, back, flagreg, rebuild):
        A(f"""
        v_mov_b32 v{T0}, v{T1}
        s_nop 1
        v_permlane32_swap_b32 v{T1}, v{T0}
        s_nop 1
        v_max_f32 v{T1}, v{T1}, v{T0}
        v_sub_f32 v{NEGM}, 0, v{T1}
        s_mov_b32 s{flagreg}, 2
        """)
        rebuild()
        A(f"s_waitcnt lgkmcnt(0)\ns_branch {back}")
    def maxblock(S, first):
        if first: A(f"v_max_f32 v{T1}, v{S}, v{S+1}")
        else: A(f"v_max3_f32 v{T1}, v{T1}, v{S}, v{S+1}")
        for r in range(2, 16, 2): A(f"v_max3_f32 v{T1}, v{T1}, v{S+r}, v{S+r+1}")
    A("P2_a_fb:\ns_mov_b32 s92, 1\ns_branch P2_a_start")
    A("P2_a_max:")
    maxblock(SA, True)
    rowmax_finish(None, "P2_a_start", 92, build_CA)
    A("P2_b_fb:\ns_mov_b32 s93, 1\ns_branch P2_b_start")
    A("P2_b_max:")
    A("s_waitcnt lgkmcnt(0)\ns_nop 7\ns_nop 3")
    A.lds_q = []
    maxblock(SA, True)
    for b in range(2, 9):
        A(f"s_cmp_lg_u32 s86, {b}\ns_cbranch_scc1 P2_mcb{b}")
        for r in range(16): A(f"v_mov_b32 v{CB+r}, v{NEGM}")
        A(f"P2_mcb{b}:")
        rdK(L_BK, b, 0)
        A.lds_drain()
        qk(0, 0, QB, SA, CB); qk(1, 0, QB, SA, CB)
        A("s_nop 7\ns_nop 7")
        if b == 8:
            for r in range(16):
                A(f"v_cndmask_b32 v{SA+r}, v{S0+r}, v{SA+r}, s[{MS+2*r}:{MS+2*r+1}]")
        maxblock(SA, False)
    rowmax_finish(None, "P2_b_start", 93, lambda: None)
    A("P2_done:")

def phase3(A, sb, endlabel):
    A("s_mul_i32 s13, s7, 160\ns_cmp_lt_u32 s28, 4\ns_cbranch_scc1 P3_comp")
    A("s_mov_b32 s12, 0x1999999a")
    WA = 2
    for i in range(5):
        A(f"""
        v_add_u32 v8, {i*64}, v1
        v_mul_hi_u32 v9, v8, s12
        v_mul_u32_u24 v10, 10, v9
        v_sub_u32 v10, v8, v10
        v_bfe_u32 v11, v9, 2, 2
        v_lshlrev_b32 v11, 3, v11
        v_bfe_u32 v12, v9, 4, 1
        v_lshl_add_u32 v11, v12, 2, v11
        v_and_b32 v12, 3, v9
        v_add_u32 v11, v11, v12
        v_mul_u32_u24 v11, 1280, v11
        v_lshl_add_u32 v{WA+i}, v10, 4, v11
        """)
    A(f"""
    s_cmp_eq_u32 s5, 0
    s_waitcnt lgkmcnt(0)
    s_cselect_b32 s16, s36, s42
    s_cselect_b32 s17, s37, s43
    s_and_b32 s17, s17, 0xffff
    s_mov_b32 s18, 819200
    s_mov_b32 s19, 0x20000
    s_sub_u32 s29, s28, 4
    s_mul_i32 s15, s29, 5120
    s_mov_b32 s30, 0
    s_mul_i32 s31, s7, 5
    s_lshr_b32 s31, s31, 1
    s_add_u32 s31, s31, s29
    P3_wl:
    s_cmp_ge_u32 s31, 20
    s_cselect_b32 s14, 20, 0
    s_sub_u32 s31, s31, s14
    s_mul_i32 s14, s31, 40960
    s_add_u32 s14, s14, s13
    """)
    for i in range(5):
        A(f"s_add_u32 m0, s15, {i*1024}\ns_nop 0\nbuffer_load_dwordx4 v{WA+i}, s[16:19], s14 offen lds")
    A(f"""
    s_add_u32 s31, s31, 4
    s_add_u32 s15, s15, {4*5120}
    s_add_u32 s30, s30, 1
    s_cmp_lt_u32 s30, 5
    s_cbranch_scc1 P3_wl
    s_waitcnt vmcnt(0)
    s_barrier
    s_branch {endlabel}
    P3_comp:
    """)
    OF = 60; ACC = 16; WR = 220; AW = 8
    def of(ks, rt): return OF + (ks * 2 + rt) * 4
    A(f"""
    s_lshl_b32 s12, s6, 3
    s_lshl_b32 s14, s28, 1
    s_add_u32 s12, s12, s14
    s_mul_i32 s15, s12, 20480
    s_mul_i32 s16, s5, {O_BYTES}
    s_add_u32 s15, s15, s16
    v_lshlrev_b32 v7, 4, v1
    v_add_u32 v7, s15, v7
    v_add_u32 v6, 20480, v7
    s_waitcnt lgkmcnt(0)
    s_add_u32 s16, s48, {O_BASE}
    s_addc_u32 s17, s49, 0
    """)
    srd(A, 20, 16, 17, 2 * O_BYTES)
    srd(A, 24, 44, 45, 2048 * 1280 * 2)
    if FUSED:
        sync_wait2(A)
    A("s_mul_i32 s30, s7, 5\ns_lshr_b32 s30, s30, 1\ns_lshl_b32 s30, s30, 10")
    def ldo(ks):
        for rt in range(2):
            A(f"buffer_load_dwordx4 {vr(of(ks,rt),4)}, v{7-rt}, s[20:23], s30 offen sc1")
        A("s_add_u32 s30, s30, 1024\ns_cmp_eq_u32 s30, 20480\ns_cselect_b32 s30, 0, s30")
    D = 8
    for ks in range(D): ldo(ks)
    A(f"""
    v_lshrrev_b32 v9, 2, v1
    v_mul_u32_u24 v9, 160, v9
    v_and_b32 v10, 3, v1
    v_mul_u32_u24 v10, 40, v10
    v_add_u32 v{AW}, v9, v10
    v_add_u32 v{AW+1}, 51200, v{AW}
    """)
    for r in range(40): A(f"v_mov_b32 v{ACC+r}, 0")
    stamp(A, sb + 0)
    A("s_barrier")
    stamp(A, sb + 1)
    units = [(ks, t) for ks in range(20) for t in range(5)]
    def rd(n):
        ks, t = units[n]
        b = WR + (n % 8) * 4
        for hf in range(2):
            off = (ks * 32 + hf * 16) * 160 + 8 * t
            a = AW
            if off >= 51200: off -= 51200; a = AW + 1
            A.lds(f"ds_read_b64_tr_b16 {vr(b+2*hf,2)}, v{a} offset:{off}", ('w', n))
    LA = 6
    A.lds_q = []
    for n in range(LA): rd(n)
    for n, (ks, t) in enumerate(units):
        if t == 0:
            outstanding = 2 * (min(ks + D, 20) - ks)
            A(f"s_waitcnt vmcnt({outstanding - 2})")
            if ks + D < 20: ldo(ks + D)
        if n + LA < len(units): rd(n + LA)
        A.lds_wait(('w', n))
        b = WR + (n % 8) * 4
        for rt in range(2):
            a = ACC + (t * 2 + rt) * 4
            A(f"v_mfma_f32_16x16x32_bf16 {vr(a,4)}, {vr(b,4)}, {vr(of(ks,rt),4)}, {vr(a,4)}")
    stamp(A, sb + 2)
    A(f"""
    v_and_b32 v2, 15, v1
    v_lshrrev_b32 v3, 4, v1
    s_lshl_b32 s12, s6, 7
    s_lshl_b32 s14, s28, 5
    s_add_u32 s12, s12, s14
    v_add_u32 v2, s12, v2
    v_mul_u32_u24 v2, 2560, v2
    v_mul_u32_u24 v3, 40, v3
    v_add_u32 v2, v2, v3
    s_mul_i32 s14, s5, 1280
    s_add_u32 s14, s14, s13
    v_add_u32 v2, s14, v2
    v_add_u32 v3, 40960, v2
    s_nop 3
    """)
    for rt in range(2):
        T = OF + rt * 12
        for t in range(5):
            a = ACC + (t * 2 + rt) * 4
            A(f"v_cvt_pk_bf16_f32 v{T+2*t}, v{a}, v{a+1}\nv_cvt_pk_bf16_f32 v{T+2*t+1}, v{a+2}, v{a+3}")
        A(f"buffer_store_dwordx4 {vr(T,4)}, v{2+rt}, s[24:27], 0 offen")
        A(f"buffer_store_dwordx4 {vr(T+4,4)}, v{2+rt}, s[24:27], 0 offen offset:16")
        A(f"buffer_store_dwordx2 {vr(T+8,2)}, v{2+rt}, s[24:27], 0 offen offset:32")
    stamp(A, sb + 3)

def gen_split(A):
    A.begin("qkv_kernel")
    prologue(A, "K1_end")
    stamp(A, 0)
    phase1(A, "K1_end")
    stamp_flush(A, 7, 0)
    A("K1_end:\ns_endpgm")
    A.end(256, 102, 256, 512, P1_LDS)
    A.begin("attn_kernel")
    prologue(A, "K2_end")
    stamp(A, 0)
    phase2(A, 1)
    stamp_flush(A, 5, 1)
    A("K2_end:\ns_endpgm")
    A.end(256, 102, 256, 512, P2_LDS)
    A.begin("proj_kernel")
    prologue(A, "K3_end")
    p3_map(A)
    stamp(A, 0)
    phase3(A, 1, "K3_end")
    stamp_flush(A, 5, 2)
    A("K3_end:\ns_endpgm")
    A.end(256, 102, 256, 512, 102400)


def p3_map(A):
    A("""
    s_and_b32 s3, s2, 7
    s_lshr_b32 s4, s2, 3
    s_lshr_b32 s5, s3, 2
    s_and_b32 s6, s3, 3
    s_lshl_b32 s6, s6, 2
    s_and_b32 s10, s4, 3
    s_add_u32 s6, s6, s10
    s_lshr_b32 s7, s4, 2
    """)

def gen_fused(A):
    A.begin(MAIN)
    prologue(A, "K_end")
    stamp(A, 0)
    phase1(A, "P1_done")
    A("s_waitcnt vmcnt(0)")
    epoch_share(A)
    A("P1_done:\ns_barrier")
    stamp(A, 7)
    epoch_read(A)
    A("s_lshl_b32 s12, s5, 7\ns_lshl_b32 s13, s6, 3\ns_add_u32 s12, s12, s13\ns_add_u32 s12, s12, s7")
    flag_set(A, 4, 12, 0, "f1")
    phase2(A, 8)
    A("s_waitcnt vmcnt(0)\ns_barrier")
    stamp(A, 12)
    flag_set(A, 0, 2, 2048, "f2")
    p3_map(A)
    phase3(A, 13, "K_end2")
    A("K_end2:")
    stamp_flush(A, 17, 0)
    A("K_end:\ns_endpgm")
    A.end(256, 102, 256, 512, FUSED_LDS)

if __name__ == '__main__':
    if '--stamp' in sys.argv: STAMP = True
    for a in sys.argv[1:]:
        if a.startswith('--dbg='): DBG.update(a[6:].split(','))
    A = Asm()
    if '--fused' in sys.argv:
        FUSED = True
        gen_fused(A)
    else:
        gen_split(A)
    order = None
    for a in sys.argv[1:]:
        if a.startswith('--order='): order = [x + '_kernel' for x in a[8:].split(',')]
    sys.stdout.write(A.text(order))
```

```python
import sys, math, struct

REF = 'concat_heads__sliding_local_dilated__sliding_block__prompt.s.ref'
HDR = [l for l in open(REF).read().split('\n')
       if l.startswith(';') and '@launch' not in l and 'Override' not in l and 'grid=ceil' not in l]
MAIN = "concat_heads__sliding_local_dilated__sliding_block__prompt_kernel"

QK_TILE = 640
V_TILE = 768
K_OFF = 32 * 128 * QK_TILE
V_OFF = 2 * K_OFF
QKV_BYTES = V_OFF + 32 * 128 * V_TILE
O_BASE = 2 * QKV_BYTES
O_BYTES = 2048 * 640 * 2
FLAG_BASE = 24 << 20
OOB = 0x7ffff000

STAMP = False
DBG = set()
STAMP_OFF = 30 << 20
FUSED = False

def f32bits(x): return struct.unpack('<I', struct.pack('<f', x))[0]
SCALE_L2E = (20 ** -0.5) * math.log2(math.e)

class Asm:
    def __init__(self):
        self.out = []; self.kernels = []; self.launches = []; self.lds_q = []
    def __call__(self, s):
        for l in s.split('\n'):
            l = l.strip()
            if not l: continue
            if 'noload' in DBG and l.startswith('buffer_load') and ' lds' in l: continue
            if 'nomfma' in DBG and l.startswith('v_mfma'): continue
            if 'nods' in DBG and l.startswith('ds_read'): continue
            if 'nowait' in DBG and l.startswith('s_waitcnt lgkmcnt(') and not l.endswith('(0)'): continue
            if 'halfds' in DBG and l.startswith('ds_read_b64_tr') and (int(l.split('[')[1].split(':')[0]) % 4 == 2): continue
            if 'nobar' in DBG and l.startswith('s_barrier'): continue
            if 'nostore' in DBG and l.startswith('buffer_store') and 's[8:11]' not in l: continue
            self.out.append(l if l.endswith(':') else '    ' + l)
    def begin(self, name):
        self.out.append(f".globl {name}\n.p2align 8\n.type {name},@function\n{name}:")
        self.cur = name
    def end(self, vgpr, sgpr, grid, block, lds):
        self.kernels.append((self.cur, vgpr, sgpr))
        self.launches.append((self.cur, grid, block, lds))
    def lds(self, s, tag):
        self(s); self.lds_q.append(tag)
    def lds_wait(self, *tags):
        idx = [i for i, t in enumerate(self.lds_q) if t in tags]
        if not idx: return
        n = len(self.lds_q) - 1 - idx[-1]
        assert n <= 15, n
        self(f"s_waitcnt lgkmcnt({n})")
        self.lds_q = self.lds_q[idx[-1] + 1:]
    def lds_drain(self):
        self("s_waitcnt lgkmcnt(0)"); self.lds_q = []
    def text(self, order=None):
        o = list(HDR)
        ls = self.launches if order is None else [l for n in order for l in self.launches if l[0] == n]
        if len(ls) == 1 and ls[0][0] == MAIN:
            (n, g, b, lds) = ls[0]
            o.append(f"; @launch grid=({g},1,1) block=({b},1,1) lds={lds}")
        else:
            for (n, g, b, lds) in ls:
                o.append(f"; @launch kernel={n} grid=({g},1,1) block=({b},1,1) lds={lds}")
        o.append('.amdgcn_target "amdgcn-amd-amdhsa--gfx950"\n.text')
        o += self.out
        o.append('.section .rodata,"a"')
        for (n, vgpr, sgpr) in self.kernels:
            o.append(f""".p2align 6
.amdhsa_kernel {n}
  .amdhsa_next_free_vgpr {vgpr}
  .amdhsa_next_free_sgpr {sgpr}
  .amdhsa_accum_offset {(vgpr + 3) // 4 * 4}
  .amdhsa_group_segment_fixed_size 0
  .amdhsa_kernarg_size 72
  .amdhsa_user_sgpr_count 2
  .amdhsa_user_sgpr_kernarg_segment_ptr 1
  .amdhsa_system_sgpr_workgroup_id_x 1
.end_amdhsa_kernel""")
        return '\n'.join(o) + '\n'

def vr(a, n=1): return f"v{a}" if n == 1 else f"v[{a}:{a+n-1}]"

def stamp(A, i):
    if STAMP and i < 100:
        A(f"s_memtime s[100:101]\ns_waitcnt lgkmcnt(0)\nv_writelane_b32 v255, s100, {i}")
        A.lds_q = []
        if i == 0:
            A("s_memrealtime s[100:101]\ns_waitcnt lgkmcnt(0)\nv_writelane_b32 v255, s100, 31")
def stamp_flush(A, n, kidx):
    if not STAMP: return
    A("s_waitcnt lgkmcnt(0) vmcnt(0)")
    stamp(A, n)
    A(f"""
    s_memrealtime s[100:101]
    s_waitcnt lgkmcnt(0)
    v_writelane_b32 v255, s100, {n+1}
    s_add_u32 s4, s48, {STAMP_OFF + kidx*524288}
    s_addc_u32 s5, s49, 0
    s_mov_b32 s8, s4
    s_and_b32 s9, s5, 0xffff
    s_mov_b32 s10, 524288
    s_mov_b32 s11, 0x20000
    s_lshl_b32 s6, s2, 4
    s_add_u32 s6, s6, s28
    s_lshl_b32 s6, s6, 7
    v_lshlrev_b32 v0, 2, v1
    v_add_u32 v0, s6, v0
    v_mov_b32 v2, {OOB}
    v_cmp_gt_u32 vcc, 32, v1
    s_nop 1
    v_cndmask_b32 v0, v2, v0, vcc
    buffer_store_dword v255, v0, s[8:11], 0 offen
    """)

def srd(A, d, lo, hi, nbytes):
    A(f"s_mov_b32 s{d}, s{lo}\ns_and_b32 s{d+1}, s{hi}, 0xffff\ns_mov_b32 s{d+2}, {nbytes}\ns_mov_b32 s{d+3}, 0x20000")

def prologue(A, endlabel):
    if 'early' in DBG: A("s_memrealtime s[94:95]")
    A(f"""
    s_cmp_ge_u32 s2, 256
    s_cbranch_scc1 {endlabel}
    s_load_dwordx16 s[32:47], s[0:1], 0
    s_load_dwordx2 s[48:49], s[0:1], 64
    v_lshrrev_b32 v2, 6, v0
    v_and_b32 v1, 63, v0
    s_and_b32 s3, s2, 7
    s_lshr_b32 s4, s2, 3
    v_readfirstlane_b32 s28, v2
    s_lshr_b32 s5, s3, 2
    s_bfe_u32 s6, s3, 0x10001
    s_and_b32 s7, s3, 1
    s_and_b32 s10, s4, 7
    s_lshr_b32 s11, s4, 3
    s_lshl_b32 s6, s6, 3
    s_add_u32 s6, s6, s10
    s_lshl_b32 s7, s7, 2
    s_add_u32 s7, s7, s11
    """)

PIECE = 1056
P1_LOOK = 5
XOFF = 32 * PIECE
SLOT = XOFF + 16384
P1_LDS = 3 * SLOT

def phase1(A, done_label):
    A("s_cmp_lt_u32 s28, 4\ns_cbranch_scc1 P1_consumer")
    A(f"""
    s_sub_u32 s29, s28, 4
    v_lshrrev_b32 v2, 5, v1
    v_and_b32 v3, 31, v1
    v_mul_u32_u24 v2, 15360, v2
    v_lshl_add_u32 v2, v3, 4, v2
    v_mov_b32 v4, {OOB}
    v_cmp_gt_u32 vcc, 30, v3
    v_lshrrev_b32 v5, 3, v1
    v_mul_u32_u24 v5, 1280, v5
    v_cndmask_b32 v8, v4, v2, vcc
    v_and_b32 v3, 7, v1
    v_lshrrev_b32 v4, 4, v1
    v_xor_b32 v3, v3, v4
    v_lshl_add_u32 v9, v3, 4, v5
    v_xor_b32 v3, 4, v3
    v_lshl_add_u32 v10, v3, 4, v5
    s_lshl_b32 s12, s11, 1
    s_add_u32 s12, s12, s10
    s_cmp_ge_u32 s12, 10
    s_cselect_b32 s13, 10, 0
    s_sub_u32 s12, s12, s13
    s_mul_i32 s13, s29, {8*3840}
    s_mul_i32 s14, s7, 480
    s_add_u32 s13, s13, s14
    s_lshl_b32 s14, s6, 7
    s_lshl_b32 s15, s29, 5
    s_add_u32 s14, s14, s15
    s_mul_i32 s14, s14, 1280
    s_mul_i32 s30, s29, {4*PIECE}
    s_lshl_b32 s31, s29, 12
    s_add_u32 s31, s31, {XOFF}
    s_mul_i32 s26, s12, 245760
    s_add_u32 s26, s26, s13
    s_lshl_b32 s27, s12, 7
    s_add_u32 s27, s27, s14
    s_mov_b32 s25, 0
    s_mov_b32 s51, 0
    s_cmp_eq_u32 s5, 0
    s_waitcnt lgkmcnt(0)
    s_cselect_b32 s16, s32, s38
    s_cselect_b32 s17, s33, s39
    s_cselect_b32 s20, s34, s40
    s_cselect_b32 s21, s35, s41
    s_and_b32 s17, s17, 0xffff
    s_mov_b32 s18, 2621440
    s_mov_b32 s19, 0x20000
    s_and_b32 s21, s21, 0xffff
    s_mov_b32 s22, 2457600
    s_mov_b32 s23, 0x20000
    """)
    def wpiece(sub, r):
        A(f"s_add_u32 m0, s30, {(sub*16 + r)*PIECE}\ns_add_u32 s50, s26, {(32*sub + r)*3840}\nbuffer_load_dwordx4 v8, s[20:23], s50 offen lds")
    def xpiece(j):
        A(f"s_add_u32 m0, s31, {j*1024}\ns_add_u32 s50, s27, {j*8*1280}\nbuffer_load_dwordx4 v{9 + (j & 1)}, s[16:19], s50 offen lds")
    def F():
        xpiece(0); wpiece(0, 0); xpiece(1); wpiece(0, 1); xpiece(2); xpiece(3)
    def S():
        wpiece(0, 2); wpiece(0, 3)
        for r in range(4): wpiece(1, r)
    stamp(A, 1)
    A("s_branch P1_lf")
    A("P1_lloop:")
    S()
    A(f"""
    s_add_u32 s12, s12, 1
    s_cmp_eq_u32 s12, 10
    s_cselect_b32 s12, 0, s12
    s_mul_i32 s26, s12, 245760
    s_add_u32 s26, s26, s13
    s_lshl_b32 s27, s12, 7
    s_add_u32 s27, s27, s14
    s_add_u32 s25, s25, 1
    s_cmp_eq_u32 s25, 3
    s_cselect_b32 s25, 0, s25
    s_cselect_b32 s50, {-2*SLOT & 0xffffffff}, {SLOT}
    s_add_u32 s30, s30, s50
    s_add_u32 s31, s31, s50
    s_add_u32 s51, s51, 1
    s_cmp_eq_u32 s51, 10
    s_cbranch_scc1 P1_llast
    P1_lf:
    """.replace(f"s_cselect_b32 s50, {-2*SLOT & 0xffffffff}, {SLOT}", f"s_mov_b32 s50, {SLOT}\ns_cselect_b32 s50, {-2*SLOT & 0xffffffff}, s50"))
    F()
    A("s_cmp_eq_u32 s51, 0\ns_cbranch_scc1 P1_lloop")
    if STAMP:
        for it, sl in ((1, 2), (2, 4), (6, 6)):
            A(f"s_cmp_lg_u32 s51, {it}\ns_cbranch_scc1 P1_lst{it}")
            stamp(A, sl)
            A("s_waitcnt vmcnt(6)")
            stamp(A, sl + 1)
            A(f"P1_lst{it}:")
    A("""
    s_waitcnt vmcnt(6)
    s_barrier
    s_branch P1_lloop
    P1_llast:
    s_waitcnt vmcnt(0)
    s_barrier
    """)
    if STAMP and not FUSED: stamp_flush(A, 8, 3)
    A(f"s_branch {done_label}")
    A("P1_consumer:")
    ACC = 8; WR = 128; XF = 168; AW0 = 184; AX0 = 185; AX1 = 186; AW = 187; AXa = 188; AXb = 189
    def acc(grp, t, rt): return ACC + ((grp * 5 + t) * 2 + rt) * 4
    A(f"""
    v_lshrrev_b32 v2, 2, v1
    v_mul_u32_u24 v2, {PIECE}, v2
    v_and_b32 v3, 3, v1
    v_mul_u32_u24 v3, 40, v3
    v_add_u32 v{AW0}, v2, v3
    v_and_b32 v2, 15, v1
    v_lshrrev_b32 v3, 4, v1
    v_lshrrev_b32 v4, 1, v2
    v_xor_b32 v3, v3, v4
    s_lshl_b32 s12, s28, 12
    s_add_u32 s12, s12, {XOFF}
    v_lshlrev_b32 v2, 7, v2
    v_add_u32 v2, s12, v2
    v_lshl_add_u32 v{AX0}, v3, 4, v2
    v_xor_b32 v3, 4, v3
    v_lshl_add_u32 v{AX1}, v3, 4, v2
    v_mov_b32 v{AW}, v{AW0}
    v_mov_b32 v{AXa}, v{AX0}
    v_mov_b32 v{AXb}, v{AX1}
    """)
    for r in range(ACC, XF + 16, 2):
        A(f"v_pk_mov_b32 v[{r}:{r+1}], 0, 0")
    A("s_mov_b32 s25, 0\ns_mov_b32 s51, 0")
    if FUSED: epoch_get(A)
    stamp(A, 1)
    units = [(sub, grp, t) for sub in range(2) for grp in range(3) for t in range(5)]
    def rd(u, hf):
        sub, grp, t = units[u]
        b = WR + (u % 10) * 4
        off = sub * 16 * PIECE + hf * 512 + grp * 160 + 8 * t
        A.lds(f"ds_read_b64_tr_b16 {vr(b + 2*hf, 2)}, v{AW} offset:{off}", ('w', u))
    def rdx(sub, rt):
        A.lds(f"ds_read_b128 {vr(XF + (sub*2+rt)*4, 4)}, v{AXa if sub == 0 else AXb} offset:{rt*2048}", ('x', sub))
    def mm(u, rt):
        sub, grp, t = units[u]
        b = WR + (u % 10) * 4
        a = acc(grp, t, rt)
        A(f"v_mfma_f32_16x16x32_bf16 {vr(a,4)}, {vr(b,4)}, {vr(XF + (sub*2+rt)*4, 4)}, {vr(a,4)}")
    L = P1_LOOK
    def body(emit):
        save = A.out
        if not emit: A.out = []
        for step in range(30):
            u = (step - L) % 30
            gen_ = 1 if step >= L else 0
            A.lds_wait(('x', units[u][0]) if gen_ else ('px', units[u][0]), ('w', u) if gen_ else ('pw', u))
            mm(u, 0)
            if step == 0: rdx(0, 0)
            if step == L + 2: rdx(1, 0)
            rd(step, 0)
            if step == 26:
                A(f"s_add_u32 s25, s25, {SLOT}\ns_cmp_eq_u32 s25, {3*SLOT}\ns_cselect_b32 s25, 0, s25")
            if step == 27:
                A(f"v_add_u32 v{AXa}, s25, v{AX0}")
            if step == 28:
                A(f"v_add_u32 v{AXb}, s25, v{AX1}")
            mm(u, 1)
            if step == 0: rdx(0, 1)
            if step == L + 2: rdx(1, 1)
            rd(step, 1)
            if step == 28:
                A("s_add_u32 s51, s51, 1\ns_cmp_lt_u32 s51, 10")
        A(f"v_add_u32 v{AW}, s25, v{AW0}")
        A.lds_q = [('p' + t[0], t[1]) for t in A.lds_q]
        if not emit: A.out = save
    A.lds_q = []
    body(False)
    A("P1_cloop:")
    A("s_barrier")
    if STAMP:
        q = A.lds_q
        for it, sl in ((0, 2), (1, 3), (5, 4)):
            if 'nolstamp' in DBG: break
            A(f"s_cmp_lg_u32 s51, {it}\ns_cbranch_scc1 P1_st{it}")
            stamp(A, sl)
            A(f"P1_st{it}:")
        A.lds_q = q
    body(True)
    A("s_cbranch_scc1 P1_cloop")
    for u in range(30 - L, 30):
        A.lds_wait(('pw', u))
        mm(u, 0); mm(u, 1)
    stamp(A, 5)
    A(f"""
    s_mul_i32 s12, s5, {QKV_BYTES}
    s_add_u32 s12, s48, s12
    s_addc_u32 s13, s49, 0
    """)
    srd(A, 24, 12, 13, QKV_BYTES)
    A(f"""
    v_and_b32 v2, 15, v1
    v_lshrrev_b32 v3, 4, v1
    s_lshl_b32 s12, s6, 3
    s_lshl_b32 s13, s28, 1
    s_add_u32 s12, s12, s13
    v_lshlrev_b32 v3, 7, v3
    v_add_u32 v3, s12, v3
    v_mul_u32_u24 v4, {QK_TILE}, v3
    v_mul_u32_u24 v5, {V_TILE}, v3
    v_lshl_add_u32 v6, v2, 3, v4
    v_lshl_add_u32 v4, v2, 4, v4
    v_lshl_add_u32 v5, v2, 4, v5
    v_mov_b32 v7, {f32bits(SCALE_L2E)}
    s_mul_i32 s13, s7, 12
    """)
    for grp in range(3):
        TB = WR + 40 + 24 * (grp & 1) if False else (WR if grp % 2 == 0 else 190)
        A(f"""
        s_add_u32 s14, s13, {4*grp}
        s_mul_i32 s15, s14, {128*QK_TILE}
        s_sub_u32 s16, s14, 64
        s_mul_i32 s16, s16, {128*V_TILE}
        s_add_u32 s16, s16, {V_OFF}
        s_cmp_ge_u32 s14, 32
        s_cbranch_scc1 P1_ns{grp}
        """)
        for r in range(acc(grp, 0, 0), acc(grp, 0, 0) + 40):
            A(f"v_mul_f32 v{r}, v7, v{r}")
        A(f"P1_ns{grp}:")
        for rt in range(2):
            T = TB + rt * 12
            for t in range(5):
                a = acc(grp, t, rt)
                A(f"v_cvt_pk_bf16_f32 v{T+2*t}, v{a}, v{a+1}\nv_cvt_pk_bf16_f32 v{T+2*t+1}, v{a+2}, v{a+3}")
        A(f"s_cmp_ge_u32 s14, 64\ns_cbranch_scc1 P1_ev{grp}")
        for rt in range(2):
            T = TB + rt * 12
            A(f"buffer_store_dwordx4 {vr(T,4)}, v4, s[24:27], s15 offen offset:{rt*QK_TILE} sc1")
            A(f"buffer_store_dwordx4 {vr(T+4,4)}, v4, s[24:27], s15 offen offset:{rt*QK_TILE+256} sc1")
            A(f"buffer_store_dwordx2 {vr(T+8,2)}, v6, s[24:27], s15 offen offset:{rt*QK_TILE+512} sc1")
        A(f"s_branch P1_ed{grp}\nP1_ev{grp}:")
        for rt in range(2):
            T = TB + rt * 12
            A(f"v_mov_b32 v{T+10}, 0x3f803f80\nv_mov_b32 v{T+11}, 0x3f803f80")
            for p in range(3):
                A(f"buffer_store_dwordx4 {vr(T+4*p,4)}, v5, s[24:27], s16 offen offset:{rt*V_TILE+256*p} sc1")
        A(f"P1_ed{grp}:")
    stamp(A, 6)


EP = 250
EP_LDS = P1_LDS
FUSED_LDS = P1_LDS + 64
SPIN_LIMIT = 1 << 17

def flag_srd(A):
    A(f"s_add_u32 s94, s48, {FLAG_BASE}\ns_addc_u32 s95, s49, 0")
    srd(A, 96, 94, 95, 4096)

def epoch_get(A):
    A(f"""
    s_cmp_lg_u32 s28, 0
    s_cbranch_scc1 EP_skip
    {"" if 'early' in DBG else "s_memrealtime s[94:95]"}
    v_mov_b32 v246, 0
    v_mov_b32 v247, 0
    v_mov_b32 v248, 0
    s_waitcnt lgkmcnt(0)
    s_mov_b32 s96, s46
    s_and_b32 s97, s47, 0xffff
    s_mov_b32 s98, 256
    s_mov_b32 s99, 0x20000
    s_or_b32 s94, s94, 1
    v_mov_b32 v244, s94
    v_mov_b32 v245, s95
    v_mov_b32 v{EP}, s94
    v_mov_b32 v{EP+1}, s95
    s_mov_b64 s[94:95], exec
    s_mov_b64 exec, 1
    buffer_atomic_cmpswap_x2 v[244:247], v248, s[96:99], 0 offen sc0 sc1
    s_mov_b64 exec, s[94:95]
    EP_skip:
    """)

def epoch_share(A):
    A(f"""
    s_cmp_lg_u32 s28, 0
    s_cbranch_scc1 EP_skip2
    v_readfirstlane_b32 s94, v244
    v_readfirstlane_b32 s95, v245
    s_nop 1
    s_or_b32 s96, s94, s95
    s_cbranch_scc0 EP_mine
    v_mov_b32 v{EP}, s94
    v_mov_b32 v{EP+1}, s95
    EP_mine:
    v_mov_b32 v12, {EP_LDS}
    s_nop 0
    ds_write_b64 v12, v[{EP}:{EP+1}]
    s_waitcnt lgkmcnt(0)
    EP_skip2:
    """)

def epoch_read(A):
    A(f"v_mov_b32 v12, {EP_LDS}\ns_nop 0\nds_read_b64 v[{EP}:{EP+1}], v12\ns_waitcnt lgkmcnt(0)")

def flag_set(A, wave, idx_sreg, base, tag):
    A(f"""
    s_cmp_lg_u32 s28, {wave}
    s_cbranch_scc1 FS_{tag}
    """)
    flag_srd(A)
    A(f"""
    s_lshl_b32 s94, s{idx_sreg}, 3
    v_mov_b32 v12, s94
    s_mov_b64 s[94:95], exec
    s_mov_b64 exec, 1
    buffer_store_dwordx2 v[{EP}:{EP+1}], v12, s[96:99], 0 offen offset:{base} sc1
    s_mov_b64 exec, s[94:95]
    FS_{tag}:
    """)

def poll(A, vaddr, vtmp, base, tag):
    A(f"""
    s_mov_b32 s94, 0
    PL_{tag}:
    buffer_load_dwordx2 v[{vtmp}:{vtmp+1}], v{vaddr}, s[96:99], 0 offen offset:{base} sc1
    s_waitcnt vmcnt(0)
    v_cmp_ne_u64 vcc, v[{vtmp}:{vtmp+1}], v[{EP}:{EP+1}]
    s_add_u32 s94, s94, 1
    s_nop 0
    s_cmp_eq_u64 vcc, 0
    s_cbranch_scc1 PD_{tag}
    s_sleep 2
    s_cmp_lt_u32 s94, {SPIN_LIMIT}
    s_cbranch_scc1 PL_{tag}
    PD_{tag}:
    """)

def sync_wait1(A):
    A(f"""
    s_cmp_lg_u32 s28, 4
    s_cbranch_scc1 SW1_skip
    v_min_u32 v2, 23, v1
    v_cmp_lt_u32 vcc, 11, v2
    v_mov_b32 v3, 12
    v_mov_b32 v4, 0
    v_cndmask_b32 v3, v4, v3, vcc
    v_sub_u32 v2, v2, v3
    v_mov_b32 v6, 128
    v_cndmask_b32 v3, v4, v6, vcc
    v_lshrrev_b32 v4, 2, v2
    v_and_b32 v2, 3, v2
    s_lshl_b32 s94, s4, 1
    s_sub_u32 s94, s94, 2
    v_add_u32 v2, s94, v2
    v_max_i32 v2, 0, v2
    v_lshl_add_u32 v3, v2, 3, v3
    v_lshlrev_b32 v4, 5, v4
    v_add_u32 v4, s3, v4
    v_mul_u32_u24 v4, 43, v4
    v_lshrrev_b32 v4, 9, v4
    v_add_u32 v3, v3, v4
    v_lshlrev_b32 v3, 3, v3
    """)
    flag_srd(A)
    stamp(A, 20)
    poll(A, 3, 6, 0, "s1")
    stamp(A, 21)
    A("SW1_skip:\ns_barrier")
    stamp(A, 22)

def sync_wait2(A):
    A(f"""
    s_lshr_b32 s94, s6, 1
    s_lshl_b32 s94, s94, 5
    v_and_b32 v2, 31, v1
    v_add_u32 v2, s94, v2
    v_lshlrev_b32 v2, 3, v2
    """)
    flag_srd(A)
    stamp(A, 24)
    poll(A, 2, 4, 2048, "s2")
    stamp(A, 25)

BLK = 1536
L_BV = 0
L_AV = 16 * BLK
L_BK = 26 * BLK
L_AK = 42 * BLK
P2_LDS = 52 * BLK + 1024

def phase2(A, sb):
    A(f"""
    s_and_b32 s3, s2, 31
    s_lshr_b32 s4, s2, 5
    v_and_b32 v3, 15, v1
    v_bfe_u32 v4, v1, 4, 1
    v_mul_u32_u24 v4, {QK_TILE}, v4
    v_lshl_add_u32 v5, v3, 4, v4
    v_lshl_add_u32 v6, v3, 3, v4
    v_add_u32 v6, 504, v6
    v_cmp_gt_u32 vcc, 32, v1
    v_add_u32 v7, 256, v5
    v_add_u32 v8, {2*QK_TILE}, v5
    v_add_u32 v9, {2*QK_TILE}, v7
    v_add_u32 v10, {2*QK_TILE}, v6
    v_cndmask_b32 v12, v7, v5, vcc
    v_cndmask_b32 v13, v8, v6, vcc
    v_cndmask_b32 v14, v10, v9, vcc
    s_mov_b32 s12, 0x15555556
    """)
    for ty in range(3):
        A(f"""
        v_add_u32 v3, {ty*64}, v1
        v_mul_hi_u32 v4, v3, s12
        v_mul_u32_u24 v5, 12, v4
        v_sub_u32 v5, v3, v5
        v_lshrrev_b32 v6, 2, v5
        v_and_b32 v5, 3, v5
        v_lshl_add_u32 v5, v4, 2, v5
        v_lshrrev_b32 v7, 4, v5
        v_mul_u32_u24 v7, {V_TILE}, v7
        v_and_b32 v5, 15, v5
        v_lshl_add_u32 v7, v5, 4, v7
        v_lshl_add_u32 v{15+ty}, v6, 8, v7
        """)
    QA = 20; QB = 28
    A(f"""
    s_lshl_b32 s14, s3, 7
    s_lshl_b32 s15, s4, 4
    s_add_u32 s14, s14, s15
    v_and_b32 v3, 15, v1
    v_bfe_u32 v4, v1, 4, 1
    v_lshrrev_b32 v5, 5, v1
    s_lshl_b32 s15, s28, 1
    s_add_u32 s15, s15, s14
    v_add_u32 v4, s15, v4
    v_mul_u32_u24 v4, {QK_TILE}, v4
    v_lshl_add_u32 v18, v3, 4, v4
    v_lshl_add_u32 v18, v5, 8, v18
    v_lshl_add_u32 v7, v3, 3, v4
    v_mov_b32 v8, {OOB}
    v_mov_b32 v{QA+4}, 0
    v_mov_b32 v{QA+5}, 0
    v_cndmask_b32 v19, v8, v7, vcc
    v_mov_b32 v{QB+4}, 0
    v_mov_b32 v{QB+5}, 0
    s_waitcnt lgkmcnt(0)
    s_add_u32 s12, s48, {QKV_BYTES}
    s_addc_u32 s13, s49, 0
    """)
    srd(A, 16, 48, 49, QKV_BYTES)
    srd(A, 20, 12, 13, QKV_BYTES)
    if FUSED:
        sync_wait1(A)
    def dma_unit(srdn, areg, tile_bytes, reg_off, tile_delta, lds_base):
        A(f"""
        s_lshl_b32 s30, s4, 4
        s_add_u32 s30, s30, s29
        s_add_u32 s31, s14, s29
        s_add_i32 s31, s31, {tile_delta}
        s_mul_i32 s31, s31, {tile_bytes}
        s_add_u32 s31, s31, {reg_off}
        s_cmp_lt_u32 s30, {-tile_delta}
        s_cselect_b32 s31, 0x70000000, s31
        s_mul_i32 s30, s29, 768
        """)
        for ty in range(3):
            A(f"s_add_u32 m0, s30, {lds_base + ty*1024}\ns_nop 0\nbuffer_load_dwordx4 v{areg+ty}, s[{srdn}:{srdn+3}], s31 offen sc1 lds")
    A(f"""
    buffer_load_dwordx4 {vr(QA,4)}, v18, s[16:19], 0 offen sc1
    buffer_load_dwordx2 {vr(QA+6,2)}, v19, s[16:19], 0 offen offset:512 sc1
    """)
    A("s_lshl_b32 s29, s28, 2\ns_cmp_ge_u32 s28, 5\ns_cbranch_scc1 P2_noak")
    dma_unit(16, 12, QK_TILE, K_OFF, -4, L_AK)
    A("P2_noak:\ns_cmp_lt_u32 s28, 3\ns_cbranch_scc1 P2_noav\ns_sub_u32 s29, s29, 12")
    dma_unit(16, 15, V_TILE, V_OFF, -4, L_AV)
    A("P2_noav:\ns_lshl_b32 s29, s28, 2")
    A(f"""
    buffer_load_dwordx4 {vr(QB,4)}, v18, s[20:23], 0 offen sc1
    buffer_load_dwordx2 {vr(QB+6,2)}, v19, s[20:23], 0 offen offset:512 sc1
    """)
    dma_unit(20, 12, QK_TILE, K_OFF, -16, L_BK)
    dma_unit(20, 15, V_TILE, V_OFF, -16, L_BV)
    stamp(A, 23)
    A(f"""
    s_add_u32 s12, s48, {O_BASE}
    s_addc_u32 s13, s49, 0
    """)
    srd(A, 24, 12, 13, 2 * O_BYTES)
    MS = 52
    PM = 36; NPM = 44; AK = 52; AV = 53; OA = 54; NEGM = 57; T0 = 58; T1 = 59; QD = 60; NINF = 61
    CA = 64; CB = 80; S0 = 96; SA = 112; SB = 128; PA = 144; PB = 152; KF = 160; VF = 176; O = 192; P2 = 208
    A(f"""
    v_and_b32 v9, 31, v1
    v_lshlrev_b32 v10, 2, v5
    v_sub_u32 v{QD}, v9, v10
    v_mov_b32 v{NINF}, 0xff800000
    """)
    for r in range(16):
        kc = (r & 3) + 8 * (r >> 2)
        A(f"v_cmp_le_i32 s[{MS+2*r}:{MS+2*r+1}], {kc}, v{QD}")
    A("v_mov_b32 v11, 0xffff\nv_mov_b32 v3, 0xffff0000\nv_mov_b32 v4, 0")
    for j in range(8):
        A(f"v_cndmask_b32 v6, v4, v11, s[{MS+4*j}:{MS+4*j+1}]")
        A(f"v_cndmask_b32 v7, v4, v3, s[{MS+4*j+2}:{MS+4*j+3}]")
        A(f"v_or_b32 v{PM+j}, v6, v7\nv_not_b32 v{NPM+j}, v{PM+j}")
    A(f"""
    s_mul_i32 s12, s28, {BLK}
    v_lshlrev_b32 v{AK}, 4, v1
    v_add_u32 v{AK}, s12, v{AK}
    v_add_u32 v{AK}, {L_BK}, v{AK}
    v_and_b32 v3, 3, v1
    v_bfe_u32 v4, v1, 2, 2
    v_bfe_u32 v6, v1, 4, 1
    v_lshrrev_b32 v7, 1, v3
    v_lshlrev_b32 v7, 6, v7
    v_and_b32 v8, 1, v3
    v_lshl_add_u32 v7, v8, 3, v7
    v_cmp_eq_u32 vcc, 0, v3
    v_mov_b32 v8, 136
    v_mov_b32 v11, 128
    v_cndmask_b32 v8, v8, v11, vcc
    v_cmp_eq_u32 vcc, 0, v6
    s_nop 1
    v_cndmask_b32 v7, v8, v7, vcc
    v_lshl_add_u32 v7, v4, 4, v7
    v_mul_u32_u24 v8, 192, v5
    v_add_u32 v7, v7, v8
    v_add_u32 v{AV}, s12, v7
    s_lshl_b32 s12, s4, 4
    s_lshl_b32 s13, s28, 1
    s_add_u32 s12, s12, s13
    v_bfe_u32 v3, v1, 4, 1
    v_add_u32 v3, s12, v3
    v_mul_u32_u24 v3, 20480, v3
    v_and_b32 v4, 15, v1
    v_lshl_add_u32 v3, v4, 4, v3
    s_mul_i32 s13, s3, 5
    v_add_u32 v4, s13, v5
    v_lshrrev_b32 v6, 1, v4
    v_and_b32 v7, 1, v4
    v_lshl_add_u32 v6, v6, 8, v3
    v_lshl_add_u32 v{OA}, v7, 3, v6
    v_add_u32 v{OA+1}, 256, v{OA}
    v_add_u32 v6, 512, v{OA}
    v_mov_b32 v8, {OOB}
    v_cmp_gt_u32 vcc, 32, v1
    s_mov_b32 s84, {f32bits(2.0**-64)}
    s_mov_b32 s85, {f32bits(2.0**64)}
    v_cndmask_b32 v{OA+2}, v8, v6, vcc
    s_sub_u32 s86, 8, s28
    s_cmp_eq_u32 s4, 0
    s_cselect_b32 s86, s86, -1
    s_or_b32 s87, s4, s28
    """)
    def rdK(lds_k, b, slot):
        for i in range(2):
            A.lds(f"ds_read_b128 {vr(KF + slot*8 + 4*i, 4)}, v{AK} offset:{lds_k - L_BK + b*BLK + i*1024}", ('k', lds_k, b))
    def rdV(lds_v, b, slot):
        for i in range(4):
            A.lds(f"ds_read_b64_tr_b16 {vr(VF + slot*8 + 2*i, 2)}, v{AV} offset:{lds_v + b*BLK + i*384}", ('v', lds_v, b))
    def qk(i, slot, Q, dst, C):
        c = vr(C, 16) if i == 0 else vr(dst, 16)
        A(f"v_mfma_f32_32x32x16_bf16 {vr(dst,16)}, {vr(KF+slot*8+4*i,4)}, {vr(Q+4*i,4)}, {c}")
    def pv(i, slot, Preg, first=False):
        c = "0" if first else vr(O, 16)
        A(f"v_mfma_f32_32x32x16_bf16 {vr(O,16)}, {vr(VF+slot*8+4*i,4)}, {vr(Preg+4*i,4)}, {c}")
    def cvt(S, Pd, j):
        A(f"v_cvt_pk_bf16_f32 v{Pd+j}, v{S+2*j}, v{S+2*j+1}")
    def finish(osoff, tag, flagreg):
        A(f"s_nop 7\ns_nop 3\nv_rcp_f32 v{T0}, v{O+12}")
        A(f"v_add_f32 v{T1}, |v{O}|, |v{O+1}|")
        for r in range(2, 12):
            A(f"v_add_f32 v{T1}, v{T1}, |v{O+r}|")
        A(f"""
        v_cmp_le_f32 s[88:89], s84, v{O+12}
        v_cmp_ge_f32 s[90:91], s85, v{O+12}
        v_cmp_gt_f32 vcc, -v{NINF}, v{T1}
        """)
        for r in range(12):
            A(f"v_mul_f32 v{O+r}, v{O+r}, v{T0}")
        A(f"""
        s_and_b64 s[88:89], s[88:89], s[90:91]
        s_and_b64 s[88:89], s[88:89], vcc
        s_or_b32 s90, s{flagreg}, 0
        s_cbranch_scc1 P2_{tag}_ok
        s_cmp_eq_u64 s[88:89], exec
        s_cbranch_scc0 P2_{tag}_fb
        P2_{tag}_ok:
        """)
        for j in range(6):
            A(f"v_cvt_pk_bf16_f32 v{O+j}, v{O+2*j}, v{O+2*j+1}")
        A(f"s_mov_b32 s12, {osoff}")
        for j in range(3):
            A(f"buffer_store_dwordx2 {vr(O+2*j,2)}, v{OA+j}, s[24:27], s12 offen sc1")
    def build_CA():
        for r in range(16):
            kc = (r & 3) + 8 * (r >> 2)
            A(f"v_subrev_u32 v{T0}, {kc}, v{QD}\nv_and_b32 v{T0}, 17, v{T0}\nv_cmp_eq_u32 s[88:89], 0, v{T0}\ns_nop 1\nv_cndmask_b32 v{CA+r}, v{NINF}, v{NEGM}, s[88:89]")
    A(f"v_mov_b32 v{NEGM}, 0\ns_mov_b32 s92, 0\ns_mov_b32 s93, 0")
    build_CA()
    stamp(A, sb + 0)
    A("s_waitcnt vmcnt(0)\ns_barrier")
    stamp(A, sb + 1)
    A("P2_a_start:")
    A.lds_q = []
    rdK(L_AK, 1, 0); rdK(L_AK, 2, 1); rdV(L_AV, 1, 0); rdV(L_AV, 2, 1)
    A.lds_wait(('k', L_AK, 1))
    qk(0, 0, QA, SA, CA); qk(1, 0, QA, SA, CA)
    A.lds_wait(('k', L_AK, 2))
    qk(0, 1, QA, SB, CA); qk(1, 1, QA, SB, CA)
    A("s_cmp_lg_u32 s87, 0\ns_nop 7\ns_cbranch_scc1 P2_a_val\ns_nop 3")
    for r in range(16): A(f"v_mov_b32 v{SA+r}, v{NINF}")
    A("P2_a_val:\ns_nop 3")
    for r in range(16):
        A(f"v_cndmask_b32 v{SA+r}, v{SA+r}, v{SB+r}, s[{MS+2*r}:{MS+2*r+1}]")
    A("s_cmp_eq_u32 s92, 1\ns_cbranch_scc1 P2_a_max")
    for r in range(16): A(f"v_exp_f32 v{SA+r}, v{SA+r}")
    A("s_nop 0")
    for j in range(8): cvt(SA, PA, j)
    for j in range(8):
        A(f"v_and_b32 v{PB+j}, v{PA+j}, v{PM+j}\nv_and_b32 v{PA+j}, v{PA+j}, v{NPM+j}")
    A.lds_wait(('v', L_AV, 2))
    A("s_nop 0")
    pv(0, 0, PA, True); pv(1, 0, PA); pv(0, 1, PB); pv(1, 1, PB)
    finish(0, 'a', 92)
    stamp(A, sb + 2)
    A(f"v_mov_b32 v{NEGM}, 0")
    A("P2_b_start:")
    A.lds_q = []
    rdK(L_BK, 0, 0); rdK(L_BK, 1, 1)
    A("s_cmp_eq_u32 s4, 0\ns_cselect_b64 s[88:89], exec, 0\ns_nop 1")
    for r in range(16): A(f"v_cndmask_b32 v{CB+r}, v{NEGM}, v{NINF}, s[88:89]")
    def cb_switch(b):
        A(f"s_cmp_lg_u32 s86, {b}\ns_cbranch_scc1 P2_cb{b}\ns_nop 7")
        for r in range(16): A(f"v_mov_b32 v{CB+r}, v{NEGM}")
        A(f"s_nop 1\nP2_cb{b}:")
    A.lds_wait(('k', L_BK, 0))
    qk(0, 0, QB, S0, CB); qk(1, 0, QB, S0, CB)
    rdK(L_BK, 2, 0)
    cb_switch(1)
    A.lds_wait(('k', L_BK, 1))
    qk(0, 1, QB, SA, CB); qk(1, 1, QB, SA, CB)
    rdV(L_BV, 1, 1)
    A("s_cmp_eq_u32 s93, 1\ns_cbranch_scc1 P2_b_max")
    cb_switch(2)
    A("s_nop 7")
    for b in range(1, 8):
        Sc, Sn = (SA, SB) if b % 2 == 1 else (SB, SA)
        Pc, Pp = (PA, PB) if b % 2 == 1 else (PB, PA)
        A.lds_wait(('k', L_BK, b + 1))
        qk(0, (b + 1) % 2, QB, Sn, CB)
        for r in range(0, 4): A(f"v_exp_f32 v{Sc+r}, v{Sc+r}")
        qk(1, (b + 1) % 2, QB, Sn, CB)
        if b + 2 <= 8: rdK(L_BK, b + 2, b % 2)
        for r in range(4, 8): A(f"v_exp_f32 v{Sc+r}, v{Sc+r}")
        if b > 1:
            A.lds_wait(('v', L_BV, b - 1))
            pv(0, (b - 1) % 2, Pp, first=(b == 2))
        for r in range(8, 12): A(f"v_exp_f32 v{Sc+r}, v{Sc+r}")
        if b > 1:
            pv(1, (b - 1) % 2, Pp)
        nb = b + 1 if b < 7 else 0
        rdV(L_BV, nb, (b + 1) % 2)
        for r in range(12, 16): A(f"v_exp_f32 v{Sc+r}, v{Sc+r}")
        for j in range(8): cvt(Sc, Pc, j)
        if b + 2 <= 8: cb_switch(b + 2)
    for r in range(16):
        A(f"v_cndmask_b32 v{S0+r}, v{S0+r}, v{SB+r}, s[{MS+2*r}:{MS+2*r+1}]")
        if r == 3:
            A.lds_wait(('v', L_BV, 7)); pv(0, 1, PA)
        if r == 11:
            pv(1, 1, PA); rdV(L_BV, 8, 1)
    for r in range(16): A(f"v_exp_f32 v{S0+r}, v{S0+r}")
    A("s_nop 0")
    for j in range(8): cvt(S0, PB, j)
    for j in range(8):
        A(f"v_and_b32 v{P2+j}, v{PB+j}, v{PM+j}\nv_and_b32 v{PB+j}, v{PB+j}, v{NPM+j}")
    A.lds_wait(('v', L_BV, 8))
    A("s_nop 0")
    pv(0, 0, PB); pv(1, 0, PB); pv(0, 1, P2); pv(1, 1, P2)
    finish(O_BYTES, 'b', 93)
    stamp(A, sb + 3)
    A("s_branch P2_done")
    def rowmax_finish(regs_done_in, back, flagreg, rebuild):
        A(f"""
        v_mov_b32 v{T0}, v{T1}
        s_nop 1
        v_permlane32_swap_b32 v{T1}, v{T0}
        s_nop 1
        v_max_f32 v{T1}, v{T1}, v{T0}
        v_sub_f32 v{NEGM}, 0, v{T1}
        s_mov_b32 s{flagreg}, 2
        """)
        rebuild()
        A(f"s_waitcnt lgkmcnt(0)\ns_branch {back}")
    def maxblock(S, first):
        if first: A(f"v_max_f32 v{T1}, v{S}, v{S+1}")
        else: A(f"v_max3_f32 v{T1}, v{T1}, v{S}, v{S+1}")
        for r in range(2, 16, 2): A(f"v_max3_f32 v{T1}, v{T1}, v{S+r}, v{S+r+1}")
    A("P2_a_fb:\ns_mov_b32 s92, 1\ns_branch P2_a_start")
    A("P2_a_max:")
    maxblock(SA, True)
    rowmax_finish(None, "P2_a_start", 92, build_CA)
    A("P2_b_fb:\ns_mov_b32 s93, 1\ns_branch P2_b_start")
    A("P2_b_max:")
    A("s_waitcnt lgkmcnt(0)\ns_nop 7\ns_nop 3")
    A.lds_q = []
    maxblock(SA, True)
    for b in range(2, 9):
        A(f"s_cmp_lg_u32 s86, {b}\ns_cbranch_scc1 P2_mcb{b}")
        for r in range(16): A(f"v_mov_b32 v{CB+r}, v{NEGM}")
        A(f"P2_mcb{b}:")
        rdK(L_BK, b, 0)
        A.lds_drain()
        qk(0, 0, QB, SA, CB); qk(1, 0, QB, SA, CB)
        A("s_nop 7\ns_nop 7")
        if b == 8:
            for r in range(16):
                A(f"v_cndmask_b32 v{SA+r}, v{S0+r}, v{SA+r}, s[{MS+2*r}:{MS+2*r+1}]")
        maxblock(SA, False)
    rowmax_finish(None, "P2_b_start", 93, lambda: None)
    A("P2_done:")

def phase3(A, sb, endlabel):
    A("s_mul_i32 s13, s7, 160\ns_cmp_lt_u32 s28, 4\ns_cbranch_scc1 P3_comp")
    A("s_mov_b32 s12, 0x1999999a")
    WA = 2
    for i in range(5):
        A(f"""
        v_add_u32 v8, {i*64}, v1
        v_mul_hi_u32 v9, v8, s12
        v_mul_u32_u24 v10, 10, v9
        v_sub_u32 v10, v8, v10
        v_bfe_u32 v11, v9, 2, 2
        v_lshlrev_b32 v11, 3, v11
        v_bfe_u32 v12, v9, 4, 1
        v_lshl_add_u32 v11, v12, 2, v11
        v_and_b32 v12, 3, v9
        v_add_u32 v11, v11, v12
        v_mul_u32_u24 v11, 1280, v11
        v_lshl_add_u32 v{WA+i}, v10, 4, v11
        """)
    A(f"""
    s_cmp_eq_u32 s5, 0
    s_waitcnt lgkmcnt(0)
    s_cselect_b32 s16, s36, s42
    s_cselect_b32 s17, s37, s43
    s_and_b32 s17, s17, 0xffff
    s_mov_b32 s18, 819200
    s_mov_b32 s19, 0x20000
    s_sub_u32 s29, s28, 4
    s_mul_i32 s15, s29, 5120
    s_mov_b32 s30, 0
    s_mul_i32 s31, s7, 5
    s_lshr_b32 s31, s31, 1
    s_add_u32 s31, s31, s29
    P3_wl:
    s_cmp_ge_u32 s31, 20
    s_cselect_b32 s14, 20, 0
    s_sub_u32 s31, s31, s14
    s_mul_i32 s14, s31, 40960
    s_add_u32 s14, s14, s13
    """)
    for i in range(5):
        A(f"s_add_u32 m0, s15, {i*1024}\ns_nop 0\nbuffer_load_dwordx4 v{WA+i}, s[16:19], s14 offen lds")
    A(f"""
    s_add_u32 s31, s31, 4
    s_add_u32 s15, s15, {4*5120}
    s_add_u32 s30, s30, 1
    s_cmp_lt_u32 s30, 5
    s_cbranch_scc1 P3_wl
    s_waitcnt vmcnt(0)
    s_barrier
    s_branch {endlabel}
    P3_comp:
    """)
    OF = 60; ACC = 16; WR = 220; AW = 8
    def of(ks, rt): return OF + (ks * 2 + rt) * 4
    A(f"""
    s_lshl_b32 s12, s6, 3
    s_lshl_b32 s14, s28, 1
    s_add_u32 s12, s12, s14
    s_mul_i32 s15, s12, 20480
    s_mul_i32 s16, s5, {O_BYTES}
    s_add_u32 s15, s15, s16
    v_lshlrev_b32 v7, 4, v1
    v_add_u32 v7, s15, v7
    v_add_u32 v6, 20480, v7
    s_waitcnt lgkmcnt(0)
    s_add_u32 s16, s48, {O_BASE}
    s_addc_u32 s17, s49, 0
    """)
    srd(A, 20, 16, 17, 2 * O_BYTES)
    srd(A, 24, 44, 45, 2048 * 1280 * 2)
    if FUSED:
        sync_wait2(A)
    A("s_mul_i32 s30, s7, 5\ns_lshr_b32 s30, s30, 1\ns_lshl_b32 s30, s30, 10")
    def ldo(ks):
        for rt in range(2):
            A(f"buffer_load_dwordx4 {vr(of(ks,rt),4)}, v{7-rt}, s[20:23], s30 offen sc1")
        A("s_add_u32 s30, s30, 1024\ns_cmp_eq_u32 s30, 20480\ns_cselect_b32 s30, 0, s30")
    D = 8
    for ks in range(D): ldo(ks)
    A(f"""
    v_lshrrev_b32 v9, 2, v1
    v_mul_u32_u24 v9, 160, v9
    v_and_b32 v10, 3, v1
    v_mul_u32_u24 v10, 40, v10
    v_add_u32 v{AW}, v9, v10
    v_add_u32 v{AW+1}, 51200, v{AW}
    """)
    for r in range(40): A(f"v_mov_b32 v{ACC+r}, 0")
    stamp(A, sb + 0)
    A("s_barrier")
    stamp(A, sb + 1)
    units = [(ks, t) for ks in range(20) for t in range(5)]
    def rd(n):
        ks, t = units[n]
        b = WR + (n % 8) * 4
        for hf in range(2):
            off = (ks * 32 + hf * 16) * 160 + 8 * t
            a = AW
            if off >= 51200: off -= 51200; a = AW + 1
            A.lds(f"ds_read_b64_tr_b16 {vr(b+2*hf,2)}, v{a} offset:{off}", ('w', n))
    LA = 6
    A.lds_q = []
    for n in range(LA): rd(n)
    for n, (ks, t) in enumerate(units):
        if t == 0:
            outstanding = 2 * (min(ks + D, 20) - ks)
            A(f"s_waitcnt vmcnt({outstanding - 2})")
            if ks + D < 20: ldo(ks + D)
        if n + LA < len(units): rd(n + LA)
        A.lds_wait(('w', n))
        b = WR + (n % 8) * 4
        for rt in range(2):
            a = ACC + (t * 2 + rt) * 4
            A(f"v_mfma_f32_16x16x32_bf16 {vr(a,4)}, {vr(b,4)}, {vr(of(ks,rt),4)}, {vr(a,4)}")
    stamp(A, sb + 2)
    A(f"""
    v_and_b32 v2, 15, v1
    v_lshrrev_b32 v3, 4, v1
    s_lshl_b32 s12, s6, 7
    s_lshl_b32 s14, s28, 5
    s_add_u32 s12, s12, s14
    v_add_u32 v2, s12, v2
    v_mul_u32_u24 v2, 2560, v2
    v_mul_u32_u24 v3, 40, v3
    v_add_u32 v2, v2, v3
    s_mul_i32 s14, s5, 1280
    s_add_u32 s14, s14, s13
    v_add_u32 v2, s14, v2
    v_add_u32 v3, 40960, v2
    s_nop 3
    """)
    for rt in range(2):
        T = OF + rt * 12
        for t in range(5):
            a = ACC + (t * 2 + rt) * 4
            A(f"v_cvt_pk_bf16_f32 v{T+2*t}, v{a}, v{a+1}\nv_cvt_pk_bf16_f32 v{T+2*t+1}, v{a+2}, v{a+3}")
        A(f"buffer_store_dwordx4 {vr(T,4)}, v{2+rt}, s[24:27], 0 offen")
        A(f"buffer_store_dwordx4 {vr(T+4,4)}, v{2+rt}, s[24:27], 0 offen offset:16")
        A(f"buffer_store_dwordx2 {vr(T+8,2)}, v{2+rt}, s[24:27], 0 offen offset:32")
    stamp(A, sb + 3)

def gen_split(A):
    A.begin("qkv_kernel")
    prologue(A, "K1_end")
    stamp(A, 0)
    phase1(A, "K1_end")
    stamp_flush(A, 7, 0)
    A("K1_end:\ns_endpgm")
    A.end(256, 102, 256, 512, P1_LDS)
    A.begin("attn_kernel")
    prologue(A, "K2_end")
    stamp(A, 0)
    phase2(A, 1)
    stamp_flush(A, 5, 1)
    A("K2_end:\ns_endpgm")
    A.end(256, 102, 256, 512, P2_LDS)
    A.begin("proj_kernel")
    prologue(A, "K3_end")
    p3_map(A)
    stamp(A, 0)
    phase3(A, 1, "K3_end")
    stamp_flush(A, 5, 2)
    A("K3_end:\ns_endpgm")
    A.end(256, 102, 256, 512, 102400)


def p3_map(A):
    A("""
    s_and_b32 s3, s2, 7
    s_lshr_b32 s4, s2, 3
    s_lshr_b32 s5, s3, 2
    s_and_b32 s6, s3, 3
    s_lshl_b32 s6, s6, 2
    s_and_b32 s10, s4, 3
    s_add_u32 s6, s6, s10
    s_lshr_b32 s7, s4, 2
    """)

def gen_fused(A):
    A.begin(MAIN)
    prologue(A, "K_end")
    stamp(A, 0)
    phase1(A, "P1_done")
    A("s_waitcnt vmcnt(0)")
    epoch_share(A)
    A("P1_done:\ns_barrier")
    stamp(A, 7)
    epoch_read(A)
    A("s_lshl_b32 s12, s5, 7\ns_lshl_b32 s13, s6, 3\ns_add_u32 s12, s12, s13\ns_add_u32 s12, s12, s7")
    flag_set(A, 4, 12, 0, "f1")
    phase2(A, 8)
    A("s_waitcnt vmcnt(0)\ns_barrier")
    stamp(A, 12)
    flag_set(A, 0, 2, 2048, "f2")
    p3_map(A)
    phase3(A, 13, "K_end2")
    A("K_end2:")
    for d in DBG:
        if d.startswith('pad'):
            A(f"""
            s_cmp_lt_u32 s28, 4
            s_cbranch_scc1 PADE
            v_readfirstlane_b32 s12, v{EP}
            PADL:
            s_memrealtime s[14:15]
            s_waitcnt lgkmcnt(0)
            s_sub_u32 s13, s14, s12
            s_cmp_lt_u32 s13, {int(d[3:])*100}
            s_cbranch_scc1 PADL
            PADE:
            """)
    stamp_flush(A, 17, 0)
    A("K_end:\ns_endpgm")
    A.end(256, 102, 256, 512, FUSED_LDS)

if __name__ == '__main__':
    if '--stamp' in sys.argv: STAMP = True
    for a in sys.argv[1:]:
        if a.startswith('--dbg='): DBG.update(a[6:].split(','))
    A = Asm()
    if '--fused' in sys.argv:
        FUSED = True
        gen_fused(A)
    else:
        gen_split(A)
    order = None
    for a in sys.argv[1:]:
        if a.startswith('--order='): order = [x + '_kernel' for x in a[8:].split(',')]
    sys.stdout.write(A.text(order))
```

```python
import sys, math, struct

REF = 'concat_heads__sliding_local_dilated__sliding_block__prompt.s.ref'
HDR = [l for l in open(REF).read().split('\n')
       if l.startswith(';') and '@launch' not in l and 'Override' not in l and 'grid=ceil' not in l]
MAIN = "concat_heads__sliding_local_dilated__sliding_block__prompt_kernel"

QK_TILE = 640
V_TILE = 768
K_OFF = 32 * 128 * QK_TILE
V_OFF = 2 * K_OFF
QKV_BYTES = V_OFF + 32 * 128 * V_TILE
O_BASE = 2 * QKV_BYTES
O_BYTES = 2048 * 640 * 2
FLAG_BASE = 24 << 20
MB1 = 0; MBH = 32768; MB2 = 65536; MB_BYTES = 131072
OOB = 0x7ffff000

STAMP = False
DBG = set()
STAMP_OFF = 30 << 20
FUSED = False

def f32bits(x): return struct.unpack('<I', struct.pack('<f', x))[0]
SCALE_L2E = (20 ** -0.5) * math.log2(math.e)

class Asm:
    def __init__(self):
        self.out = []; self.kernels = []; self.launches = []; self.lds_q = []
    def __call__(self, s):
        for l in s.split('\n'):
            l = l.strip()
            if not l: continue
            if 'noload' in DBG and l.startswith('buffer_load') and ' lds' in l: continue
            if 'nomfma' in DBG and l.startswith('v_mfma'): continue
            if 'nods' in DBG and l.startswith('ds_read'): continue
            if 'nowait' in DBG and l.startswith('s_waitcnt lgkmcnt(') and not l.endswith('(0)'): continue
            if 'halfds' in DBG and l.startswith('ds_read_b64_tr') and (int(l.split('[')[1].split(':')[0]) % 4 == 2): continue
            if 'nobar' in DBG and l.startswith('s_barrier'): continue
            if 'nostore' in DBG and l.startswith('buffer_store') and 's[8:11]' not in l: continue
            self.out.append(l if l.endswith(':') else '    ' + l)
    def begin(self, name):
        self.out.append(f".globl {name}\n.p2align 8\n.type {name},@function\n{name}:")
        self.cur = name
    def end(self, vgpr, sgpr, grid, block, lds):
        self.kernels.append((self.cur, vgpr, sgpr))
        self.launches.append((self.cur, grid, block, lds))
    def lds(self, s, tag):
        self(s); self.lds_q.append(tag)
    def lds_wait(self, *tags):
        idx = [i for i, t in enumerate(self.lds_q) if t in tags]
        if not idx: return
        n = len(self.lds_q) - 1 - idx[-1]
        assert n <= 15, n
        self(f"s_waitcnt lgkmcnt({n})")
        self.lds_q = self.lds_q[idx[-1] + 1:]
    def lds_drain(self):
        self("s_waitcnt lgkmcnt(0)"); self.lds_q = []
    def text(self, order=None):
        o = list(HDR)
        ls = self.launches if order is None else [l for n in order for l in self.launches if l[0] == n]
        if len(ls) == 1 and ls[0][0] == MAIN:
            (n, g, b, lds) = ls[0]
            o.append(f"; @launch grid=({g},1,1) block=({b},1,1) lds={lds}")
        else:
            for (n, g, b, lds) in ls:
                o.append(f"; @launch kernel={n} grid=({g},1,1) block=({b},1,1) lds={lds}")
        o.append('.amdgcn_target "amdgcn-amd-amdhsa--gfx950"\n.text')
        o += self.out
        o.append('.section .rodata,"a"')
        for (n, vgpr, sgpr) in self.kernels:
            o.append(f""".p2align 6
.amdhsa_kernel {n}
  .amdhsa_next_free_vgpr {vgpr}
  .amdhsa_next_free_sgpr {sgpr}
  .amdhsa_accum_offset {(vgpr + 3) // 4 * 4}
  .amdhsa_group_segment_fixed_size 0
  .amdhsa_kernarg_size 72
  .amdhsa_user_sgpr_count 2
  .amdhsa_user_sgpr_kernarg_segment_ptr 1
  .amdhsa_system_sgpr_workgroup_id_x 1
.end_amdhsa_kernel""")
        return '\n'.join(o) + '\n'

def vr(a, n=1): return f"v{a}" if n == 1 else f"v[{a}:{a+n-1}]"

def stamp(A, i):
    if STAMP and i < 100:
        A(f"s_memtime s[100:101]\ns_waitcnt lgkmcnt(0)\nv_writelane_b32 v255, s100, {i}")
        A.lds_q = []
        if i == 0:
            A("s_memrealtime s[100:101]\ns_waitcnt lgkmcnt(0)\nv_writelane_b32 v255, s100, 31")
def stamp_flush(A, n, kidx):
    if not STAMP: return
    A("s_waitcnt lgkmcnt(0) vmcnt(0)")
    stamp(A, n)
    A(f"""
    s_memrealtime s[100:101]
    s_waitcnt lgkmcnt(0)
    v_writelane_b32 v255, s100, {n+1}
    s_add_u32 s4, s48, {STAMP_OFF + kidx*524288}
    s_addc_u32 s5, s49, 0
    s_mov_b32 s8, s4
    s_and_b32 s9, s5, 0xffff
    s_mov_b32 s10, 524288
    s_mov_b32 s11, 0x20000
    s_lshl_b32 s6, s2, 4
    s_add_u32 s6, s6, s28
    s_lshl_b32 s6, s6, 7
    v_lshlrev_b32 v0, 2, v1
    v_add_u32 v0, s6, v0
    v_mov_b32 v2, {OOB}
    v_cmp_gt_u32 vcc, 32, v1
    s_nop 1
    v_cndmask_b32 v0, v2, v0, vcc
    buffer_store_dword v255, v0, s[8:11], 0 offen
    """)

def srd(A, d, lo, hi, nbytes):
    A(f"s_mov_b32 s{d}, s{lo}\ns_and_b32 s{d+1}, s{hi}, 0xffff\ns_mov_b32 s{d+2}, {nbytes}\ns_mov_b32 s{d+3}, 0x20000")

def prologue(A, endlabel):
    if 'early' in DBG: A("s_memrealtime s[94:95]")
    A(f"""
    s_cmp_ge_u32 s2, 256
    s_cbranch_scc1 {endlabel}
    s_load_dwordx16 s[32:47], s[0:1], 0
    s_load_dwordx2 s[48:49], s[0:1], 64
    s_getpc_b64 s[50:51]
    v_lshlrev_b32 v3, 6, v0
    v_lshrrev_b32 v2, 6, v0
    v_min_u32 v3, CODE_BYTES, v3
    v_and_b32 v1, 63, v0
    {"" if 'nocpf' in DBG else "global_load_dword v254, v3, s[50:51]"}
    s_and_b32 s3, s2, 7
    s_lshr_b32 s4, s2, 3
    v_readfirstlane_b32 s28, v2
    s_lshr_b32 s5, s3, 2
    s_bfe_u32 s6, s3, 0x10001
    s_and_b32 s7, s3, 1
    s_and_b32 s10, s4, 7
    s_lshr_b32 s11, s4, 3
    s_lshl_b32 s6, s6, 3
    s_add_u32 s6, s6, s10
    s_lshl_b32 s7, s7, 2
    s_add_u32 s7, s7, s11
    """)

PIECE = 1056
P1_LOOK = 5
XOFF = 32 * PIECE
SLOT = XOFF + 16384
P1_LDS = 3 * SLOT
LDS_TOTAL = 163840
BLK = 1536
HD = 14 * BLK
L_B = 102400
L_BK = L_B; L_BQ = L_B + 16 * BLK; L_BV = L_B + 24 * BLK
assert L_BV + 16 * BLK == LDS_TOTAL
EP_LDS = P1_LDS
HF_LDS = 4 * HD + 64
EP = 250
SPIN_LIMIT = 1 << 17
PM = 214; QD = 222; NINF = 223; LK = 224; LV = 225; OL = 226; NEGM = 227; T0 = 228; T1 = 229; CA = 230
MS = 52
QF = 20; AK = 28; AV = 29; AQ = 30; OA = 32; WA = 36
CB = 80; S0 = 96; SA = 112; SB = 128; PA = 144; PB = 152; KF = 160; VF = 176; O = 192; P2 = 64

def flag_srd(A):
    A(f"s_add_u32 s94, s48, {FLAG_BASE}\ns_addc_u32 s95, s49, 0")
    srd(A, 96, 94, 95, MB_BYTES)

def dbg_srd(A):
    A("s_mov_b32 s96, s46\ns_and_b32 s97, s47, 0xffff\ns_mov_b32 s98, 256\ns_mov_b32 s99, 0x20000")

def epoch_get(A):
    A(f"""
    s_or_b32 s96, s28, s2
    s_cbranch_scc1 EP_skip
    {"" if 'early' in DBG else "s_memrealtime s[94:95]"}
    v_mov_b32 v252, 0
    s_waitcnt lgkmcnt(0)
    """)
    dbg_srd(A)
    A(f"""
    s_or_b32 s94, s94, 1
    v_mov_b32 v{EP}, s94
    v_mov_b32 v{EP+1}, s95
    s_nop 0
    buffer_store_dwordx2 v[{EP}:{EP+1}], v252, s[96:99], 0 offen sc1
    EP_skip:
    """)

def epoch_share(A):
    A(f"""
    s_cmp_lg_u32 s28, 4
    s_cbranch_scc1 EP_skip2
    """)
    dbg_srd(A)
    A(f"""
    v_mov_b32 v252, 0
    s_mov_b32 s94, 0
    EP_spin:
    buffer_load_dwordx2 v[{EP}:{EP+1}], v252, s[96:99], 0 offen sc1
    s_add_u32 s94, s94, 1
    s_waitcnt vmcnt(0)
    v_readfirstlane_b32 s95, v{EP}
    s_cmp_ge_u32 s94, {SPIN_LIMIT}
    s_cbranch_scc1 EP_got
    s_cmp_eq_u32 s95, 0
    s_cbranch_scc1 EP_spin
    EP_got:
    v_mov_b32 v252, {EP_LDS}
    s_nop 0
    ds_write_b64 v252, v[{EP}:{EP+1}]
    s_waitcnt lgkmcnt(0)
    EP_skip2:
    """)

def epoch_read(A):
    A(f"v_mov_b32 v252, {EP_LDS}\ns_nop 0\nds_read_b64 v[{EP}:{EP+1}], v252\ns_waitcnt lgkmcnt(0)")

def flag_store(A, vaddr):
    A(f"buffer_store_dwordx2 v[{EP}:{EP+1}], v{vaddr}, s[96:99], 0 offen sc1")

def poll(A, vaddr, vtmp, tag):
    A(f"""
    s_mov_b32 s94, 0
    PL_{tag}:
    buffer_load_dwordx2 v[{vtmp}:{vtmp+1}], v{vaddr}, s[96:99], 0 offen sc1
    s_waitcnt vmcnt(0)
    v_cmp_ne_u64 vcc, v[{vtmp}:{vtmp+1}], v[{EP}:{EP+1}]
    s_add_u32 s94, s94, 1
    s_nop 0
    s_cmp_eq_u64 vcc, 0
    s_cbranch_scc1 PD_{tag}
    s_sleep 1
    s_cmp_lt_u32 s94, {SPIN_LIMIT}
    s_cbranch_scc1 PL_{tag}
    PD_{tag}:
    """)

def setup2(A):
    A(f"""
    v_lshrrev_b32 v5, 5, v1
    v_and_b32 v2, 31, v1
    v_lshlrev_b32 v3, 2, v5
    v_sub_u32 v{QD}, v2, v3
    v_mov_b32 v{NINF}, 0xff800000
    v_mov_b32 v{NEGM}, 0
    v_lshlrev_b32 v{LK}, 4, v1
    """)
    for r in range(16):
        kc = (r & 3) + 8 * (r >> 2)
        A(f"v_cmp_le_i32 s[{MS+2*r}:{MS+2*r+1}], {kc}, v{QD}")
    A("v_mov_b32 v2, 0xffff\nv_mov_b32 v3, 0xffff0000\nv_mov_b32 v4, 0")
    for j in range(8):
        A(f"v_cndmask_b32 v6, v4, v2, s[{MS+4*j}:{MS+4*j+1}]")
        A(f"v_cndmask_b32 v7, v4, v3, s[{MS+4*j+2}:{MS+4*j+3}]")
        A(f"v_or_b32 v{PM+j}, v6, v7")
    A(f"""
    v_and_b32 v3, 3, v1
    v_bfe_u32 v4, v1, 2, 2
    v_lshrrev_b32 v7, 1, v3
    v_lshlrev_b32 v7, 6, v7
    v_and_b32 v6, 1, v3
    v_lshl_add_u32 v7, v6, 3, v7
    v_min_u32 v6, 1, v3
    v_lshlrev_b32 v6, 3, v6
    v_add_u32 v6, 128, v6
    v_bfe_u32 v2, v1, 4, 1
    v_cmp_eq_u32 vcc, 0, v2
    v_mul_u32_u24 v2, 20480, v2
    v_and_b32 v3, 15, v1
    v_cndmask_b32 v7, v6, v7, vcc
    v_lshl_add_u32 v7, v4, 4, v7
    v_mul_u32_u24 v6, 192, v5
    v_add_u32 v{LV}, v7, v6
    v_lshl_add_u32 v{OL}, v3, 4, v2
    s_mov_b32 s84, {f32bits(2.0**-64)}
    s_mov_b32 s85, {f32bits(2.0**64)}
    s_mov_b32 s92, 0
    s_mov_b32 s93, 0
    """)

def build_CA(A):
    for r in range(16):
        kc = (r & 3) + 8 * (r >> 2)
        A(f"v_subrev_u32 v{T0}, {kc}, v{QD}\nv_and_b32 v{T0}, 17, v{T0}\nv_cmp_eq_u32 s[88:89], 0, v{T0}\ns_nop 1\nv_cndmask_b32 v{CA+r}, v{NINF}, v{NEGM}, s[88:89]")

def oaddr(A, s_head, s_rt16):
    A(f"""
    s_mul_i32 s88, s{s_head}, 5
    s_mul_i32 s89, s{s_rt16}, 20480
    v_lshrrev_b32 v2, 5, v1
    v_add_u32 v2, s88, v2
    v_lshrrev_b32 v3, 1, v2
    v_and_b32 v2, 1, v2
    v_lshl_add_u32 v3, v3, 8, v{OL}
    v_lshl_add_u32 v3, v2, 3, v3
    v_add_u32 v{OA}, s89, v3
    v_cmp_gt_u32 vcc, 32, v1
    v_mov_b32 v2, {OOB}
    v_add_u32 v3, 512, v{OA}
    v_add_u32 v{OA+1}, 256, v{OA}
    v_cndmask_b32 v{OA+2}, v2, v3, vcc
    """)

def qk(A, i, slot, dst, C):
    c = vr(C, 16) if i == 0 else vr(dst, 16)
    A(f"v_mfma_f32_32x32x16_bf16 {vr(dst,16)}, {vr(KF+slot*8+4*i,4)}, {vr(QF+4*i,4)}, {c}")
def pv(A, i, slot, Preg, first=False):
    c = "0" if first else vr(O, 16)
    A(f"v_mfma_f32_32x32x16_bf16 {vr(O,16)}, {vr(VF+slot*8+4*i,4)}, {vr(Preg+4*i,4)}, {c}")
def cvt(A, S, Pd, j):
    A(f"v_cvt_pk_bf16_f32 v{Pd+j}, v{S+2*j}, v{S+2*j+1}")
def rdK(A, b, slot):
    for i in range(2):
        A.lds(f"ds_read_b128 {vr(KF + slot*8 + 4*i, 4)}, v{AK} offset:{b*BLK + i*1024}", ('k', b))
def rdV(A, b, slot):
    for i in range(4):
        A.lds(f"ds_read_b64_tr_b16 {vr(VF + slot*8 + 2*i, 2)}, v{AV} offset:{b*BLK + i*384}", ('v', b))
def rdQ(A):
    for i in range(2):
        A.lds(f"ds_read_b128 {vr(QF + 4*i, 4)}, v{AQ} offset:{i*1024}", ('q', 0))
def maskQ(A):
    A(f"v_mov_b32 v{QF+4}, 0\nv_mov_b32 v{QF+5}, 0\ns_mov_b32 s88, -1\ns_mov_b32 s89, 0\nv_mov_b32 v{T0}, 0")
    A(f"v_cndmask_b32 v{QF+6}, v{T0}, v{QF+6}, s[88:89]\nv_cndmask_b32 v{QF+7}, v{T0}, v{QF+7}, s[88:89]\ns_nop 0")

def finish(A, osoff, tag, flagreg):
    A(f"s_nop 7\ns_nop 3\nv_rcp_f32 v{T0}, v{O+12}")
    A(f"v_add_f32 v{T1}, |v{O}|, |v{O+1}|")
    for r in range(2, 12):
        A(f"v_add_f32 v{T1}, v{T1}, |v{O+r}|")
    A(f"""
    v_cmp_le_f32 s[88:89], s84, v{O+12}
    v_cmp_ge_f32 s[90:91], s85, v{O+12}
    v_cmp_gt_f32 vcc, -v{NINF}, v{T1}
    """)
    for r in range(12):
        A(f"v_mul_f32 v{O+r}, v{O+r}, v{T0}")
    A(f"""
    s_and_b64 s[88:89], s[88:89], s[90:91]
    s_and_b64 s[88:89], s[88:89], vcc
    s_or_b32 s90, s{flagreg}, 0
    s_cbranch_scc1 P2_{tag}_ok
    s_cmp_eq_u64 s[88:89], exec
    s_cbranch_scc0 P2_{tag}_fb
    P2_{tag}_ok:
    """)
    for j in range(6):
        A(f"v_cvt_pk_bf16_f32 v{O+j}, v{O+2*j}, v{O+2*j+1}")
    A(f"s_mov_b32 s88, {osoff}")
    for j in range(3):
        A(f"buffer_store_dwordx2 {vr(O+2*j,2)}, v{OA+j}, s[24:27], s88 offen sc1")

def maxblock(A, S, first):
    if first: A(f"v_max_f32 v{T1}, v{S}, v{S+1}")
    else: A(f"v_max3_f32 v{T1}, v{T1}, v{S}, v{S+1}")
    for r in range(2, 16, 2): A(f"v_max3_f32 v{T1}, v{T1}, v{S+r}, v{S+r+1}")
def rowmax_finish(A, back, flagreg, rebuild):
    A(f"""
    v_mov_b32 v{T0}, v{T1}
    s_nop 1
    v_permlane32_swap_b32 v{T1}, v{T0}
    s_nop 1
    v_max_f32 v{T1}, v{T1}, v{T0}
    v_sub_f32 v{NEGM}, 0, v{T1}
    s_mov_b32 s{flagreg}, 2
    """)
    rebuild()
    A(f"s_waitcnt lgkmcnt(0)\ns_branch {back}")

def dma_patterns(A):
    A(f"""
    v_and_b32 v3, 15, v1
    v_bfe_u32 v4, v1, 4, 1
    v_mul_u32_u24 v4, {QK_TILE}, v4
    v_lshl_add_u32 v5, v3, 4, v4
    v_lshl_add_u32 v6, v3, 3, v4
    v_add_u32 v6, 504, v6
    v_cmp_gt_u32 vcc, 32, v1
    v_add_u32 v7, 256, v5
    v_add_u32 v8, {2*QK_TILE}, v5
    v_add_u32 v9, {2*QK_TILE}, v7
    v_add_u32 v10, {2*QK_TILE}, v6
    v_cndmask_b32 v12, v7, v5, vcc
    v_cndmask_b32 v13, v8, v6, vcc
    v_cndmask_b32 v14, v10, v9, vcc
    s_mov_b32 s12, 0x15555556
    """)
    for ty in range(3):
        A(f"""
        v_add_u32 v3, {ty*64}, v1
        v_mul_hi_u32 v4, v3, s12
        v_mul_u32_u24 v5, 12, v4
        v_sub_u32 v5, v3, v5
        v_lshrrev_b32 v6, 2, v5
        v_and_b32 v5, 3, v5
        v_lshl_add_u32 v5, v4, 2, v5
        v_lshrrev_b32 v7, 4, v5
        v_mul_u32_u24 v7, {V_TILE}, v7
        v_and_b32 v5, 15, v5
        v_lshl_add_u32 v7, v5, 4, v7
        v_lshl_add_u32 v{15+ty}, v6, 8, v7
        """)

def gen(A):
    A.begin(MAIN)
    prologue(A, "K_end")
    stamp(A, 0)
    A("s_cmp_lt_u32 s28, 4\ns_cbranch_scc1 P1_consumer")
    A(f"""
    s_sub_u32 s29, s28, 4
    v_lshrrev_b32 v2, 5, v1
    v_and_b32 v3, 31, v1
    v_mul_u32_u24 v2, 15360, v2
    v_mul_u32_u24 v6, 26, v3
    v_lshrrev_b32 v6, 8, v6
    s_cmp_eq_u32 s5, 0
    s_cselect_b32 s15, 1120, 0
    s_cselect_b32 s14, 160, 480
    v_mul_lo_u32 v6, v6, s15
    v_lshl_add_u32 v2, v3, 4, v2
    v_add_u32 v2, v2, v6
    v_mov_b32 v4, {OOB}
    v_cmp_gt_u32 vcc, 30, v3
    v_lshrrev_b32 v5, 3, v1
    v_mul_u32_u24 v5, 1280, v5
    v_cndmask_b32 v8, v4, v2, vcc
    v_and_b32 v3, 7, v1
    v_lshrrev_b32 v4, 4, v1
    v_xor_b32 v3, v3, v4
    v_lshl_add_u32 v9, v3, 4, v5
    v_xor_b32 v3, 4, v3
    v_lshl_add_u32 v10, v3, 4, v5
    s_mul_i32 s12, s11, 5
    s_lshr_b32 s12, s12, 1
    s_mul_i32 s13, s10, 5
    s_lshr_b32 s13, s13, 2
    s_add_u32 s12, s12, s13
    s_cmp_ge_u32 s12, 10
    s_cselect_b32 s13, 10, 0
    s_sub_u32 s12, s12, s13
    s_mul_i32 s13, s29, {8*3840}
    s_mul_i32 s14, s7, s14
    s_add_u32 s13, s13, s14
    s_lshl_b32 s14, s6, 7
    s_lshl_b32 s15, s29, 5
    s_add_u32 s14, s14, s15
    s_mul_i32 s14, s14, 1280
    s_mul_i32 s30, s29, {4*PIECE}
    s_lshl_b32 s31, s29, 12
    s_add_u32 s31, s31, {XOFF}
    s_mul_i32 s26, s12, 245760
    s_add_u32 s26, s26, s13
    s_lshl_b32 s27, s12, 7
    s_add_u32 s27, s27, s14
    s_mov_b32 s25, 0
    s_mov_b32 s51, 0
    s_cmp_eq_u32 s5, 0
    s_waitcnt lgkmcnt(0)
    s_cselect_b32 s16, s32, s38
    s_cselect_b32 s17, s33, s39
    s_cselect_b32 s20, s34, s40
    s_cselect_b32 s21, s35, s41
    s_and_b32 s17, s17, 0xffff
    s_mov_b32 s18, 2621440
    s_mov_b32 s19, 0x20000
    s_and_b32 s21, s21, 0xffff
    s_mov_b32 s22, 2457600
    s_mov_b32 s23, 0x20000
    """.replace("s_cselect_b32 s14, 160, 480", "s_movk_i32 s14, 480\ns_cselect_b32 s14, 160, s14"))
    def wpiece(sub, r):
        A(f"s_add_u32 m0, s30, {(sub*16 + r)*PIECE}\ns_add_u32 s50, s26, {(32*sub + r)*3840}\nbuffer_load_dwordx4 v8, s[20:23], s50 offen lds")
    def xpiece(j):
        A(f"s_add_u32 m0, s31, {j*1024}\ns_add_u32 s50, s27, {j*8*1280}\nbuffer_load_dwordx4 v{9 + (j & 1)}, s[16:19], s50 offen lds")
    def F():
        xpiece(0); wpiece(0, 0); xpiece(1); wpiece(0, 1); xpiece(2); xpiece(3)
    def S():
        wpiece(0, 2); wpiece(0, 3)
        for r in range(4): wpiece(1, r)
    A("s_branch P1_lf")
    A("P1_lloop:")
    S()
    A(f"""
    s_add_u32 s12, s12, 1
    s_cmp_eq_u32 s12, 10
    s_cselect_b32 s12, 0, s12
    s_mul_i32 s26, s12, 245760
    s_add_u32 s26, s26, s13
    s_lshl_b32 s27, s12, 7
    s_add_u32 s27, s27, s14
    s_add_u32 s25, s25, 1
    s_cmp_eq_u32 s25, 3
    s_cselect_b32 s25, 0, s25
    s_mov_b32 s50, {SLOT}
    s_cselect_b32 s50, {-2*SLOT & 0xffffffff}, s50
    s_add_u32 s30, s30, s50
    s_add_u32 s31, s31, s50
    s_add_u32 s51, s51, 1
    s_cmp_eq_u32 s51, 10
    s_cbranch_scc1 P1_llast
    P1_lf:
    """)
    F()
    A("""
    s_cmp_eq_u32 s51, 0
    s_cbranch_scc1 P1_lloop
    s_waitcnt vmcnt(6)
    s_barrier
    s_branch P1_lloop
    P1_llast:
    s_waitcnt vmcnt(0)
    s_barrier
    """)
    stamp(A, 1)
    epoch_share(A)
    A(f"""
    s_cmp_eq_u32 s5, 0
    s_cselect_b32 s16, s36, s42
    s_cselect_b32 s17, s37, s43
    s_and_b32 s17, s17, 0xffff
    s_mov_b32 s18, 819200
    s_lshr_b32 s12, s2, 3
    s_lshl_b32 s12, s12, 2
    s_add_u32 s12, s12, s29
    s_mul_i32 s12, s12, 6400
    v_lshlrev_b32 v2, 7, v1
    v_mov_b32 v3, {OOB}
    v_cmp_gt_u32 vcc, 50, v1
    s_nop 1
    v_cndmask_b32 v2, v3, v2, vcc
    buffer_load_dword v11, v2, s[16:19], s12 offen
    buffer_load_dword v11, v2, s[16:19], s12 offen offset:64
    """)
    setup2(A)
    dma_patterns(A)
    flag_srd(A)
    A(f"""
    s_and_b32 s3, s2, 31
    s_lshr_b32 s4, s2, 5
    s_add_u32 s12, s48, {QKV_BYTES}
    s_addc_u32 s13, s49, 0
    """)
    srd(A, 16, 48, 49, QKV_BYTES)
    srd(A, 20, 12, 13, QKV_BYTES)
    A(f"""
    v_cmp_lt_u32 vcc, 11, v1
    v_mov_b32 v2, 0
    v_mov_b32 v3, 1
    v_cndmask_b32 v2, v2, v3, vcc
    v_mul_u32_u24 v3, 12, v2
    v_sub_u32 v3, v1, v3
    s_mul_i32 s12, s7, 12
    v_add_u32 v3, s12, v3
    v_lshrrev_b32 v4, 5, v3
    v_and_b32 v3, 31, v3
    s_lshr_b32 s12, s6, 1
    v_add_u32 v5, s12, v2
    v_lshl_add_u32 v3, v5, 5, v3
    s_and_b32 s12, s6, 1
    s_add_u32 s12, s12, 2
    v_lshlrev_b32 v2, 1, v2
    v_sub_u32 v2, s12, v2
    v_lshl_add_u32 v2, v4, 2, v2
    v_lshlrev_b32 v2, 3, v2
    v_lshl_add_u32 v2, v3, 7, v2
    v_cmp_gt_u32 vcc, 8, v5
    v_cmp_gt_u32 s[88:89], 24, v1
    v_mov_b32 v3, {OOB}
    s_and_b64 vcc, vcc, s[88:89]
    s_add_u32 s12, s6, 1
    s_lshl_b32 s13, s12, 3
    s_add_u32 s13, s13, s7
    s_lshl_b32 s13, s13, 7
    s_add_u32 s13, s13, {MBH}
    s_cmp_lt_u32 s12, 16
    s_cselect_b32 s13, s13, {OOB}
    v_cndmask_b32 v18, v3, v2, vcc
    v_mov_b32 v4, s13
    v_cmp_eq_u32 vcc, 0, v1
    s_cmp_eq_u32 s5, 0
    s_cbranch_scc0 L_pa
    v_cndmask_b32 v18, v3, v4, vcc
    L_pa:
    """)
    A(f"""
    v_min_u32 v2, 11, v1
    v_lshrrev_b32 v3, 2, v2
    v_cmp_eq_u32 vcc, 0, v3
    s_cmp_eq_u32 s4, 0
    s_cselect_b64 s[88:89], exec, vcc
    v_or_b32 v3, 2, v2
    v_cndmask_b32 v2, v2, v3, s[88:89]
    s_lshl_b32 s12, s2, 7
    v_lshlrev_b32 v2, 3, v2
    v_add_u32 v19, s12, v2
    s_lshl_b32 s14, s3, 7
    s_lshl_b32 s15, s4, 4
    s_add_u32 s14, s14, s15
    """)
    A("s_barrier")
    epoch_read(A)
    A("s_barrier")
    stamp(A, 2)
    A("s_cmp_lg_u32 s28, 4\ns_cbranch_scc1 L_nf")
    flag_store(A, 18)
    A("s_cmp_lg_u32 s5, 0\ns_cbranch_scc1 L_nf")
    A(f"""
    s_cmp_eq_u32 s6, 0
    s_cbranch_scc1 L_hnp
    s_lshl_b32 s12, s6, 3
    s_add_u32 s12, s12, s7
    s_lshl_b32 s12, s12, 7
    s_add_u32 s12, s12, {MBH}
    v_mov_b32 v2, s12
    """)
    poll(A, 2, 4, "h")
    A(f"""
    L_hnp:
    s_mov_b64 s[90:91], exec
    s_lshl_b32 s12, s7, 9
    s_lshl_b32 s13, s6, 3
    s_add_u32 s12, s12, s13
    s_sub_u32 s12, s12, 2
    """)
    for hd in range(4):
        for (areg, tb, off, lds) in ((12, QK_TILE, K_OFF, 0), (15, V_TILE, V_OFF, 9 * BLK)):
            A(f"""
            s_add_u32 s13, s12, {hd*128}
            s_mul_i32 s13, s13, {tb}
            s_add_u32 s13, s13, {off}
            s_cmp_eq_u32 s6, 0
            s_cselect_b32 s13, 0x70000000, s13
            s_mov_b32 m0, {hd*HD + lds}
            s_nop 0
            buffer_load_dwordx4 v{areg}, s[16:19], s13 offen sc1 lds
            s_mov_b32 m0, {hd*HD + lds + 1024}
            s_mov_b32 exec_hi, 0
            buffer_load_dwordx4 v{areg+1}, s[16:19], s13 offen sc1 lds
            s_mov_b64 exec, s[90:91]
            """)
    A(f"""
    v_mov_b32 v2, {HF_LDS}
    v_mov_b32 v3, 1
    s_waitcnt vmcnt(0)
    ds_write_b32 v2, v3
    s_waitcnt lgkmcnt(0)
    L_nf:
    """)
    stamp(A, 3)
    poll(A, 19, 4, "b")
    stamp(A, 4)
    def dma_unit(areg, tile_bytes, reg_off, tile_delta, lds_base, u_expr):
        A(u_expr)
        A(f"""
        s_lshl_b32 s30, s4, 4
        s_add_u32 s30, s30, s29
        s_add_u32 s31, s14, s29
        s_add_i32 s31, s31, {tile_delta}
        s_mul_i32 s31, s31, {tile_bytes}
        s_add_u32 s31, s31, {reg_off}
        s_cmp_lt_u32 s30, {-tile_delta}
        s_cselect_b32 s31, 0x70000000, s31
        s_mul_i32 s30, s29, 768
        """)
        for ty in range(3):
            A(f"s_add_u32 m0, s30, {lds_base + ty*1024}\ns_nop 0\nbuffer_load_dwordx4 v{areg+ty}, s[20:23], s31 offen sc1 lds")
    dma_unit(12, QK_TILE, 0, 0, L_BQ, "s_sub_u32 s29, s28, 4\ns_lshl_b32 s29, s29, 2")
    dma_unit(12, QK_TILE, K_OFF, -16, L_BK, "")
    dma_unit(15, V_TILE, V_OFF, -16, L_BV, "")
    dma_unit(12, QK_TILE, K_OFF, -16, L_BK, "s_add_u32 s29, s29, 16")
    dma_unit(15, V_TILE, V_OFF, -16, L_BV, "")
    stamp(A, 5)
    A(f"""
    s_lshl_b32 s12, s6, 3
    v_add_u32 v2, s12, v1
    v_lshlrev_b32 v2, 8, v2
    s_lshl_b32 s12, s7, 3
    s_add_u32 s12, s12, {MB2}
    v_add_u32 v2, s12, v2
    v_mov_b32 v3, {OOB}
    v_cmp_gt_u32 vcc, 8, v1
    s_or_b32 s12, s5, 0
    s_cselect_b64 vcc, 0, vcc
    s_cmp_lg_u32 s28, 4
    s_cselect_b64 vcc, 0, vcc
    s_nop 1
    v_cndmask_b32 v18, v3, v2, vcc
    s_branch P2_pre
    """)

    A("P1_consumer:")
    ACC = 8; WR = 128; XF = 168; AW0 = 184; AX0 = 185; AX1 = 186; AW = 187; AXa = 188; AXb = 189
    def acc(grp, t, rt): return ACC + ((grp * 5 + t) * 2 + rt) * 4
    epoch_get(A)
    A(f"""
    v_lshrrev_b32 v2, 2, v1
    v_mul_u32_u24 v2, {PIECE}, v2
    v_and_b32 v3, 3, v1
    v_mul_u32_u24 v3, 40, v3
    v_add_u32 v{AW0}, v2, v3
    v_and_b32 v2, 15, v1
    v_lshrrev_b32 v3, 4, v1
    v_lshrrev_b32 v4, 1, v2
    v_xor_b32 v3, v3, v4
    s_lshl_b32 s12, s28, 12
    s_add_u32 s12, s12, {XOFF}
    v_lshlrev_b32 v2, 7, v2
    v_add_u32 v2, s12, v2
    v_lshl_add_u32 v{AX0}, v3, 4, v2
    v_xor_b32 v3, 4, v3
    v_lshl_add_u32 v{AX1}, v3, 4, v2
    v_mov_b32 v{AW}, v{AW0}
    v_mov_b32 v{AXa}, v{AX0}
    v_mov_b32 v{AXb}, v{AX1}
    """)
    for r in range(ACC, XF + 16, 2):
        A(f"v_pk_mov_b32 v[{r}:{r+1}], 0, 0")
    setup2(A)
    build_CA(A)
    A("s_mov_b32 s25, 0\ns_mov_b32 s51, 0")
    stamp(A, 1)
    units = [(sub, grp, t) for sub in range(2) for grp in range(3) for t in range(5)]
    def rd(u, hf):
        sub, grp, t = units[u]
        b = WR + (u % 10) * 4
        off = sub * 16 * PIECE + hf * 512 + grp * 160 + 8 * t
        A.lds(f"ds_read_b64_tr_b16 {vr(b + 2*hf, 2)}, v{AW} offset:{off}", ('w', u))
    def rdx(sub, rt):
        A.lds(f"ds_read_b128 {vr(XF + (sub*2+rt)*4, 4)}, v{AXa if sub == 0 else AXb} offset:{rt*2048}", ('x', sub))
    def mm(u, rt):
        sub, grp, t = units[u]
        b = WR + (u % 10) * 4
        a = acc(grp, t, rt)
        A(f"v_mfma_f32_16x16x32_bf16 {vr(a,4)}, {vr(b,4)}, {vr(XF + (sub*2+rt)*4, 4)}, {vr(a,4)}")
    L = P1_LOOK
    def body(emit):
        save = A.out
        if not emit: A.out = []
        for step in range(30):
            u = (step - L) % 30
            g_ = 1 if step >= L else 0
            A.lds_wait(('x', units[u][0]) if g_ else ('px', units[u][0]), ('w', u) if g_ else ('pw', u))
            mm(u, 0)
            if step == 0: rdx(0, 0)
            if step == L + 2: rdx(1, 0)
            rd(step, 0)
            if step == 26:
                A(f"s_add_u32 s25, s25, {SLOT}\ns_cmp_eq_u32 s25, {3*SLOT}\ns_cselect_b32 s25, 0, s25")
            if step == 27:
                A(f"v_add_u32 v{AXa}, s25, v{AX0}")
            if step == 28:
                A(f"v_add_u32 v{AXb}, s25, v{AX1}")
            mm(u, 1)
            if step == 0: rdx(0, 1)
            if step == L + 2: rdx(1, 1)
            rd(step, 1)
            if step == 28:
                A("s_add_u32 s51, s51, 1\ns_cmp_lt_u32 s51, 10")
        A(f"v_add_u32 v{AW}, s25, v{AW0}")
        A.lds_q = [('p' + t[0], t[1]) for t in A.lds_q]
        if not emit: A.out = save
    A.lds_q = []
    body(False)
    A("P1_cloop:")
    A("s_barrier")
    if STAMP and 'stg' in DBG:
        A("s_memtime s[100:101]\ns_add_u32 m0, s51, 16\ns_waitcnt lgkmcnt(0)\nv_writelane_b32 v255, s100, m0")
    body(True)
    A("s_cbranch_scc1 P1_cloop")
    for u in range(30 - L, 30):
        A.lds_wait(('pw', u))
        mm(u, 0); mm(u, 1)
    stamp(A, 2)
    A("s_barrier")
    epoch_read(A)
    A(f"""
    s_mul_i32 s12, s5, {QKV_BYTES}
    s_add_u32 s12, s48, s12
    s_addc_u32 s13, s49, 0
    """)
    srd(A, 24, 12, 13, QKV_BYTES)
    A(f"""
    v_and_b32 v2, 15, v1
    v_lshrrev_b32 v3, 4, v1
    s_lshl_b32 s12, s6, 3
    s_lshl_b32 s13, s28, 1
    s_add_u32 s12, s12, s13
    v_mul_u32_u24 v252, {HD}, v3
    v_lshlrev_b32 v3, 7, v3
    v_add_u32 v3, s12, v3
    v_mul_u32_u24 v4, {QK_TILE}, v3
    v_mul_u32_u24 v5, {V_TILE}, v3
    v_lshl_add_u32 v6, v2, 3, v4
    v_lshl_add_u32 v4, v2, 4, v4
    v_lshl_add_u32 v5, v2, 4, v5
    v_mov_b32 v7, {f32bits(SCALE_L2E)}
    s_mul_i32 s13, s7, 12
    s_mul_i32 s12, s28, {BLK}
    v_add_u32 v252, s12, v252
    v_lshrrev_b32 v3, 2, v2
    v_mul_u32_u24 v3, 192, v3
    v_and_b32 v253, 3, v2
    v_lshl_add_u32 v3, v253, 4, v3
    v_add_u32 v253, v252, v3
    v_lshl_add_u32 v252, v2, 4, v252
    s_cmp_eq_u32 s5, 0
    s_cbranch_scc1 P1_epiA
    """)
    def pack(grp, TB):
        for rt in range(2):
            T = TB + rt * 12
            for t in range(5):
                a = acc(grp, t, rt)
                A(f"v_cvt_pk_bf16_f32 v{T+2*t}, v{a}, v{a+1}\nv_cvt_pk_bf16_f32 v{T+2*t+1}, v{a+2}, v{a+3}")
    def store_qk(TB, soff):
        for rt in range(2):
            T = TB + rt * 12
            A(f"buffer_store_dwordx4 {vr(T,4)}, v4, s[24:27], s{soff} offen offset:{rt*QK_TILE} sc1")
            A(f"buffer_store_dwordx4 {vr(T+4,4)}, v4, s[24:27], s{soff} offen offset:{rt*QK_TILE+256} sc1")
            A(f"buffer_store_dwordx2 {vr(T+8,2)}, v6, s[24:27], s{soff} offen offset:{rt*QK_TILE+512} sc1")
    def ones(TB):
        for rt in range(2):
            T = TB + rt * 12
            A(f"v_mov_b32 v{T+10}, 0x3f803f80\nv_mov_b32 v{T+11}, 0x3f803f80")
    def store_v(TB, soff):
        for rt in range(2):
            T = TB + rt * 12
            for p in range(3):
                A(f"buffer_store_dwordx4 {vr(T+4*p,4)}, v5, s[24:27], s{soff} offen offset:{rt*V_TILE+256*p} sc1")
    def scale(grp):
        for r in range(acc(grp, 0, 0), acc(grp, 0, 0) + 40):
            A(f"v_mul_f32 v{r}, v7, v{r}")
    TBS = [WR, 190, WR + 24]
    for grp in range(3):
        TB = TBS[grp]
        A(f"""
        s_add_u32 s14, s13, {4*grp}
        s_mul_i32 s15, s14, {128*QK_TILE}
        s_sub_u32 s16, s14, 64
        s_mul_i32 s16, s16, {128*V_TILE}
        s_add_u32 s16, s16, {V_OFF}
        s_cmp_ge_u32 s14, 32
        s_cbranch_scc1 P1_ns{grp}
        """)
        scale(grp)
        A(f"P1_ns{grp}:")
        pack(grp, TB)
        A(f"s_cmp_ge_u32 s14, 64\ns_cbranch_scc1 P1_ev{grp}")
        store_qk(TB, 15)
        A(f"s_branch P1_ed{grp}\nP1_ev{grp}:")
        ones(TB); store_v(TB, 16)
        A(f"P1_ed{grp}:")
    stamp(A, 3)
    A("s_waitcnt vmcnt(0)\ns_barrier")
    stamp(A, 4)
    A("s_branch P2_cd")
    A("P1_epiA:")
    pack(1, TBS[1]); pack(2, TBS[2]); ones(TBS[2])
    A(f"""
    s_cmp_lg_u32 s28, 3
    s_cbranch_scc1 P1_nh
    s_lshl_b32 s14, s7, 2
    s_mul_i32 s15, s14, {128*QK_TILE}
    s_add_u32 s15, s15, {K_OFF}
    s_mul_i32 s16, s14, {128*V_TILE}
    s_add_u32 s16, s16, {V_OFF}
    """)
    store_qk(TBS[1], 15); store_v(TBS[2], 16)
    A("P1_nh:")
    scale(0); pack(0, TBS[0])
    A(f"v_mov_b32 v2, 0\nv_mov_b32 v3, 0\nv_mov_b32 v8, {HF_LDS}")
    A("ds_write_b32 v8, v2")
    for (grp, base) in ((1, BLK), (0, 5 * BLK)):
        for rt in range(2):
            T = TBS[grp] + rt * 12
            A(f"ds_write_b128 v252, {vr(T,4)} offset:{base + rt*256}")
            A(f"ds_write_b128 v252, {vr(T+4,4)} offset:{base + rt*256 + 512}")
            A(f"ds_write_b64 v252, {vr(T+8,2)} offset:{base + rt*256 + 1024 + 8}")
            A(f"ds_write_b64 v252, v[2:3] offset:{base + rt*256 + 1024}")
    for rt in range(2):
        T = TBS[2] + rt * 12
        for p in range(3):
            A(f"ds_write_b128 v253, {vr(T+4*p,4)} offset:{10*BLK + rt*768 + p*64}")
    A(f"""
    s_add_u32 s12, s48, {O_BASE}
    s_addc_u32 s13, s49, 0
    s_mul_i32 s14, s28, {HD}
    s_lshl_b32 s15, s7, 2
    s_add_u32 s15, s15, s28
    s_mov_b32 s16, 1
    """)
    stamp(A, 3)
    A("s_waitcnt vmcnt(0) lgkmcnt(0)\ns_barrier")
    stamp(A, 4)
    srd(A, 24, 12, 13, 2 * O_BYTES)
    A(f"""
    P2_a_unit:
    s_mul_i32 s12, s16, {BLK}
    s_add_u32 s12, s12, s14
    v_add_u32 v{AK}, s12, v{LK}
    s_add_u32 s13, s12, {9*BLK}
    v_add_u32 v{AV}, s13, v{LV}
    v_add_u32 v{AQ}, {5*BLK}, v{AK}
    s_lshl_b32 s12, s6, 3
    s_lshl_b32 s13, s16, 1
    s_add_u32 s17, s12, s13
    s_or_b32 s87, s6, s16
    s_cmp_lg_u32 s16, 0
    s_cbranch_scc1 P2_a_start
    v_mov_b32 v2, {HF_LDS}
    s_mov_b32 s94, 0
    P2_hw:
    ds_read_b32 v3, v2
    s_add_u32 s94, s94, 1
    s_waitcnt lgkmcnt(0)
    v_readfirstlane_b32 s12, v3
    s_cmp_ge_u32 s94, {SPIN_LIMIT*8}
    s_cbranch_scc1 P2_a_start
    s_cmp_eq_u32 s12, 1
    s_cbranch_scc0 P2_hw
    P2_a_start:
    """)
    A.lds_q = []
    rdQ(A); rdK(A, 0, 0); rdK(A, 1, 1); rdV(A, 0, 0); rdV(A, 1, 1)
    oaddr(A, 15, 17)
    A.lds_wait(('q', 0))
    maskQ(A)
    A.lds_wait(('k', 0))
    qk(A, 0, 0, SA, CA); qk(A, 1, 0, SA, CA)
    A.lds_wait(('k', 1))
    qk(A, 0, 1, SB, CA); qk(A, 1, 1, SB, CA)
    A("s_cmp_lg_u32 s87, 0\ns_nop 7\ns_cbranch_scc1 P2_a_val\ns_nop 3")
    for r in range(16): A(f"v_mov_b32 v{SA+r}, v{NINF}")
    A("P2_a_val:\ns_nop 3")
    for r in range(16):
        A(f"v_cndmask_b32 v{SA+r}, v{SA+r}, v{SB+r}, s[{MS+2*r}:{MS+2*r+1}]")
    A("s_cmp_eq_u32 s92, 1\ns_cbranch_scc1 P2_a_max")
    for r in range(16): A(f"v_exp_f32 v{SA+r}, v{SA+r}")
    A("s_nop 0")
    for j in range(8): cvt(A, SA, PA, j)
    for j in range(8):
        A(f"v_and_b32 v{PB+j}, v{PA+j}, v{PM+j}\nv_bfi_b32 v{PA+j}, v{PM+j}, 0, v{PA+j}")
    A.lds_wait(('v', 1))
    A("s_nop 0")
    pv(A, 0, 0, PA, True); pv(A, 1, 0, PA); pv(A, 0, 1, PB); pv(A, 1, 1, PB)
    finish(A, 0, 'a', 92)
    A(f"""
    s_cmp_eq_u32 s92, 0
    s_cbranch_scc1 P2_a_next
    s_mov_b32 s92, 0
    v_mov_b32 v{NEGM}, 0
    """)
    build_CA(A)
    A("""
    P2_a_next:
    s_add_u32 s16, s16, 1
    s_and_b32 s16, s16, 3
    s_cmp_lg_u32 s16, 1
    s_cbranch_scc1 P2_a_unit
    """)
    stamp(A, 5)
    A("P2_cd:")
    flag_srd(A)
    A(f"s_and_b32 s3, s2, 31\ns_lshr_b32 s4, s2, 5\nv_mov_b32 v18, {OOB}")
    A("P2_pre:")
    A(f"""
    s_add_u32 s12, s48, {O_BASE}
    s_addc_u32 s13, s49, 0
    """)
    srd(A, 24, 12, 13, 2 * O_BYTES)
    A(f"""
    s_mul_i32 s12, s28, {BLK}
    s_add_u32 s13, s12, {L_BK}
    v_add_u32 v{AK}, s13, v{LK}
    s_add_u32 s13, s12, {L_BQ}
    v_add_u32 v{AQ}, s13, v{LK}
    s_add_u32 s13, s12, {L_BV}
    v_add_u32 v{AV}, s13, v{LV}
    v_mov_b32 v{NEGM}, 0
    s_sub_u32 s86, 8, s28
    s_cmp_eq_u32 s4, 0
    s_cselect_b32 s86, s86, -1
    s_lshl_b32 s12, s4, 4
    s_lshl_b32 s13, s28, 1
    s_add_u32 s17, s12, s13
    """)
    oaddr(A, 3, 17)
    A(f"""
    s_and_b32 s12, s2, 3
    s_lshl_b32 s9, s12, 2
    s_bfe_u32 s12, s2, 0x20003
    s_add_u32 s9, s9, s12
    s_lshr_b32 s10, s2, 5
    s_mul_i32 s11, s10, 5
    s_lshr_b32 s11, s11, 1
    s_mov_b32 s12, 0x1999999a
    """)
    for i in range(5):
        A(f"""
        v_add_u32 v8, {i*64}, v1
        v_mul_hi_u32 v9, v8, s12
        v_mul_u32_u24 v10, 10, v9
        v_sub_u32 v10, v8, v10
        v_bfe_u32 v11, v9, 2, 2
        v_lshlrev_b32 v11, 3, v11
        v_bfe_u32 v12, v9, 4, 1
        v_lshl_add_u32 v11, v12, 2, v11
        v_and_b32 v12, 3, v9
        v_add_u32 v11, v11, v12
        v_mul_u32_u24 v11, 1280, v11
        v_lshl_add_u32 v{WA+i}, v10, 4, v11
        """)
    A(f"""
    s_cmp_eq_u32 s5, 0
    s_cselect_b32 s16, s36, s42
    s_cselect_b32 s17, s37, s43
    s_and_b32 s17, s17, 0xffff
    s_mov_b32 s18, 819200
    s_mov_b32 s19, 0x20000
    s_mul_i32 s20, s10, 160
    """)
    def wo_setup(n):
        A(f"""
        s_add_u32 s21, s28, {8*n}
        s_add_u32 s22, s21, s11
        s_cmp_ge_u32 s22, 20
        s_cselect_b32 s23, 20, 0
        s_sub_u32 s22, s22, s23
        s_mul_i32 s22, s22, 40960
        s_add_u32 s22, s22, s20
        s_mul_i32 s23, s21, 5120
        """)
    def wo_piece(i):
        A(f"s_add_u32 m0, s23, {i*1024}\ns_nop 0\nbuffer_load_dwordx4 v{WA+i}, s[16:19], s22 offen lds")
    A("s_waitcnt vmcnt(0)\ns_barrier")
    stamp(A, 6)
    A.lds_q = []
    rdQ(A)
    flag_store(A, 18)
    A.lds_wait(('q', 0))
    maskQ(A)
    A("P2_b_start:")
    A.lds_q = []
    rdK(A, 0, 0); rdK(A, 1, 1)
    A("s_cmp_eq_u32 s4, 0\ns_cselect_b64 s[88:89], exec, 0\ns_nop 1")
    for r in range(16): A(f"v_cndmask_b32 v{CB+r}, v{NEGM}, v{NINF}, s[88:89]")
    def cb_switch(b):
        A(f"s_cmp_lg_u32 s86, {b}\ns_cbranch_scc1 P2_cb{b}\ns_nop 7")
        for r in range(16): A(f"v_mov_b32 v{CB+r}, v{NEGM}")
        A(f"s_nop 1\nP2_cb{b}:")
    A.lds_wait(('k', 0))
    qk(A, 0, 0, S0, CB); qk(A, 1, 0, S0, CB)
    rdK(A, 2, 0)
    cb_switch(1)
    A.lds_wait(('k', 1))
    qk(A, 0, 1, SA, CB); qk(A, 1, 1, SA, CB)
    rdV(A, 1, 1)
    A("s_cmp_eq_u32 s93, 1\ns_cbranch_scc1 P2_b_max")
    cb_switch(2)
    A("s_nop 7")
    for b in range(1, 8):
        Sc, Sn = (SA, SB) if b % 2 == 1 else (SB, SA)
        Pc, Pp = (PA, PB) if b % 2 == 1 else (PB, PA)
        wn, wh = (b - 1) // 2, (b - 1) % 2
        dow = b <= 6
        if dow and wn == 2: A(f"s_cmp_ge_u32 s28, 4\ns_cbranch_scc1 P2_nw{b}")
        if dow:
            if wh == 0: wo_setup(wn)
            for i in (range(0, 3) if wh == 0 else range(3, 5)): wo_piece(i)
        if dow and wn == 2: A(f"P2_nw{b}:")
        A.lds_wait(('k', b + 1))
        qk(A, 0, (b + 1) % 2, Sn, CB)
        for r in range(0, 4): A(f"v_exp_f32 v{Sc+r}, v{Sc+r}")
        qk(A, 1, (b + 1) % 2, Sn, CB)
        if b + 2 <= 8: rdK(A, b + 2, b % 2)
        for r in range(4, 8): A(f"v_exp_f32 v{Sc+r}, v{Sc+r}")
        if b > 1:
            A.lds_wait(('v', b - 1))
            pv(A, 0, (b - 1) % 2, Pp, first=(b == 2))
        for r in range(8, 12): A(f"v_exp_f32 v{Sc+r}, v{Sc+r}")
        if b > 1:
            pv(A, 1, (b - 1) % 2, Pp)
        nb = b + 1 if b < 7 else 0
        rdV(A, nb, (b + 1) % 2)
        for r in range(12, 16): A(f"v_exp_f32 v{Sc+r}, v{Sc+r}")
        for j in range(8): cvt(A, Sc, Pc, j)
        if b + 2 <= 8: cb_switch(b + 2)
    for r in range(16):
        A(f"v_cndmask_b32 v{S0+r}, v{S0+r}, v{SB+r}, s[{MS+2*r}:{MS+2*r+1}]")
        if r == 3:
            A.lds_wait(('v', 7)); pv(A, 0, 1, PA)
        if r == 11:
            pv(A, 1, 1, PA); rdV(A, 8, 1)
    for r in range(16): A(f"v_exp_f32 v{S0+r}, v{S0+r}")
    A("s_nop 0")
    for j in range(8): cvt(A, S0, PB, j)
    for j in range(8):
        A(f"v_and_b32 v{P2+j}, v{PB+j}, v{PM+j}\nv_bfi_b32 v{PB+j}, v{PM+j}, 0, v{PB+j}")
    A.lds_wait(('v', 8))
    A("s_nop 0")
    pv(A, 0, 0, PB); pv(A, 1, 0, PB); pv(A, 0, 1, P2); pv(A, 1, 1, P2)
    finish(A, O_BYTES, 'b', 93)
    stamp(A, 7)
    A(f"""
    s_lshl_b32 s12, s4, 4
    s_add_u32 s12, s12, 128
    v_add_u32 v2, s12, v1
    v_lshlrev_b32 v2, 8, v2
    s_lshl_b32 s12, s3, 3
    s_add_u32 s12, s12, {MB2}
    v_add_u32 v2, s12, v2
    v_mov_b32 v3, {OOB}
    v_cmp_gt_u32 vcc, 16, v1
    s_nop 1
    v_cndmask_b32 v14, v3, v2, vcc
    """)
    OF = 60; ACC3 = 16; WR3 = 220; AW3 = 8
    def of(ks, rt): return OF + (ks * 2 + rt) * 4
    A(f"""
    s_lshl_b32 s12, s5, 7
    s_lshl_b32 s13, s9, 3
    s_add_u32 s12, s12, s13
    s_add_u32 s12, s12, s10
    s_lshl_b32 s12, s12, 8
    s_add_u32 s12, s12, {MB2}
    s_cmp_eq_u32 s5, 0
    s_cselect_b32 s13, 7, 31
    v_and_b32 v12, s13, v1
    v_lshlrev_b32 v12, 3, v12
    v_add_u32 v12, s12, v12
    s_lshl_b32 s12, s9, 3
    s_lshl_b32 s14, s28, 1
    s_add_u32 s12, s12, s14
    s_mul_i32 s15, s12, 20480
    s_mul_i32 s21, s5, {O_BYTES}
    s_add_u32 s15, s15, s21
    v_lshlrev_b32 v7, 4, v1
    v_add_u32 v7, s15, v7
    v_add_u32 v6, 20480, v7
    v_lshrrev_b32 v9, 2, v1
    v_mul_u32_u24 v9, 160, v9
    v_and_b32 v10, 3, v1
    v_mul_u32_u24 v10, 40, v10
    v_add_u32 v{AW3}, v9, v10
    v_add_u32 v{AW3+1}, 51200, v{AW3}
    s_lshl_b32 s30, s11, 10
    """)
    for r in range(0, 40, 2): A(f"v_pk_mov_b32 v[{ACC3+r}:{ACC3+r+1}], 0, 0")
    A("s_waitcnt vmcnt(0)\ns_barrier")
    stamp(A, 8)
    A("s_cmp_lt_u32 s28, 4\ns_cbranch_scc1 P3\ns_cmp_lg_u32 s28, 4\ns_cbranch_scc1 K_end2")
    flag_store(A, 14)
    A("s_branch K_end2")
    A("P2_a_fb:\ns_mov_b32 s92, 1\ns_branch P2_a_start")
    A("P2_a_max:")
    maxblock(A, SA, True)
    rowmax_finish(A, "P2_a_start", 92, lambda: build_CA(A))
    A("P2_b_fb:\ns_mov_b32 s93, 1\ns_branch P2_b_start")
    A("P2_b_max:")
    A("s_waitcnt lgkmcnt(0)\ns_nop 7\ns_nop 3")
    A.lds_q = []
    maxblock(A, SA, True)
    for b in range(2, 9):
        A(f"s_cmp_lg_u32 s86, {b}\ns_cbranch_scc1 P2_mcb{b}")
        for r in range(16): A(f"v_mov_b32 v{CB+r}, v{NEGM}")
        A(f"P2_mcb{b}:")
        rdK(A, b, 0)
        A.lds_drain()
        qk(A, 0, 0, SA, CB); qk(A, 1, 0, SA, CB)
        A("s_nop 7\ns_nop 7")
        if b == 8:
            for r in range(16):
                A(f"v_cndmask_b32 v{SA+r}, v{S0+r}, v{SA+r}, s[{MS+2*r}:{MS+2*r+1}]")
        maxblock(A, SA, False)
    rowmax_finish(A, "P2_b_start", 93, lambda: None)
    A("P3:")
    srd(A, 16, 44, 45, 2048 * 1280 * 2)
    poll(A, 12, 4, "o")
    stamp(A, 9)
    def ldo(ks):
        for rt in range(2):
            A(f"buffer_load_dwordx4 {vr(of(ks,rt),4)}, v{7-rt}, s[24:27], s30 offen sc1")
        A("s_add_u32 s30, s30, 1024\ns_cmp_eq_u32 s30, 20480\ns_cselect_b32 s30, 0, s30")
    D = P3_DEPTH
    for ks in range(D): ldo(ks)
    units3 = [(ks, t) for ks in range(20) for t in range(5)]
    def rd3(n, hf):
        ks, t = units3[n]
        b = WR3 + (n % 8) * 4
        off = (ks * 32 + hf * 16) * 160 + 8 * t
        a = AW3
        if off >= 51200: off -= 51200; a = AW3 + 1
        A.lds(f"ds_read_b64_tr_b16 {vr(b+2*hf,2)}, v{a} offset:{off}", ('w', n))
    LA = 6
    A.lds_q = []
    for n in range(LA): rd3(n, 0); rd3(n, 1)
    for n, (ks, t) in enumerate(units3):
        if t == 0:
            outstanding = 2 * (min(ks + D, 20) - ks)
            A(f"s_waitcnt vmcnt({outstanding - 2})")
            if ks + D < 20: ldo(ks + D)
        A.lds_wait(('w', n))
        b = WR3 + (n % 8) * 4
        for rt in range(2):
            a = ACC3 + (t * 2 + rt) * 4
            A(f"v_mfma_f32_16x16x32_bf16 {vr(a,4)}, {vr(b,4)}, {vr(of(ks,rt),4)}, {vr(a,4)}")
            if n + LA < len(units3): rd3(n + LA, rt)
    stamp(A, 10)
    A(f"""
    v_and_b32 v2, 15, v1
    v_lshrrev_b32 v3, 4, v1
    s_lshl_b32 s12, s9, 7
    s_lshl_b32 s14, s28, 5
    s_add_u32 s12, s12, s14
    v_add_u32 v2, s12, v2
    v_mul_u32_u24 v2, 2560, v2
    v_mul_u32_u24 v3, 40, v3
    v_add_u32 v2, v2, v3
    s_mul_i32 s14, s5, 1280
    s_add_u32 s14, s14, s20
    v_add_u32 v2, s14, v2
    v_add_u32 v3, 40960, v2
    s_nop 3
    """)
    for rt in range(2):
        T = OF + rt * 12
        for t in range(5):
            a = ACC3 + (t * 2 + rt) * 4
            A(f"v_cvt_pk_bf16_f32 v{T+2*t}, v{a}, v{a+1}\nv_cvt_pk_bf16_f32 v{T+2*t+1}, v{a+2}, v{a+3}")
        A(f"buffer_store_dwordx4 {vr(T,4)}, v{2+rt}, s[16:19], 0 offen {OUT_FLAGS}")
        A(f"buffer_store_dwordx4 {vr(T+4,4)}, v{2+rt}, s[16:19], 0 offen offset:16 {OUT_FLAGS}")
        A(f"buffer_store_dwordx2 {vr(T+8,2)}, v{2+rt}, s[16:19], 0 offen offset:32 {OUT_FLAGS}")
    stamp(A, 11)
    A("K_end2:")
    for d in DBG:
        if d.startswith('pad'):
            A(f"""
            s_cmp_lt_u32 s28, 4
            s_cbranch_scc1 PADE
            v_readfirstlane_b32 s12, v{EP}
            PADL:
            s_memrealtime s[14:15]
            s_waitcnt lgkmcnt(0)
            s_sub_u32 s13, s14, s12
            s_cmp_lt_u32 s13, {int(d[3:])*100}
            s_cbranch_scc1 PADL
            PADE:
            """)
    stamp_flush(A, 12, 0)
    A("K_end:\ns_endpgm")
    A.end(256, 102, 256, 512, LDS_TOTAL)

P3_DEPTH = 8
OUT_FLAGS = ""

if __name__ == '__main__':
    if '--stamp' in sys.argv: STAMP = True
    for a in sys.argv[1:]:
        if a.startswith('--dbg='): DBG.update(a[6:].split(','))
        if a.startswith('--out='): OUT_FLAGS = a[6:].replace('+', ' ')
    A = Asm()
    gen(A)
    t = A.text()
    import subprocess, re, os
    open('_g3.s', 'w').write(t.replace('CODE_BYTES', '0x1234'))
    subprocess.run(['clang', '-x', 'assembler', '-target', 'amdgcn-amd-amdhsa', '-mcpu=gfx950', '-c', '_g3.s', '-o', '_g3.o'], check=True)
    nm = subprocess.run(['llvm-objdump', '-t', '_g3.o'], capture_output=True, text=True).stdout
    end = int(re.search(r'^([0-9a-f]+) .* K_end$', nm, re.M).group(1), 16)
    sys.stderr.write(f"code bytes {end}\n")
    sys.stdout.write(t.replace('CODE_BYTES', str(end - 64)))
```

```python
import sys, math, struct

REF = 'concat_heads__sliding_local_dilated__sliding_block__prompt.s.ref'
HDR = [l for l in open(REF).read().split('\n')
       if l.startswith(';') and '@launch' not in l and 'Override' not in l and 'grid=ceil' not in l]
MAIN = "concat_heads__sliding_local_dilated__sliding_block__prompt_kernel"

QK_TILE = 640
V_TILE = 768
K_OFF = 32 * 128 * QK_TILE
V_OFF = 2 * K_OFF
QKV_BYTES = V_OFF + 32 * 128 * V_TILE
O_BASE = 2 * QKV_BYTES
O_BYTES = 2048 * 640 * 2
FLAG_BASE = 24 << 20
MB1 = 0; MBH = 32768; MB2 = 65536; MB_BYTES = 131072
OOB = 0x7ffff000

STAMP = False
DBG = set()
STAMP_OFF = 30 << 20
FUSED = False

def f32bits(x): return struct.unpack('<I', struct.pack('<f', x))[0]
SCALE_L2E = (20 ** -0.5) * math.log2(math.e)

class Asm:
    def __init__(self):
        self.out = []; self.kernels = []; self.launches = []; self.lds_q = []
    def __call__(self, s):
        for l in s.split('\n'):
            l = l.strip()
            if not l: continue
            if 'noload' in DBG and l.startswith('buffer_load') and ' lds' in l: continue
            if 'nomfma' in DBG and l.startswith('v_mfma'): continue
            if 'nods' in DBG and l.startswith('ds_read'): continue
            if 'nowait' in DBG and l.startswith('s_waitcnt lgkmcnt(') and not l.endswith('(0)'): continue
            if 'halfds' in DBG and l.startswith('ds_read_b64_tr') and (int(l.split('[')[1].split(':')[0]) % 4 == 2): continue
            if 'nobar' in DBG and l.startswith('s_barrier'): continue
            if 'nostore' in DBG and l.startswith('buffer_store') and 's[8:11]' not in l: continue
            self.out.append(l if l.endswith(':') else '    ' + l)
    def begin(self, name):
        self.out.append(f".globl {name}\n.p2align 8\n.type {name},@function\n{name}:")
        self.cur = name
    def end(self, vgpr, sgpr, grid, block, lds):
        self.kernels.append((self.cur, vgpr, sgpr))
        self.launches.append((self.cur, grid, block, lds))
    def lds(self, s, tag):
        self(s); self.lds_q.append(tag)
    def lds_wait(self, *tags):
        idx = [i for i, t in enumerate(self.lds_q) if t in tags]
        if not idx: return
        n = len(self.lds_q) - 1 - idx[-1]
        assert n <= 15, n
        self(f"s_waitcnt lgkmcnt({n})")
        self.lds_q = self.lds_q[idx[-1] + 1:]
    def lds_drain(self):
        self("s_waitcnt lgkmcnt(0)"); self.lds_q = []
    def text(self, order=None):
        o = list(HDR)
        ls = self.launches if order is None else [l for n in order for l in self.launches if l[0] == n]
        if len(ls) == 1 and ls[0][0] == MAIN:
            (n, g, b, lds) = ls[0]
            o.append(f"; @launch grid=({g},1,1) block=({b},1,1) lds={lds}")
        else:
            for (n, g, b, lds) in ls:
                o.append(f"; @launch kernel={n} grid=({g},1,1) block=({b},1,1) lds={lds}")
        o.append('.amdgcn_target "amdgcn-amd-amdhsa--gfx950"\n.text')
        o += self.out
        o.append('.section .rodata,"a"')
        for (n, vgpr, sgpr) in self.kernels:
            o.append(f""".p2align 6
.amdhsa_kernel {n}
  .amdhsa_next_free_vgpr {vgpr}
  .amdhsa_next_free_sgpr {sgpr}
  .amdhsa_accum_offset {(vgpr + 3) // 4 * 4}
  .amdhsa_group_segment_fixed_size 0
  .amdhsa_kernarg_size 72
  .amdhsa_user_sgpr_count 2
  .amdhsa_user_sgpr_kernarg_segment_ptr 1
  .amdhsa_system_sgpr_workgroup_id_x 1
.end_amdhsa_kernel""")
        return '\n'.join(o) + '\n'

def vr(a, n=1): return f"v{a}" if n == 1 else f"v[{a}:{a+n-1}]"

def stamp(A, i):
    if STAMP and i < 100:
        A(f"s_memtime s[100:101]\ns_waitcnt lgkmcnt(0)\nv_writelane_b32 v255, s100, {i}")
        A.lds_q = []
        if i == 0:
            A("s_memrealtime s[100:101]\ns_waitcnt lgkmcnt(0)\nv_writelane_b32 v255, s100, 31")
def stamp_flush(A, n, kidx):
    if not STAMP: return
    A("s_waitcnt lgkmcnt(0) vmcnt(0)")
    stamp(A, n)
    A(f"""
    s_memrealtime s[100:101]
    s_waitcnt lgkmcnt(0)
    v_writelane_b32 v255, s100, {n+1}
    s_add_u32 s4, s48, {STAMP_OFF + kidx*524288}
    s_addc_u32 s5, s49, 0
    s_mov_b32 s8, s4
    s_and_b32 s9, s5, 0xffff
    s_mov_b32 s10, 524288
    s_mov_b32 s11, 0x20000
    s_lshl_b32 s6, s2, 4
    s_add_u32 s6, s6, s28
    s_lshl_b32 s6, s6, 7
    v_lshlrev_b32 v0, 2, v1
    v_add_u32 v0, s6, v0
    v_mov_b32 v2, {OOB}
    v_cmp_gt_u32 vcc, 32, v1
    s_nop 1
    v_cndmask_b32 v0, v2, v0, vcc
    buffer_store_dword v255, v0, s[8:11], 0 offen
    """)

def srd(A, d, lo, hi, nbytes):
    A(f"s_mov_b32 s{d}, s{lo}\ns_and_b32 s{d+1}, s{hi}, 0xffff\ns_mov_b32 s{d+2}, {nbytes}\ns_mov_b32 s{d+3}, 0x20000")

def prologue(A, endlabel):
    if 'early' in DBG: A("s_memrealtime s[94:95]")
    A(f"""
    s_cmp_ge_u32 s2, 256
    s_cbranch_scc1 {endlabel}
    s_load_dwordx16 s[32:47], s[0:1], 0
    s_load_dwordx2 s[48:49], s[0:1], 64
    s_getpc_b64 s[50:51]
    v_lshlrev_b32 v3, 6, v0
    v_lshrrev_b32 v2, 6, v0
    v_min_u32 v3, CODE_BYTES, v3
    v_and_b32 v1, 63, v0
    {"" if 'nocpf' in DBG else "global_load_dword v254, v3, s[50:51]"}
    s_and_b32 s3, s2, 7
    s_lshr_b32 s4, s2, 3
    v_readfirstlane_b32 s28, v2
    s_lshr_b32 s5, s3, 2
    s_bfe_u32 s6, s3, 0x10001
    s_and_b32 s7, s3, 1
    s_and_b32 s10, s4, 7
    s_lshr_b32 s11, s4, 3
    s_lshl_b32 s6, s6, 3
    s_add_u32 s6, s6, s10
    s_lshl_b32 s7, s7, 2
    s_add_u32 s7, s7, s11
    """)

PIECE = 1056
P1_LOOK = 5
XOFF = 32 * PIECE
SLOT = XOFF + 16384
P1_LDS = 3 * SLOT
LDS_TOTAL = 163840
BLK = 1536
HD = 14 * BLK
L_BK = 0; L_BV = 16 * BLK; L_WO = 32 * BLK; L_BQ = L_WO + 102400
assert L_BQ + 8 * BLK == LDS_TOTAL
L_A = SLOT
EP_LDS = 140000
HF_LDS = EP_LDS + 64
assert L_A + 4 * HD <= EP_LDS
EP = 250
SPIN_LIMIT = 1 << 17
PM = 214; QD = 222; NINF = 223; LK = 224; LV = 225; OL = 226; NEGM = 227; T0 = 228; T1 = 229; CA = 230
MS = 52
QF = 20; AK = 28; AV = 29; AQ = 30; OA = 32; WA = 36
CB = 80; S0 = 96; SA = 112; SB = 128; PA = 144; PB = 152; KF = 160; VF = 176; O = 192; P2 = 64

def flag_srd(A):
    A(f"s_add_u32 s94, s48, {FLAG_BASE}\ns_addc_u32 s95, s49, 0")
    srd(A, 96, 94, 95, MB_BYTES)

def dbg_srd(A):
    A("s_mov_b32 s96, s46\ns_and_b32 s97, s47, 0xffff\ns_mov_b32 s98, 256\ns_mov_b32 s99, 0x20000")

def epoch_get(A):
    A(f"""
    s_or_b32 s96, s28, s2
    s_cbranch_scc1 EP_skip
    {"" if 'early' in DBG else "s_memrealtime s[94:95]"}
    v_mov_b32 v252, 0
    s_waitcnt lgkmcnt(0)
    """)
    dbg_srd(A)
    A(f"""
    s_or_b32 s94, s94, 1
    v_mov_b32 v{EP}, s94
    v_mov_b32 v{EP+1}, s95
    s_nop 0
    buffer_store_dwordx2 v[{EP}:{EP+1}], v252, s[96:99], 0 offen sc1
    EP_skip:
    """)

def epoch_share(A):
    A(f"""
    s_cmp_lg_u32 s28, 4
    s_cbranch_scc1 EP_skip2
    """)
    dbg_srd(A)
    A(f"""
    v_mov_b32 v252, 0
    s_mov_b32 s94, 0
    EP_spin:
    buffer_load_dwordx2 v[{EP}:{EP+1}], v252, s[96:99], 0 offen sc1
    s_add_u32 s94, s94, 1
    s_waitcnt vmcnt(0)
    v_readfirstlane_b32 s95, v{EP}
    s_cmp_ge_u32 s94, {SPIN_LIMIT}
    s_cbranch_scc1 EP_got
    s_cmp_eq_u32 s95, 0
    s_cbranch_scc1 EP_spin
    EP_got:
    v_mov_b32 v252, {EP_LDS}
    s_nop 0
    ds_write_b64 v252, v[{EP}:{EP+1}]
    s_waitcnt lgkmcnt(0)
    EP_skip2:
    """)

def epoch_read(A):
    A(f"v_mov_b32 v252, {EP_LDS}\ns_nop 0\nds_read_b64 v[{EP}:{EP+1}], v252\ns_waitcnt lgkmcnt(0)")

def flag_store(A, vaddr):
    A(f"buffer_store_dwordx2 v[{EP}:{EP+1}], v{vaddr}, s[96:99], 0 offen sc1")

def poll(A, vaddr, vtmp, tag):
    A(f"""
    s_mov_b32 s94, 0
    PL_{tag}:
    buffer_load_dwordx2 v[{vtmp}:{vtmp+1}], v{vaddr}, s[96:99], 0 offen sc1
    s_waitcnt vmcnt(0)
    v_cmp_ne_u64 vcc, v[{vtmp}:{vtmp+1}], v[{EP}:{EP+1}]
    s_add_u32 s94, s94, 1
    s_nop 0
    s_cmp_eq_u64 vcc, 0
    s_cbranch_scc1 PD_{tag}
    s_sleep 1
    s_cmp_lt_u32 s94, {SPIN_LIMIT}
    s_cbranch_scc1 PL_{tag}
    PD_{tag}:
    """)

def setup2(A):
    A(f"""
    v_lshrrev_b32 v5, 5, v1
    v_and_b32 v2, 31, v1
    v_lshlrev_b32 v3, 2, v5
    v_sub_u32 v{QD}, v2, v3
    v_mov_b32 v{NINF}, 0xff800000
    v_mov_b32 v{NEGM}, 0
    v_lshlrev_b32 v{LK}, 4, v1
    """)
    for r in range(16):
        kc = (r & 3) + 8 * (r >> 2)
        A(f"v_cmp_le_i32 s[{MS+2*r}:{MS+2*r+1}], {kc}, v{QD}")
    A("v_mov_b32 v2, 0xffff\nv_mov_b32 v3, 0xffff0000\nv_mov_b32 v4, 0")
    for j in range(8):
        A(f"v_cndmask_b32 v6, v4, v2, s[{MS+4*j}:{MS+4*j+1}]")
        A(f"v_cndmask_b32 v7, v4, v3, s[{MS+4*j+2}:{MS+4*j+3}]")
        A(f"v_or_b32 v{PM+j}, v6, v7")
    A(f"""
    v_and_b32 v3, 3, v1
    v_bfe_u32 v4, v1, 2, 2
    v_lshrrev_b32 v7, 1, v3
    v_lshlrev_b32 v7, 6, v7
    v_and_b32 v6, 1, v3
    v_lshl_add_u32 v7, v6, 3, v7
    v_min_u32 v6, 1, v3
    v_lshlrev_b32 v6, 3, v6
    v_add_u32 v6, 128, v6
    v_bfe_u32 v2, v1, 4, 1
    v_cmp_eq_u32 vcc, 0, v2
    v_mul_u32_u24 v2, 20480, v2
    v_and_b32 v3, 15, v1
    v_cndmask_b32 v7, v6, v7, vcc
    v_lshl_add_u32 v7, v4, 4, v7
    v_mul_u32_u24 v6, 192, v5
    v_add_u32 v{LV}, v7, v6
    v_lshl_add_u32 v{OL}, v3, 4, v2
    s_mov_b32 s84, {f32bits(2.0**-64)}
    s_mov_b32 s85, {f32bits(2.0**64)}
    s_mov_b32 s92, 0
    s_mov_b32 s93, 0
    """)

def build_CA(A):
    for r in range(16):
        kc = (r & 3) + 8 * (r >> 2)
        A(f"v_subrev_u32 v{T0}, {kc}, v{QD}\nv_and_b32 v{T0}, 17, v{T0}\nv_cmp_eq_u32 s[88:89], 0, v{T0}\ns_nop 1\nv_cndmask_b32 v{CA+r}, v{NINF}, v{NEGM}, s[88:89]")

def oaddr(A, s_head, s_rt16):
    A(f"""
    s_mul_i32 s88, s{s_head}, 5
    s_mul_i32 s89, s{s_rt16}, 20480
    v_lshrrev_b32 v2, 5, v1
    v_add_u32 v2, s88, v2
    v_lshrrev_b32 v3, 1, v2
    v_and_b32 v2, 1, v2
    v_lshl_add_u32 v3, v3, 8, v{OL}
    v_lshl_add_u32 v3, v2, 3, v3
    v_add_u32 v{OA}, s89, v3
    v_cmp_gt_u32 vcc, 32, v1
    v_mov_b32 v2, {OOB}
    v_add_u32 v3, 512, v{OA}
    v_add_u32 v{OA+1}, 256, v{OA}
    v_cndmask_b32 v{OA+2}, v2, v3, vcc
    """)

def qk(A, i, slot, dst, C):
    c = vr(C, 16) if i == 0 else vr(dst, 16)
    A(f"v_mfma_f32_32x32x16_bf16 {vr(dst,16)}, {vr(KF+slot*8+4*i,4)}, {vr(QF+4*i,4)}, {c}")
def pv(A, i, slot, Preg, first=False):
    c = "0" if first else vr(O, 16)
    A(f"v_mfma_f32_32x32x16_bf16 {vr(O,16)}, {vr(VF+slot*8+4*i,4)}, {vr(Preg+4*i,4)}, {c}")
def cvt(A, S, Pd, j):
    A(f"v_cvt_pk_bf16_f32 v{Pd+j}, v{S+2*j}, v{S+2*j+1}")
def rdK(A, b, slot):
    for i in range(2):
        A.lds(f"ds_read_b128 {vr(KF + slot*8 + 4*i, 4)}, v{AK} offset:{b*BLK + i*1024}", ('k', b))
def rdV(A, b, slot):
    for i in range(4):
        A.lds(f"ds_read_b64_tr_b16 {vr(VF + slot*8 + 2*i, 2)}, v{AV} offset:{b*BLK + i*384}", ('v', b))
def rdQ(A):
    for i in range(2):
        A.lds(f"ds_read_b128 {vr(QF + 4*i, 4)}, v{AQ} offset:{i*1024}", ('q', 0))
def maskQ(A):
    A(f"v_mov_b32 v{QF+4}, 0\nv_mov_b32 v{QF+5}, 0\ns_mov_b32 s88, -1\ns_mov_b32 s89, 0\nv_mov_b32 v{T0}, 0")
    A(f"v_cndmask_b32 v{QF+6}, v{T0}, v{QF+6}, s[88:89]\nv_cndmask_b32 v{QF+7}, v{T0}, v{QF+7}, s[88:89]\ns_nop 0")

def finish(A, osoff, tag, flagreg):
    A(f"s_nop 7\ns_nop 3\nv_rcp_f32 v{T0}, v{O+12}")
    A(f"v_add_f32 v{T1}, |v{O}|, |v{O+1}|")
    for r in range(2, 12):
        A(f"v_add_f32 v{T1}, v{T1}, |v{O+r}|")
    A(f"""
    v_cmp_le_f32 s[88:89], s84, v{O+12}
    v_cmp_ge_f32 s[90:91], s85, v{O+12}
    v_cmp_gt_f32 vcc, -v{NINF}, v{T1}
    """)
    for r in range(12):
        A(f"v_mul_f32 v{O+r}, v{O+r}, v{T0}")
    A(f"""
    s_and_b64 s[88:89], s[88:89], s[90:91]
    s_and_b64 s[88:89], s[88:89], vcc
    s_or_b32 s90, s{flagreg}, 0
    s_cbranch_scc1 P2_{tag}_ok
    s_cmp_eq_u64 s[88:89], exec
    s_cbranch_scc0 P2_{tag}_fb
    P2_{tag}_ok:
    """)
    for j in range(6):
        A(f"v_cvt_pk_bf16_f32 v{O+j}, v{O+2*j}, v{O+2*j+1}")
    A(f"s_mov_b32 s88, {osoff}")
    for j in range(3):
        A(f"buffer_store_dwordx2 {vr(O+2*j,2)}, v{OA+j}, s[24:27], s88 offen sc1")

def maxblock(A, S, first):
    if first: A(f"v_max_f32 v{T1}, v{S}, v{S+1}")
    else: A(f"v_max3_f32 v{T1}, v{T1}, v{S}, v{S+1}")
    for r in range(2, 16, 2): A(f"v_max3_f32 v{T1}, v{T1}, v{S+r}, v{S+r+1}")
def rowmax_finish(A, back, flagreg, rebuild):
    A(f"""
    v_mov_b32 v{T0}, v{T1}
    s_nop 1
    v_permlane32_swap_b32 v{T1}, v{T0}
    s_nop 1
    v_max_f32 v{T1}, v{T1}, v{T0}
    v_sub_f32 v{NEGM}, 0, v{T1}
    s_mov_b32 s{flagreg}, 2
    """)
    rebuild()
    A(f"s_waitcnt lgkmcnt(0)\ns_branch {back}")

def dma_patterns(A):
    A(f"""
    v_and_b32 v3, 15, v1
    v_bfe_u32 v4, v1, 4, 1
    v_mul_u32_u24 v4, {QK_TILE}, v4
    v_lshl_add_u32 v5, v3, 4, v4
    v_lshl_add_u32 v6, v3, 3, v4
    v_add_u32 v6, 504, v6
    v_cmp_gt_u32 vcc, 32, v1
    v_add_u32 v7, 256, v5
    v_add_u32 v8, {2*QK_TILE}, v5
    v_add_u32 v9, {2*QK_TILE}, v7
    v_add_u32 v10, {2*QK_TILE}, v6
    v_cndmask_b32 v12, v7, v5, vcc
    v_cndmask_b32 v13, v8, v6, vcc
    v_cndmask_b32 v14, v10, v9, vcc
    s_mov_b32 s12, 0x15555556
    """)
    for ty in range(3):
        A(f"""
        v_add_u32 v3, {ty*64}, v1
        v_mul_hi_u32 v4, v3, s12
        v_mul_u32_u24 v5, 12, v4
        v_sub_u32 v5, v3, v5
        v_lshrrev_b32 v6, 2, v5
        v_and_b32 v5, 3, v5
        v_lshl_add_u32 v5, v4, 2, v5
        v_lshrrev_b32 v7, 4, v5
        v_mul_u32_u24 v7, {V_TILE}, v7
        v_and_b32 v5, 15, v5
        v_lshl_add_u32 v7, v5, 4, v7
        v_lshl_add_u32 v{15+ty}, v6, 8, v7
        """)

ROT = 4
ROTCODE = {
 10: """s_mul_i32 s12, s11, 5
    s_lshr_b32 s12, s12, 1
    s_mul_i32 s13, s10, 5
    s_lshr_b32 s13, s13, 2
    s_add_u32 s12, s12, s13
    s_cmp_ge_u32 s12, 10
    s_cselect_b32 s13, 10, 0
    s_sub_u32 s12, s12, s13""",
 1: "s_mov_b32 s12, 0",
 2: "s_add_u32 s12, s10, s11\ns_and_b32 s12, s12, 1\ns_mul_i32 s12, s12, 5",
 4: "s_add_u32 s12, s10, s11\ns_and_b32 s12, s12, 3\ns_mul_i32 s12, s12, 5\ns_lshr_b32 s12, s12, 1",
 3: "s_add_u32 s12, s10, s11\ns_mul_i32 s13, s12, 43\ns_lshr_b32 s13, s13, 7\ns_mul_i32 s13, s13, 3\ns_sub_u32 s12, s12, s13\ns_mul_i32 s12, s12, 7\ns_lshr_b32 s12, s12, 1",
}
def gen(A):
    A.begin(MAIN)
    prologue(A, "K_end")
    stamp(A, 0)
    A("s_cmp_lt_u32 s28, 4\ns_cbranch_scc1 P1_consumer")
    A(f"""
    s_sub_u32 s29, s28, 4
    v_lshrrev_b32 v2, 5, v1
    v_and_b32 v3, 31, v1
    v_mul_u32_u24 v2, 15360, v2
    v_mul_u32_u24 v6, 26, v3
    v_lshrrev_b32 v6, 8, v6
    s_cmp_eq_u32 s5, 0
    s_cselect_b32 s15, 1120, 0
    s_cselect_b32 s14, 160, 480
    v_mul_lo_u32 v6, v6, s15
    v_lshl_add_u32 v2, v3, 4, v2
    v_add_u32 v2, v2, v6
    v_mov_b32 v4, {OOB}
    v_cmp_gt_u32 vcc, 30, v3
    v_lshrrev_b32 v5, 3, v1
    v_mul_u32_u24 v5, 1280, v5
    v_cndmask_b32 v8, v4, v2, vcc
    v_and_b32 v3, 7, v1
    v_lshrrev_b32 v4, 4, v1
    v_xor_b32 v3, v3, v4
    v_lshl_add_u32 v9, v3, 4, v5
    v_xor_b32 v3, 4, v3
    v_lshl_add_u32 v10, v3, 4, v5
    {ROTCODE[ROT]}
    s_mul_i32 s13, s29, {8*3840}
    s_mul_i32 s14, s7, s14
    s_add_u32 s13, s13, s14
    s_lshl_b32 s14, s6, 7
    s_lshl_b32 s15, s29, 5
    s_add_u32 s14, s14, s15
    s_mul_i32 s14, s14, 1280
    s_mul_i32 s30, s29, {4*PIECE}
    s_lshl_b32 s31, s29, 12
    s_add_u32 s31, s31, {XOFF}
    s_mul_i32 s26, s12, 245760
    s_add_u32 s26, s26, s13
    s_lshl_b32 s27, s12, 7
    s_add_u32 s27, s27, s14
    s_mov_b32 s25, 0
    s_mov_b32 s51, 0
    s_cmp_eq_u32 s5, 0
    s_waitcnt lgkmcnt(0)
    s_cselect_b32 s16, s32, s38
    s_cselect_b32 s17, s33, s39
    s_cselect_b32 s20, s34, s40
    s_cselect_b32 s21, s35, s41
    s_and_b32 s17, s17, 0xffff
    s_mov_b32 s18, 2621440
    s_mov_b32 s19, 0x20000
    s_and_b32 s21, s21, 0xffff
    s_mov_b32 s22, 2457600
    s_mov_b32 s23, 0x20000
    """.replace("s_cselect_b32 s14, 160, 480", "s_movk_i32 s14, 480\ns_cselect_b32 s14, 160, s14"))
    def wpiece(sub, r):
        A(f"s_add_u32 m0, s30, {(sub*16 + r)*PIECE}\ns_add_u32 s50, s26, {(32*sub + r)*3840}\nbuffer_load_dwordx4 v8, s[20:23], s50 offen lds")
    def xpiece(j):
        A(f"s_add_u32 m0, s31, {j*1024}\ns_add_u32 s50, s27, {j*8*1280}\nbuffer_load_dwordx4 v{9 + (j & 1)}, s[16:19], s50 offen lds")
    def F():
        xpiece(0); wpiece(0, 0); xpiece(1); wpiece(0, 1); xpiece(2); xpiece(3)
    def S():
        wpiece(0, 2); wpiece(0, 3)
        for r in range(4): wpiece(1, r)
    A("s_branch P1_lf")
    A("P1_lloop:")
    S()
    A(f"""
    s_add_u32 s12, s12, 1
    s_cmp_eq_u32 s12, 10
    s_cselect_b32 s12, 0, s12
    s_mul_i32 s26, s12, 245760
    s_add_u32 s26, s26, s13
    s_lshl_b32 s27, s12, 7
    s_add_u32 s27, s27, s14
    s_add_u32 s25, s25, 1
    s_cmp_eq_u32 s25, 3
    s_cselect_b32 s25, 0, s25
    s_mov_b32 s50, {SLOT}
    s_cselect_b32 s50, {-2*SLOT & 0xffffffff}, s50
    s_add_u32 s30, s30, s50
    s_add_u32 s31, s31, s50
    s_add_u32 s51, s51, 1
    s_cmp_eq_u32 s51, 10
    s_cbranch_scc1 P1_llast
    P1_lf:
    """)
    F()
    A("""
    s_cmp_eq_u32 s51, 0
    s_cbranch_scc1 P1_lloop
    s_waitcnt vmcnt(6)
    s_barrier
    s_branch P1_lloop
    P1_llast:
    s_waitcnt vmcnt(0)
    s_barrier
    """)
    stamp(A, 1)
    epoch_share(A)
    A(f"""
    s_cmp_eq_u32 s5, 0
    s_cselect_b32 s16, s36, s42
    s_cselect_b32 s17, s37, s43
    s_and_b32 s17, s17, 0xffff
    s_mov_b32 s18, 819200
    s_lshr_b32 s12, s2, 3
    s_lshl_b32 s12, s12, 2
    s_add_u32 s12, s12, s29
    s_mul_i32 s12, s12, 6400
    v_lshlrev_b32 v2, 7, v1
    v_mov_b32 v3, {OOB}
    v_cmp_gt_u32 vcc, 50, v1
    s_nop 1
    v_cndmask_b32 v2, v3, v2, vcc
    buffer_load_dword v11, v2, s[16:19], s12 offen
    buffer_load_dword v11, v2, s[16:19], s12 offen offset:64
    """)
    setup2(A)
    dma_patterns(A)
    flag_srd(A)
    A(f"""
    s_and_b32 s3, s2, 31
    s_lshr_b32 s4, s2, 5
    """)
    build_CA(A)
    A(f"""
    v_cmp_lt_u32 vcc, 11, v1
    v_mov_b32 v2, 0
    v_mov_b32 v3, 1
    v_cndmask_b32 v2, v2, v3, vcc
    v_mul_u32_u24 v3, 12, v2
    v_sub_u32 v3, v1, v3
    s_mul_i32 s12, s7, 12
    v_add_u32 v3, s12, v3
    v_lshrrev_b32 v4, 5, v3
    v_and_b32 v3, 31, v3
    s_lshr_b32 s12, s6, 1
    v_add_u32 v5, s12, v2
    v_lshl_add_u32 v3, v5, 5, v3
    s_and_b32 s12, s6, 1
    s_add_u32 s12, s12, 2
    v_lshlrev_b32 v2, 1, v2
    v_sub_u32 v2, s12, v2
    v_lshl_add_u32 v2, v4, 2, v2
    v_lshlrev_b32 v2, 3, v2
    v_lshl_add_u32 v2, v3, 7, v2
    v_cmp_gt_u32 vcc, 8, v5
    v_cmp_gt_u32 s[88:89], 24, v1
    v_mov_b32 v3, {OOB}
    s_and_b64 vcc, vcc, s[88:89]
    s_cmp_lg_u32 s28, 4
    s_cselect_b64 vcc, 0, vcc
    s_nop 0
    v_cndmask_b32 v18, v3, v2, vcc
    """)
    A(f"""
    v_min_u32 v2, 2, v1
    v_lshlrev_b32 v2, 5, v2
    s_lshl_b32 s12, s2, 7
    s_lshl_b32 s13, s29, 3
    s_add_u32 s12, s12, s13
    v_add_u32 v19, s12, v2
    s_lshl_b32 s14, s3, 7
    s_lshl_b32 s15, s4, 4
    s_add_u32 s14, s14, s15
    s_add_u32 s14, s14, s13
    s_sub_u32 s14, s14, 16
    s_mul_i32 s26, s14, {QK_TILE}
    s_mul_i32 s27, s14, {V_TILE}
    s_add_u32 s27, s27, {V_OFF}
    s_add_u32 s15, s15, s13
    s_cmp_lt_u32 s15, 16
    s_cselect_b32 s26, 0x70000000, s26
    s_cselect_b32 s27, 0x70000000, s27
    s_cselect_b32 s31, 7, 0
    s_cmp_ge_u32 s29, 2
    s_cselect_b32 s30, 7, 6
    s_mul_i32 s25, s29, {4*BLK}
    """)
    A(f"""
    s_add_u32 s12, s48, {O_BASE}
    s_addc_u32 s13, s49, 0
    s_barrier
    """)
    epoch_read(A)
    stamp(A, 2)
    A("s_cmp_eq_u32 s5, 0\ns_cbranch_scc1 L_A")
    flag_store(A, 18)
    A("s_branch L_nf")
    A(f"""
    L_A:
    s_mov_b32 s8, s25
    s_mov_b32 s9, s26
    s_mov_b32 s10, s27
    s_mov_b32 s15, s29
    s_mov_b32 s16, 3
    s_branch P2_a_enter
    L_Aret:
    s_mov_b32 s25, s8
    s_mov_b32 s26, s9
    s_mov_b32 s27, s10
    """)
    srd(A, 16, 48, 49, QKV_BYTES)
    A(f"""
    s_cmp_eq_u32 s6, 0
    s_cbranch_scc1 L_hnp
    s_lshl_b32 s12, s6, 3
    s_add_u32 s12, s12, s7
    s_lshl_b32 s12, s12, 7
    s_add_u32 s12, s12, {MBH}
    v_mov_b32 v2, s12
    """)
    poll(A, 2, 4, "h")
    A(f"""
    L_hnp:
    s_mov_b64 s[90:91], exec
    s_lshl_b32 s12, s7, 2
    s_add_u32 s12, s12, s29
    s_lshl_b32 s12, s12, 7
    s_lshl_b32 s13, s6, 3
    s_add_u32 s12, s12, s13
    s_sub_u32 s12, s12, 2
    s_mul_i32 s14, s29, {HD}
    """)
    for (areg, tb, off, lds) in ((12, QK_TILE, K_OFF, 0), (15, V_TILE, V_OFF, 9 * BLK)):
        A(f"""
        s_mul_i32 s13, s12, {tb}
        s_add_u32 s13, s13, {off}
        s_cmp_eq_u32 s6, 0
        s_cselect_b32 s13, 0x70000000, s13
        s_add_u32 m0, s14, {L_A + lds}
        s_nop 0
        buffer_load_dwordx4 v{areg}, s[16:19], s13 offen sc1 lds
        s_add_u32 m0, s14, {L_A + lds + 1024}
        s_mov_b32 exec_hi, 0
        buffer_load_dwordx4 v{areg+1}, s[16:19], s13 offen sc1 lds
        s_mov_b64 exec, s[90:91]
        """)
    A(f"""
    s_lshl_b32 s12, s29, 3
    s_add_u32 s12, s12, {HF_LDS}
    v_mov_b32 v2, s12
    s_waitcnt vmcnt(0)
    ds_write_b64 v2, v[{EP}:{EP+1}]
    s_waitcnt lgkmcnt(0)
    L_nf:
    s_add_u32 s12, s48, {QKV_BYTES}
    s_addc_u32 s13, s49, 0
    """)
    srd(A, 20, 12, 13, QKV_BYTES)
    stamp(A, 3)
    A(f"""
    s_mov_b32 s94, 0
    PL_b:
    buffer_load_dwordx2 v[4:5], v19, s[96:99], 0 offen sc1
    s_waitcnt vmcnt(0)
    v_cmp_eq_u64 vcc, v[4:5], v[{EP}:{EP+1}]
    s_add_u32 s94, s94, 1
    s_cmp_ge_u32 s94, {SPIN_LIMIT}
    s_cselect_b32 s12, 7, s31
    s_or_b32 s12, s12, vcc_lo
    s_and_b32 s12, s12, s30
    """)
    for m, (areg, sreg, soff, tb, lds) in enumerate(((12, 26, 0, QK_TILE, L_BQ - 8 * BLK), (12, 26, K_OFF, QK_TILE, L_BK), (15, 27, 0, V_TILE, L_BV))):
        A(f"s_bitcmp1_b32 s12, {m}\ns_cbranch_scc0 PB_{m}")
        for u in range(2):
            A(f"s_add_u32 s13, s{sreg}, {soff + u*4*tb}")
            for ty in range(3):
                A(f"s_add_u32 m0, s25, {lds + u*3072 + ty*1024}\ns_nop 0\nbuffer_load_dwordx4 v{areg+ty}, s[20:23], s13 offen sc1 lds")
        A(f"PB_{m}:")
    A("""
    s_andn2_b32 s30, s30, s12
    s_cbranch_scc0 PD_b
    s_sleep 1
    s_branch PL_b
    PD_b:
    """)
    stamp(A, 5)
    A(f"""
    s_lshl_b32 s12, s6, 3
    v_add_u32 v2, s12, v1
    v_lshlrev_b32 v2, 8, v2
    s_lshl_b32 s12, s7, 3
    s_add_u32 s12, s12, {MB2}
    v_add_u32 v2, s12, v2
    v_mov_b32 v3, {OOB}
    v_cmp_gt_u32 vcc, 8, v1
    s_or_b32 s12, s5, 0
    s_cselect_b64 vcc, 0, vcc
    s_cmp_lg_u32 s28, 4
    s_cselect_b64 vcc, 0, vcc
    s_nop 1
    v_cndmask_b32 v18, v3, v2, vcc
    s_branch P2_pre
    """)

    A("P1_consumer:")
    ACC = 8; WR = 128; XF = 168; AW0 = 184; AX0 = 185; AX1 = 186; AW = 187; AXa = 188; AXb = 189
    def acc(grp, t, rt): return ACC + ((grp * 5 + t) * 2 + rt) * 4
    epoch_get(A)
    A(f"""
    v_lshrrev_b32 v2, 2, v1
    v_mul_u32_u24 v2, {PIECE}, v2
    v_and_b32 v3, 3, v1
    v_mul_u32_u24 v3, 40, v3
    v_add_u32 v{AW0}, v2, v3
    v_and_b32 v2, 15, v1
    v_lshrrev_b32 v3, 4, v1
    v_lshrrev_b32 v4, 1, v2
    v_xor_b32 v3, v3, v4
    s_lshl_b32 s12, s28, 12
    s_add_u32 s12, s12, {XOFF}
    v_lshlrev_b32 v2, 7, v2
    v_add_u32 v2, s12, v2
    v_lshl_add_u32 v{AX0}, v3, 4, v2
    v_xor_b32 v3, 4, v3
    v_lshl_add_u32 v{AX1}, v3, 4, v2
    v_mov_b32 v{AW}, v{AW0}
    v_mov_b32 v{AXa}, v{AX0}
    v_mov_b32 v{AXb}, v{AX1}
    """)
    for r in range(ACC, XF + 16, 2):
        A(f"v_pk_mov_b32 v[{r}:{r+1}], 0, 0")
    setup2(A)
    build_CA(A)
    A(f"""
    s_waitcnt lgkmcnt(0)
    s_mul_i32 s12, s5, {QKV_BYTES}
    s_add_u32 s12, s48, s12
    s_addc_u32 s13, s49, 0
    """)
    srd(A, 16, 12, 13, QKV_BYTES)
    flag_srd(A)
    A(f"""
    v_and_b32 v2, 15, v1
    v_lshrrev_b32 v3, 4, v1
    s_lshl_b32 s12, s6, 3
    s_lshl_b32 s13, s28, 1
    s_add_u32 s12, s12, s13
    v_mul_u32_u24 v252, {HD}, v3
    v_lshlrev_b32 v3, 7, v3
    v_add_u32 v3, s12, v3
    v_mul_u32_u24 v4, {QK_TILE}, v3
    v_mul_u32_u24 v5, {V_TILE}, v3
    v_lshl_add_u32 v6, v2, 3, v4
    v_lshl_add_u32 v4, v2, 4, v4
    v_lshl_add_u32 v5, v2, 4, v5
    v_mov_b32 v7, {f32bits(SCALE_L2E)}
    s_mul_i32 s13, s7, 12
    s_mul_i32 s12, s28, {BLK}
    s_add_u32 s12, s12, {L_A}
    v_add_u32 v252, s12, v252
    v_lshrrev_b32 v3, 2, v2
    v_mul_u32_u24 v3, 192, v3
    v_and_b32 v253, 3, v2
    v_lshl_add_u32 v3, v253, 4, v3
    v_add_u32 v253, v252, v3
    v_lshl_add_u32 v252, v2, 4, v252
    v_mov_b32 v2, 0
    v_mov_b32 v3, 0
    """)
    A("s_mov_b32 s25, 0\ns_mov_b32 s51, 0")
    stamp(A, 1)
    units = [(sub, grp, t) for sub in range(2) for grp in range(3) for t in range(5)]
    def rd(u, hf):
        sub, grp, t = units[u]
        b = WR + (u % 10) * 4
        off = sub * 16 * PIECE + hf * 512 + grp * 160 + 8 * t
        A.lds(f"ds_read_b64_tr_b16 {vr(b + 2*hf, 2)}, v{AW} offset:{off}", ('w', u))
    def rdx(sub, rt):
        A.lds(f"ds_read_b128 {vr(XF + (sub*2+rt)*4, 4)}, v{AXa if sub == 0 else AXb} offset:{rt*2048}", ('x', sub))
    def mm(u, rt):
        sub, grp, t = units[u]
        b = WR + (u % 10) * 4
        a = acc(grp, t, rt)
        A(f"v_mfma_f32_16x16x32_bf16 {vr(a,4)}, {vr(b,4)}, {vr(XF + (sub*2+rt)*4, 4)}, {vr(a,4)}")
    L = P1_LOOK
    def body(emit):
        save = A.out
        if not emit: A.out = []
        for step in range(30):
            u = (step - L) % 30
            g_ = 1 if step >= L else 0
            A.lds_wait(('x', units[u][0]) if g_ else ('px', units[u][0]), ('w', u) if g_ else ('pw', u))
            mm(u, 0)
            if step == 0: rdx(0, 0)
            if step == L + 2: rdx(1, 0)
            rd(step, 0)
            if step == 26:
                A(f"s_add_u32 s25, s25, {SLOT}\ns_cmp_eq_u32 s25, {3*SLOT}\ns_cselect_b32 s25, 0, s25")
            if step == 27:
                A(f"v_add_u32 v{AXa}, s25, v{AX0}")
            if step == 28:
                A(f"v_add_u32 v{AXb}, s25, v{AX1}")
            mm(u, 1)
            if step == 0: rdx(0, 1)
            if step == L + 2: rdx(1, 1)
            rd(step, 1)
            if step == 28:
                A("s_add_u32 s51, s51, 1\ns_cmp_lt_u32 s51, 10")
        A(f"v_add_u32 v{AW}, s25, v{AW0}")
        A.lds_q = [('p' + t[0], t[1]) for t in A.lds_q]
        if not emit: A.out = save
    A.lds_q = []
    body(False)
    A("P1_cloop:")
    A("s_barrier")
    if STAMP and 'stg' in DBG:
        A("s_memtime s[100:101]\ns_add_u32 m0, s51, 16\ns_waitcnt lgkmcnt(0)\nv_writelane_b32 v255, s100, m0")
    body(True)
    A("s_cbranch_scc1 P1_cloop")
    for u in range(30 - L, 30):
        A.lds_wait(('pw', u))
        mm(u, 0); mm(u, 1)
    stamp(A, 2)
    A("s_cmp_eq_u32 s5, 0\ns_cbranch_scc1 P1_epiA")
    def pack(grp, TB):
        for rt in range(2):
            T = TB + rt * 12
            for t in range(5):
                a = acc(grp, t, rt)
                A(f"v_cvt_pk_bf16_f32 v{T+2*t}, v{a}, v{a+1}\nv_cvt_pk_bf16_f32 v{T+2*t+1}, v{a+2}, v{a+3}")
    def store_qk(TB, soff):
        for rt in range(2):
            T = TB + rt * 12
            A(f"buffer_store_dwordx4 {vr(T,4)}, v4, s[16:19], s{soff} offen offset:{rt*QK_TILE} sc1")
            A(f"buffer_store_dwordx4 {vr(T+4,4)}, v4, s[16:19], s{soff} offen offset:{rt*QK_TILE+256} sc1")
            A(f"buffer_store_dwordx2 {vr(T+8,2)}, v6, s[16:19], s{soff} offen offset:{rt*QK_TILE+512} sc1")
    def ones(TB):
        for rt in range(2):
            T = TB + rt * 12
            A(f"v_mov_b32 v{T+10}, 0x3f803f80\nv_mov_b32 v{T+11}, 0x3f803f80")
    def store_v(TB, soff):
        for rt in range(2):
            T = TB + rt * 12
            for p in range(3):
                A(f"buffer_store_dwordx4 {vr(T+4*p,4)}, v5, s[16:19], s{soff} offen offset:{rt*V_TILE+256*p} sc1")
    def scale(grp):
        for r in range(acc(grp, 0, 0), acc(grp, 0, 0) + 40):
            A(f"v_mul_f32 v{r}, v7, v{r}")
    TBS = [WR, 190, WR + 24]
    for grp in range(3):
        TB = TBS[grp]
        A(f"""
        s_add_u32 s14, s13, {4*grp}
        s_mul_i32 s20, s14, {128*QK_TILE}
        s_sub_u32 s21, s14, 64
        s_mul_i32 s21, s21, {128*V_TILE}
        s_add_u32 s21, s21, {V_OFF}
        s_cmp_ge_u32 s14, 32
        s_cbranch_scc1 P1_ns{grp}
        """)
        scale(grp)
        A(f"P1_ns{grp}:")
        pack(grp, TB)
        A(f"s_cmp_ge_u32 s14, 64\ns_cbranch_scc1 P1_ev{grp}")
        store_qk(TB, 20)
        A(f"s_branch P1_ed{grp}\nP1_ev{grp}:")
        ones(TB); store_v(TB, 21)
        A(f"P1_ed{grp}:")
    stamp(A, 3)
    A("s_waitcnt vmcnt(0)\ns_barrier")
    stamp(A, 4)
    epoch_read(A)
    A("s_branch P2_cd")
    A("P1_epiA:\ns_nop 3")
    pack(1, TBS[1]); pack(2, TBS[2]); ones(TBS[2])
    A(f"""
    s_cmp_lg_u32 s28, 3
    s_cbranch_scc1 P1_nh
    s_lshl_b32 s14, s7, 2
    s_mul_i32 s20, s14, {128*QK_TILE}
    s_add_u32 s20, s20, {K_OFF}
    s_mul_i32 s21, s14, {128*V_TILE}
    s_add_u32 s21, s21, {V_OFF}
    """)
    store_qk(TBS[1], 20); store_v(TBS[2], 21)
    A("P1_nh:")
    def img_qk(grp, base):
        for rt in range(2):
            T = TBS[grp] + rt * 12
            A(f"ds_write_b128 v252, {vr(T,4)} offset:{base + rt*256}")
            A(f"ds_write_b128 v252, {vr(T+4,4)} offset:{base + rt*256 + 512}")
            A(f"ds_write_b64 v252, {vr(T+8,2)} offset:{base + rt*256 + 1024 + 8}")
            A(f"ds_write_b64 v252, v[2:3] offset:{base + rt*256 + 1024}")
    img_qk(1, BLK)
    for rt in range(2):
        T = TBS[2] + rt * 12
        for p in range(3):
            A(f"ds_write_b128 v253, {vr(T+4*p,4)} offset:{10*BLK + rt*768 + p*64}")
    scale(0); pack(0, TBS[0])
    img_qk(0, 5 * BLK)
    A(f"""
    s_add_u32 s12, s48, {O_BASE}
    s_addc_u32 s13, s49, 0
    s_mov_b32 s15, s28
    s_mov_b32 s16, 1
    """)
    stamp(A, 3)
    A("s_waitcnt lgkmcnt(0)\ns_barrier")
    stamp(A, 4)
    epoch_read(A)
    A(f"""
    s_cmp_lg_u32 s28, 3
    s_cbranch_scc1 P2_a_enter
    s_add_u32 s20, s6, 1
    s_lshl_b32 s21, s20, 3
    s_add_u32 s21, s21, s7
    s_lshl_b32 s21, s21, 7
    s_add_u32 s21, s21, {MBH}
    s_cmp_lt_u32 s20, 16
    s_cselect_b32 s21, s21, {OOB}
    v_mov_b32 v2, s21
    s_waitcnt vmcnt(0)
    """)
    flag_store(A, 2)
    A("P2_a_enter:")
    srd(A, 24, 12, 13, 2 * O_BYTES)
    A(f"""
    s_mul_i32 s14, s15, {HD}
    s_add_u32 s14, s14, {L_A}
    s_lshl_b32 s12, s15, 3
    s_add_u32 s11, s12, {HF_LDS}
    s_lshl_b32 s12, s7, 2
    s_add_u32 s15, s15, s12
    P2_a_unit:
    s_mul_i32 s12, s16, {BLK}
    s_add_u32 s12, s12, s14
    v_add_u32 v{AK}, s12, v{LK}
    s_add_u32 s13, s12, {9*BLK}
    v_add_u32 v{AV}, s13, v{LV}
    v_add_u32 v{AQ}, {5*BLK}, v{AK}
    s_lshl_b32 s12, s6, 3
    s_lshl_b32 s13, s16, 1
    s_add_u32 s17, s12, s13
    s_or_b32 s87, s6, s16
    s_cmp_lg_u32 s16, 0
    s_cbranch_scc1 P2_a_start
    v_mov_b32 v2, s11
    s_mov_b32 s94, 0
    P2_hw:
    ds_read_b64 v[4:5], v2
    s_add_u32 s94, s94, 1
    s_waitcnt lgkmcnt(0)
    v_cmp_ne_u64 vcc, v[4:5], v[{EP}:{EP+1}]
    s_cmp_ge_u32 s94, {SPIN_LIMIT*8}
    s_cbranch_scc1 P2_a_start
    s_cmp_eq_u64 vcc, 0
    s_cbranch_scc0 P2_hw
    P2_a_start:
    """)
    A.lds_q = []
    rdQ(A); rdK(A, 0, 0); rdK(A, 1, 1); rdV(A, 0, 0); rdV(A, 1, 1)
    oaddr(A, 15, 17)
    A.lds_wait(('q', 0))
    maskQ(A)
    A.lds_wait(('k', 0))
    qk(A, 0, 0, SA, CA); qk(A, 1, 0, SA, CA)
    A.lds_wait(('k', 1))
    qk(A, 0, 1, SB, CA); qk(A, 1, 1, SB, CA)
    A("s_cmp_lg_u32 s87, 0\ns_nop 7\ns_cbranch_scc1 P2_a_val\ns_nop 3")
    for r in range(16): A(f"v_mov_b32 v{SA+r}, v{NINF}")
    A("P2_a_val:\ns_nop 3")
    for r in range(16):
        A(f"v_cndmask_b32 v{SA+r}, v{SA+r}, v{SB+r}, s[{MS+2*r}:{MS+2*r+1}]")
    A("s_cmp_eq_u32 s92, 1\ns_cbranch_scc1 P2_a_max")
    for r in range(16): A(f"v_exp_f32 v{SA+r}, v{SA+r}")
    A("s_nop 0")
    for j in range(8): cvt(A, SA, PA, j)
    for j in range(8):
        A(f"v_and_b32 v{PB+j}, v{PA+j}, v{PM+j}\nv_bfi_b32 v{PA+j}, v{PM+j}, 0, v{PA+j}")
    A.lds_wait(('v', 1))
    A("s_nop 0")
    pv(A, 0, 0, PA, True); pv(A, 1, 0, PA); pv(A, 0, 1, PB); pv(A, 1, 1, PB)
    finish(A, 0, 'a', 92)
    A(f"""
    s_cmp_eq_u32 s92, 0
    s_cbranch_scc1 P2_a_next
    s_mov_b32 s92, 0
    v_mov_b32 v{NEGM}, 0
    """)
    build_CA(A)
    A("""
    P2_a_next:
    s_cmp_eq_u32 s16, 3
    s_cbranch_scc1 L_Aret
    s_cmp_eq_u32 s16, 0
    s_cbranch_scc1 P2_a_done
    s_add_u32 s16, s16, 1
    s_cmp_eq_u32 s16, 3
    s_cselect_b32 s16, 0, s16
    s_branch P2_a_unit
    P2_a_done:
    """)
    stamp(A, 5)
    A("P2_cd:")
    A(f"s_and_b32 s3, s2, 31\ns_lshr_b32 s4, s2, 5\nv_mov_b32 v18, {OOB}")
    A("P2_pre:")
    A(f"""
    s_add_u32 s12, s48, {O_BASE}
    s_addc_u32 s13, s49, 0
    """)
    srd(A, 24, 12, 13, 2 * O_BYTES)
    A(f"""
    s_mul_i32 s12, s28, {BLK}
    s_add_u32 s13, s12, {L_BK}
    v_add_u32 v{AK}, s13, v{LK}
    s_add_u32 s13, s12, {L_BQ}
    v_add_u32 v{AQ}, s13, v{LK}
    s_add_u32 s13, s12, {L_BV}
    v_add_u32 v{AV}, s13, v{LV}
    v_mov_b32 v{NEGM}, 0
    s_sub_u32 s86, 8, s28
    s_cmp_eq_u32 s4, 0
    s_cselect_b32 s86, s86, -1
    s_lshl_b32 s12, s4, 4
    s_lshl_b32 s13, s28, 1
    s_add_u32 s17, s12, s13
    """)
    oaddr(A, 3, 17)
    A(f"""
    s_and_b32 s12, s2, 3
    s_lshl_b32 s9, s12, 2
    s_bfe_u32 s12, s2, 0x20003
    s_add_u32 s9, s9, s12
    s_lshr_b32 s10, s2, 5
    s_mul_i32 s11, s10, 5
    s_lshr_b32 s11, s11, 1
    s_mov_b32 s12, 0x1999999a
    """)
    for i in range(5):
        A(f"""
        v_add_u32 v8, {i*64}, v1
        v_mul_hi_u32 v9, v8, s12
        v_mul_u32_u24 v10, 10, v9
        v_sub_u32 v10, v8, v10
        v_bfe_u32 v11, v9, 2, 2
        v_lshlrev_b32 v11, 3, v11
        v_bfe_u32 v12, v9, 4, 1
        v_lshl_add_u32 v11, v12, 2, v11
        v_and_b32 v12, 3, v9
        v_add_u32 v11, v11, v12
        v_mul_u32_u24 v11, 1280, v11
        v_lshl_add_u32 v{WA+i}, v10, 4, v11
        """)
    A(f"""
    s_cmp_eq_u32 s5, 0
    s_cselect_b32 s16, s36, s42
    s_cselect_b32 s17, s37, s43
    s_and_b32 s17, s17, 0xffff
    s_mov_b32 s18, 819200
    s_mov_b32 s19, 0x20000
    s_mul_i32 s20, s10, 160
    """)
    def wo_setup(n):
        A(f"""
        s_add_u32 s21, s28, {8*n}
        s_add_u32 s22, s21, s11
        s_cmp_ge_u32 s22, 20
        s_cselect_b32 s23, 20, 0
        s_sub_u32 s22, s22, s23
        s_mul_i32 s22, s22, 40960
        s_add_u32 s22, s22, s20
        s_mul_i32 s23, s21, 5120
        """)
    def wo_piece(i):
        if 'nowo' in DBG: return
        A(f"s_add_u32 m0, s23, {L_WO + i*1024}\ns_nop 0\nbuffer_load_dwordx4 v{WA+i}, s[16:19], s22 offen lds")
    A("s_waitcnt vmcnt(0)\ns_barrier")
    stamp(A, 6)
    A.lds_q = []
    rdQ(A)
    flag_store(A, 18)
    A.lds_wait(('q', 0))
    maskQ(A)
    A("P2_b_start:")
    A.lds_q = []
    rdK(A, 0, 0); rdK(A, 1, 1)
    A("s_cmp_eq_u32 s4, 0\ns_cselect_b64 s[88:89], exec, 0\ns_nop 1")
    for r in range(16): A(f"v_cndmask_b32 v{CB+r}, v{NEGM}, v{NINF}, s[88:89]")
    def cb_switch(b):
        A(f"s_cmp_lg_u32 s86, {b}\ns_cbranch_scc1 P2_cb{b}\ns_nop 7")
        for r in range(16): A(f"v_mov_b32 v{CB+r}, v{NEGM}")
        A(f"s_nop 1\nP2_cb{b}:")
    A.lds_wait(('k', 0))
    qk(A, 0, 0, S0, CB); qk(A, 1, 0, S0, CB)
    rdK(A, 2, 0)
    cb_switch(1)
    A.lds_wait(('k', 1))
    qk(A, 0, 1, SA, CB); qk(A, 1, 1, SA, CB)
    rdV(A, 1, 1)
    A("s_cmp_eq_u32 s93, 1\ns_cbranch_scc1 P2_b_max")
    cb_switch(2)
    A("s_nop 7")
    for b in range(1, 8):
        Sc, Sn = (SA, SB) if b % 2 == 1 else (SB, SA)
        Pc, Pp = (PA, PB) if b % 2 == 1 else (PB, PA)
        wn, wh = (b - 1) // 2, (b - 1) % 2
        dow = b <= 6
        if dow and wn == 2: A(f"s_cmp_ge_u32 s28, 4\ns_cbranch_scc1 P2_nw{b}")
        if dow:
            if wh == 0: wo_setup(wn)
            for i in (range(0, 3) if wh == 0 else range(3, 5)): wo_piece(i)
        if dow and wn == 2: A(f"P2_nw{b}:")
        A.lds_wait(('k', b + 1))
        qk(A, 0, (b + 1) % 2, Sn, CB)
        for r in range(0, 4): A(f"v_exp_f32 v{Sc+r}, v{Sc+r}")
        qk(A, 1, (b + 1) % 2, Sn, CB)
        if b + 2 <= 8: rdK(A, b + 2, b % 2)
        for r in range(4, 8): A(f"v_exp_f32 v{Sc+r}, v{Sc+r}")
        if b > 1:
            A.lds_wait(('v', b - 1))
            pv(A, 0, (b - 1) % 2, Pp, first=(b == 2))
        for r in range(8, 12): A(f"v_exp_f32 v{Sc+r}, v{Sc+r}")
        if b > 1:
            pv(A, 1, (b - 1) % 2, Pp)
        nb = b + 1 if b < 7 else 0
        rdV(A, nb, (b + 1) % 2)
        for r in range(12, 16): A(f"v_exp_f32 v{Sc+r}, v{Sc+r}")
        for j in range(8): cvt(A, Sc, Pc, j)
        if b + 2 <= 8: cb_switch(b + 2)
    for r in range(16):
        A(f"v_cndmask_b32 v{S0+r}, v{S0+r}, v{SB+r}, s[{MS+2*r}:{MS+2*r+1}]")
        if r == 3:
            A.lds_wait(('v', 7)); pv(A, 0, 1, PA)
        if r == 11:
            pv(A, 1, 1, PA); rdV(A, 8, 1)
    for r in range(16): A(f"v_exp_f32 v{S0+r}, v{S0+r}")
    A("s_nop 0")
    for j in range(8): cvt(A, S0, PB, j)
    for j in range(8):
        A(f"v_and_b32 v{P2+j}, v{PB+j}, v{PM+j}\nv_bfi_b32 v{PB+j}, v{PM+j}, 0, v{PB+j}")
    A.lds_wait(('v', 8))
    A("s_nop 0")
    pv(A, 0, 0, PB); pv(A, 1, 0, PB); pv(A, 0, 1, P2); pv(A, 1, 1, P2)
    finish(A, O_BYTES, 'b', 93)
    stamp(A, 7)
    A(f"""
    s_lshl_b32 s12, s4, 4
    s_add_u32 s12, s12, 128
    v_add_u32 v2, s12, v1
    v_lshlrev_b32 v2, 8, v2
    s_lshl_b32 s12, s3, 3
    s_add_u32 s12, s12, {MB2}
    v_add_u32 v2, s12, v2
    v_mov_b32 v3, {OOB}
    v_cmp_gt_u32 vcc, 16, v1
    s_nop 1
    v_cndmask_b32 v14, v3, v2, vcc
    """)
    OF = 60; ACC3 = 16; WR3 = 220; AW3 = 8
    def of(ks, rt): return OF + (ks * 2 + rt) * 4
    A(f"""
    s_lshl_b32 s12, s5, 7
    s_lshl_b32 s13, s9, 3
    s_add_u32 s12, s12, s13
    s_add_u32 s12, s12, s10
    s_lshl_b32 s12, s12, 8
    s_add_u32 s12, s12, {MB2}
    s_cmp_eq_u32 s5, 0
    s_cselect_b32 s13, 7, 31
    v_and_b32 v12, s13, v1
    v_lshlrev_b32 v12, 3, v12
    v_add_u32 v12, s12, v12
    s_lshl_b32 s12, s9, 3
    s_lshl_b32 s14, s28, 1
    s_add_u32 s12, s12, s14
    s_mul_i32 s15, s12, 20480
    s_mul_i32 s21, s5, {O_BYTES}
    s_add_u32 s15, s15, s21
    v_lshlrev_b32 v7, 4, v1
    v_add_u32 v7, s15, v7
    v_add_u32 v6, 20480, v7
    v_lshrrev_b32 v9, 2, v1
    v_mul_u32_u24 v9, 160, v9
    v_and_b32 v10, 3, v1
    v_mul_u32_u24 v10, 40, v10
    v_add_u32 v{AW3}, v9, v10
    v_add_u32 v{AW3}, {L_WO}, v{AW3}
    v_add_u32 v{AW3+1}, 51200, v{AW3}
    s_lshl_b32 s30, s11, 10
    """)
    for r in range(0, 40, 2): A(f"v_pk_mov_b32 v[{ACC3+r}:{ACC3+r+1}], 0, 0")
    A("s_waitcnt vmcnt(0)\ns_barrier")
    stamp(A, 8)
    A("s_cmp_lt_u32 s28, 4\ns_cbranch_scc1 P3\ns_cmp_lg_u32 s28, 4\ns_cbranch_scc1 K_end2")
    flag_store(A, 14)
    A("s_branch K_end2")
    A("P2_a_fb:\ns_mov_b32 s92, 1\ns_branch P2_a_start")
    A("P2_a_max:")
    maxblock(A, SA, True)
    rowmax_finish(A, "P2_a_start", 92, lambda: build_CA(A))
    A("P2_b_fb:\ns_mov_b32 s93, 1\ns_branch P2_b_start")
    A("P2_b_max:")
    A("s_waitcnt lgkmcnt(0)\ns_nop 7\ns_nop 3")
    A.lds_q = []
    maxblock(A, SA, True)
    for b in range(2, 9):
        A(f"s_cmp_lg_u32 s86, {b}\ns_cbranch_scc1 P2_mcb{b}")
        for r in range(16): A(f"v_mov_b32 v{CB+r}, v{NEGM}")
        A(f"P2_mcb{b}:")
        rdK(A, b, 0)
        A.lds_drain()
        qk(A, 0, 0, SA, CB); qk(A, 1, 0, SA, CB)
        A("s_nop 7\ns_nop 7")
        if b == 8:
            for r in range(16):
                A(f"v_cndmask_b32 v{SA+r}, v{S0+r}, v{SA+r}, s[{MS+2*r}:{MS+2*r+1}]")
        maxblock(A, SA, False)
    rowmax_finish(A, "P2_b_start", 93, lambda: None)
    A("P3:")
    srd(A, 16, 44, 45, 2048 * 1280 * 2)
    poll(A, 12, 4, "o")
    stamp(A, 9)
    def ldo(ks):
        for rt in range(2):
            A(f"buffer_load_dwordx4 {vr(of(ks,rt),4)}, v{7-rt}, s[24:27], s30 offen sc1")
        A("s_add_u32 s30, s30, 1024\ns_cmp_eq_u32 s30, 20480\ns_cselect_b32 s30, 0, s30")
    D = P3_DEPTH
    for ks in range(D): ldo(ks)
    units3 = [(ks, t) for ks in range(20) for t in range(5)]
    def rd3(n, hf):
        ks, t = units3[n]
        b = WR3 + (n % 8) * 4
        off = (ks * 32 + hf * 16) * 160 + 8 * t
        a = AW3
        if off >= 51200: off -= 51200; a = AW3 + 1
        A.lds(f"ds_read_b64_tr_b16 {vr(b+2*hf,2)}, v{a} offset:{off}", ('w', n))
    LA = 6
    A.lds_q = []
    for n in range(LA): rd3(n, 0); rd3(n, 1)
    for n, (ks, t) in enumerate(units3):
        if t == 0:
            outstanding = 2 * (min(ks + D, 20) - ks)
            A(f"s_waitcnt vmcnt({outstanding - 2})")
            if ks + D < 20: ldo(ks + D)
        A.lds_wait(('w', n))
        b = WR3 + (n % 8) * 4
        for rt in range(2):
            a = ACC3 + (t * 2 + rt) * 4
            A(f"v_mfma_f32_16x16x32_bf16 {vr(a,4)}, {vr(b,4)}, {vr(of(ks,rt),4)}, {vr(a,4)}")
            if n + LA < len(units3): rd3(n + LA, rt)
    stamp(A, 10)
    A(f"""
    v_and_b32 v2, 15, v1
    v_lshrrev_b32 v3, 4, v1
    s_lshl_b32 s12, s9, 7
    s_lshl_b32 s14, s28, 5
    s_add_u32 s12, s12, s14
    v_add_u32 v2, s12, v2
    v_mul_u32_u24 v2, 2560, v2
    v_mul_u32_u24 v3, 40, v3
    v_add_u32 v2, v2, v3
    s_mul_i32 s14, s5, 1280
    s_add_u32 s14, s14, s20
    v_add_u32 v2, s14, v2
    v_add_u32 v3, 40960, v2
    s_nop 3
    """)
    for rt in range(2):
        T = OF + rt * 12
        for t in range(5):
            a = ACC3 + (t * 2 + rt) * 4
            A(f"v_cvt_pk_bf16_f32 v{T+2*t}, v{a}, v{a+1}\nv_cvt_pk_bf16_f32 v{T+2*t+1}, v{a+2}, v{a+3}")
        A(f"buffer_store_dwordx4 {vr(T,4)}, v{2+rt}, s[16:19], 0 offen {OUT_FLAGS}")
        A(f"buffer_store_dwordx4 {vr(T+4,4)}, v{2+rt}, s[16:19], 0 offen offset:16 {OUT_FLAGS}")
        A(f"buffer_store_dwordx2 {vr(T+8,2)}, v{2+rt}, s[16:19], 0 offen offset:32 {OUT_FLAGS}")
    stamp(A, 11)
    A("K_end2:")
    for d in DBG:
        if d.startswith('pad'):
            A(f"""
            s_cmp_lt_u32 s28, 4
            s_cbranch_scc1 PADE
            v_readfirstlane_b32 s12, v{EP}
            PADL:
            s_memrealtime s[14:15]
            s_waitcnt lgkmcnt(0)
            s_sub_u32 s13, s14, s12
            s_cmp_lt_u32 s13, {int(d[3:])*100}
            s_cbranch_scc1 PADL
            PADE:
            """)
    stamp_flush(A, 12, 0)
    A("K_end:\ns_endpgm")
    A.end(256, 102, 256, 512, LDS_TOTAL)

P3_DEPTH = 8
OUT_FLAGS = ""

if __name__ == '__main__':
    if '--stamp' in sys.argv: STAMP = True
    for a in sys.argv[1:]:
        if a.startswith('--dbg='): DBG.update(a[6:].split(','))
        if a.startswith('--rot='): ROT = int(a[6:])
        if a.startswith('--out='): OUT_FLAGS = a[6:].replace('+', ' ')
    A = Asm()
    gen(A)
    t = A.text()
    import subprocess, re, os
    open('_g3.s', 'w').write(t.replace('CODE_BYTES', '0x1234'))
    subprocess.run(['clang', '-x', 'assembler', '-target', 'amdgcn-amd-amdhsa', '-mcpu=gfx950', '-c', '_g3.s', '-o', '_g3.o'], check=True)
    nm = subprocess.run(['llvm-objdump', '-t', '_g3.o'], capture_output=True, text=True).stdout
    end = int(re.search(r'^([0-9a-f]+) .* K_end$', nm, re.M).group(1), 16)
    sys.stderr.write(f"code bytes {end}\n")
    sys.stdout.write(t.replace('CODE_BYTES', str(end - 64)))
```

```python
import sys, math, struct

REF = 'concat_heads__sliding_local_dilated__sliding_block__prompt.s.ref'
HDR = [l for l in open(REF).read().split('\n')
       if l.startswith(';') and '@launch' not in l and 'Override' not in l and 'grid=ceil' not in l]
MAIN = "concat_heads__sliding_local_dilated__sliding_block__prompt_kernel"

QK_TILE = 640
V_TILE = 768
HS = 128
for _a in sys.argv[1:]:
    if _a.startswith('--hs='): HS = int(_a[5:])
K_OFF = 32 * HS * QK_TILE
V_OFF = 2 * K_OFF
QKV_BYTES = V_OFF + 32 * HS * V_TILE
O_BASE = 18 << 20
assert 2 * QKV_BYTES <= O_BASE
O_BYTES = 2048 * 640 * 2
FLAG_BASE = 24 << 20
MB1 = 0; MBH = 32768; MB2 = 65536; MB_BYTES = 131072
OOB = 0x7ffff000

STAMP = False
DBG = set()
STAMP_OFF = 30 << 20
FUSED = False

def f32bits(x): return struct.unpack('<I', struct.pack('<f', x))[0]
SCALE_L2E = (20 ** -0.5) * math.log2(math.e)

class Asm:
    def __init__(self):
        self.out = []; self.kernels = []; self.launches = []; self.lds_q = []
    def __call__(self, s):
        for l in s.split('\n'):
            l = l.strip()
            if not l: continue
            if 'noload' in DBG and l.startswith('buffer_load') and ' lds' in l: continue
            if 'nomfma' in DBG and l.startswith('v_mfma'): continue
            if 'nods' in DBG and l.startswith('ds_read'): continue
            if 'nowait' in DBG and l.startswith('s_waitcnt lgkmcnt(') and not l.endswith('(0)'): continue
            if 'halfds' in DBG and l.startswith('ds_read_b64_tr') and (int(l.split('[')[1].split(':')[0]) % 4 == 2): continue
            if 'nobar' in DBG and l.startswith('s_barrier'): continue
            if 'nostore' in DBG and l.startswith('buffer_store') and 's[8:11]' not in l: continue
            self.out.append(l if l.endswith(':') else '    ' + l)
    def begin(self, name):
        self.out.append(f".globl {name}\n.p2align 8\n.type {name},@function\n{name}:")
        self.cur = name
    def end(self, vgpr, sgpr, grid, block, lds):
        self.kernels.append((self.cur, vgpr, sgpr))
        self.launches.append((self.cur, grid, block, lds))
    def lds(self, s, tag):
        self(s); self.lds_q.append(tag)
    def lds_wait(self, *tags):
        idx = [i for i, t in enumerate(self.lds_q) if t in tags]
        if not idx: return
        n = len(self.lds_q) - 1 - idx[-1]
        assert n <= 15, n
        self(f"s_waitcnt lgkmcnt({n})")
        self.lds_q = self.lds_q[idx[-1] + 1:]
    def lds_drain(self):
        self("s_waitcnt lgkmcnt(0)"); self.lds_q = []
    def text(self, order=None):
        o = list(HDR)
        ls = self.launches if order is None else [l for n in order for l in self.launches if l[0] == n]
        if len(ls) == 1 and ls[0][0] == MAIN:
            (n, g, b, lds) = ls[0]
            o.append(f"; @launch grid=({g},1,1) block=({b},1,1) lds={lds}")
        else:
            for (n, g, b, lds) in ls:
                o.append(f"; @launch kernel={n} grid=({g},1,1) block=({b},1,1) lds={lds}")
        o.append('.amdgcn_target "amdgcn-amd-amdhsa--gfx950"\n.text')
        o += self.out
        o.append('.section .rodata,"a"')
        for (n, vgpr, sgpr) in self.kernels:
            o.append(f""".p2align 6
.amdhsa_kernel {n}
  .amdhsa_next_free_vgpr {vgpr}
  .amdhsa_next_free_sgpr {sgpr}
  .amdhsa_accum_offset {(vgpr + 3) // 4 * 4}
  .amdhsa_group_segment_fixed_size 0
  .amdhsa_kernarg_size 72
  .amdhsa_user_sgpr_count 2
  .amdhsa_user_sgpr_kernarg_segment_ptr 1
  .amdhsa_system_sgpr_workgroup_id_x 1
.end_amdhsa_kernel""")
        return '\n'.join(o) + '\n'

def vr(a, n=1): return f"v{a}" if n == 1 else f"v[{a}:{a+n-1}]"

def stamp(A, i):
    if STAMP and i < 100:
        A(f"s_memtime s[100:101]\ns_waitcnt lgkmcnt(0)\nv_writelane_b32 v255, s100, {i}")
        A.lds_q = []
        if i == 0:
            A("s_memrealtime s[100:101]\ns_waitcnt lgkmcnt(0)\nv_writelane_b32 v255, s100, 31")
def stamp_flush(A, n, kidx):
    if not STAMP: return
    A("s_waitcnt lgkmcnt(0) vmcnt(0)")
    stamp(A, n)
    A(f"""
    s_memrealtime s[100:101]
    s_waitcnt lgkmcnt(0)
    v_writelane_b32 v255, s100, {n+1}
    s_add_u32 s4, s48, {STAMP_OFF + kidx*524288}
    s_addc_u32 s5, s49, 0
    s_mov_b32 s8, s4
    s_and_b32 s9, s5, 0xffff
    s_mov_b32 s10, 524288
    s_mov_b32 s11, 0x20000
    s_lshl_b32 s6, s2, 4
    s_add_u32 s6, s6, s28
    s_lshl_b32 s6, s6, 7
    v_lshlrev_b32 v0, 2, v1
    v_add_u32 v0, s6, v0
    v_mov_b32 v2, {OOB}
    v_cmp_gt_u32 vcc, 32, v1
    s_nop 1
    v_cndmask_b32 v0, v2, v0, vcc
    buffer_store_dword v255, v0, s[8:11], 0 offen
    """)

def srd(A, d, lo, hi, nbytes):
    A(f"s_mov_b32 s{d}, s{lo}\ns_and_b32 s{d+1}, s{hi}, 0xffff\ns_mov_b32 s{d+2}, {nbytes}\ns_mov_b32 s{d+3}, 0x20000")

MAPCODE = {
 'split': """s_lshr_b32 s5, s3, 2
    s_bfe_u32 s6, s3, 0x10001
    s_and_b32 s7, s3, 1
    s_and_b32 s10, s4, 7
    s_lshr_b32 s11, s4, 3
    s_lshl_b32 s6, s6, 3
    s_add_u32 s6, s6, s10
    s_lshl_b32 s7, s7, 2
    s_add_u32 s7, s7, s11""",
 'mix': """s_lshr_b32 s5, s4, 4
    s_lshr_b32 s6, s3, 1
    s_and_b32 s7, s3, 1
    s_and_b32 s10, s4, 3
    s_bfe_u32 s11, s4, 0x20002
    s_lshl_b32 s6, s6, 2
    s_add_u32 s6, s6, s10
    s_lshl_b32 s7, s7, 2
    s_add_u32 s7, s7, s11""",
 'mix2': """s_lshr_b32 s5, s4, 4
    s_lshr_b32 s6, s3, 2
    s_and_b32 s7, s3, 3
    s_and_b32 s10, s4, 7
    s_bfe_u32 s11, s4, 0x10003
    s_lshl_b32 s6, s6, 3
    s_add_u32 s6, s6, s10
    s_lshl_b32 s7, s7, 1
    s_add_u32 s7, s7, s11
    s_lshl_b32 s11, s11, 1""",
}
def prologue(A, endlabel):
    if 'early' in DBG: A("s_memrealtime s[94:95]")
    A(f"""
    s_cmp_ge_u32 s2, 256
    s_cbranch_scc1 {endlabel}
    s_load_dwordx16 s[32:47], s[0:1], 0
    s_load_dwordx2 s[48:49], s[0:1], 64
    s_getpc_b64 s[50:51]
    v_lshlrev_b32 v3, 6, v0
    v_lshrrev_b32 v2, 6, v0
    v_min_u32 v3, CODE_BYTES, v3
    v_and_b32 v1, 63, v0
    {"" if 'nocpf' in DBG else "global_load_dword v254, v3, s[50:51]"}
    s_and_b32 s3, s2, 7
    s_lshr_b32 s4, s2, 3
    v_readfirstlane_b32 s28, v2
    {MAPCODE['mix' if 'mix' in DBG else 'mix2' if 'mix2' in DBG else 'split']}
    """)

PIECE = 1056
P1_LOOK = 5
XOFF = 32 * PIECE
SLOT = XOFF + 16384
P1_LDS = 3 * SLOT
LDS_TOTAL = 163840
BLK = 1536
HD = 14 * BLK
L_BK = 0; L_BV = 16 * BLK; L_WO = 32 * BLK; L_BQ = L_WO + 102400
assert L_BQ + 8 * BLK == LDS_TOTAL
L_A = SLOT
EP_LDS = 140000
HF_LDS = EP_LDS + 64
assert L_A + 4 * HD <= EP_LDS
EP = 250
SPIN_LIMIT = 1 << 17
PM = 214; QD = 222; NINF = 223; LK = 224; LV = 225; OL = 226; NEGM = 227; T0 = 228; T1 = 229; CA = 230
MS = 52
QF = 20; AK = 28; AV = 29; AQ = 30; OA = 32; WA = 36
CB = 80; S0 = 96; SA = 112; SB = 128; PA = 144; PB = 152; KF = 160; VF = 176; O = 192; P2 = 64

def flag_srd(A):
    A(f"s_add_u32 s94, s48, {FLAG_BASE}\ns_addc_u32 s95, s49, 0")
    srd(A, 96, 94, 95, MB_BYTES)

def dbg_srd(A):
    A("s_mov_b32 s96, s46\ns_and_b32 s97, s47, 0xffff\ns_mov_b32 s98, 256\ns_mov_b32 s99, 0x20000")

def epoch_get(A):
    A(f"""
    s_or_b32 s96, s28, s2
    s_cbranch_scc1 EP_skip
    {"" if 'early' in DBG else "s_memrealtime s[94:95]"}
    v_mov_b32 v252, 0
    s_waitcnt lgkmcnt(0)
    """)
    dbg_srd(A)
    A(f"""
    s_or_b32 s94, s94, 1
    v_mov_b32 v{EP}, s94
    v_mov_b32 v{EP+1}, s95
    s_nop 0
    buffer_store_dwordx2 v[{EP}:{EP+1}], v252, s[96:99], 0 offen sc1
    EP_skip:
    """)

def epoch_share(A):
    A(f"""
    s_cmp_lg_u32 s28, 4
    s_cbranch_scc1 EP_skip2
    """)
    dbg_srd(A)
    A(f"""
    v_mov_b32 v252, 0
    s_mov_b32 s94, 0
    EP_spin:
    buffer_load_dwordx2 v[{EP}:{EP+1}], v252, s[96:99], 0 offen sc1
    s_add_u32 s94, s94, 1
    s_waitcnt vmcnt(0)
    v_readfirstlane_b32 s95, v{EP}
    s_cmp_ge_u32 s94, {SPIN_LIMIT}
    s_cbranch_scc1 EP_got
    s_cmp_eq_u32 s95, 0
    s_cbranch_scc1 EP_spin
    EP_got:
    v_mov_b32 v252, {EP_LDS}
    s_nop 0
    ds_write_b64 v252, v[{EP}:{EP+1}]
    s_waitcnt lgkmcnt(0)
    EP_skip2:
    """)

def epoch_read(A):
    A(f"v_mov_b32 v252, {EP_LDS}\ns_nop 0\nds_read_b64 v[{EP}:{EP+1}], v252\ns_waitcnt lgkmcnt(0)")
    A(f"v_readfirstlane_b32 s0, v{EP}\nv_readfirstlane_b32 s1, v{EP+1}")

def flag_store(A, vaddr):
    A(f"buffer_store_dwordx2 v[{EP}:{EP+1}], v{vaddr}, s[96:99], 0 offen sc1")

def poll(A, vaddr, vtmp, tag):
    A(f"""
    s_mov_b32 s94, 0
    PL_{tag}:
    buffer_load_dwordx2 v[{vtmp}:{vtmp+1}], v{vaddr}, s[96:99], 0 offen sc1
    s_waitcnt vmcnt(0)
    v_cmp_ne_u64 vcc, v[{vtmp}:{vtmp+1}], v[{EP}:{EP+1}]
    s_add_u32 s94, s94, 1
    s_nop 0
    s_cmp_eq_u64 vcc, 0
    s_cbranch_scc1 PD_{tag}
    s_sleep 1
    s_cmp_lt_u32 s94, {SPIN_LIMIT}
    s_cbranch_scc1 PL_{tag}
    PD_{tag}:
    """)

def setup2(A):
    A(f"""
    v_lshrrev_b32 v5, 5, v1
    v_and_b32 v2, 31, v1
    v_lshlrev_b32 v3, 2, v5
    v_sub_u32 v{QD}, v2, v3
    v_mov_b32 v{NINF}, 0xff800000
    v_mov_b32 v{NEGM}, 0
    v_lshlrev_b32 v{LK}, 4, v1
    """)
    for r in range(16):
        kc = (r & 3) + 8 * (r >> 2)
        A(f"v_cmp_le_i32 s[{MS+2*r}:{MS+2*r+1}], {kc}, v{QD}")
    A("v_mov_b32 v2, 0xffff\nv_mov_b32 v3, 0xffff0000\nv_mov_b32 v4, 0")
    for j in range(8):
        A(f"v_cndmask_b32 v6, v4, v2, s[{MS+4*j}:{MS+4*j+1}]")
        A(f"v_cndmask_b32 v7, v4, v3, s[{MS+4*j+2}:{MS+4*j+3}]")
        A(f"v_or_b32 v{PM+j}, v6, v7")
    A(f"""
    v_and_b32 v3, 3, v1
    v_bfe_u32 v4, v1, 2, 2
    v_lshrrev_b32 v7, 1, v3
    v_lshlrev_b32 v7, 6, v7
    v_and_b32 v6, 1, v3
    v_lshl_add_u32 v7, v6, 3, v7
    v_min_u32 v6, 1, v3
    v_lshlrev_b32 v6, 3, v6
    v_add_u32 v6, 128, v6
    v_bfe_u32 v2, v1, 4, 1
    v_cmp_eq_u32 vcc, 0, v2
    v_mul_u32_u24 v2, 20480, v2
    v_and_b32 v3, 15, v1
    v_cndmask_b32 v7, v6, v7, vcc
    v_lshl_add_u32 v7, v4, 4, v7
    v_mul_u32_u24 v6, 192, v5
    v_add_u32 v{LV}, v7, v6
    v_lshl_add_u32 v{OL}, v3, 4, v2
    s_mov_b32 s84, {f32bits(2.0**-64)}
    s_mov_b32 s85, {f32bits(2.0**64)}
    s_mov_b32 s92, 0
    s_mov_b32 s93, 0
    """)

def build_CA(A):
    for r in range(16):
        kc = (r & 3) + 8 * (r >> 2)
        A(f"v_subrev_u32 v{T0}, {kc}, v{QD}\nv_and_b32 v{T0}, 17, v{T0}\nv_cmp_eq_u32 s[88:89], 0, v{T0}\ns_nop 1\nv_cndmask_b32 v{CA+r}, v{NINF}, v{NEGM}, s[88:89]")

def oaddr(A, s_head, s_rt16):
    A(f"""
    s_lshr_b32 s88, s{s_head}, 3
    s_mul_i32 s88, s88, 5120
    s_mul_i32 s89, s{s_rt16}, 20480
    s_add_u32 s88, s88, s89
    s_and_b32 s89, s{s_head}, 7
    s_lshl_b32 s90, s89, 9
    s_add_u32 s90, s90, s88
    s_lshl_b32 s89, s89, 7
    s_add_u32 s89, s89, s88
    s_add_u32 s89, s89, 4096
    v_lshrrev_b32 v2, 5, v1
    v_lshl_add_u32 v2, v2, 8, v{OL}
    v_add_u32 v{OA}, s90, v2
    v_and_b32 v2, 15, v1
    v_lshlrev_b32 v2, 3, v2
    v_sub_u32 v3, v{OL}, v2
    v_add_u32 v3, s89, v3
    v_cmp_gt_u32 vcc, 32, v1
    v_mov_b32 v2, {OOB}
    s_nop 0
    v_cndmask_b32 v{OA+1}, v2, v3, vcc
    """)

def qk(A, i, slot, dst, C):
    c = vr(C, 16) if i == 0 else vr(dst, 16)
    A(f"v_mfma_f32_32x32x16_bf16 {vr(dst,16)}, {vr(KF+slot*8+4*i,4)}, {vr(QF+4*i,4)}, {c}")
def pv(A, i, slot, Preg, first=False):
    c = "0" if first else vr(O, 16)
    A(f"v_mfma_f32_32x32x16_bf16 {vr(O,16)}, {vr(VF+slot*8+4*i,4)}, {vr(Preg+4*i,4)}, {c}")
def cvt(A, S, Pd, j):
    A(f"v_cvt_pk_bf16_f32 v{Pd+j}, v{S+2*j}, v{S+2*j+1}")
def rdK(A, b, slot):
    for i in range(2):
        A.lds(f"ds_read_b128 {vr(KF + slot*8 + 4*i, 4)}, v{AK} offset:{b*BLK + i*1024}", ('k', b))
def rdV(A, b, slot):
    for i in range(4):
        A.lds(f"ds_read_b64_tr_b16 {vr(VF + slot*8 + 2*i, 2)}, v{AV} offset:{b*BLK + i*384}", ('v', b))
def rdQ(A):
    for i in range(2):
        A.lds(f"ds_read_b128 {vr(QF + 4*i, 4)}, v{AQ} offset:{i*1024}", ('q', 0))
def maskQ(A):
    A(f"v_mov_b32 v{QF+4}, 0\nv_mov_b32 v{QF+5}, 0\ns_mov_b32 s88, -1\ns_mov_b32 s89, 0\nv_mov_b32 v{T0}, 0")
    A(f"v_cndmask_b32 v{QF+6}, v{T0}, v{QF+6}, s[88:89]\nv_cndmask_b32 v{QF+7}, v{T0}, v{QF+7}, s[88:89]\ns_nop 0")

def finish(A, osoff, tag, flagreg):
    A(f"s_nop 7\ns_nop 3\nv_rcp_f32 v{T0}, v{O+12}")
    A(f"v_add_f32 v{T1}, |v{O}|, |v{O+1}|")
    for r in range(2, 12):
        A(f"v_add_f32 v{T1}, v{T1}, |v{O+r}|")
    A(f"""
    v_cmp_le_f32 s[88:89], s84, v{O+12}
    v_cmp_ge_f32 s[90:91], s85, v{O+12}
    v_cmp_gt_f32 vcc, -v{NINF}, v{T1}
    """)
    for r in range(12):
        A(f"v_mul_f32 v{O+r}, v{O+r}, v{T0}")
    A(f"""
    s_and_b64 s[88:89], s[88:89], s[90:91]
    s_and_b64 s[88:89], s[88:89], vcc
    s_or_b32 s90, s{flagreg}, 0
    s_cbranch_scc1 P2_{tag}_ok
    s_cmp_eq_u64 s[88:89], exec
    s_cbranch_scc0 P2_{tag}_fb
    P2_{tag}_ok:
    """)
    for j in range(6):
        A(f"v_cvt_pk_bf16_f32 v{O+j}, v{O+2*j}, v{O+2*j+1}")
    A(f"s_mov_b32 s88, {osoff}")
    A(f"v_permlane32_swap_b32 v{O}, v{O+2}\nv_permlane32_swap_b32 v{O+1}, v{O+3}")
    A(f"buffer_store_dwordx2 {vr(O+4,2)}, v{OA+1}, s[24:27], s88 offen sc1")
    A(f"buffer_store_dwordx4 {vr(O,4)}, v{OA}, s[24:27], s88 offen sc1")

def maxblock(A, S, first):
    if first: A(f"v_max_f32 v{T1}, v{S}, v{S+1}")
    else: A(f"v_max3_f32 v{T1}, v{T1}, v{S}, v{S+1}")
    for r in range(2, 16, 2): A(f"v_max3_f32 v{T1}, v{T1}, v{S+r}, v{S+r+1}")
def rowmax_finish(A, back, flagreg, rebuild):
    A(f"""
    v_mov_b32 v{T0}, v{T1}
    s_nop 1
    v_permlane32_swap_b32 v{T1}, v{T0}
    s_nop 1
    v_max_f32 v{T1}, v{T1}, v{T0}
    v_sub_f32 v{NEGM}, 0, v{T1}
    s_mov_b32 s{flagreg}, 2
    """)
    rebuild()
    A(f"s_waitcnt lgkmcnt(0)\ns_branch {back}")

def dma_patterns(A):
    A(f"""
    v_and_b32 v3, 15, v1
    v_bfe_u32 v4, v1, 4, 1
    v_lshlrev_b32 v6, 3, v4
    v_mul_u32_u24 v4, 768, v4
    v_lshl_add_u32 v5, v3, 4, v4
    v_lshl_add_u32 v6, v3, 4, v6
    v_add_u32 v6, 504, v6
    v_cmp_gt_u32 vcc, 32, v1
    v_add_u32 v7, 256, v5
    v_add_u32 v8, {2*QK_TILE}, v5
    v_add_u32 v9, {2*QK_TILE}, v7
    v_add_u32 v10, {2*QK_TILE}, v6
    v_cndmask_b32 v12, v7, v5, vcc
    v_cndmask_b32 v13, v8, v6, vcc
    v_cndmask_b32 v14, v10, v9, vcc
    s_mov_b32 s12, 0x15555556
    """)
    for ty in range(3):
        A(f"""
        v_add_u32 v3, {ty*64}, v1
        v_mul_hi_u32 v4, v3, s12
        v_mul_u32_u24 v5, 12, v4
        v_sub_u32 v5, v3, v5
        v_lshrrev_b32 v6, 2, v5
        v_and_b32 v5, 3, v5
        v_lshl_add_u32 v5, v4, 2, v5
        v_lshrrev_b32 v7, 4, v5
        v_mul_u32_u24 v7, {V_TILE}, v7
        v_and_b32 v5, 15, v5
        v_lshl_add_u32 v7, v5, 4, v7
        v_lshl_add_u32 v{15+ty}, v6, 8, v7
        """)

ROT = 4
HEADCODE = "s_and_b32 s3, s2, 7\ns_lshl_b32 s3, s3, 2\ns_bfe_u32 s4, s2, 0x20003\ns_or_b32 s3, s3, s4\ns_lshr_b32 s4, s2, 5"
ROTCODE = {
 10: """s_mul_i32 s12, s11, 5
    s_lshr_b32 s12, s12, 1
    s_mul_i32 s13, s10, 5
    s_lshr_b32 s13, s13, 2
    s_add_u32 s12, s12, s13
    s_cmp_ge_u32 s12, 10
    s_cselect_b32 s13, 10, 0
    s_sub_u32 s12, s12, s13""",
 1: "s_mov_b32 s12, 0",
 2: "s_add_u32 s12, s10, s11\ns_and_b32 s12, s12, 1\ns_mul_i32 s12, s12, 5",
 4: "s_add_u32 s12, s10, s11\ns_and_b32 s12, s12, 3\ns_mul_i32 s12, s12, 5\ns_lshr_b32 s12, s12, 1",
 3: "s_add_u32 s12, s10, s11\ns_mul_i32 s13, s12, 43\ns_lshr_b32 s13, s13, 7\ns_mul_i32 s13, s13, 3\ns_sub_u32 s12, s12, s13\ns_mul_i32 s12, s12, 7\ns_lshr_b32 s12, s12, 1",
}
def gen(A):
    A.begin(MAIN)
    prologue(A, "K_end")
    stamp(A, 0)
    A("s_cmp_lt_u32 s28, 4\ns_cbranch_scc1 P1_consumer")
    A(f"""
    s_sub_u32 s29, s28, 4
    v_lshrrev_b32 v2, 5, v1
    v_and_b32 v3, 31, v1
    v_mul_u32_u24 v2, 15360, v2
    v_mul_u32_u24 v6, 26, v3
    v_lshrrev_b32 v6, 8, v6
    s_cmp_eq_u32 s5, 0
    s_cselect_b32 s15, 1120, 0
    s_cselect_b32 s14, 160, 480
    v_mul_lo_u32 v6, v6, s15
    v_lshl_add_u32 v2, v3, 4, v2
    v_add_u32 v2, v2, v6
    v_mov_b32 v4, {OOB}
    v_cmp_gt_u32 vcc, 30, v3
    v_lshrrev_b32 v5, 3, v1
    v_mul_u32_u24 v5, 1280, v5
    v_cndmask_b32 v8, v4, v2, vcc
    v_and_b32 v3, 7, v1
    v_lshrrev_b32 v4, 4, v1
    v_xor_b32 v3, v3, v4
    v_lshl_add_u32 v9, v3, 4, v5
    v_xor_b32 v3, 4, v3
    v_lshl_add_u32 v10, v3, 4, v5
    {ROTCODE[ROT]}
    s_mul_i32 s13, s29, {8*3840}
    s_mul_i32 s14, s7, s14
    s_add_u32 s13, s13, s14
    s_lshl_b32 s14, s6, 7
    s_lshl_b32 s15, s29, 5
    s_add_u32 s14, s14, s15
    s_mul_i32 s14, s14, 1280
    s_mul_i32 s30, s29, {4*PIECE}
    s_lshl_b32 s31, s29, 12
    s_add_u32 s31, s31, {XOFF}
    s_mul_i32 s26, s12, 245760
    s_add_u32 s26, s26, s13
    s_lshl_b32 s27, s12, 7
    s_add_u32 s27, s27, s14
    s_mov_b32 s25, 0
    s_mov_b32 s51, 0
    s_cmp_eq_u32 s5, 0
    s_waitcnt lgkmcnt(0)
    s_cselect_b32 s16, s32, s38
    s_cselect_b32 s17, s33, s39
    s_cselect_b32 s20, s34, s40
    s_cselect_b32 s21, s35, s41
    s_and_b32 s17, s17, 0xffff
    s_mov_b32 s18, 2621440
    s_mov_b32 s19, 0x20000
    s_and_b32 s21, s21, 0xffff
    s_mov_b32 s22, 2457600
    s_mov_b32 s23, 0x20000
    """.replace("s_cselect_b32 s14, 160, 480", "s_movk_i32 s14, 480\ns_cselect_b32 s14, 160, s14"))
    def wpiece(sub, r):
        A(f"s_add_u32 m0, s30, {(sub*16 + r)*PIECE}\ns_add_u32 s50, s26, {(32*sub + r)*3840}\nbuffer_load_dwordx4 v8, s[20:23], s50 offen lds")
    def xpiece(j):
        A(f"s_add_u32 m0, s31, {j*1024}\ns_add_u32 s50, s27, {j*8*1280}\nbuffer_load_dwordx4 v{9 + (j & 1)}, s[16:19], s50 offen lds")
    def F():
        xpiece(0); wpiece(0, 0); xpiece(1); wpiece(0, 1); xpiece(2); xpiece(3)
    def S():
        wpiece(0, 2); wpiece(0, 3)
        for r in range(4): wpiece(1, r)
    for d in DBG:
        if d.startswith('adel'): A(f"s_cmp_lg_u32 s5, 0\ns_cbranch_scc1 P1_lf\ns_sleep {d[4:]}")
    A("s_branch P1_lf")
    A("P1_lloop:")
    S()
    A(f"""
    s_add_u32 s12, s12, 1
    s_cmp_eq_u32 s12, 10
    s_cselect_b32 s12, 0, s12
    s_mul_i32 s26, s12, 245760
    s_add_u32 s26, s26, s13
    s_lshl_b32 s27, s12, 7
    s_add_u32 s27, s27, s14
    s_add_u32 s25, s25, 1
    s_cmp_eq_u32 s25, 3
    s_cselect_b32 s25, 0, s25
    s_mov_b32 s50, {SLOT}
    s_cselect_b32 s50, {-2*SLOT & 0xffffffff}, s50
    s_add_u32 s30, s30, s50
    s_add_u32 s31, s31, s50
    s_add_u32 s51, s51, 1
    s_cmp_eq_u32 s51, 10
    s_cbranch_scc1 P1_llast
    P1_lf:
    """)
    F()
    A("""
    s_cmp_eq_u32 s51, 0
    s_cbranch_scc1 P1_lloop
    s_waitcnt vmcnt(6)
    s_barrier
    s_branch P1_lloop
    P1_llast:
    s_waitcnt vmcnt(0)
    s_barrier
    """)
    stamp(A, 1)
    epoch_share(A)
    A(f"""
    s_bitcmp0_b32 s2, 2
    s_cselect_b32 s16, s36, s42
    s_cselect_b32 s17, s37, s43
    s_and_b32 s17, s17, 0xffff
    s_mov_b32 s18, 819200
    s_lshr_b32 s12, s2, 3
    s_lshl_b32 s12, s12, 2
    s_add_u32 s12, s12, s29
    s_mul_i32 s12, s12, 6400
    v_lshlrev_b32 v2, 7, v1
    v_mov_b32 v3, {OOB}
    v_cmp_gt_u32 vcc, 50, v1
    s_nop 1
    v_cndmask_b32 v2, v3, v2, vcc
    buffer_load_dword v11, v2, s[16:19], s12 offen
    buffer_load_dword v11, v2, s[16:19], s12 offen offset:64
    """)
    setup2(A)
    dma_patterns(A)
    flag_srd(A)
    A(f"""
    {HEADCODE}
    """)
    build_CA(A)
    A(f"""
    v_cmp_lt_u32 vcc, 11, v1
    v_mov_b32 v2, 0
    v_mov_b32 v3, 1
    v_cndmask_b32 v2, v2, v3, vcc
    v_mul_u32_u24 v3, 12, v2
    v_sub_u32 v3, v1, v3
    s_mul_i32 s12, s7, 12
    v_add_u32 v3, s12, v3
    v_lshrrev_b32 v4, 5, v3
    v_and_b32 v3, 31, v3
    s_lshr_b32 s12, s6, 1
    v_add_u32 v5, s12, v2
    v_lshl_add_u32 v3, v5, 5, v3
    s_and_b32 s12, s6, 1
    s_add_u32 s12, s12, 2
    v_lshlrev_b32 v2, 1, v2
    v_sub_u32 v2, s12, v2
    v_lshl_add_u32 v2, v2, 2, v4
    v_lshlrev_b32 v2, 3, v2
    v_lshl_add_u32 v2, v3, 7, v2
    v_cmp_gt_u32 vcc, 8, v5
    v_cmp_gt_u32 s[88:89], 24, v1
    v_mov_b32 v3, {OOB}
    s_and_b64 vcc, vcc, s[88:89]
    s_cmp_lg_u32 s28, 4
    s_cselect_b64 vcc, 0, vcc
    s_nop 0
    v_cndmask_b32 v18, v3, v2, vcc
    """)
    A(f"""
    s_lshl_b32 s12, s4, 5
    s_add_u32 s12, s12, s3
    s_lshl_b32 s12, s12, 7
    s_lshl_b32 s13, s29, 5
    s_add_u32 s12, s12, s13
    s_add_u32 s40, s12, {FLAG_BASE + MB1}
    s_lshl_b32 s13, s29, 3
    s_mul_i32 s14, s3, {HS}
    s_lshl_b32 s15, s4, 4
    s_add_u32 s14, s14, s15
    s_add_u32 s14, s14, s13
    s_sub_u32 s14, s14, 16
    s_mul_i32 s26, s14, {QK_TILE}
    s_mul_i32 s27, s14, {V_TILE}
    s_add_u32 s27, s27, {V_OFF}
    s_add_u32 s15, s15, s13
    s_cmp_lt_u32 s15, 16
    s_cselect_b32 s26, 0x70000000, s26
    s_cselect_b32 s27, 0x70000000, s27
    s_cselect_b32 s31, 7, 0
    s_cmp_ge_u32 s29, 2
    s_cselect_b32 s30, 7, 6
    s_mul_i32 s25, s29, {4*BLK}
    """)
    A(f"""
    s_mov_b64 s[46:47], s[36:37]
    s_cmp_eq_u32 s6, 0
    s_cselect_b32 s12, 8, {8 if 'nohalo' in DBG else 0}
    s_or_b32 s31, s31, s12
    s_cmp_eq_u32 s5, 0
    s_cselect_b32 s12, 8, 0
    s_or_b32 s30, s30, s12
    s_add_u32 s12, s48, {QKV_BYTES}
    s_addc_u32 s13, s49, 0
    """)
    srd(A, 20, 12, 13, QKV_BYTES)
    srd(A, 16, 48, 49, QKV_BYTES)
    A("s_barrier")
    epoch_read(A)
    stamp(A, 2)
    A("s_cmp_eq_u32 s5, 0\ns_cbranch_scc1 L_nf")
    flag_store(A, 18)
    A("L_nf:")
    A(f"""
    s_mov_b32 s11, 0
    PL_b:
    s_load_dwordx8 s[32:39], s[48:49], s40 glc
    s_add_u32 s11, s11, 1
    s_cmp_ge_u32 s11, {SPIN_LIMIT}
    s_cselect_b32 s12, 15, s31
    s_waitcnt lgkmcnt(0)
    s_cmp_eq_u64 s[32:33], s[0:1]
    s_cselect_b32 s13, 1, 0
    s_or_b32 s12, s12, s13
    s_cmp_eq_u64 s[34:35], s[0:1]
    s_cselect_b32 s13, 2, 0
    s_or_b32 s12, s12, s13
    s_cmp_eq_u64 s[36:37], s[0:1]
    s_cselect_b32 s13, 4, 0
    s_or_b32 s12, s12, s13
    s_cmp_eq_u64 s[38:39], s[0:1]
    s_cselect_b32 s13, 8, 0
    s_or_b32 s12, s12, s13
    s_and_b32 s12, s12, s30
    s_bitcmp1_b32 s12, 3
    s_cbranch_scc0 PB_h
    s_mov_b64 s[90:91], exec
    s_lshl_b32 s15, s7, 2
    s_add_u32 s15, s15, s29
    s_mul_i32 s15, s15, {HS}
    s_lshl_b32 s13, s6, 3
    s_add_u32 s15, s15, s13
    s_sub_u32 s15, s15, 2
    s_mul_i32 s14, s29, {HD}
    """)
    for (areg, tb, off, lds) in ((12, QK_TILE, K_OFF, 0), (15, V_TILE, V_OFF, 9 * BLK)):
        A(f"""
        s_mul_i32 s13, s15, {tb}
        s_add_u32 s13, s13, {off}
        s_cmp_eq_u32 s6, {'s6' if 'nohalo' in DBG else 0}
        s_cselect_b32 s13, 0x70000000, s13
        s_add_u32 m0, s14, {L_A + lds}
        s_nop 0
        buffer_load_dwordx4 v{areg}, s[16:19], s13 offen sc1 lds
        s_add_u32 m0, s14, {L_A + lds + 1024}
        s_mov_b32 exec_hi, 0
        buffer_load_dwordx4 v{areg+1}, s[16:19], s13 offen sc1 lds
        s_mov_b64 exec, s[90:91]
        """)
    A("PB_h:")
    for m, (areg, sreg, soff, tb, lds) in enumerate(((12, 26, 0, QK_TILE, L_BQ - 8 * BLK), (12, 26, K_OFF, QK_TILE, L_BK), (15, 27, 0, V_TILE, L_BV))):
        A(f"s_bitcmp1_b32 s12, {m}\ns_cbranch_scc0 PB_{m}")
        for u in range(2):
            A(f"s_add_u32 s13, s{sreg}, {soff + u*4*tb}")
            for ty in range(3):
                A(f"s_add_u32 m0, s25, {lds + u*3072 + ty*1024}\ns_nop 0\nbuffer_load_dwordx4 v{areg+ty}, s[20:23], s13 offen sc1 lds")
        A(f"PB_{m}:")
    A(f"""
    s_andn2_b32 s30, s30, s12
    s_bitcmp1_b32 s12, 3
    s_cbranch_scc0 L_nh
    s_mov_b32 s8, s25
    s_mov_b32 s9, s26
    s_mov_b32 s10, s27
    s_mov_b32 s15, s29
    s_mov_b32 s16, 0
    s_add_u32 s12, s48, {O_BASE}
    s_addc_u32 s13, s49, 0
    s_waitcnt vmcnt(0)
    """)
    stamp(A, 3)
    A(f"""
    s_branch P2_a_enter
    L_Aret:
    s_mov_b32 s25, s8
    s_mov_b32 s26, s9
    s_mov_b32 s27, s10
    """)
    stamp(A, 4)
    A(f"""
    L_nh:
    s_cmp_lg_u32 s30, 0
    s_cbranch_scc0 PD_b
    {f"s_sleep {PSLEEP}" if PSLEEP else ""}
    s_branch PL_b
    PD_b:
    """)
    stamp(A, 5)
    A("s_branch P2_pre")

    A("P1_consumer:")
    ACC = 8; WR = 128; XF = 168; AW0 = 184; AX0 = 185; AX1 = 186; AW = 187; AXa = 188; AXb = 189
    def acc(grp, t, rt): return ACC + ((grp * 5 + t) * 2 + rt) * 4
    epoch_get(A)
    A(f"""
    v_lshrrev_b32 v2, 2, v1
    v_mul_u32_u24 v2, {PIECE}, v2
    v_and_b32 v3, 3, v1
    v_mul_u32_u24 v3, 40, v3
    v_add_u32 v{AW0}, v2, v3
    v_and_b32 v2, 15, v1
    v_lshrrev_b32 v3, 4, v1
    v_lshrrev_b32 v4, 1, v2
    v_xor_b32 v3, v3, v4
    s_lshl_b32 s12, s28, 12
    s_add_u32 s12, s12, {XOFF}
    v_lshlrev_b32 v2, 7, v2
    v_add_u32 v2, s12, v2
    v_lshl_add_u32 v{AX0}, v3, 4, v2
    v_xor_b32 v3, 4, v3
    v_lshl_add_u32 v{AX1}, v3, 4, v2
    v_mov_b32 v{AW}, v{AW0}
    v_mov_b32 v{AXa}, v{AX0}
    v_mov_b32 v{AXb}, v{AX1}
    """)
    for r in range(ACC, XF + 16, 2):
        A(f"v_pk_mov_b32 v[{r}:{r+1}], 0, 0")
    setup2(A)
    build_CA(A)
    A(f"""
    s_waitcnt lgkmcnt(0)
    s_mul_i32 s12, s5, {QKV_BYTES}
    s_add_u32 s12, s48, s12
    s_addc_u32 s13, s49, 0
    """)
    srd(A, 16, 12, 13, QKV_BYTES)
    flag_srd(A)
    A(f"""
    v_and_b32 v2, 15, v1
    v_lshrrev_b32 v3, 4, v1
    s_lshl_b32 s12, s6, 3
    s_lshl_b32 s13, s28, 1
    s_add_u32 s12, s12, s13
    v_mul_u32_u24 v252, {HD}, v3
    v_mul_u32_u24 v3, {HS}, v3
    v_add_u32 v3, s12, v3
    v_mul_u32_u24 v4, {QK_TILE}, v3
    v_mul_u32_u24 v5, {V_TILE}, v3
    v_lshl_add_u32 v4, v2, 4, v4
    v_lshl_add_u32 v5, v2, 4, v5
    v_mov_b32 v7, {f32bits(SCALE_L2E)}
    s_mul_i32 s13, s7, 12
    s_mul_i32 s12, s28, {BLK}
    s_add_u32 s12, s12, {L_A}
    v_add_u32 v252, s12, v252
    v_lshrrev_b32 v3, 2, v2
    v_mul_u32_u24 v3, 192, v3
    v_and_b32 v253, 3, v2
    v_lshl_add_u32 v3, v253, 4, v3
    v_add_u32 v253, v252, v3
    v_lshl_add_u32 v252, v2, 4, v252
    v_mov_b32 v2, 0
    v_mov_b32 v3, 0
    """)
    if 'tlb' in DBG:
        A(f"""
        s_cmp_lg_u32 s28, 1
        s_cbranch_scc1 P1_nt
        v_mul_u32_u24 v246, {0x80000 if 'tlb2' not in DBG else 0x68000}, v1
        v_mul_u32_u24 v247, 81920, v1
        global_load_dword v248, v246, s[48:49]
        global_load_dword v249, v247, s[44:45]
        P1_nt:
        """)
    A("s_mov_b32 s25, 0\ns_mov_b32 s51, 0")
    stamp(A, 1)
    units = [(sub, grp, t) for sub in range(2) for grp in range(3) for t in range(5)]
    def rd(u, hf):
        sub, grp, t = units[u]
        b = WR + (u % 10) * 4
        off = sub * 16 * PIECE + hf * 512 + grp * 160 + 8 * t
        A.lds(f"ds_read_b64_tr_b16 {vr(b + 2*hf, 2)}, v{AW} offset:{off}", ('w', u))
    def rdx(sub, rt):
        A.lds(f"ds_read_b128 {vr(XF + (sub*2+rt)*4, 4)}, v{AXa if sub == 0 else AXb} offset:{rt*2048}", ('x', sub))
    def mm(u, rt):
        sub, grp, t = units[u]
        b = WR + (u % 10) * 4
        a = acc(grp, t, rt)
        A(f"v_mfma_f32_16x16x32_bf16 {vr(a,4)}, {vr(b,4)}, {vr(XF + (sub*2+rt)*4, 4)}, {vr(a,4)}")
    L = P1_LOOK
    def body(emit):
        save = A.out
        if not emit: A.out = []
        for step in range(30):
            u = (step - L) % 30
            g_ = 1 if step >= L else 0
            A.lds_wait(('x', units[u][0]) if g_ else ('px', units[u][0]), ('w', u) if g_ else ('pw', u))
            mm(u, 0)
            if step == 0: rdx(0, 0)
            if step == L + 2: rdx(1, 0)
            rd(step, 0)
            if step == 26:
                A(f"s_add_u32 s25, s25, {SLOT}\ns_cmp_eq_u32 s25, {3*SLOT}\ns_cselect_b32 s25, 0, s25")
            if step == 27:
                A(f"v_add_u32 v{AXa}, s25, v{AX0}")
            if step == 28:
                A(f"v_add_u32 v{AXb}, s25, v{AX1}")
            mm(u, 1)
            if step == 0: rdx(0, 1)
            if step == L + 2: rdx(1, 1)
            rd(step, 1)
            if step == 28:
                A("s_add_u32 s51, s51, 1\ns_cmp_lt_u32 s51, 10")
        A(f"v_add_u32 v{AW}, s25, v{AW0}")
        A.lds_q = [('p' + t[0], t[1]) for t in A.lds_q]
        if not emit: A.out = save
    A.lds_q = []
    body(False)
    A("P1_cloop:")
    A("s_barrier")
    if STAMP and 'stg' in DBG:
        A("s_memtime s[100:101]\ns_add_u32 m0, s51, 16\ns_waitcnt lgkmcnt(0)\nv_writelane_b32 v255, s100, m0")
    body(True)
    A("s_cbranch_scc1 P1_cloop")
    for u in range(30 - L, 30):
        A.lds_wait(('pw', u))
        mm(u, 0); mm(u, 1)
    stamp(A, 2)
    A("s_cmp_eq_u32 s5, 0\ns_cbranch_scc1 P1_epiA")
    def pack(grp, TB):
        for rt in range(2):
            T = TB + rt * 12
            for t in range(5):
                a = acc(grp, t, rt)
                A(f"v_cvt_pk_bf16_f32 v{T+2*t}, v{a}, v{a+1}\nv_cvt_pk_bf16_f32 v{T+2*t+1}, v{a+2}, v{a+3}")
    def store_qk(TB, soff):
        A(f"v_mov_b32 v{TB+10}, v{TB+20}\nv_mov_b32 v{TB+11}, v{TB+21}")
        for rt in range(2):
            T = TB + rt * 12
            A(f"buffer_store_dwordx4 {vr(T,4)}, v4, s[16:19], s{soff} offen offset:{rt*768} sc1")
            A(f"buffer_store_dwordx4 {vr(T+4,4)}, v4, s[16:19], s{soff} offen offset:{rt*768+256} sc1")
        A(f"buffer_store_dwordx4 {vr(TB+8,4)}, v4, s[16:19], s{soff} offen offset:512 sc1")
    def ones(TB):
        for rt in range(2):
            T = TB + rt * 12
            A(f"v_mov_b32 v{T+10}, 0x3f803f80\nv_mov_b32 v{T+11}, 0x3f803f80")
    def store_v(TB, soff):
        for rt in range(2):
            T = TB + rt * 12
            for p in range(3):
                A(f"buffer_store_dwordx4 {vr(T+4*p,4)}, v5, s[16:19], s{soff} offen offset:{rt*V_TILE+256*p} sc1")
    def scale(grp):
        for r in range(acc(grp, 0, 0), acc(grp, 0, 0) + 40):
            A(f"v_mul_f32 v{r}, v7, v{r}")
    TBS = [WR, 190, WR + 24]
    for grp in range(3):
        TB = TBS[grp]
        A(f"""
        s_add_u32 s14, s13, {4*grp}
        s_mul_i32 s20, s14, {HS*QK_TILE}
        s_sub_u32 s21, s14, 64
        s_mul_i32 s21, s21, {HS*V_TILE}
        s_add_u32 s21, s21, {V_OFF}
        s_cmp_ge_u32 s14, 32
        s_cbranch_scc1 P1_ns{grp}
        """)
        scale(grp)
        A(f"P1_ns{grp}:")
        pack(grp, TB)
        A(f"s_cmp_ge_u32 s14, 64\ns_cbranch_scc1 P1_ev{grp}")
        store_qk(TB, 20)
        A(f"s_branch P1_ed{grp}\nP1_ev{grp}:")
        ones(TB); store_v(TB, 21)
        A(f"P1_ed{grp}:")
    stamp(A, 3)
    A("s_waitcnt vmcnt(0)\ns_barrier")
    stamp(A, 4)
    epoch_read(A)
    A("s_branch P2_cd")
    A("P1_epiA:\ns_nop 3")
    pack(1, TBS[1]); pack(2, TBS[2]); ones(TBS[2])
    A(f"""
    s_cmp_lg_u32 s28, {9 if 'nohalo' in DBG else 3}
    s_cbranch_scc1 P1_nh
    s_lshl_b32 s14, s7, 2
    s_mul_i32 s20, s14, {HS*QK_TILE}
    s_add_u32 s20, s20, {K_OFF}
    s_mul_i32 s21, s14, {HS*V_TILE}
    s_add_u32 s21, s21, {V_OFF}
    """)
    store_qk(TBS[1], 20); store_v(TBS[2], 21)
    A("P1_nh:")
    def img_qk(grp, base):
        for rt in range(2):
            T = TBS[grp] + rt * 12
            A(f"ds_write_b128 v252, {vr(T,4)} offset:{base + rt*256}")
            A(f"ds_write_b128 v252, {vr(T+4,4)} offset:{base + rt*256 + 512}")
            A(f"ds_write_b64 v252, {vr(T+8,2)} offset:{base + rt*256 + 1024 + 8}")
            A(f"ds_write_b64 v252, v[2:3] offset:{base + rt*256 + 1024}")
    img_qk(1, BLK)
    for rt in range(2):
        T = TBS[2] + rt * 12
        for p in range(3):
            A(f"ds_write_b128 v253, {vr(T+4*p,4)} offset:{10*BLK + rt*768 + p*64}")
    scale(0); pack(0, TBS[0])
    img_qk(0, 5 * BLK)
    A(f"""
    s_add_u32 s12, s48, {O_BASE}
    s_addc_u32 s13, s49, 0
    s_mov_b32 s15, s28
    s_mov_b32 s16, 1
    """)
    stamp(A, 3)
    A("s_waitcnt lgkmcnt(0)\ns_barrier")
    stamp(A, 4)
    epoch_read(A)
    A(f"""
    s_cmp_lg_u32 s28, {9 if 'nohalo' in DBG else 3}
    s_cbranch_scc1 P2_a_enter
    s_and_b32 s21, s6, {3 if 'mix' in DBG else 7}
    s_cmp_eq_u32 s21, {3 if 'mix' in DBG else 7}
    s_cselect_b32 s21, {-22 if 'mix' in DBG else -52 if 'mix2' in DBG else -54}, 8
    s_add_u32 s21, s21, s2
    s_and_b32 s20, s21, 7
    s_lshl_b32 s20, s20, 2
    s_bfe_u32 s22, s21, 0x20003
    s_or_b32 s20, s20, s22
    s_andn2_b32 s21, s21, 31
    s_or_b32 s21, s21, s20
    s_lshl_b32 s21, s21, 7
    s_add_u32 s21, s21, {MB1 + 24}
    s_cmp_lt_u32 s6, 15
    s_cselect_b32 s21, s21, {OOB}
    v_min_u32 v2, 3, v1
    v_lshlrev_b32 v2, 5, v2
    v_add_u32 v2, s21, v2
    s_waitcnt vmcnt(0)
    """)
    flag_store(A, 2)
    A("P2_a_enter:")
    srd(A, 24, 12, 13, 2 * O_BYTES)
    A(f"""
    s_mul_i32 s14, s15, {HD}
    s_add_u32 s14, s14, {L_A}
    s_lshl_b32 s12, s7, 2
    s_add_u32 s15, s15, s12
    P2_a_unit:
    s_mul_i32 s12, s16, {BLK}
    s_add_u32 s12, s12, s14
    v_add_u32 v{AK}, s12, v{LK}
    s_add_u32 s13, s12, {9*BLK}
    v_add_u32 v{AV}, s13, v{LV}
    v_add_u32 v{AQ}, {5*BLK}, v{AK}
    s_lshl_b32 s12, s6, 3
    s_lshl_b32 s13, s16, 1
    s_add_u32 s17, s12, s13
    s_or_b32 s87, s6, s16
    P2_a_start:
    """)
    A.lds_q = []
    rdQ(A); rdK(A, 0, 0); rdK(A, 1, 1); rdV(A, 0, 0); rdV(A, 1, 1)
    oaddr(A, 15, 17)
    A.lds_wait(('q', 0))
    maskQ(A)
    A.lds_wait(('k', 0))
    qk(A, 0, 0, SA, CA); qk(A, 1, 0, SA, CA)
    A.lds_wait(('k', 1))
    qk(A, 0, 1, SB, CA); qk(A, 1, 1, SB, CA)
    A("s_cmp_lg_u32 s87, 0\ns_nop 7\ns_cbranch_scc1 P2_a_val\ns_nop 3")
    for r in range(16): A(f"v_mov_b32 v{SA+r}, v{NINF}")
    A("P2_a_val:\ns_nop 3")
    for r in range(16):
        A(f"v_cndmask_b32 v{SA+r}, v{SA+r}, v{SB+r}, s[{MS+2*r}:{MS+2*r+1}]")
    A("s_cmp_eq_u32 s92, 1\ns_cbranch_scc1 P2_a_max")
    for r in range(16): A(f"v_exp_f32 v{SA+r}, v{SA+r}")
    A("s_nop 0")
    for j in range(8): cvt(A, SA, PA, j)
    for j in range(8):
        A(f"v_and_b32 v{PB+j}, v{PA+j}, v{PM+j}\nv_bfi_b32 v{PA+j}, v{PM+j}, 0, v{PA+j}")
    A.lds_wait(('v', 1))
    A("s_nop 0")
    pv(A, 0, 0, PA, True); pv(A, 1, 0, PA); pv(A, 0, 1, PB); pv(A, 1, 1, PB)
    finish(A, 0, 'a', 92)
    A(f"""
    s_cmp_eq_u32 s92, 0
    s_cbranch_scc1 P2_a_next
    s_mov_b32 s92, 0
    v_mov_b32 v{NEGM}, 0
    """)
    build_CA(A)
    if 'nohalo' in DBG:
        A("""
        P2_a_next:
        s_cmp_eq_u32 s16, 3
        s_cbranch_scc1 L_Aret
        s_xor_b32 s16, s16, 3
        s_cmp_lg_u32 s16, 1
        s_cbranch_scc1 P2_a_unit
        """)
    else:
        A("""
        P2_a_next:
        s_cmp_eq_u32 s16, 0
        s_cbranch_scc1 L_Aret
        s_add_u32 s16, s16, 1
        s_cmp_lt_u32 s16, 4
        s_cbranch_scc1 P2_a_unit
        """)
    stamp(A, 5)
    A("P2_cd:")
    A(f"{HEADCODE}\ns_mov_b64 s[46:47], s[36:37]")
    A("P2_pre:")
    A(f"""
    s_lshl_b32 s12, s6, 3
    s_add_u32 s12, s12, s7
    s_lshl_b32 s12, s12, 3
    s_add_u32 s12, s12, s28
    s_lshl_b32 s12, s12, 3
    s_add_u32 s12, s12, {MB2}
    s_cmp_eq_u32 s5, 0
    s_cselect_b32 s12, s12, {OOB}
    v_mov_b32 v18, {OOB}
    v_writelane_b32 v18, s12, 0
    s_bfe_u32 s5, s2, 0x10002
    s_add_u32 s12, s48, {O_BASE}
    s_addc_u32 s13, s49, 0
    """)
    srd(A, 24, 12, 13, 2 * O_BYTES)
    A(f"""
    s_mul_i32 s12, s28, {BLK}
    s_add_u32 s13, s12, {L_BK}
    v_add_u32 v{AK}, s13, v{LK}
    s_add_u32 s13, s12, {L_BQ}
    v_add_u32 v{AQ}, s13, v{LK}
    s_add_u32 s13, s12, {L_BV}
    v_add_u32 v{AV}, s13, v{LV}
    v_mov_b32 v{NEGM}, 0
    s_sub_u32 s86, 8, s28
    s_cmp_eq_u32 s4, 0
    s_cselect_b32 s86, s86, -1
    s_lshl_b32 s12, s4, 4
    s_lshl_b32 s13, s28, 1
    s_add_u32 s17, s12, s13
    """)
    oaddr(A, 3, 17)
    A(f"""
    s_and_b32 s12, s2, 3
    s_lshl_b32 s9, s12, 2
    s_bfe_u32 s12, s2, 0x20003
    s_add_u32 s9, s9, s12
    s_lshr_b32 s10, s2, 5
    s_lshr_b32 s11, s10, 1
    s_mov_b32 s12, 0x1999999a
    """)
    for i in range(5):
        A(f"""
        v_add_u32 v8, {i*64}, v1
        v_mul_hi_u32 v9, v8, s12
        v_mul_u32_u24 v10, 10, v9
        v_sub_u32 v10, v8, v10
        v_bfe_u32 v11, v9, 2, 2
        v_lshlrev_b32 v11, 3, v11
        v_bfe_u32 v12, v9, 4, 1
        v_lshl_add_u32 v11, v12, 2, v11
        v_and_b32 v12, 3, v9
        v_add_u32 v11, v11, v12
        v_lshrrev_b32 v12, 4, v11
        v_lshl_add_u32 v12, v12, 2, v11
        v_mul_u32_u24 v12, 1280, v12
        v_lshl_add_u32 v{WA+i}, v10, 4, v12
        v_lshrrev_b32 v12, 2, v11
        v_lshl_add_u32 v12, v12, 4, v11
        v_add_u32 v12, 16, v12
        v_mul_u32_u24 v12, 1280, v12
        v_lshl_add_u32 v{WA+5+i}, v10, 4, v12
        """)
    A(f"""
    s_cmp_eq_u32 s5, 0
    s_cselect_b32 s16, s46, s42
    s_cselect_b32 s17, s47, s43
    s_and_b32 s17, s17, 0xffff
    s_mov_b32 s18, 819200
    s_mov_b32 s19, 0x20000
    s_mul_i32 s20, s10, 160
    """)
    def wo_setup(n):
        if n < 2:
            A(f"""
            s_add_u32 s21, s28, {8*n}
            s_mul_i32 s22, s21, {40*1280}
            s_add_u32 s22, s22, s20
            s_lshr_b32 s23, s21, 2
            s_add_u32 s23, s23, s21
            s_mul_i32 s23, s23, 5120
            """)
        else:
            A(f"""
            s_mul_i32 s22, s28, {160*1280}
            s_add_u32 s22, s22, s20
            s_mul_i32 s23, s28, 25600
            s_add_u32 s23, s23, 20480
            """)
    def wo_piece(i, n):
        A(f"s_add_u32 m0, s23, {L_WO + i*1024}\ns_nop 0\nbuffer_load_dwordx4 v{WA+i+(5 if n == 2 else 0)}, s[16:19], s22 offen lds")
    A("s_cmp_lt_u32 s28, 4\ns_cbranch_scc1 P2_bd\ns_waitcnt vmcnt(0)\nP2_bd:\ns_barrier")
    stamp(A, 6)
    A.lds_q = []
    rdQ(A)
    A.lds_wait(('q', 0))
    maskQ(A)
    A("P2_b_start:")
    A.lds_q = []
    rdK(A, 0, 0); rdK(A, 1, 1)
    A("s_cmp_eq_u32 s4, 0\ns_cselect_b64 s[88:89], exec, 0\ns_nop 1")
    for r in range(16): A(f"v_cndmask_b32 v{CB+r}, v{NEGM}, v{NINF}, s[88:89]")
    def cb_switch(b):
        A(f"s_cmp_lg_u32 s86, {b}\ns_cbranch_scc1 P2_cb{b}\ns_nop 7")
        for r in range(16): A(f"v_mov_b32 v{CB+r}, v{NEGM}")
        A(f"s_nop 1\nP2_cb{b}:")
    A.lds_wait(('k', 0))
    qk(A, 0, 0, S0, CB); qk(A, 1, 0, S0, CB)
    rdK(A, 2, 0)
    cb_switch(1)
    A.lds_wait(('k', 1))
    qk(A, 0, 1, SA, CB); qk(A, 1, 1, SA, CB)
    rdV(A, 1, 1)
    A("s_cmp_eq_u32 s93, 1\ns_cbranch_scc1 P2_b_max")
    cb_switch(2)
    A("s_nop 7")
    for b in range(1, 8):
        Sc, Sn = (SA, SB) if b % 2 == 1 else (SB, SA)
        Pc, Pp = (PA, PB) if b % 2 == 1 else (PB, PA)
        wn, wh = (b - 1) // 2, (b - 1) % 2
        dow = b <= 6
        if b == 3:
            A("s_waitcnt vmcnt(5)"); flag_store(A, 18)
        if dow and wn == 2: A(f"s_cmp_ge_u32 s28, 4\ns_cbranch_scc1 P2_nw{b}")
        if dow:
            if wh == 0: wo_setup(wn)
            for i in (range(0, 3) if wh == 0 else range(3, 5)): wo_piece(i, wn)
        if dow and wn == 2: A(f"P2_nw{b}:")
        A.lds_wait(('k', b + 1))
        qk(A, 0, (b + 1) % 2, Sn, CB)
        for r in range(0, 4): A(f"v_exp_f32 v{Sc+r}, v{Sc+r}")
        qk(A, 1, (b + 1) % 2, Sn, CB)
        if b + 2 <= 8: rdK(A, b + 2, b % 2)
        for r in range(4, 8): A(f"v_exp_f32 v{Sc+r}, v{Sc+r}")
        if b > 1:
            A.lds_wait(('v', b - 1))
            pv(A, 0, (b - 1) % 2, Pp, first=(b == 2))
        for r in range(8, 12): A(f"v_exp_f32 v{Sc+r}, v{Sc+r}")
        if b > 1:
            pv(A, 1, (b - 1) % 2, Pp)
        nb = b + 1 if b < 7 else 0
        rdV(A, nb, (b + 1) % 2)
        for r in range(12, 16): A(f"v_exp_f32 v{Sc+r}, v{Sc+r}")
        for j in range(8): cvt(A, Sc, Pc, j)
        if b + 2 <= 8: cb_switch(b + 2)
    for r in range(16):
        A(f"v_cndmask_b32 v{S0+r}, v{S0+r}, v{SB+r}, s[{MS+2*r}:{MS+2*r+1}]")
        if r == 3:
            A.lds_wait(('v', 7)); pv(A, 0, 1, PA)
        if r == 11:
            pv(A, 1, 1, PA); rdV(A, 8, 1)
    for r in range(16): A(f"v_exp_f32 v{S0+r}, v{S0+r}")
    A("s_nop 0")
    for j in range(8): cvt(A, S0, PB, j)
    for j in range(8):
        A(f"v_and_b32 v{P2+j}, v{PB+j}, v{PM+j}\nv_bfi_b32 v{PB+j}, v{PM+j}, 0, v{PB+j}")
    A.lds_wait(('v', 8))
    A("s_nop 0")
    pv(A, 0, 0, PB); pv(A, 1, 0, PB); pv(A, 0, 1, P2); pv(A, 1, 1, P2)
    finish(A, O_BYTES, 'b', 93)
    stamp(A, 7)
    A(f"""
    s_lshl_b32 s12, s9, 9
    s_add_u32 s12, s12, {MB2}
    s_cmp_lt_u32 s28, 4
    s_cselect_b32 s12, s12, {OOB}
    s_cmp_eq_u32 s5, 0
    s_cselect_b32 s12, s12, {OOB}
    v_lshlrev_b32 v13, 3, v1
    v_add_u32 v13, s12, v13
    s_nop 0
    buffer_load_dwordx2 v[4:5], v13, s[96:99], 0 offen sc1
    s_lshl_b32 s12, s4, 4
    s_add_u32 s12, s12, 128
    v_add_u32 v2, s12, v1
    v_lshlrev_b32 v2, 8, v2
    s_lshl_b32 s12, s3, 3
    s_add_u32 s12, s12, {MB2}
    v_add_u32 v2, s12, v2
    v_mov_b32 v3, {OOB}
    v_cmp_gt_u32 vcc, 16, v1
    s_nop 1
    v_cndmask_b32 v14, v3, v2, vcc
    """)
    OF = 60; ACC3 = 16; WR3 = 220; AW3 = 8
    def of(ks, rt): return OF + (ks * 2 + rt) * 4
    A(f"""
    s_lshl_b32 s12, s5, 7
    s_lshl_b32 s13, s9, 3
    s_add_u32 s12, s12, s13
    s_add_u32 s12, s12, s10
    s_lshl_b32 s12, s12, 8
    s_lshl_b32 s13, s9, 9
    s_cmp_eq_u32 s5, 0
    s_cselect_b32 s12, s13, s12
    s_add_u32 s12, s12, {FLAG_BASE + MB2}
    s_and_b32 s13, s28, 3
    s_sub_u32 s14, 7, s5
    s_lshl_b32 s13, s13, s14
    s_add_u32 s40, s12, s13
    s_cmp_eq_u32 s5, 0
    s_cselect_b32 s13, 64, 0
    s_add_u32 s41, s40, s13
    v_and_b32 v12, 3, v1
    v_lshlrev_b32 v12, 3, v12
    s_lshl_b32 s12, s9, 3
    s_lshl_b32 s14, s28, 1
    s_add_u32 s12, s12, s14
    s_mul_i32 s15, s12, 20480
    s_mul_i32 s21, s5, {O_BYTES}
    s_add_u32 s15, s15, s21
    v_lshlrev_b32 v7, 4, v1
    v_add_u32 v7, s15, v7
    v_add_u32 v6, 20480, v7
    v_and_b32 v2, 15, v1
    v_lshlrev_b32 v2, 3, v2
    v_sub_u32 v11, v7, v2
    v_add_u32 v15, 20480, v11
    v_lshrrev_b32 v9, 2, v1
    v_mul_u32_u24 v9, 160, v9
    v_and_b32 v10, 3, v1
    v_lshlrev_b32 v13, 3, v10
    v_mul_u32_u24 v10, {16 if SECT else 40}, v10
    v_add_u32 v{AW3}, v9, v10
    v_add_u32 v{AW3}, {L_WO}, v{AW3}
    s_mov_b32 s21, 0
    s_cmp_lt_u32 s28, 4
    s_cbranch_scc1 P3
    s_waitcnt vmcnt(0)
    s_barrier
    """)
    stamp(A, 8)
    A("s_cmp_lg_u32 s28, 4\ns_cbranch_scc1 H_poll")
    flag_store(A, 14)
    A(f"""
    H_poll:
    s_mov_b32 s94, 0
    s_and_b32 s12, s28, 3
    s_lshl_b32 s12, s12, 3
    v_mov_b32 v2, s12
    H_loop:
    s_load_dwordx16 s[52:67], s[48:49], s40 glc
    s_load_dwordx16 s[68:83], s[48:49], s41 glc
    s_add_u32 s94, s94, 1
    s_cmp_ge_u32 s94, {SPIN_LIMIT}
    s_waitcnt lgkmcnt(0)
    s_cbranch_scc1 H_done
    s_xor_b64 s[88:89], s[52:53], s[0:1]
    """)
    for i in range(1, 16):
        A(f"s_xor_b64 s[90:91], s[{52+2*i}:{53+2*i}], s[0:1]\ns_or_b64 s[88:89], s[88:89], s[90:91]")
    A(f"""
    s_cbranch_scc1 H_loop
    H_done:
    ds_write_b64 v2, v[{EP}:{EP+1}]
    s_waitcnt lgkmcnt(0)
    """)
    stamp(A, 9)
    A("s_branch K_end2")
    A("P2_a_fb:\ns_mov_b32 s92, 1\ns_waitcnt lgkmcnt(0)\ns_branch P2_a_start")
    A("P2_a_max:")
    maxblock(A, SA, True)
    rowmax_finish(A, "P2_a_start", 92, lambda: build_CA(A))
    A("P2_b_fb:\ns_mov_b32 s93, 1\ns_branch P2_b_start")
    A("P2_b_max:")
    A("s_waitcnt lgkmcnt(0)\ns_nop 7\ns_nop 3")
    A.lds_q = []
    maxblock(A, SA, True)
    for b in range(2, 9):
        A(f"s_cmp_lg_u32 s86, {b}\ns_cbranch_scc1 P2_mcb{b}")
        for r in range(16): A(f"v_mov_b32 v{CB+r}, v{NEGM}")
        A(f"P2_mcb{b}:")
        rdK(A, b, 0)
        A.lds_drain()
        qk(A, 0, 0, SA, CB); qk(A, 1, 0, SA, CB)
        A("s_nop 7\ns_nop 7")
        if b == 8:
            for r in range(16):
                A(f"v_cndmask_b32 v{SA+r}, v{S0+r}, v{SA+r}, s[{MS+2*r}:{MS+2*r+1}]")
        maxblock(A, SA, False)
    rowmax_finish(A, "P2_b_start", 93, lambda: None)
    A("P3:")
    srd(A, 16, 44, 45, 2048 * 1280 * 2)
    AWS = [9, 10]
    def pick(i, tag):
        if tag != 'e': A("v_cmp_eq_u64 vcc, s[0:1], v[4:5]\ns_nop 1\ns_or_b32 s22, s22, vcc_lo")
        A(f"""
        s_andn2_b32 s12, s22, s21
        s_lshr_b32 s12, s12, s11
        s_and_b32 s12, s12, 15
        s_cselect_b32 s23, 1, 0
        s_ff1_i32_b32 s12, s12
        s_add_u32 s12, s12, s11
        s_and_b32 s12, s12, 3
        s_lshl_b32 s13, 0x11, s12
        s_mul_i32 s13, s13, s23
        s_or_b32 s21, s21, s13
        s_mul_i32 s13, s12, 25600
        s_mul_i32 s30, s12, 5120
        v_add_u32 v{AWS[i & 1]}, s13, v{AW3}
        {f"v_sub_u32 v{2 + (i & 1)}, v{AWS[i & 1]}, v13" if SECT else ""}
        s_cmp_eq_u32 s23, 0
        s_cselect_b32 s30, 0x70000000, s30
        s_add_u32 s31, s30, 4096
        """)
    def ldo(i):
        for ks in range(4):
            for rt in range(2):
                A(f"buffer_load_dwordx4 {vr(of(i*5+ks,rt),4)}, v{7-rt}, s[24:27], s30 offen offset:{ks*1024} sc1")
        for rt in range(2):
            for hf in range(2):
                A(f"buffer_load_dwordx2 {vr(of(i*5+4,rt)+2*hf,2)}, v{(11,15)[rt]}, s[24:27], s31 offen offset:{hf*128} sc1")
    def rd3(n, hf):
        i, ks, t = n // 25, (n % 25) // 5, n % 5
        b = WR3 + (n % 8) * 4
        off = (ks * 32 + hf * 16) * 160 + ((0, 8, 64, 72, 128)[t] if SECT else 8 * t)
        ar = 2 + (i & 1) if (SECT and t == 4) else AWS[i & 1]
        A.lds(f"ds_read_b64_tr_b16 {vr(b+2*hf,2)}, v{ar} offset:{off}", ('w', n))
    LA = 6
    def acquire(i):
        A(f"""
        s_mov_b32 s94, 0
        P3_acq{i}:
        ds_read_b64 v[4:5], v12
        s_waitcnt lgkmcnt(0)
        """)
        pick(i, f"a{i}")
        A(f"s_cmp_eq_u32 s23, 0\ns_cbranch_scc1 P3_acq{i}")
        ldo(i)
        A.lds_q = []
        for n in range(i*25, i*25 + LA): rd3(n, 0); rd3(n, 1)
    for r in range(0, 40, 2): A(f"v_pk_mov_b32 v[{ACC3+r}:{ACC3+r+1}], 0, 0")
    A("""
    s_waitcnt vmcnt(0)
    v_cmp_ne_u64 vcc, s[0:1], v[4:5]
    s_nop 1
    s_cmp_eq_u64 vcc, 0
    s_cselect_b32 s22, 0xff, 0
    """)
    pick(0, 'e'); ldo(0)
    A("s_barrier")
    stamp(A, 8)
    A.lds_q = []
    for n in range(LA): rd3(n, 0); rd3(n, 1)
    A("s_cmp_lg_u32 s23, 0\ns_cbranch_scc1 P3_go0")
    acquire(0)
    A("P3_go0:")
    stamp(A, 9)
    for n in range(100):
        i, ks, t = n // 25, (n % 25) // 5, n % 5
        if n % 25 == 0 and i < 3: A.lds("ds_read_b64 v[4:5], v12", ('f', i))
        if n % 25 == 3 and i < 3:
            A.lds_wait(('f', i)); pick(i + 1, f"t{i}"); ldo(i + 1)
        if t == 0:
            A(f"s_waitcnt vmcnt({(10 - 2*ks if ks < 4 else 0) + (12 if (i < 3 and ks > 0) else 0)})")
        A.lds_wait(('w', n))
        b = WR3 + (n % 8) * 4
        for rt in range(2):
            a = ACC3 + (t * 2 + rt) * 4
            A(f"v_mfma_f32_16x16x32_bf16 {vr(a,4)}, {vr(b,4)}, {vr(of(i*5+ks,rt),4)}, {vr(a,4)}")
            if n + LA < 100: rd3(n + LA, rt)
        if n % 25 == 24 and i < 3:
            A(f"s_cmp_lg_u32 s23, 0\ns_cbranch_scc1 P3_go{i+1}")
            q = list(A.lds_q)
            acquire(i + 1)
            assert q == A.lds_q, (q, A.lds_q)
            A(f"P3_go{i+1}:")
    stamp(A, 10)
    A(f"""
    v_and_b32 v2, 15, v1
    v_lshrrev_b32 v3, 4, v1
    s_lshl_b32 s12, s9, 7
    s_lshl_b32 s14, s28, 5
    s_add_u32 s12, s12, s14
    v_add_u32 v2, s12, v2
    v_mul_u32_u24 v2, 2560, v2
    v_lshlrev_b32 v4, 3, v3
    v_mul_u32_u24 v3, {16 if SECT else 40}, v3
    v_add_u32 v2, v2, v3
    s_mul_i32 s14, s5, 1280
    s_add_u32 s14, s14, s20
    v_add_u32 v2, s14, v2
    v_add_u32 v3, 40960, v2
    v_sub_u32 v5, v3, v4
    v_sub_u32 v4, v2, v4
    s_nop 3
    """)
    for rt in range(2):
        T = OF + rt * 12
        for t in range(5):
            a = ACC3 + (t * 2 + rt) * 4
            A(f"v_cvt_pk_bf16_f32 v{T+2*t}, v{a}, v{a+1}\nv_cvt_pk_bf16_f32 v{T+2*t+1}, v{a+2}, v{a+3}")
        A(f"buffer_store_dwordx4 {vr(T,4)}, v{2+rt}, s[16:19], 0 offen {OUT_FLAGS}")
        A(f"buffer_store_dwordx4 {vr(T+4,4)}, v{2+rt}, s[16:19], 0 offen offset:{64 if SECT else 16} {OUT_FLAGS}")
        A(f"buffer_store_dwordx2 {vr(T+8,2)}, v{(4 if SECT else 2)+rt}, s[16:19], 0 offen offset:{128 if SECT else 32} {OUT_FLAGS}")
    stamp(A, 11)
    A("K_end2:")
    for d in DBG:
        if d.startswith('pad'):
            A(f"""
            s_cmp_lt_u32 s28, 4
            s_cbranch_scc1 PADE
            v_readfirstlane_b32 s12, v{EP}
            PADL:
            s_memrealtime s[14:15]
            s_waitcnt lgkmcnt(0)
            s_sub_u32 s13, s14, s12
            s_cmp_lt_u32 s13, {int(d[3:])*100}
            s_cbranch_scc1 PADL
            PADE:
            """)
    stamp_flush(A, 12, 0)
    A("K_end:\ns_endpgm")
    A.end(256, 102, 256, 512, LDS_TOTAL)

P3_DEPTH = 8
PSLEEP = 0
SECT = True
OUT_FLAGS = ""

if __name__ == '__main__':
    if '--stamp' in sys.argv: STAMP = True
    for a in sys.argv[1:]:
        if a.startswith('--dbg='): DBG.update(a[6:].split(','))
        if a.startswith('--rot='): ROT = int(a[6:])
        if a.startswith('--psleep='): PSLEEP = int(a[9:])
        if a.startswith('--out='): OUT_FLAGS = a[6:].replace('+', ' ')
    A = Asm()
    gen(A)
    t = A.text()
    import subprocess, re, os
    open('_g3.s', 'w').write(t.replace('CODE_BYTES', '0x1234'))
    subprocess.run(['clang', '-x', 'assembler', '-target', 'amdgcn-amd-amdhsa', '-mcpu=gfx950', '-c', '_g3.s', '-o', '_g3.o'], check=True)
    nm = subprocess.run(['llvm-objdump', '-t', '_g3.o'], capture_output=True, text=True).stdout
    end = int(re.search(r'^([0-9a-f]+) .* K_end$', nm, re.M).group(1), 16)
    sys.stderr.write(f"code bytes {end}\n")
    sys.stdout.write(t.replace('CODE_BYTES', str(end - 64)))
```

```python
import sys, math, struct

REF = 'concat_heads__sliding_local_dilated__sliding_block__prompt.s.ref'
HDR = [l for l in open(REF).read().split('\n')
       if l.startswith(';') and '@launch' not in l and 'Override' not in l and 'grid=ceil' not in l]
MAIN = "concat_heads__sliding_local_dilated__sliding_block__prompt_kernel"

QK_TILE = 640
V_TILE = 640
HS = 128
for _a in sys.argv[1:]:
    if _a.startswith('--hs='): HS = int(_a[5:])
K_OFF = 32 * HS * QK_TILE
V_OFF = 2 * K_OFF
QKV_BYTES = V_OFF + 32 * HS * V_TILE
O_BASE = 18 << 20
assert 2 * QKV_BYTES <= O_BASE
O_BYTES = 2048 * 640 * 2
FLAG_BASE = 24 << 20
MB1 = 0; MB2 = 131072; MB_BYTES = 262144
OOB = 0x7ffff000

STAMP = False
DBG = set()
STAMP_OFF = 30 << 20
FUSED = False

def f32bits(x): return struct.unpack('<I', struct.pack('<f', x))[0]
SCALE_L2E = (20 ** -0.5) * math.log2(math.e)

NOTES = """;
;           (buffer_load ... lds), waves 0-3 run the MFMAs.  Q is scaled by Dh^-0.5 * log2(e).
;"""

class Asm:
    def __init__(self):
        self.out = []; self.kernels = []; self.launches = []; self.lds_q = []
    def __call__(self, s):
        for l in s.split('\n'):
            l = l.strip()
            if not l: continue
            if 'noload' in DBG and l.startswith('buffer_load') and ' lds' in l: continue
            if 'nomfma' in DBG and l.startswith('v_mfma'): continue
            if 'nods' in DBG and l.startswith('ds_read'): continue
            if 'nowait' in DBG and l.startswith('s_waitcnt lgkmcnt(') and not l.endswith('(0)'): continue
            if 'halfds' in DBG and l.startswith('ds_read_b64_tr') and (int(l.split('[')[1].split(':')[0]) % 4 == 2): continue
            if 'nobar' in DBG and l.startswith('s_barrier'): continue
            if 'nostore' in DBG and l.startswith('buffer_store') and 's[8:11]' not in l: continue
            self.out.append(l if l.endswith(':') else '    ' + l)
    def begin(self, name):
        self.out.append(f".globl {name}\n.p2align 8\n.type {name},@function\n{name}:")
        self.cur = name
    def end(self, vgpr, sgpr, grid, block, lds):
        self.kernels.append((self.cur, vgpr, sgpr))
        self.launches.append((self.cur, grid, block, lds))
    def lds(self, s, tag):
        self(s); self.lds_q.append(tag)
    def lds_wait(self, *tags):
        idx = [i for i, t in enumerate(self.lds_q) if t in tags]
        if not idx: return
        n = len(self.lds_q) - 1 - idx[-1]
        assert n <= 15, n
        self(f"s_waitcnt lgkmcnt({n})")
        self.lds_q = self.lds_q[idx[-1] + 1:]
    def lds_drain(self):
        self("s_waitcnt lgkmcnt(0)"); self.lds_q = []
    def text(self, order=None):
        o = list(HDR)
        ls = self.launches if order is None else [l for n in order for l in self.launches if l[0] == n]
        if len(ls) == 1 and ls[0][0] == MAIN:
            (n, g, b, lds) = ls[0]
            o.append(f"; @launch grid=({g},1,1) block=({b},1,1) lds={lds}")
        else:
            for (n, g, b, lds) in ls:
                o.append(f"; @launch kernel={n} grid=({g},1,1) block=({b},1,1) lds={lds}")
        o.append(NOTES)
        o.append('.amdgcn_target "amdgcn-amd-amdhsa--gfx950"\n.text')
        o += self.out
        o.append('.section .rodata,"a"')
        for (n, vgpr, sgpr) in self.kernels:
            o.append(f""".p2align 6
.amdhsa_kernel {n}
  .amdhsa_next_free_vgpr {vgpr}
  .amdhsa_next_free_sgpr {sgpr}
  .amdhsa_accum_offset {(vgpr + 3) // 4 * 4}
  .amdhsa_group_segment_fixed_size 0
  .amdhsa_kernarg_size 72
  .amdhsa_user_sgpr_count 2
  .amdhsa_user_sgpr_kernarg_segment_ptr 1
  .amdhsa_system_sgpr_workgroup_id_x 1
.end_amdhsa_kernel""")
        return '\n'.join(o) + '\n'

def vr(a, n=1): return f"v{a}" if n == 1 else f"v[{a}:{a+n-1}]"

def stamp(A, i):
    if STAMP and i < 100:
        A(f"s_memtime s[100:101]\ns_waitcnt lgkmcnt(0)\nv_writelane_b32 v255, s100, {i}")
        A.lds_q = []
        if i == 0:
            A("s_memrealtime s[100:101]\ns_waitcnt lgkmcnt(0)\nv_writelane_b32 v255, s100, 31")
def stamp_flush(A, n, kidx):
    if not STAMP: return
    A("s_waitcnt lgkmcnt(0) vmcnt(0)")
    stamp(A, n)
    A(f"""
    s_memrealtime s[100:101]
    s_waitcnt lgkmcnt(0)
    v_writelane_b32 v255, s100, {n+1}
    s_add_u32 s4, s48, {STAMP_OFF + kidx*524288}
    s_addc_u32 s5, s49, 0
    s_mov_b32 s8, s4
    s_and_b32 s9, s5, 0xffff
    s_mov_b32 s10, 524288
    s_mov_b32 s11, 0x20000
    s_lshl_b32 s6, s2, 4
    s_add_u32 s6, s6, s28
    s_lshl_b32 s6, s6, 7
    v_lshlrev_b32 v0, 2, v1
    v_add_u32 v0, s6, v0
    v_mov_b32 v2, {OOB}
    v_cmp_gt_u32 vcc, 32, v1
    s_nop 1
    v_cndmask_b32 v0, v2, v0, vcc
    buffer_store_dword v255, v0, s[8:11], 0 offen
    """)

def srd(A, d, lo, hi, nbytes):
    A(f"s_mov_b32 s{d}, s{lo}\ns_and_b32 s{d+1}, s{hi}, 0xffff\ns_mov_b32 s{d+2}, {nbytes}\ns_mov_b32 s{d+3}, 0x20000")

MAPCODE = {
 'split': """s_lshr_b32 s5, s3, 2
    s_bfe_u32 s6, s3, 0x10001
    s_and_b32 s7, s3, 1
    s_and_b32 s10, s4, 7
    s_lshr_b32 s11, s4, 3
    s_lshl_b32 s6, s6, 3
    s_add_u32 s6, s6, s10
    s_lshl_b32 s7, s7, 2
    s_add_u32 s7, s7, s11""",
 'mix': """s_lshr_b32 s5, s4, 4
    s_lshr_b32 s6, s3, 1
    s_and_b32 s7, s3, 1
    s_and_b32 s10, s4, 3
    s_bfe_u32 s11, s4, 0x20002
    s_lshl_b32 s6, s6, 2
    s_add_u32 s6, s6, s10
    s_lshl_b32 s7, s7, 2
    s_add_u32 s7, s7, s11""",
 'mix2': """s_lshr_b32 s5, s4, 4
    s_lshr_b32 s6, s3, 2
    s_and_b32 s7, s3, 3
    s_and_b32 s10, s4, 7
    s_bfe_u32 s11, s4, 0x10003
    s_lshl_b32 s6, s6, 3
    s_add_u32 s6, s6, s10
    s_lshl_b32 s7, s7, 1
    s_add_u32 s7, s7, s11
    s_lshl_b32 s11, s11, 1""",
}
def prologue(A, endlabel):
    if 'early' in DBG: A("s_memrealtime s[94:95]")
    A(f"""
    s_cmp_ge_u32 s2, 256
    s_cbranch_scc1 {endlabel}
    s_load_dwordx16 s[32:47], s[0:1], 0
    s_load_dwordx2 s[48:49], s[0:1], 64
    s_getpc_b64 s[50:51]
    v_lshrrev_b32 v2, 6, v0
    s_andn2_b32 s3, s2, 7
    {"v_lshlrev_b32 v3, 6, v0" if 'cpfall' in DBG else "v_add_lshl_u32 v3, v2, s3, 7"}
    v_min_u32 v3, CODE_BYTES, v3
    v_and_b32 v1, 63, v0
    global_load_dword v254, v3, s[50:51]
    s_and_b32 s3, s2, 7
    s_lshr_b32 s4, s2, 3
    v_readfirstlane_b32 s28, v2
    {MAPCODE['mix' if 'mix' in DBG else 'mix2' if 'mix2' in DBG else 'split']}
    """)

PIECE = 1056
P1_LOOK = 5
XOFF = 32 * PIECE
SLOT = XOFF + 16384
P1_LDS = 3 * SLOT
LDS_TOTAL = 163840
BLK = 1536
HD = 14 * BLK
L_BK = 0; L_BV = 16 * BLK; L_WO = 32 * BLK; L_BQ = L_WO + 102400
assert L_BQ + 8 * BLK == LDS_TOTAL
L_A = SLOT
EP_LDS = 140000
HF_LDS = EP_LDS + 64
assert L_A + 4 * HD <= EP_LDS
EP = 250
SPIN_LIMIT = 1 << 17
PM = 214; QD = 222; NINF = 223; LK = 224; LV = 225; OL = 226; NEGM = 227; T0 = 228; T1 = 229; CA = 230
MS = 52
QF = 20; AK = 28; AV = 29; AQ = 30; OA = 32; WA = 36
CB = 80; S0 = 96; SA = 112; SB = 128; PA = 144; PB = 152; KF = 160; VF = 176; O = 192; P2 = 64

def flag_srd(A):
    A(f"s_add_u32 s94, s48, {FLAG_BASE}\ns_addc_u32 s95, s49, 0")
    srd(A, 96, 94, 95, MB_BYTES)

def dbg_srd(A):
    A("s_mov_b32 s96, s46\ns_and_b32 s97, s47, 0xffff\ns_mov_b32 s98, 256\ns_mov_b32 s99, 0x20000")

def epoch_get(A):
    A(f"""
    s_or_b32 s96, s28, s2
    s_cbranch_scc1 EP_skip
    {"" if 'early' in DBG else "s_memrealtime s[94:95]"}
    v_mov_b32 v252, 0
    s_waitcnt lgkmcnt(0)
    """)
    dbg_srd(A)
    A(f"""
    s_or_b32 s94, s94, 1
    v_mov_b32 v{EP}, s94
    v_mov_b32 v{EP+1}, s95
    s_nop 0
    buffer_store_dwordx2 v[{EP}:{EP+1}], v252, s[96:99], 0 offen sc1
    EP_skip:
    """)

def epoch_share(A):
    A(f"""
    s_cmp_lg_u32 s28, 4
    s_cbranch_scc1 EP_skip2
    """)
    dbg_srd(A)
    A(f"""
    v_mov_b32 v252, 0
    s_mov_b32 s94, 0
    EP_spin:
    buffer_load_dwordx2 v[{EP}:{EP+1}], v252, s[96:99], 0 offen sc1
    s_add_u32 s94, s94, 1
    s_waitcnt vmcnt(0)
    v_readfirstlane_b32 s95, v{EP}
    s_cmp_ge_u32 s94, {SPIN_LIMIT}
    s_cbranch_scc1 EP_got
    s_cmp_eq_u32 s95, 0
    s_cbranch_scc1 EP_spin
    EP_got:
    v_mov_b32 v252, {EP_LDS}
    s_nop 0
    ds_write_b64 v252, v[{EP}:{EP+1}]
    s_waitcnt lgkmcnt(0)
    EP_skip2:
    """)

def epoch_read(A):
    A(f"v_mov_b32 v252, {EP_LDS}\ns_nop 0\nds_read_b64 v[{EP}:{EP+1}], v252\ns_waitcnt lgkmcnt(0)")
    A(f"v_readfirstlane_b32 s0, v{EP}\nv_readfirstlane_b32 s1, v{EP+1}")

def flag_store(A, vaddr):
    A(f"buffer_store_dwordx2 v[{EP}:{EP+1}], v{vaddr}, s[96:99], 0 offen sc1")

def poll(A, vaddr, vtmp, tag):
    A(f"""
    s_mov_b32 s94, 0
    PL_{tag}:
    buffer_load_dwordx2 v[{vtmp}:{vtmp+1}], v{vaddr}, s[96:99], 0 offen sc1
    s_waitcnt vmcnt(0)
    v_cmp_ne_u64 vcc, v[{vtmp}:{vtmp+1}], v[{EP}:{EP+1}]
    s_add_u32 s94, s94, 1
    s_nop 0
    s_cmp_eq_u64 vcc, 0
    s_cbranch_scc1 PD_{tag}
    s_sleep 1
    s_cmp_lt_u32 s94, {SPIN_LIMIT}
    s_cbranch_scc1 PL_{tag}
    PD_{tag}:
    """)

def setup2(A):
    A(f"""
    v_lshrrev_b32 v5, 5, v1
    v_and_b32 v2, 31, v1
    v_lshlrev_b32 v3, 2, v5
    v_sub_u32 v{QD}, v2, v3
    v_mov_b32 v{NINF}, 0xff800000
    v_mov_b32 v{NEGM}, 0
    v_lshlrev_b32 v{LK}, 4, v1
    """)
    for r in range(16):
        kc = (r & 3) + 8 * (r >> 2)
        A(f"v_cmp_le_i32 s[{MS+2*r}:{MS+2*r+1}], {kc}, v{QD}")
    A("v_mov_b32 v2, 0xffff\nv_mov_b32 v3, 0xffff0000\nv_mov_b32 v4, 0")
    for j in range(8):
        A(f"v_cndmask_b32 v6, v4, v2, s[{MS+4*j}:{MS+4*j+1}]")
        A(f"v_cndmask_b32 v7, v4, v3, s[{MS+4*j+2}:{MS+4*j+3}]")
        A(f"v_or_b32 v{PM+j}, v6, v7")
    A(f"""
    v_and_b32 v3, 3, v1
    v_bfe_u32 v4, v1, 2, 2
    v_lshrrev_b32 v7, 1, v3
    v_lshlrev_b32 v7, 6, v7
    v_and_b32 v6, 1, v3
    v_lshl_add_u32 v7, v6, 3, v7
    v_min_u32 v6, 1, v3
    v_lshlrev_b32 v6, 3, v6
    v_add_u32 v6, 128, v6
    v_bfe_u32 v2, v1, 4, 1
    v_cmp_eq_u32 vcc, 0, v2
    v_mul_u32_u24 v2, 20480, v2
    v_and_b32 v3, 15, v1
    v_cndmask_b32 v7, v6, v7, vcc
    v_lshl_add_u32 v7, v4, 4, v7
    v_mul_u32_u24 v6, 192, v5
    v_add_u32 v{LV}, v7, v6
    v_lshl_add_u32 v{OL}, v3, 4, v2
    s_mov_b32 s84, {f32bits(2.0**-64)}
    s_mov_b32 s85, {f32bits(2.0**64)}
    s_mov_b32 s92, 0
    s_mov_b32 s93, 0
    """)

def build_CA(A):
    for r in range(16):
        kc = (r & 3) + 8 * (r >> 2)
        A(f"v_subrev_u32 v{T0}, {kc}, v{QD}\nv_and_b32 v{T0}, 17, v{T0}\nv_cmp_eq_u32 s[88:89], 0, v{T0}\ns_nop 1\nv_cndmask_b32 v{CA+r}, v{NINF}, v{NEGM}, s[88:89]")

def oaddr(A, s_head, s_rt16):
    A(f"""
    s_lshr_b32 s88, s{s_head}, 3
    s_mul_i32 s88, s88, 5120
    s_mul_i32 s89, s{s_rt16}, 20480
    s_add_u32 s88, s88, s89
    s_and_b32 s89, s{s_head}, 7
    s_lshl_b32 s90, s89, 9
    s_add_u32 s90, s90, s88
    s_lshl_b32 s89, s89, 7
    s_add_u32 s89, s89, s88
    s_add_u32 s89, s89, 4096
    v_lshrrev_b32 v2, 5, v1
    v_lshl_add_u32 v2, v2, 8, v{OL}
    v_add_u32 v{OA}, s90, v2
    v_and_b32 v2, 15, v1
    v_lshlrev_b32 v2, 3, v2
    v_sub_u32 v3, v{OL}, v2
    v_add_u32 v3, s89, v3
    v_cmp_gt_u32 vcc, 32, v1
    v_mov_b32 v2, {OOB}
    s_nop 0
    v_cndmask_b32 v{OA+1}, v2, v3, vcc
    """)

def qk(A, i, slot, dst, C):
    c = vr(C, 16) if i == 0 else vr(dst, 16)
    A(f"v_mfma_f32_32x32x16_bf16 {vr(dst,16)}, {vr(KF+slot*8+4*i,4)}, {vr(QF+4*i,4)}, {c}")
def pv(A, i, slot, Preg, first=False):
    c = "0" if first else vr(O, 16)
    A(f"v_mfma_f32_32x32x16_bf16 {vr(O,16)}, {vr(VF+slot*8+4*i,4)}, {vr(Preg+4*i,4)}, {c}")
def cvt(A, S, Pd, j):
    A(f"v_cvt_pk_bf16_f32 v{Pd+j}, v{S+2*j}, v{S+2*j+1}")
def rdK(A, b, slot):
    for i in range(2):
        A.lds(f"ds_read_b128 {vr(KF + slot*8 + 4*i, 4)}, v{AK} offset:{b*BLK + i*1024}", ('k', b))
def rdV(A, b, slot):
    for i in range(4):
        A.lds(f"ds_read_b64_tr_b16 {vr(VF + slot*8 + 2*i, 2)}, v{AV} offset:{b*BLK + i*384}", ('v', b))
def rdQ(A):
    for i in range(2):
        A.lds(f"ds_read_b128 {vr(QF + 4*i, 4)}, v{AQ} offset:{i*1024}", ('q', 0))
def maskQ(A):
    A(f"v_mov_b32 v{QF+4}, 0\nv_mov_b32 v{QF+5}, 0\ns_mov_b32 s88, -1\ns_mov_b32 s89, 0\nv_mov_b32 v{T0}, 0")
    A(f"v_cndmask_b32 v{QF+6}, v{T0}, v{QF+6}, s[88:89]\nv_cndmask_b32 v{QF+7}, v{T0}, v{QF+7}, s[88:89]\ns_nop 0")

def finish(A, osoff, tag, flagreg):
    A(f"s_nop 7\ns_nop 3\nv_rcp_f32 v{T0}, v{O+12}")
    A(f"v_add_f32 v{T1}, |v{O}|, |v{O+1}|")
    for r in range(2, 12):
        A(f"v_add_f32 v{T1}, v{T1}, |v{O+r}|")
    A(f"""
    v_cmp_le_f32 s[88:89], s84, v{O+12}
    v_cmp_ge_f32 s[90:91], s85, v{O+12}
    v_cmp_gt_f32 vcc, -v{NINF}, v{T1}
    """)
    for r in range(12):
        A(f"v_mul_f32 v{O+r}, v{O+r}, v{T0}")
    A(f"""
    s_and_b64 s[88:89], s[88:89], s[90:91]
    s_and_b64 s[88:89], s[88:89], vcc
    s_or_b32 s90, s{flagreg}, 0
    s_cbranch_scc1 P2_{tag}_ok
    s_cmp_eq_u64 s[88:89], exec
    s_cbranch_scc0 P2_{tag}_fb
    P2_{tag}_ok:
    """)
    for j in range(6):
        A(f"v_cvt_pk_bf16_f32 v{O+j}, v{O+2*j}, v{O+2*j+1}")
    A(f"s_mov_b32 s88, {osoff}")
    A(f"v_permlane32_swap_b32 v{O}, v{O+2}\nv_permlane32_swap_b32 v{O+1}, v{O+3}")
    A(f"buffer_store_dwordx2 {vr(O+4,2)}, v{OA+1}, s[24:27], s88 offen sc1")
    A(f"buffer_store_dwordx4 {vr(O,4)}, v{OA}, s[24:27], s88 offen sc1")

def maxblock(A, S, first):
    if first: A(f"v_max_f32 v{T1}, v{S}, v{S+1}")
    else: A(f"v_max3_f32 v{T1}, v{T1}, v{S}, v{S+1}")
    for r in range(2, 16, 2): A(f"v_max3_f32 v{T1}, v{T1}, v{S+r}, v{S+r+1}")
def rowmax_finish(A, back, flagreg, rebuild):
    A(f"""
    v_mov_b32 v{T0}, v{T1}
    s_nop 1
    v_permlane32_swap_b32 v{T1}, v{T0}
    s_nop 1
    v_max_f32 v{T1}, v{T1}, v{T0}
    v_sub_f32 v{NEGM}, 0, v{T1}
    s_mov_b32 s{flagreg}, 2
    """)
    rebuild()
    A(f"s_waitcnt lgkmcnt(0)\ns_branch {back}")

def dma_patterns(A):
    A(f"""
    v_and_b32 v3, 15, v1
    v_bfe_u32 v4, v1, 4, 1
    v_lshlrev_b32 v6, 3, v4
    v_mul_u32_u24 v4, 768, v4
    v_lshl_add_u32 v5, v3, 4, v4
    v_lshl_add_u32 v6, v3, 4, v6
    v_add_u32 v6, 504, v6
    v_cmp_gt_u32 vcc, 32, v1
    v_add_u32 v7, 256, v5
    v_add_u32 v8, {2*QK_TILE}, v5
    v_add_u32 v9, {2*QK_TILE}, v7
    v_add_u32 v10, {2*QK_TILE}, v6
    v_cndmask_b32 v12, v7, v5, vcc
    v_cndmask_b32 v13, v8, v6, vcc
    v_cndmask_b32 v14, v10, v9, vcc
    s_mov_b32 s12, 0x15555556
    """)
    for ty in range(3):
        A(f"""
        v_add_u32 v3, {ty*64}, v1
        v_mul_hi_u32 v4, v3, s12
        v_mul_u32_u24 v5, 12, v4
        v_sub_u32 v5, v3, v5
        v_lshrrev_b32 v6, 2, v5
        v_and_b32 v5, 3, v5
        v_lshl_add_u32 v5, v4, 2, v5
        v_lshrrev_b32 v7, 5, v5
        v_mul_u32_u24 v7, 1280, v7
        v_lshrrev_b32 v9, 1, v6
        v_mul_u32_u24 v9, 760, v9
        v_sub_u32 v9, 768, v9
        v_bfe_u32 v8, v5, 4, 1
        v_mad_u32_u24 v7, v8, v9, v7
        v_and_b32 v5, 15, v5
        v_lshl_add_u32 v7, v5, 4, v7
        v_lshl_add_u32 v{15+ty}, v6, 8, v7
        """)

P3COORD = """s_and_b32 s12, s2, 3
    s_lshl_b32 s9, s12, 2
    s_bfe_u32 s12, s2, 0x20003
    s_add_u32 s9, s9, s12
    s_lshr_b32 s10, s2, 5
    s_lshr_b32 s11, s10, 1"""
P3COORD = P3COORD.replace("s_lshr_b32 s11, s10, 1", "s_mov_b32 s11, 2")
def cb_init(A):
    A("s_cmp_eq_u32 s4, 0\ns_cselect_b64 s[88:89], exec, 0\ns_nop 1")
    for r in range(16): A(f"v_cndmask_b32 v{CB+r}, v{NEGM}, v{NINF}, s[88:89]")
def wo_patterns(A, quads):
    A("s_mov_b32 s12, 0x1999999a")
    for i in range(5):
        A(f"""
        v_add_u32 v8, {i*64}, v1
        v_mul_hi_u32 v9, v8, s12
        v_mul_u32_u24 v10, 10, v9
        v_sub_u32 v10, v8, v10
        v_bfe_u32 v11, v9, 2, 2
        v_lshlrev_b32 v11, 3, v11
        v_bfe_u32 v12, v9, 4, 1
        v_lshl_add_u32 v11, v12, 2, v11
        v_and_b32 v12, 3, v9
        v_add_u32 v11, v11, v12
        v_lshrrev_b32 v12, 4, v11
        v_lshl_add_u32 v12, v12, 2, v11
        v_mul_u32_u24 v12, 1280, v12
        v_lshl_add_u32 v{WA+i}, v10, 4, v12
        """)
        if quads: A(f"""
        v_lshrrev_b32 v12, 2, v11
        v_lshl_add_u32 v12, v12, 4, v11
        v_add_u32 v12, 16, v12
        v_mul_u32_u24 v12, 1280, v12
        v_lshl_add_u32 v{WA+5+i}, v10, 4, v12
        """)
        else: A(f"v_mov_b32 v{WA+5+i}, v{WA+i}")
ROT = 4
HEADCODE = "s_and_b32 s3, s2, 7\ns_lshl_b32 s3, s3, 2\ns_bfe_u32 s4, s2, 0x20003\ns_or_b32 s3, s3, s4\ns_lshr_b32 s4, s2, 5"
ROTCODE = {
 10: """s_mul_i32 s12, s11, 5
    s_lshr_b32 s12, s12, 1
    s_mul_i32 s13, s10, 5
    s_lshr_b32 s13, s13, 2
    s_add_u32 s12, s12, s13
    s_cmp_ge_u32 s12, 10
    s_cselect_b32 s13, 10, 0
    s_sub_u32 s12, s12, s13""",
 1: "s_mov_b32 s12, 0",
 5: "s_add_u32 s12, s10, s7\ns_mul_i32 s13, s12, 52\ns_lshr_b32 s13, s13, 8\ns_mul_i32 s13, s13, 5\ns_sub_u32 s12, s12, s13\ns_lshl_b32 s12, s12, 1",
 6: "s_add_u32 s12, s6, s7\ns_mul_i32 s13, s12, 52\ns_lshr_b32 s13, s13, 8\ns_mul_i32 s13, s13, 5\ns_sub_u32 s12, s12, s13\ns_lshl_b32 s12, s12, 1",
 2: "s_add_u32 s12, s10, s11\ns_and_b32 s12, s12, 1\ns_mul_i32 s12, s12, 5",
 4: "s_add_u32 s12, s10, s11\ns_and_b32 s12, s12, 3\ns_mul_i32 s12, s12, 5\ns_lshr_b32 s12, s12, 1",
 3: "s_add_u32 s12, s10, s11\ns_mul_i32 s13, s12, 43\ns_lshr_b32 s13, s13, 7\ns_mul_i32 s13, s13, 3\ns_sub_u32 s12, s12, s13\ns_mul_i32 s12, s12, 7\ns_lshr_b32 s12, s12, 1",
}
def gen(A):
    A.begin(MAIN)
    if 'lst' in DBG: A("s_memtime s[98:99]")
    prologue(A, "K_end")
    if 'lst' not in DBG: stamp(A, 0)
    A("s_cmp_lt_u32 s28, 4\ns_cbranch_scc1 P1_consumer")
    A(f"""
    s_sub_u32 s29, s28, 4
    v_lshrrev_b32 v2, 5, v1
    v_and_b32 v3, 31, v1
    v_mul_u32_u24 v2, 15360, v2
    v_mul_u32_u24 v6, 26, v3
    v_lshrrev_b32 v6, 8, v6
    s_cmp_eq_u32 s5, 0
    s_cselect_b32 s15, 1120, 0
    s_cselect_b32 s14, 160, 480
    v_mul_lo_u32 v6, v6, s15
    v_lshl_add_u32 v2, v3, 4, v2
    v_add_u32 v2, v2, v6
    v_mov_b32 v4, {OOB}
    v_cmp_gt_u32 vcc, 30, v3
    v_lshrrev_b32 v5, 3, v1
    v_mul_u32_u24 v5, 1280, v5
    v_cndmask_b32 v8, v4, v2, vcc
    v_and_b32 v3, 7, v1
    v_lshrrev_b32 v4, 4, v1
    v_xor_b32 v3, v3, v4
    v_lshl_add_u32 v9, v3, 4, v5
    v_xor_b32 v3, 4, v3
    v_lshl_add_u32 v10, v3, 4, v5
    {ROTCODE[ROT]}
    s_mul_i32 s13, s29, {8*3840}
    s_mul_i32 s14, s7, s14
    s_add_u32 s13, s13, s14
    s_lshl_b32 s14, s6, 7
    s_lshl_b32 s15, s29, 5
    s_add_u32 s14, s14, s15
    s_mul_i32 s14, s14, 1280
    s_mul_i32 s30, s29, {4*PIECE}
    s_lshl_b32 s31, s29, 12
    s_add_u32 s31, s31, {XOFF}
    s_mul_i32 s26, s12, 245760
    s_add_u32 s26, s26, s13
    s_lshl_b32 s27, s12, 7
    s_add_u32 s27, s27, s14
    s_mov_b32 s25, 0
    s_mov_b32 s51, 0
    s_cmp_eq_u32 s5, 0
    {"s_memtime s[96:97]" if 'lst' in DBG else ""}
    s_waitcnt lgkmcnt(0)
    {"v_writelane_b32 v255, s96, 14" if 'lst' in DBG else ""}
    s_cselect_b32 s16, s32, s38
    s_cselect_b32 s17, s33, s39
    s_cselect_b32 s20, s34, s40
    s_cselect_b32 s21, s35, s41
    s_and_b32 s17, s17, 0xffff
    s_mov_b32 s18, 2621440
    s_mov_b32 s19, 0x20000
    s_and_b32 s21, s21, 0xffff
    s_mov_b32 s22, 2457600
    s_mov_b32 s23, 0x20000
    """.replace("s_cselect_b32 s14, 160, 480", "s_movk_i32 s14, 480\ns_cselect_b32 s14, 160, s14"))
    def wpiece(sub, r):
        A(f"s_add_u32 m0, s30, {(sub*16 + r)*PIECE}\ns_add_u32 s50, s26, {(32*sub + r)*3840}\nbuffer_load_dwordx4 v8, s[20:23], s50 offen lds")
    def xpiece(j):
        A(f"s_add_u32 m0, s31, {j*1024}\ns_add_u32 s50, s27, {j*8*1280}\nbuffer_load_dwordx4 v{9 + (j & 1)}, s[16:19], s50 offen lds")
    def F():
        xpiece(0); wpiece(0, 0); xpiece(1); wpiece(0, 1); xpiece(2); xpiece(3)
    def S():
        wpiece(0, 2); wpiece(0, 3)
        for r in range(4): wpiece(1, r)
    for d in DBG:
        if d.startswith('adel'): A(f"s_cmp_lg_u32 s5, 0\ns_cbranch_scc1 P1_lf\ns_sleep {d[4:]}")
    if 'lst' in DBG: stamp(A, 10); A("v_writelane_b32 v255, s98, 0")
    A("s_branch P1_lf")
    A("P1_lloop:")
    S()
    A(f"""
    s_add_u32 s12, s12, 1
    s_cmp_eq_u32 s12, 10
    s_cselect_b32 s12, 0, s12
    s_mul_i32 s26, s12, 245760
    s_add_u32 s26, s26, s13
    s_lshl_b32 s27, s12, 7
    s_add_u32 s27, s27, s14
    s_add_u32 s25, s25, 1
    s_cmp_eq_u32 s25, 3
    s_cselect_b32 s25, 0, s25
    s_mov_b32 s50, {SLOT}
    s_cselect_b32 s50, {-2*SLOT & 0xffffffff}, s50
    s_add_u32 s30, s30, s50
    s_add_u32 s31, s31, s50
    s_add_u32 s51, s51, 1
    s_cmp_eq_u32 s51, 10
    s_cbranch_scc1 P1_llast
    P1_lf:
    """)
    F()
    A("""
    s_cmp_eq_u32 s51, 0
    s_cbranch_scc1 P1_lloop
    """)
    if 'lst' in DBG and STAMP: A("s_cmp_lg_u32 s51, 1\ns_cbranch_scc1 LST1"); stamp(A, 11); A("LST1:")
    A("""
    s_waitcnt vmcnt(6)
    s_barrier
    LSTG
    s_branch P1_lloop
    P1_llast:
    s_waitcnt vmcnt(0)
    s_barrier
    """)
    stamp(A, 1)
    epoch_share(A)
    A(f"""
    s_bitcmp0_b32 s2, 2
    s_cselect_b32 s16, s36, s42
    s_cselect_b32 s17, s37, s43
    s_and_b32 s17, s17, 0xffff
    s_mov_b32 s18, 819200
    s_lshr_b32 s12, s2, 3
    s_lshl_b32 s12, s12, 2
    s_add_u32 s12, s12, s29
    s_mul_i32 s12, s12, 6400
    v_lshlrev_b32 v2, 7, v1
    v_mov_b32 v3, {OOB}
    v_cmp_gt_u32 vcc, 50, v1
    s_nop 1
    v_cndmask_b32 v2, v3, v2, vcc
    buffer_load_dword v254, v2, s[16:19], s12 offen
    buffer_load_dword v254, v2, s[16:19], s12 offen offset:64
    """)
    setup2(A)
    wo_patterns(A, False)
    dma_patterns(A)
    flag_srd(A)
    A(f"""
    {HEADCODE}
    """)
    build_CA(A)
    cb_init(A)
    A(f"""
    s_lshl_b32 s12, s4, 4
    s_add_u32 s12, s12, 128
    v_add_u32 v2, s12, v1
    v_lshlrev_b32 v2, 9, v2
    s_lshl_b32 s12, s3, 3
    s_and_b32 s13, s3, 24
    s_lshl_b32 s13, s13, 3
    s_add_u32 s12, s12, s13
    s_add_u32 s12, s12, {MB2}
    v_add_u32 v2, s12, v2
    v_mov_b32 v3, {OOB}
    v_cmp_gt_u32 vcc, 16, v1
    v_mov_b32 v58, v3
    v_mov_b32 v59, v3
    v_cndmask_b32 v19, v3, v2, vcc
    """)
    A(f"""
    v_cmp_lt_u32 vcc, 11, v1
    v_mov_b32 v2, 0
    v_mov_b32 v3, 1
    v_cndmask_b32 v2, v2, v3, vcc
    v_mul_u32_u24 v3, 12, v2
    v_sub_u32 v3, v1, v3
    s_mul_i32 s12, s7, 12
    v_add_u32 v3, s12, v3
    v_lshrrev_b32 v4, 5, v3
    v_and_b32 v3, 31, v3
    s_lshr_b32 s12, s6, 1
    v_add_u32 v5, s12, v2
    v_lshl_add_u32 v3, v5, 5, v3
    s_and_b32 s12, s6, 1
    s_add_u32 s12, s12, 2
    v_lshlrev_b32 v2, 1, v2
    v_sub_u32 v2, s12, v2
    v_lshl_add_u32 v2, v2, 4, v4
    v_lshlrev_b32 v2, 3, v2
    v_lshl_add_u32 v2, v3, 9, v2
    v_cmp_gt_u32 vcc, 8, v5
    v_cmp_gt_u32 s[88:89], 24, v1
    v_mov_b32 v3, {OOB}
    s_and_b64 vcc, vcc, s[88:89]
    s_cmp_lg_u32 s28, 4
    s_cselect_b64 vcc, 0, vcc
    s_nop 0
    v_cndmask_b32 v18, v3, v2, vcc
    """)
    A(f"""
    s_lshl_b32 s12, s4, 5
    s_add_u32 s12, s12, s3
    s_lshl_b32 s12, s12, 9
    s_lshl_b32 s13, s29, 7
    s_add_u32 s12, s12, s13
    s_add_u32 s40, s12, {FLAG_BASE + MB1}
    s_lshl_b32 s13, s29, 3
    s_mul_i32 s14, s3, {HS}
    s_lshl_b32 s15, s4, 4
    s_add_u32 s14, s14, s15
    s_add_u32 s14, s14, s13
    s_sub_u32 s14, s14, 16
    s_mul_i32 s26, s14, {QK_TILE}
    s_mul_i32 s27, s14, {V_TILE}
    s_add_u32 s27, s27, {V_OFF}
    s_add_u32 s15, s15, s13
    s_cmp_lt_u32 s15, 16
    s_cselect_b32 s26, 0x70000000, s26
    s_cselect_b32 s27, 0x70000000, s27
    s_cselect_b32 s31, 7, 0
    s_cmp_ge_u32 s29, 2
    s_cselect_b32 s30, 7, 6
    s_mul_i32 s25, s29, {4*BLK}
    """)
    A(f"""
    v_lshrrev_b32 v52, 2, v1
    v_mul_u32_u24 v52, 192, v52
    v_and_b32 v53, 3, v1
    v_lshl_add_u32 v52, v53, 4, v52
    s_add_u32 s12, s25, {L_BV + 136}
    v_add_u32 v53, s12, v52
    s_mul_i32 s12, s29, {HD}
    s_add_u32 s12, s12, {L_A + 9*BLK + 136}
    v_add_u32 v52, s12, v52
    v_mov_b32 v54, 0x3f803f80
    v_mov_b32 v55, 0x3f803f80
    s_mov_b64 s[46:47], s[36:37]
    s_cmp_eq_u32 s6, 0
    s_cselect_b32 s12, 8, {8 if 'nohalo' in DBG else 0}
    s_or_b32 s31, s31, s12
    s_cmp_eq_u32 s5, 0
    s_cselect_b32 s12, 8, 0
    s_or_b32 s30, s30, s12
    s_add_u32 s12, s48, {QKV_BYTES}
    s_addc_u32 s13, s49, 0
    """)
    srd(A, 20, 12, 13, QKV_BYTES)
    srd(A, 16, 48, 49, QKV_BYTES)
    A("s_barrier")
    epoch_read(A)
    stamp(A, 2)
    A("s_cmp_eq_u32 s5, 0\ns_cbranch_scc1 L_nf")
    flag_store(A, 18)
    A("L_nf:")
    A(f"""
    s_mov_b32 s11, 0
    PL_b:
    s_load_dwordx8 s[32:39], s[48:49], s40 glc
    s_add_u32 s11, s11, 1
    s_cmp_ge_u32 s11, {SPIN_LIMIT}
    s_cselect_b32 s12, 15, s31
    s_waitcnt lgkmcnt(0)
    s_cmp_eq_u64 s[32:33], s[0:1]
    s_cselect_b32 s13, 1, 0
    s_or_b32 s12, s12, s13
    s_cmp_eq_u64 s[34:35], s[0:1]
    s_cselect_b32 s13, 2, 0
    s_or_b32 s12, s12, s13
    s_cmp_eq_u64 s[36:37], s[0:1]
    s_cselect_b32 s13, 4, 0
    s_or_b32 s12, s12, s13
    s_cmp_eq_u64 s[38:39], s[0:1]
    s_cselect_b32 s13, 8, 0
    s_or_b32 s12, s12, s13
    s_and_b32 s12, s12, s30
    s_bitcmp1_b32 s12, 3
    s_cbranch_scc0 PB_h
    s_mov_b64 s[90:91], exec
    s_lshl_b32 s15, s7, 2
    s_add_u32 s15, s15, s29
    s_mul_i32 s15, s15, {HS}
    s_lshl_b32 s13, s6, 3
    s_add_u32 s15, s15, s13
    s_sub_u32 s15, s15, 2
    s_mul_i32 s14, s29, {HD}
    """)
    for (areg, tb, off, lds) in ((12, QK_TILE, K_OFF, 0), (15, V_TILE, V_OFF, 9 * BLK)):
        A(f"""
        s_mul_i32 s13, s15, {tb}
        s_add_u32 s13, s13, {off}
        s_cmp_eq_u32 s6, {'s6' if 'nohalo' in DBG else 0}
        s_cselect_b32 s13, 0x70000000, s13
        s_add_u32 m0, s14, {L_A + lds}
        s_nop 0
        buffer_load_dwordx4 v{areg}, s[16:19], s13 offen sc1 lds
        s_add_u32 m0, s14, {L_A + lds + 1024}
        s_mov_b32 exec_hi, 0
        buffer_load_dwordx4 v{areg+1}, s[16:19], s13 offen sc1 lds
        s_mov_b64 exec, s[90:91]
        """)
    A("PB_h:")
    for m, (areg, sreg, soff, tb, lds) in enumerate(((12, 26, 0, QK_TILE, L_BQ - 8 * BLK), (12, 26, K_OFF, QK_TILE, L_BK), (15, 27, 0, V_TILE, L_BV))):
        A(f"s_bitcmp1_b32 s12, {m}\ns_cbranch_scc0 PB_{m}")
        for u in range(2):
            A(f"s_add_u32 s13, s{sreg}, {soff + u*4*tb}")
            for ty in range(3):
                A(f"s_add_u32 m0, s25, {lds + u*3072 + ty*1024}\ns_nop 0\nbuffer_load_dwordx4 v{areg+ty}, s[20:23], s13 offen sc1 lds")
        A(f"PB_{m}:")
    A(f"""
    s_andn2_b32 s30, s30, s12
    s_bitcmp1_b32 s12, 3
    s_cbranch_scc0 L_nh
    s_mov_b32 s8, s25
    s_mov_b32 s9, s26
    s_mov_b32 s10, s27
    s_mov_b32 s15, s29
    s_mov_b32 s16, 0
    s_add_u32 s12, s48, {O_BASE}
    s_addc_u32 s13, s49, 0
    s_waitcnt vmcnt(0)
    ds_write_b64 v52, v[54:55]
    """)
    stamp(A, 3)
    A(f"""
    s_branch P2_a_enter
    L_Aret:
    s_mov_b32 s25, s8
    s_mov_b32 s26, s9
    s_mov_b32 s27, s10
    """)
    stamp(A, 4)
    A(f"""
    L_nh:
    s_cmp_lg_u32 s30, 0
    s_cbranch_scc0 PD_b
    {f"s_sleep {PSLEEP}" if PSLEEP else ""}
    s_branch PL_b
    PD_b:
    """)
    stamp(A, 5)
    A("s_branch P2_pre")

    A("P1_consumer:")
    ACC = 8; WR = 128; XF = 168; AW0 = 184; AX0 = 185; AX1 = 186; AW = 187; AXa = 188; AXb = 189
    def acc(grp, t, rt): return ACC + ((grp * 5 + t) * 2 + rt) * 4
    if 'pf' in DBG:
        A(f"""
        s_cmp_eq_u32 s28, 1
        s_cbranch_scc0 PF_w
        s_lshl_b32 s12, s6, 2
        s_and_b32 s13, s7, 3
        s_add_u32 s12, s12, s13
        s_mul_i32 s12, s12, 40960
        v_lshlrev_b32 v2, 7, v1
        v_add_u32 v2, s12, v2
        s_movk_i32 s14, 8192
        s_cmp_eq_u32 s5, 0
        s_waitcnt lgkmcnt(0)
        s_cselect_b32 s12, s32, s38
        s_cselect_b32 s13, s33, s39
        s_branch PF_go
        PF_w:
        s_cmp_eq_u32 s28, 2
        s_cbranch_scc0 PF_end
        v_min_u32 v3, 59, v1
        v_mul_u32_u24 v4, 0x1112, v3
        v_lshrrev_b32 v4, 16, v4
        v_mul_u32_u24 v5, 15, v4
        v_sub_u32 v5, v3, v5
        v_mul_u32_u24 v6, 52, v5
        v_lshrrev_b32 v6, 8, v6
        s_cmp_eq_u32 s5, 0
        s_cselect_b32 s12, 640, 0
        s_movk_i32 s13, 1920
        s_cselect_b32 s13, 640, s13
        v_mul_lo_u32 v6, v6, s12
        v_lshl_add_u32 v2, v5, 7, v6
        v_mul_u32_u24 v4, 3840, v4
        v_add_u32 v2, v2, v4
        s_lshr_b32 s12, s7, 2
        s_mul_i32 s13, s13, s12
        s_lshr_b32 s12, s2, 3
        s_mul_i32 s12, s12, {20*3840}
        s_add_u32 s12, s12, s13
        v_add_u32 v2, s12, v2
        s_movk_i32 s14, 15360
        s_cmp_eq_u32 s5, 0
        s_waitcnt lgkmcnt(0)
        s_cselect_b32 s12, s34, s40
        s_cselect_b32 s13, s35, s41
        PF_go:
        """)
        for j in range(5):
            A(f"global_load_dword v254, v2, s[12:13]")
            if j < 4: A("v_add_u32 v2, s14, v2")
        A("PF_end:")
    epoch_get(A)
    A(f"""
    v_lshrrev_b32 v2, 2, v1
    v_mul_u32_u24 v2, {PIECE}, v2
    v_and_b32 v3, 3, v1
    v_mul_u32_u24 v3, 40, v3
    v_add_u32 v{AW0}, v2, v3
    v_and_b32 v2, 15, v1
    v_lshrrev_b32 v3, 4, v1
    v_lshrrev_b32 v4, 1, v2
    v_xor_b32 v3, v3, v4
    s_lshl_b32 s12, s28, 12
    s_add_u32 s12, s12, {XOFF}
    v_lshlrev_b32 v2, 7, v2
    v_add_u32 v2, s12, v2
    v_lshl_add_u32 v{AX0}, v3, 4, v2
    v_xor_b32 v3, 4, v3
    v_lshl_add_u32 v{AX1}, v3, 4, v2
    v_mov_b32 v{AW}, v{AW0}
    v_mov_b32 v{AXa}, v{AX0}
    v_mov_b32 v{AXb}, v{AX1}
    """)
    for r in range(ACC, XF + 16, 2):
        A(f"v_pk_mov_b32 v[{r}:{r+1}], 0, 0")
    setup2(A)
    build_CA(A)
    A(f"""
    s_waitcnt lgkmcnt(0)
    s_mul_i32 s12, s5, {QKV_BYTES}
    s_add_u32 s12, s48, s12
    s_addc_u32 s13, s49, 0
    """)
    srd(A, 16, 12, 13, QKV_BYTES)
    flag_srd(A)
    A(f"""
    v_and_b32 v2, 15, v1
    v_lshrrev_b32 v3, 4, v1
    s_lshl_b32 s12, s6, 3
    s_lshl_b32 s13, s28, 1
    s_add_u32 s12, s12, s13
    v_mul_u32_u24 v252, {HD}, v3
    v_mul_u32_u24 v3, {HS}, v3
    v_add_u32 v3, s12, v3
    v_mul_u32_u24 v4, {QK_TILE}, v3
    v_lshl_add_u32 v4, v2, 4, v4
    v_mov_b32 v7, {f32bits(SCALE_L2E)}
    s_mul_i32 s13, s7, 12
    s_mul_i32 s12, s28, {BLK}
    s_add_u32 s12, s12, {L_A}
    v_add_u32 v252, s12, v252
    v_lshrrev_b32 v3, 2, v2
    v_mul_u32_u24 v3, 192, v3
    v_and_b32 v253, 3, v2
    v_lshl_add_u32 v3, v253, 4, v3
    v_add_u32 v253, v252, v3
    v_lshl_add_u32 v252, v2, 4, v252
    v_mov_b32 v2, 0
    v_mov_b32 v3, 0
    """)
    if 'tlb' in DBG:
        A(f"""
        s_cmp_lg_u32 s28, 1
        s_cbranch_scc1 P1_nt
        v_mul_u32_u24 v246, {0x80000 if 'tlb2' not in DBG else 0x68000}, v1
        v_mul_u32_u24 v247, 81920, v1
        global_load_dword v248, v246, s[48:49]
        global_load_dword v249, v247, s[44:45]
        P1_nt:
        """)
    A("s_mov_b32 s25, 0\ns_mov_b32 s51, 0")
    stamp(A, 1)
    units = [(sub, grp, t) for sub in range(2) for grp in range(3) for t in range(5)]
    def rd(u, hf):
        sub, grp, t = units[u]
        b = WR + (u % 10) * 4
        off = sub * 16 * PIECE + hf * 512 + grp * 160 + 8 * t
        A.lds(f"ds_read_b64_tr_b16 {vr(b + 2*hf, 2)}, v{AW} offset:{off}", ('w', u))
    def rdx(sub, rt):
        A.lds(f"ds_read_b128 {vr(XF + (sub*2+rt)*4, 4)}, v{AXa if sub == 0 else AXb} offset:{rt*2048}", ('x', sub))
    def mm(u, rt):
        sub, grp, t = units[u]
        b = WR + (u % 10) * 4
        a = acc(grp, t, rt)
        A(f"v_mfma_f32_16x16x32_bf16 {vr(a,4)}, {vr(b,4)}, {vr(XF + (sub*2+rt)*4, 4)}, {vr(a,4)}")
    L = P1_LOOK
    def body(emit):
        save = A.out
        if not emit: A.out = []
        for step in range(30):
            u = (step - L) % 30
            g_ = 1 if step >= L else 0
            tags = [('x', units[u][0]) if g_ else ('px', units[u][0]), ('w', u) if g_ else ('pw', u)]
            if WB and step % WB == 0:
                for d in range(1, WB):
                    if step + d < 30:
                        u2 = (step + d - L) % 30; g2 = step + d >= L
                        if not (g2 and u2 >= step): tags += [('x', units[u2][0]) if g2 else ('px', units[u2][0]), ('w', u2) if g2 else ('pw', u2)]
            A.lds_wait(*tags)
            mm(u, 0)
            if step == 0: rdx(0, 0)
            if step == L + 2: rdx(1, 0)
            rd(step, 0)
            if step == 26:
                A(f"s_add_u32 s25, s25, {SLOT}\ns_cmp_eq_u32 s25, {3*SLOT}\ns_cselect_b32 s25, 0, s25")
            if step == 27:
                A(f"v_add_u32 v{AXa}, s25, v{AX0}")
            if step == 28:
                A(f"v_add_u32 v{AXb}, s25, v{AX1}")
            mm(u, 1)
            if step == 0: rdx(0, 1)
            if step == L + 2: rdx(1, 1)
            rd(step, 1)
            if step == 28:
                A("s_add_u32 s51, s51, 1\ns_cmp_lt_u32 s51, 10")
        A(f"v_add_u32 v{AW}, s25, v{AW0}")
        A.lds_q = [('p' + t[0], t[1]) for t in A.lds_q]
        if not emit: A.out = save
    A.lds_q = []
    body(False)
    if ALIGN is not None:
        A.out.append("    .p2align 6")
        for _ in range(ALIGN // 4): A("s_nop 0")
    A("P1_cloop:")
    A("s_barrier")
    if STAMP and 'stg' in DBG:
        A("s_memtime s[100:101]\ns_add_u32 m0, s51, 16\ns_waitcnt lgkmcnt(0)\nv_writelane_b32 v255, s100, m0")
    body(True)
    A("s_cbranch_scc1 P1_cloop")
    for u in range(30 - L, 30):
        A.lds_wait(('pw', u))
        mm(u, 0); mm(u, 1)
    stamp(A, 2)
    A("s_cmp_eq_u32 s5, 0\ns_cbranch_scc1 P1_epiA")
    def pack(grp, TB):
        for rt in range(2):
            T = TB + rt * 12
            for t in range(5):
                a = acc(grp, t, rt)
                A(f"v_cvt_pk_bf16_f32 v{T+2*t}, v{a}, v{a+1}\nv_cvt_pk_bf16_f32 v{T+2*t+1}, v{a+2}, v{a+3}")
    def store_qk(TB, soff):
        A(f"v_mov_b32 v{TB+10}, v{TB+20}\nv_mov_b32 v{TB+11}, v{TB+21}")
        for rt in range(2):
            T = TB + rt * 12
            A(f"buffer_store_dwordx4 {vr(T,4)}, v4, s[16:19], s{soff} offen offset:{rt*768} sc1")
            A(f"buffer_store_dwordx4 {vr(T+4,4)}, v4, s[16:19], s{soff} offen offset:{rt*768+256} sc1")
        A(f"buffer_store_dwordx4 {vr(TB+8,4)}, v4, s[16:19], s{soff} offen offset:512 sc1")
    def ones(TB):
        for rt in range(2):
            T = TB + rt * 12
            A(f"v_mov_b32 v{T+10}, 0x3f803f80\nv_mov_b32 v{T+11}, 0x3f803f80")
    def store_v(TB, soff):
        for rt in range(2):
            T = TB + rt * 12
            for p in range(3):
                A(f"buffer_store_dwordx4 {vr(T+4*p,4)}, v5, s[16:19], s{soff} offen offset:{rt*V_TILE+256*p} sc1")
    def scale(grp):
        for r in range(acc(grp, 0, 0), acc(grp, 0, 0) + 40):
            A(f"v_mul_f32 v{r}, v7, v{r}")
    TBS = [WR, 190, WR + 24]
    for grp in range(3):
        TB = TBS[grp]
        A(f"""
        s_add_u32 s14, s13, {4*grp}
        s_mul_i32 s20, s14, {HS*QK_TILE}
        s_cmp_ge_u32 s14, 32
        s_cbranch_scc1 P1_ns{grp}
        """)
        scale(grp)
        A(f"P1_ns{grp}:")
        pack(grp, TB)
        store_qk(TB, 20)
    stamp(A, 3)
    A("s_waitcnt vmcnt(0)\ns_barrier")
    stamp(A, 4)
    epoch_read(A)
    A("s_branch P2_cd")
    A("P1_epiA:\ns_nop 3")
    pack(1, TBS[1]); pack(2, TBS[2])
    A(f"""
    s_cmp_lg_u32 s28, {9 if 'nohalo' in DBG else 3}
    s_cbranch_scc1 P1_nh
    s_lshl_b32 s14, s7, 2
    s_mul_i32 s20, s14, {HS*QK_TILE}
    s_add_u32 s20, s20, {K_OFF}
    s_mul_i32 s21, s14, {HS*V_TILE}
    s_add_u32 s21, s21, {V_OFF}
    """)
    store_qk(TBS[1], 20); store_qk(TBS[2], 21)
    A("s_nop 1\nP1_nh:")
    ones(TBS[2])
    def img_qk(grp, base):
        for rt in range(2):
            T = TBS[grp] + rt * 12
            A(f"ds_write_b128 v252, {vr(T,4)} offset:{base + rt*256}")
            A(f"ds_write_b128 v252, {vr(T+4,4)} offset:{base + rt*256 + 512}")
            A(f"ds_write_b64 v252, {vr(T+8,2)} offset:{base + rt*256 + 1024 + 8}")
            A(f"ds_write_b64 v252, v[2:3] offset:{base + rt*256 + 1024}")
    img_qk(1, BLK)
    for rt in range(2):
        T = TBS[2] + rt * 12
        for p in range(3):
            A(f"ds_write_b128 v253, {vr(T+4*p,4)} offset:{10*BLK + rt*768 + p*64}")
    scale(0); pack(0, TBS[0])
    img_qk(0, 5 * BLK)
    A(f"""
    s_add_u32 s12, s48, {O_BASE}
    s_addc_u32 s13, s49, 0
    s_mov_b32 s15, s28
    s_mov_b32 s16, 1
    """)
    stamp(A, 3)
    A("s_waitcnt lgkmcnt(0)\ns_barrier")
    stamp(A, 4)
    epoch_read(A)
    A(f"""
    s_cmp_lg_u32 s28, {9 if 'nohalo' in DBG else 3}
    s_cbranch_scc1 P2_a_enter
    s_and_b32 s21, s6, {3 if 'mix' in DBG else 7}
    s_cmp_eq_u32 s21, {3 if 'mix' in DBG else 7}
    s_cselect_b32 s21, {-22 if 'mix' in DBG else -52 if 'mix2' in DBG else -54}, 8
    s_add_u32 s21, s21, s2
    s_and_b32 s20, s21, 7
    s_lshl_b32 s20, s20, 2
    s_bfe_u32 s22, s21, 0x20003
    s_or_b32 s20, s20, s22
    s_andn2_b32 s21, s21, 31
    s_or_b32 s21, s21, s20
    s_lshl_b32 s21, s21, 9
    s_add_u32 s21, s21, {MB1 + 24}
    s_cmp_lt_u32 s6, 15
    s_cselect_b32 s21, s21, {OOB}
    v_min_u32 v2, 3, v1
    v_lshlrev_b32 v2, 7, v2
    v_add_u32 v2, s21, v2
    s_waitcnt vmcnt(0)
    """)
    flag_store(A, 2)
    A("P2_a_enter:")
    srd(A, 24, 12, 13, 2 * O_BYTES)
    A(f"""
    s_mul_i32 s14, s15, {HD}
    s_add_u32 s14, s14, {L_A}
    s_lshl_b32 s12, s7, 2
    s_add_u32 s15, s15, s12
    P2_a_unit:
    s_mul_i32 s12, s16, {BLK}
    s_add_u32 s12, s12, s14
    v_add_u32 v{AK}, s12, v{LK}
    s_add_u32 s13, s12, {9*BLK}
    v_add_u32 v{AV}, s13, v{LV}
    v_add_u32 v{AQ}, {5*BLK}, v{AK}
    s_lshl_b32 s12, s6, 3
    s_lshl_b32 s13, s16, 1
    s_add_u32 s17, s12, s13
    s_or_b32 s87, s6, s16
    P2_a_start:
    """)
    A.lds_q = []
    rdQ(A); rdK(A, 0, 0); rdK(A, 1, 1); rdV(A, 0, 0); rdV(A, 1, 1)
    oaddr(A, 15, 17)
    A.lds_wait(('q', 0))
    maskQ(A)
    A.lds_wait(('k', 0))
    qk(A, 0, 0, SA, CA); qk(A, 1, 0, SA, CA)
    A.lds_wait(('k', 1))
    qk(A, 0, 1, SB, CA); qk(A, 1, 1, SB, CA)
    A("s_cmp_lg_u32 s87, 0\ns_nop 7\ns_cbranch_scc1 P2_a_val\ns_nop 3")
    for r in range(16): A(f"v_mov_b32 v{SA+r}, v{NINF}")
    A("P2_a_val:\ns_nop 3")
    for r in range(16):
        A(f"v_cndmask_b32 v{SA+r}, v{SA+r}, v{SB+r}, s[{MS+2*r}:{MS+2*r+1}]")
    A("s_cmp_eq_u32 s92, 1\ns_cbranch_scc1 P2_a_max")
    for r in range(16): A(f"v_exp_f32 v{SA+r}, v{SA+r}")
    A("s_nop 0")
    for j in range(8): cvt(A, SA, PA, j)
    for j in range(8):
        A(f"v_and_b32 v{PB+j}, v{PA+j}, v{PM+j}\nv_bfi_b32 v{PA+j}, v{PM+j}, 0, v{PA+j}")
    A.lds_wait(('v', 1))
    A("s_nop 0")
    pv(A, 0, 0, PA, True); pv(A, 1, 0, PA); pv(A, 0, 1, PB); pv(A, 1, 1, PB)
    finish(A, 0, 'a', 92)
    A(f"""
    s_cmp_eq_u32 s92, 0
    s_cbranch_scc1 P2_a_next
    s_mov_b32 s92, 0
    v_mov_b32 v{NEGM}, 0
    """)
    build_CA(A)
    if 'nohalo' in DBG:
        A("""
        P2_a_next:
        s_cmp_eq_u32 s16, 3
        s_cbranch_scc1 L_Aret
        s_xor_b32 s16, s16, 3
        s_cmp_lg_u32 s16, 1
        s_cbranch_scc1 P2_a_unit
        """)
    else:
        A("""
        P2_a_next:
        s_cmp_eq_u32 s16, 0
        s_cbranch_scc1 L_Aret
        s_add_u32 s16, s16, 1
        s_cmp_lt_u32 s16, 4
        s_cbranch_scc1 P2_a_unit
        """)
    stamp(A, 5)
    A("P2_cd:")
    A(f"{HEADCODE}\ns_mov_b64 s[46:47], s[36:37]")
    OF = 60; ACC3 = 16; WR3 = 220; AW3 = 8; TO = 56; TW = 57
    def of(ks, rt): return OF + (ks * 2 + rt) * 4
    wo_patterns(A, True)
    A(f"""
    {P3COORD}
    s_bfe_u32 s8, s2, 0x10002
    s_lshl_b32 s12, s9, 3
    s_add_u32 s12, s12, s10
    s_lshl_b32 s12, s12, 9
    s_add_u32 s12, s12, {MB2}
    s_cmp_eq_u32 s8, 0
    s_cselect_b32 s12, s12, {OOB}
    v_and_b32 v13, 7, v1
    v_lshlrev_b32 v13, 3, v13
    v_add_u32 v13, s12, v13
    v_add_u32 v12, s11, v1
    v_and_b32 v12, 3, v12
    v_lshlrev_b32 v12, 3, v12
    s_lshl_b32 s12, s9, 3
    s_lshl_b32 s14, s28, 1
    s_add_u32 s12, s12, s14
    s_mul_i32 s15, s12, 20480
    s_mul_i32 s21, s8, {O_BYTES}
    s_add_u32 s15, s15, s21
    v_lshlrev_b32 v7, 4, v1
    v_add_u32 v7, s15, v7
    v_add_u32 v6, 20480, v7
    v_and_b32 v2, 15, v1
    v_lshlrev_b32 v2, 3, v2
    v_sub_u32 v11, v7, v2
    v_add_u32 v11, 4096, v11
    v_add_u32 v15, 20480, v11
    v_lshrrev_b32 v9, 2, v1
    v_mul_u32_u24 v9, 160, v9
    v_and_b32 v10, 3, v1
    v_lshlrev_b32 v10, 3, v10
    v_add_u32 v{AW3}, v9, v10
    v_add_u32 v{AW3}, {L_WO}, v{AW3}
    v_lshrrev_b32 v{TW}, 3, v12
    v_mul_u32_u24 v{TO}, 5120, v{TW}
    v_mul_u32_u24 v{TW}, 25600, v{TW}
    s_mov_b32 s12, 0x70000000
    v_and_b32 v2, 15, v1
    v_writelane_b32 v{TO}, s12, 63
    v_lshrrev_b32 v3, 4, v1
    s_lshl_b32 s12, s9, 7
    s_lshl_b32 s14, s28, 5
    s_add_u32 s12, s12, s14
    v_add_u32 v2, s12, v2
    v_mul_u32_u24 v2, 2560, v2
    s_mul_i32 s14, s8, 1280
    s_mul_i32 s20, s10, 160
    s_add_u32 s14, s14, s20
    v_add_u32 v2, s14, v2
    v_lshl_add_u32 v59, v3, 3, v2
    v_and_b32 v5, 1, v3
    v_lshl_add_u32 v2, v5, 5, v2
    v_lshrrev_b32 v5, 1, v3
    v_lshl_add_u32 v58, v5, 4, v2
    v_mov_b32 v19, {OOB}
    v_mov_b32 v53, v12
    """)
    cb_init(A)
    A("P2_pre:")
    A(f"""
    s_lshl_b32 s12, s6, 9
    s_add_u32 s12, s12, s7
    s_lshl_b32 s12, s12, 3
    s_add_u32 s12, s12, {MB2}
    s_cmp_eq_u32 s5, 0
    s_cselect_b32 s12, s12, {OOB}
    s_cmp_eq_u32 s28, 4
    s_cselect_b32 s12, s12, {OOB}
    v_min_u32 v18, 7, v1
    v_lshlrev_b32 v18, 9, v18
    v_add_u32 v18, s12, v18
    s_bfe_u32 s5, s2, 0x10002
    s_add_u32 s12, s48, {O_BASE}
    s_addc_u32 s13, s49, 0
    """)
    srd(A, 24, 12, 13, 2 * O_BYTES)
    A(f"""
    s_mul_i32 s12, s28, {BLK}
    s_add_u32 s13, s12, {L_BK}
    v_add_u32 v{AK}, s13, v{LK}
    s_add_u32 s13, s12, {L_BQ}
    v_add_u32 v{AQ}, s13, v{LK}
    s_add_u32 s13, s12, {L_BV}
    v_add_u32 v{AV}, s13, v{LV}
    s_sub_u32 s86, 8, s28
    s_cmp_eq_u32 s4, 0
    s_cselect_b32 s86, s86, -1
    s_lshl_b32 s12, s4, 4
    s_lshl_b32 s13, s28, 1
    s_add_u32 s17, s12, s13
    """)
    oaddr(A, 3, 17)
    A(f"""
    {P3COORD}
    s_cmp_eq_u32 s5, 0
    s_cselect_b32 s16, s46, s42
    s_cselect_b32 s17, s47, s43
    s_and_b32 s17, s17, 0xffff
    s_mov_b32 s18, 819200
    s_mov_b32 s19, 0x20000
    s_mul_i32 s20, s10, 160
    """)
    def wo_setup(n):
        if n < 2:
            A(f"""
            s_add_u32 s21, s28, {8*n}
            s_mul_i32 s22, s21, {40*1280}
            s_add_u32 s22, s22, s20
            s_lshr_b32 s23, s21, 2
            s_add_u32 s23, s23, s21
            s_mul_i32 s23, s23, 5120
            """)
        else:
            A(f"""
            s_mul_i32 s22, s28, {160*1280}
            s_add_u32 s22, s22, s20
            s_mul_i32 s23, s28, 25600
            s_add_u32 s23, s23, 20480
            """)
    def wo_piece(i, n):
        A(f"s_add_u32 m0, s23, {L_WO + i*1024}\ns_nop 0\nbuffer_load_dwordx4 v{WA+i+(5 if n == 2 else 0)}, s[16:19], s22 offen lds")
    A(f"s_cmp_lt_u32 s28, 4\ns_cbranch_scc1 P2_bd\n{'s_setprio 1' if PRIO else ''}\ns_waitcnt vmcnt(0)\nds_write_b64 v53, v[54:55]\nds_write_b64 v53, v[54:55] offset:3072\nP2_bd:\ns_waitcnt vmcnt(0) lgkmcnt(0)\ns_barrier")
    stamp(A, 6)
    A.lds_q = []
    rdQ(A)
    rdK(A, 0, 0); rdK(A, 1, 1)
    flag_store(A, 18)
    A.lds_wait(('q', 0))
    maskQ(A)
    A("s_branch P2_b_go\nP2_b_start:")
    A.lds_q = []
    rdK(A, 0, 0); rdK(A, 1, 1)
    A("P2_b_go:")
    def cb_switch(b):
        A(f"s_cmp_lg_u32 s86, {b}\ns_cbranch_scc1 P2_cb{b}\ns_nop 7")
        for r in range(16): A(f"v_mov_b32 v{CB+r}, v{NEGM}")
        A(f"s_nop 1\nP2_cb{b}:")
    A.lds_wait(('k', 0))
    qk(A, 0, 0, S0, CB); qk(A, 1, 0, S0, CB)
    rdK(A, 2, 0)
    cb_switch(1)
    A.lds_wait(('k', 1))
    qk(A, 0, 1, SA, CB); qk(A, 1, 1, SA, CB)
    rdV(A, 1, 1)
    A("s_cmp_eq_u32 s93, 1\ns_cbranch_scc1 P2_b_max")
    cb_switch(2)
    A("s_nop 7")
    for b in range(1, 8):
        Sc, Sn = (SA, SB) if b % 2 == 1 else (SB, SA)
        Pc, Pp = (PA, PB) if b % 2 == 1 else (PB, PA)
        wn, wh = (b - 1) // 2, (b - 1) % 2
        dow = b <= 6
        if b == PRIO: A("s_setprio 0")
        if dow and wn == 2: A(f"s_cmp_ge_u32 s28, 4\ns_cbranch_scc1 P2_nw{b}")
        if dow:
            if wh == 0: wo_setup(wn)
            for i in (range(0, 3) if wh == 0 else range(3, 5)): wo_piece(i, wn)
        if dow and wn == 2: A(f"P2_nw{b}:")
        A.lds_wait(('k', b + 1))
        qk(A, 0, (b + 1) % 2, Sn, CB)
        for r in range(0, 4): A(f"v_exp_f32 v{Sc+r}, v{Sc+r}")
        qk(A, 1, (b + 1) % 2, Sn, CB)
        if b + 2 <= 8: rdK(A, b + 2, b % 2)
        for r in range(4, 8): A(f"v_exp_f32 v{Sc+r}, v{Sc+r}")
        if b > 1:
            A.lds_wait(('v', b - 1))
            pv(A, 0, (b - 1) % 2, Pp, first=(b == 2))
        for r in range(8, 12): A(f"v_exp_f32 v{Sc+r}, v{Sc+r}")
        if b > 1:
            pv(A, 1, (b - 1) % 2, Pp)
        nb = b + 1 if b < 7 else 0
        rdV(A, nb, (b + 1) % 2)
        for r in range(12, 16): A(f"v_exp_f32 v{Sc+r}, v{Sc+r}")
        for j in range(8): cvt(A, Sc, Pc, j)
        if b + 2 <= 8: cb_switch(b + 2)
    if PRIO == 8: A("s_setprio 0")
    for r in range(16):
        A(f"v_cndmask_b32 v{S0+r}, v{S0+r}, v{SB+r}, s[{MS+2*r}:{MS+2*r+1}]")
        if r == 3:
            A.lds_wait(('v', 7)); pv(A, 0, 1, PA)
        if r == 11:
            pv(A, 1, 1, PA); rdV(A, 8, 1)
    for r in range(16): A(f"v_exp_f32 v{S0+r}, v{S0+r}")
    A("s_nop 0")
    for j in range(8): cvt(A, S0, PB, j)
    for j in range(8):
        A(f"v_and_b32 v{P2+j}, v{PB+j}, v{PM+j}\nv_bfi_b32 v{PB+j}, v{PM+j}, 0, v{PB+j}")
    A.lds_wait(('v', 8))
    A("s_nop 0")
    pv(A, 0, 0, PB); pv(A, 1, 0, PB); pv(A, 0, 1, P2); pv(A, 1, 1, P2)
    finish(A, O_BYTES, 'b', 93)
    stamp(A, 7)
    A(f"""
    s_cmp_lt_u32 s28, 4
    s_cbranch_scc1 P3
    s_waitcnt vmcnt(0)
    s_barrier
    """)
    stamp(A, 8)
    A("s_cmp_lg_u32 s28, 4\ns_cbranch_scc1 H_poll")
    flag_store(A, 19)
    A(f"""
    H_poll:
    s_lshl_b32 s12, s5, 7
    s_lshl_b32 s13, s9, 3
    s_add_u32 s12, s12, s13
    s_add_u32 s12, s12, s10
    s_lshl_b32 s12, s12, 9
    s_add_u32 s12, s12, {FLAG_BASE + MB2}
    s_and_b32 s13, s28, 3
    s_lshl_b32 s13, s13, 7
    s_mul_i32 s13, s13, s5
    s_add_u32 s40, s12, s13
    s_mov_b32 s94, 0
    s_and_b32 s12, s28, 3
    s_lshl_b32 s12, s12, 3
    v_mov_b32 v2, s12
    H_loop:
    s_load_dwordx16 s[52:67], s[48:49], s40 glc
    s_add_u32 s94, s94, 1
    s_cmp_ge_u32 s94, {SPIN_LIMIT}
    s_waitcnt lgkmcnt(0)
    s_cbranch_scc1 H_done
    s_xor_b64 s[88:89], s[52:53], s[0:1]
    """)
    for i in range(1, 8):
        A(f"s_xor_b64 s[90:91], s[{52+2*i}:{53+2*i}], s[0:1]\ns_or_b64 s[88:89], s[88:89], s[90:91]")
    A(f"""
    s_cbranch_scc1 H_loop
    H_done:
    ds_write_b64 v2, v[{EP}:{EP+1}]
    s_waitcnt lgkmcnt(0)
    """)
    stamp(A, 9)
    A("s_branch K_end2")
    A("P2_a_fb:\ns_mov_b32 s92, 1\ns_waitcnt lgkmcnt(0)\ns_branch P2_a_start")
    A("P2_a_max:")
    maxblock(A, SA, True)
    rowmax_finish(A, "P2_a_start", 92, lambda: build_CA(A))
    A("P2_b_fb:\ns_mov_b32 s93, 1")
    cb_init(A)
    A("s_branch P2_b_start")
    A("P2_b_max:")
    A("s_waitcnt lgkmcnt(0)\ns_nop 7\ns_nop 3")
    A.lds_q = []
    maxblock(A, SA, True)
    for b in range(2, 9):
        A(f"s_cmp_lg_u32 s86, {b}\ns_cbranch_scc1 P2_mcb{b}")
        for r in range(16): A(f"v_mov_b32 v{CB+r}, v{NEGM}")
        A(f"P2_mcb{b}:")
        rdK(A, b, 0)
        A.lds_drain()
        qk(A, 0, 0, SA, CB); qk(A, 1, 0, SA, CB)
        A("s_nop 7\ns_nop 7")
        if b == 8:
            for r in range(16):
                A(f"v_cndmask_b32 v{SA+r}, v{S0+r}, v{SA+r}, s[{MS+2*r}:{MS+2*r+1}]")
        maxblock(A, SA, False)
    rowmax_finish(A, "P2_b_start", 93, lambda: cb_init(A))
    A("P3:")
    srd(A, 16, 44, 45, 2048 * 1280 * 2)
    AWS = [9, 10]
    def pick(i, cmp=True):
        l = ["v_cmp_eq_u64 vcc, s[0:1], v[4:5]", "s_nop 1\ns_or_b32 s22, s22, vcc_lo"] if cmp else []
        return l + [f"s_and_b32 s12, s22, {1 << i}" if STATIC else "s_andn2_b32 s12, s22, s21", "s_ff1_i32_b32 s23, s12",
                    f"v_readlane_b32 s13, v{TW}, s23", f"v_readlane_b32 s30, v{TO}, s23", "s_bitset1_b32 s21, s23",
                    f"v_add_u32 v{AWS[i & 1]}, s13, v{AW3}", "s_nop 2"]
    def ldo(i):
        l = []
        for ks in range(4):
            for rt in range(2):
                l.append(f"buffer_load_dwordx4 {vr(of(i*5+ks,rt),4)}, v{7-rt}, s[24:27], s30 offen offset:{ks*1024} sc1")
        for rt in range(2):
            for hf in range(2):
                l.append(f"buffer_load_dwordx2 {vr(of(i*5+4,rt)+2*hf,2)}, v{(11,15)[rt]}, s[24:27], s30 offen offset:{hf*128} sc1")
        return l
    def rd3(n, hf):
        i, ks, t = n // 25, (n % 25) // 5, n % 5
        b = WR3 + (n % 8) * 4
        off = (ks * 32 + hf * 16) * 160 + 32 * t
        ar = AWS[i & 1]
        A.lds(f"ds_read_b64_tr_b16 {vr(b+2*hf,2)}, v{ar} offset:{off}", ('w', n))
    LA = 6
    def prime(i):
        A.lds_q = []
        if i < 3: A.lds("ds_read_b64 v[4:5], v12", ('f', i))
        for n in range(i*25, i*25 + LA): rd3(n, 0); rd3(n, 1)
    def acquire(i):
        A(f"P3_acq{i}:\nds_read_b64 v[4:5], v12\ns_waitcnt lgkmcnt(0)")
        for x in pick(i): A(x)
        A(f"s_cmp_lt_i32 s23, 0\ns_cbranch_scc1 P3_acq{i}")
        for x in ldo(i): A(x)
        prime(i)
    A(f"""
    buffer_load_dwordx2 v[4:5], v13, s[96:99], 0 offen sc1
    s_mov_b32 s21, -16
    s_waitcnt vmcnt(1)
    s_barrier
    """)
    stamp(A, 8)
    A("""
    s_waitcnt vmcnt(0)
    v_cmp_ne_u64 vcc, s[0:1], v[4:5]
    s_nop 1
    s_cmp_eq_u64 vcc, 0
    s_cselect_b32 s22, 0xff, 0
    """)
    acquire(0)
    A("P3_go0:")
    stamp(A, 9)
    fill = []; nxt = 0
    for n in range(100):
        i, ks, t = n // 25, (n % 25) // 5, n % 5
        if n % 25 == 0:
            nxt = 0
            if i < 3:
                A.lds_wait(('f', i)); fill = pick(i + 1) + ldo(i + 1)
                if i == 0:
                    for x in fill: A(x)
                    fill = []; nxt = 12
        if t == 0 and STAMP and 'p3s' in DBG and n >= 25:
            A(f"s_memtime s[100:101]\ns_waitcnt lgkmcnt(0)\nv_writelane_b32 v255, s100, {14 + n//5 - 5}")
        if t == 0:
            A(f"s_waitcnt vmcnt({(10 - 2*ks if ks < 4 else 0) + nxt})")
        if n % 2 == 0 or n % 25 == 0:
            A.lds_wait(('w', n), ('w', n + 1) if (n % 25 != 24 and n % 2 == 0) else ('w', n))
        b = WR3 + (n % 8) * 4
        for rt in range(2):
            a = ACC3 + (t * 2 + rt) * 4
            A(f"v_mfma_f32_16x16x32_bf16 {vr(a,4)}, {vr(b,4)}, {vr(of(i*5+ks,rt),4)}, {vr(a,4) if n >= 5 else 0}")
            if n + LA < 100:
                if (n + LA) % 25 == 0 and rt == 0 and i < 2: A.lds("ds_read_b64 v[4:5], v12", ('f', i + 1))
                rd3(n + LA, rt)
            if fill:
                x = fill.pop(0)
                if x == "s_nop 2": x = fill.pop(0)
                A(x.replace("s_nop 1\n", ""))
                if x.startswith("buffer_load"): nxt += 1
        if n % 25 == 24 and i < 3:
            assert not fill
            A(f"s_cmp_ge_i32 s23, 0\ns_cbranch_scc1 P3_go{i+1}")
            q = list(A.lds_q)
            acquire(i + 1)
            assert q == A.lds_q, (q, A.lds_q)
            A(f"P3_go{i+1}:")
    stamp(A, 10)
    A("s_mov_b32 s12, 40960")
    for rt in range(2):
        T = OF + rt * 12
        for t in range(5):
            a = ACC3 + (t * 2 + rt) * 4
            A(f"v_cvt_pk_bf16_f32 v{T+2*t}, v{a}, v{a+1}\nv_cvt_pk_bf16_f32 v{T+2*t+1}, v{a+2}, v{a+3}")
        for j in (0, 1, 4, 5): A(f"v_permlane16_swap_b32 v{T+j}, v{T+j+2}")
        so = "s12" if rt else "0"
        A(f"buffer_store_dwordx4 {vr(T,4)}, v58, s[16:19], {so} offen {OUT_FLAGS}")
        A(f"buffer_store_dwordx4 {vr(T+4,4)}, v58, s[16:19], {so} offen offset:64 {OUT_FLAGS}")
        A(f"buffer_store_dwordx2 {vr(T+8,2)}, v59, s[16:19], {so} offen offset:128 {OUT_FLAGS}")
    stamp(A, 11)
    A("K_end2:")
    for d in DBG:
        if d.startswith('pad'):
            A(f"""
            s_cmp_lt_u32 s28, 4
            s_cbranch_scc1 PADE
            v_readfirstlane_b32 s12, v{EP}
            PADL:
            s_memrealtime s[14:15]
            s_waitcnt lgkmcnt(0)
            s_sub_u32 s13, s14, s12
            s_cmp_lt_u32 s13, {int(d[3:])*100}
            s_cbranch_scc1 PADL
            PADE:
            """)
    stamp_flush(A, 12, 0)
    A("K_end:\ns_endpgm")
    A.end(256, 102, 256, 512, LDS_TOTAL)

P3_DEPTH = 8
PSLEEP = 0
STATIC = True
ALIGN = None
WB = 2
CPF_SH = 3
PRIO = 6
SECT = True
OUT_FLAGS = ""

if __name__ == '__main__':
    if '--stamp' in sys.argv: STAMP = True
    for a in sys.argv[1:]:
        if a.startswith('--dbg='): DBG.update(a[6:].split(','))
        if a.startswith('--rot='): ROT = int(a[6:])
        if a.startswith('--al='): ALIGN = int(a[5:])
        if a.startswith('--wb='): WB = int(a[5:])
        if a.startswith('--look='): P1_LOOK = int(a[7:])
        if a.startswith('--prio='): PRIO = int(a[7:])
        if a.startswith('--psleep='): PSLEEP = int(a[9:])
        if a.startswith('--out='): OUT_FLAGS = a[6:].replace('+', ' ')
    A = Asm()
    gen(A)
    t = A.text()
    t = t.replace("    LSTG\n", "    s_memtime s[100:101]\n    s_add_u32 m0, s51, 15\n    s_waitcnt lgkmcnt(0)\n    v_writelane_b32 v255, s100, m0\n" if (STAMP and 'lstg' in DBG) else "")
    import subprocess, re, os
    open('_g3.s', 'w').write(t.replace('CODE_BYTES', '0x1234').replace('CPF_OFF', '0x1234'))
    subprocess.run(['clang', '-x', 'assembler', '-target', 'amdgcn-amd-amdhsa', '-mcpu=gfx950', '-c', '_g3.s', '-o', '_g3.o'], check=True)
    nm = subprocess.run(['llvm-objdump', '-t', '_g3.o'], capture_output=True, text=True).stdout
    end = int(re.search(r'^([0-9a-f]+) .* K_end$', nm, re.M).group(1), 16)
    sys.stderr.write(f"code bytes {end}\n")
    m = re.search(r'^([0-9a-f]+) .* CPF_pc$', nm, re.M)
    pc = int(m.group(1), 16) if m else 0
    sys.stdout.write(t.replace('CODE_BYTES', str(end - 64)))
```

```python
import sys, math, struct

REF = 'concat_heads__sliding_local_dilated__sliding_block__prompt.s.ref'
HDR = [l for l in open(REF).read().split('\n')
       if l.startswith(';') and '@launch' not in l and 'Override' not in l and 'grid=ceil' not in l]
MAIN = "concat_heads__sliding_local_dilated__sliding_block__prompt_kernel"

QK_TILE = 640
V_TILE = 640
HS = 128
for _a in sys.argv[1:]:
    if _a.startswith('--hs='): HS = int(_a[5:])
K_OFF = 32 * HS * QK_TILE
V_OFF = 2 * K_OFF
QKV_BYTES = V_OFF + 32 * HS * V_TILE
O_BASE = 18 << 20
assert 2 * QKV_BYTES <= O_BASE
O_BYTES = 2048 * 640 * 2
FLAG_BASE = 24 << 20
MB1 = 0; MB2 = 131072; MB_BYTES = 262144
OOB = 0x7ffff000

STAMP = False
DBG = set()
STAMP_OFF = 30 << 20
FUSED = False

def f32bits(x): return struct.unpack('<I', struct.pack('<f', x))[0]
SCALE_L2E = (20 ** -0.5) * math.log2(math.e)

NOTES = """;
;           (buffer_load ... lds), waves 0-3 run the MFMAs.  Q is scaled by Dh^-0.5 * log2(e).
;"""

class Asm:
    def __init__(self):
        self.out = []; self.kernels = []; self.launches = []; self.lds_q = []
    def __call__(self, s):
        for l in s.split('\n'):
            l = l.strip()
            if not l: continue
            if 'noload' in DBG and l.startswith('buffer_load') and ' lds' in l: continue
            if 'nomfma' in DBG and l.startswith('v_mfma'): continue
            if 'nods' in DBG and l.startswith('ds_read'): continue
            if 'nowait' in DBG and l.startswith('s_waitcnt lgkmcnt(') and not l.endswith('(0)'): continue
            if 'halfds' in DBG and l.startswith('ds_read_b64_tr') and (int(l.split('[')[1].split(':')[0]) % 4 == 2): continue
            if 'nobar' in DBG and l.startswith('s_barrier'): continue
            if 'nostore' in DBG and l.startswith('buffer_store') and 's[8:11]' not in l: continue
            self.out.append(l if l.endswith(':') else '    ' + l)
    def begin(self, name):
        self.out.append(f".globl {name}\n.p2align 8\n.type {name},@function\n{name}:")
        self.cur = name
    def end(self, vgpr, sgpr, grid, block, lds):
        self.kernels.append((self.cur, vgpr, sgpr))
        self.launches.append((self.cur, grid, block, lds))
    def lds(self, s, tag):
        self(s); self.lds_q.append(tag)
    def lds_wait(self, *tags):
        idx = [i for i, t in enumerate(self.lds_q) if t in tags]
        if not idx: return
        n = len(self.lds_q) - 1 - idx[-1]
        assert n <= 15, n
        self(f"s_waitcnt lgkmcnt({n})")
        self.lds_q = self.lds_q[idx[-1] + 1:]
    def lds_drain(self):
        self("s_waitcnt lgkmcnt(0)"); self.lds_q = []
    def text(self, order=None):
        o = list(HDR)
        ls = self.launches if order is None else [l for n in order for l in self.launches if l[0] == n]
        if len(ls) == 1 and ls[0][0] == MAIN:
            (n, g, b, lds) = ls[0]
            o.append(f"; @launch grid=({g},1,1) block=({b},1,1) lds={lds}")
        else:
            for (n, g, b, lds) in ls:
                o.append(f"; @launch kernel={n} grid=({g},1,1) block=({b},1,1) lds={lds}")
        o.append(NOTES)
        o.append('.amdgcn_target "amdgcn-amd-amdhsa--gfx950"\n.text')
        o += self.out
        o.append('.section .rodata,"a"')
        for (n, vgpr, sgpr) in self.kernels:
            o.append(f""".p2align 6
.amdhsa_kernel {n}
  .amdhsa_next_free_vgpr {vgpr}
  .amdhsa_next_free_sgpr {sgpr}
  .amdhsa_accum_offset {(vgpr + 3) // 4 * 4}
  .amdhsa_group_segment_fixed_size 0
  .amdhsa_kernarg_size 72
  .amdhsa_user_sgpr_count 2
  .amdhsa_user_sgpr_kernarg_segment_ptr 1
  .amdhsa_system_sgpr_workgroup_id_x 1
.end_amdhsa_kernel""")
        return '\n'.join(o) + '\n'

def vr(a, n=1): return f"v{a}" if n == 1 else f"v[{a}:{a+n-1}]"

def stamp(A, i):
    if STAMP and i < 100:
        A(f"s_memtime s[100:101]\ns_waitcnt lgkmcnt(0)\nv_writelane_b32 v255, s100, {i}")
        A.lds_q = []
        if i == 0:
            A("s_memrealtime s[100:101]\ns_waitcnt lgkmcnt(0)\nv_writelane_b32 v255, s100, 31")
def stamp_flush(A, n, kidx):
    if not STAMP: return
    A("s_waitcnt lgkmcnt(0) vmcnt(0)")
    stamp(A, n)
    A(f"""
    s_memrealtime s[100:101]
    s_waitcnt lgkmcnt(0)
    v_writelane_b32 v255, s100, {n+1}
    s_add_u32 s4, s48, {STAMP_OFF + kidx*524288}
    s_addc_u32 s5, s49, 0
    s_mov_b32 s8, s4
    s_and_b32 s9, s5, 0xffff
    s_mov_b32 s10, 524288
    s_mov_b32 s11, 0x20000
    s_lshl_b32 s6, s2, 4
    s_add_u32 s6, s6, s28
    s_lshl_b32 s6, s6, 7
    v_lshlrev_b32 v0, 2, v1
    v_add_u32 v0, s6, v0
    v_mov_b32 v2, {OOB}
    v_cmp_gt_u32 vcc, 32, v1
    s_nop 1
    v_cndmask_b32 v0, v2, v0, vcc
    buffer_store_dword v255, v0, s[8:11], 0 offen
    """)

def srd(A, d, lo, hi, nbytes):
    A(f"s_mov_b32 s{d}, s{lo}\ns_and_b32 s{d+1}, s{hi}, 0xffff\ns_mov_b32 s{d+2}, {nbytes}\ns_mov_b32 s{d+3}, 0x20000")

MAPCODE = {
 'split': """s_lshr_b32 s5, s3, 2
    s_bfe_u32 s6, s3, 0x10001
    s_and_b32 s7, s3, 1
    s_and_b32 s10, s4, 7
    s_lshr_b32 s11, s4, 3
    s_lshl_b32 s6, s6, 3
    s_add_u32 s6, s6, s10
    s_lshl_b32 s7, s7, 2
    s_add_u32 s7, s7, s11""",
 'mix': """s_lshr_b32 s5, s4, 4
    s_lshr_b32 s6, s3, 1
    s_and_b32 s7, s3, 1
    s_and_b32 s10, s4, 3
    s_bfe_u32 s11, s4, 0x20002
    s_lshl_b32 s6, s6, 2
    s_add_u32 s6, s6, s10
    s_lshl_b32 s7, s7, 2
    s_add_u32 s7, s7, s11""",
 'mix2': """s_lshr_b32 s5, s4, 4
    s_lshr_b32 s6, s3, 2
    s_and_b32 s7, s3, 3
    s_and_b32 s10, s4, 7
    s_bfe_u32 s11, s4, 0x10003
    s_lshl_b32 s6, s6, 3
    s_add_u32 s6, s6, s10
    s_lshl_b32 s7, s7, 1
    s_add_u32 s7, s7, s11
    s_lshl_b32 s11, s11, 1""",
}
def prologue(A, endlabel):
    if 'early' in DBG: A("s_memrealtime s[94:95]")
    A(f"""
    s_cmp_ge_u32 s2, 256
    s_cbranch_scc1 {endlabel}
    s_load_dwordx16 s[32:47], s[0:1], 0
    s_load_dwordx2 s[48:49], s[0:1], 64
    s_getpc_b64 s[50:51]
    v_lshrrev_b32 v2, 6, v0
    s_andn2_b32 s3, s2, 7
    {"v_lshlrev_b32 v3, 6, v0" if 'cpfall' in DBG else "v_add_lshl_u32 v3, v2, s3, 7"}
    v_min_u32 v3, CODE_BYTES, v3
    v_and_b32 v1, 63, v0
    global_load_dword v254, v3, s[50:51]
    s_and_b32 s3, s2, 7
    s_lshr_b32 s4, s2, 3
    v_readfirstlane_b32 s28, v2
    {MAPCODE['mix' if 'mix' in DBG else 'mix2' if 'mix2' in DBG else 'split']}
    """)

PIECE = 1056
P1_LOOK = 5
XOFF = 32 * PIECE
SLOT = XOFF + 16384
P1_LDS = 3 * SLOT
LDS_TOTAL = 163840
BLK = 1536
HD = 14 * BLK
L_BK = 0; L_BV = 16 * BLK; L_WO = 32 * BLK; L_BQ = L_WO + 102400
assert L_BQ + 8 * BLK == LDS_TOTAL
L_A = SLOT
EP_LDS = 140000
HF_LDS = EP_LDS + 64
assert L_A + 4 * HD <= EP_LDS
EP = 250
SPIN_LIMIT = 1 << 17
PM = 214; QD = 222; NINF = 223; LK = 224; LV = 225; OL = 226; NEGM = 227; T0 = 228; T1 = 229; CA = 230
MS = 52
QF = 20; AK = 28; AV = 29; AQ = 30; OA = 32; WA = 36
CB = 80; S0 = 96; SA = 112; SB = 128; PA = 144; PB = 152; KF = 160; VF = 176; O = 192; P2 = 64

def flag_srd(A):
    A(f"s_add_u32 s94, s48, {FLAG_BASE}\ns_addc_u32 s95, s49, 0")
    srd(A, 96, 94, 95, MB_BYTES)

def dbg_srd(A):
    A("s_mov_b32 s96, s46\ns_and_b32 s97, s47, 0xffff\ns_mov_b32 s98, 256\ns_mov_b32 s99, 0x20000")

def epoch_get(A):
    A(f"""
    s_or_b32 s96, s28, s2
    s_cbranch_scc1 EP_skip
    {"" if 'early' in DBG else "s_memrealtime s[94:95]"}
    v_mov_b32 v252, 0
    s_waitcnt lgkmcnt(0)
    """)
    dbg_srd(A)
    A(f"""
    s_or_b32 s94, s94, 1
    v_mov_b32 v{EP}, s94
    v_mov_b32 v{EP+1}, s95
    s_nop 0
    buffer_store_dwordx2 v[{EP}:{EP+1}], v252, s[96:99], 0 offen sc1
    EP_skip:
    """)

def epoch_share(A):
    A(f"""
    s_cmp_lg_u32 s28, 4
    s_cbranch_scc1 EP_skip2
    """)
    dbg_srd(A)
    A(f"""
    v_mov_b32 v252, 0
    s_mov_b32 s94, 0
    EP_spin:
    buffer_load_dwordx2 v[{EP}:{EP+1}], v252, s[96:99], 0 offen sc1
    s_add_u32 s94, s94, 1
    s_waitcnt vmcnt(0)
    v_readfirstlane_b32 s95, v{EP}
    s_cmp_ge_u32 s94, {SPIN_LIMIT}
    s_cbranch_scc1 EP_got
    s_cmp_eq_u32 s95, 0
    s_cbranch_scc1 EP_spin
    EP_got:
    v_mov_b32 v252, {EP_LDS}
    s_nop 0
    ds_write_b64 v252, v[{EP}:{EP+1}]
    s_waitcnt lgkmcnt(0)
    EP_skip2:
    """)

def epoch_read(A):
    A(f"v_mov_b32 v252, {EP_LDS}\ns_nop 0\nds_read_b64 v[{EP}:{EP+1}], v252\ns_waitcnt lgkmcnt(0)")
    A(f"v_readfirstlane_b32 s0, v{EP}\nv_readfirstlane_b32 s1, v{EP+1}")

def flag_store(A, vaddr):
    A(f"buffer_store_dwordx2 v[{EP}:{EP+1}], v{vaddr}, s[96:99], 0 offen sc1")

def poll(A, vaddr, vtmp, tag):
    A(f"""
    s_mov_b32 s94, 0
    PL_{tag}:
    buffer_load_dwordx2 v[{vtmp}:{vtmp+1}], v{vaddr}, s[96:99], 0 offen sc1
    s_waitcnt vmcnt(0)
    v_cmp_ne_u64 vcc, v[{vtmp}:{vtmp+1}], v[{EP}:{EP+1}]
    s_add_u32 s94, s94, 1
    s_nop 0
    s_cmp_eq_u64 vcc, 0
    s_cbranch_scc1 PD_{tag}
    s_sleep 1
    s_cmp_lt_u32 s94, {SPIN_LIMIT}
    s_cbranch_scc1 PL_{tag}
    PD_{tag}:
    """)

def setup2(A):
    A(f"""
    v_lshrrev_b32 v5, 5, v1
    v_and_b32 v2, 31, v1
    v_lshlrev_b32 v3, 2, v5
    v_sub_u32 v{QD}, v2, v3
    v_mov_b32 v{NINF}, 0xff800000
    v_mov_b32 v{NEGM}, 0
    v_lshlrev_b32 v{LK}, 4, v1
    """)
    for r in range(16):
        kc = (r & 3) + 8 * (r >> 2)
        A(f"v_cmp_le_i32 s[{MS+2*r}:{MS+2*r+1}], {kc}, v{QD}")
    A("v_mov_b32 v2, 0xffff\nv_mov_b32 v3, 0xffff0000\nv_mov_b32 v4, 0")
    for j in range(8):
        A(f"v_cndmask_b32 v6, v4, v2, s[{MS+4*j}:{MS+4*j+1}]")
        A(f"v_cndmask_b32 v7, v4, v3, s[{MS+4*j+2}:{MS+4*j+3}]")
        A(f"v_or_b32 v{PM+j}, v6, v7")
    A(f"""
    v_and_b32 v3, 3, v1
    v_bfe_u32 v4, v1, 2, 2
    v_lshrrev_b32 v7, 1, v3
    v_lshlrev_b32 v7, 6, v7
    v_and_b32 v6, 1, v3
    v_lshl_add_u32 v7, v6, 3, v7
    v_min_u32 v6, 1, v3
    v_lshlrev_b32 v6, 3, v6
    v_add_u32 v6, 128, v6
    v_bfe_u32 v2, v1, 4, 1
    v_cmp_eq_u32 vcc, 0, v2
    v_mul_u32_u24 v2, 20480, v2
    v_and_b32 v3, 15, v1
    v_cndmask_b32 v7, v6, v7, vcc
    v_lshl_add_u32 v7, v4, 4, v7
    v_mul_u32_u24 v6, 192, v5
    v_add_u32 v{LV}, v7, v6
    v_lshl_add_u32 v{OL}, v3, 4, v2
    s_mov_b32 s84, {f32bits(2.0**-64)}
    s_mov_b32 s85, {f32bits(2.0**64)}
    s_mov_b32 s92, 0
    s_mov_b32 s93, 0
    """)

def build_CA(A):
    for r in range(16):
        kc = (r & 3) + 8 * (r >> 2)
        A(f"v_subrev_u32 v{T0}, {kc}, v{QD}\nv_and_b32 v{T0}, 17, v{T0}\nv_cmp_eq_u32 s[88:89], 0, v{T0}\ns_nop 1\nv_cndmask_b32 v{CA+r}, v{NINF}, v{NEGM}, s[88:89]")

def oaddr(A, s_head, s_rt16):
    A(f"""
    s_lshr_b32 s88, s{s_head}, 3
    s_mul_i32 s88, s88, 5120
    s_mul_i32 s89, s{s_rt16}, 20480
    s_add_u32 s88, s88, s89
    s_and_b32 s89, s{s_head}, 7
    s_lshl_b32 s90, s89, 9
    s_add_u32 s90, s90, s88
    s_lshl_b32 s89, s89, 7
    s_add_u32 s89, s89, s88
    s_add_u32 s89, s89, 4096
    v_lshrrev_b32 v2, 5, v1
    v_lshl_add_u32 v2, v2, 8, v{OL}
    v_add_u32 v{OA}, s90, v2
    v_and_b32 v2, 15, v1
    v_lshlrev_b32 v2, 3, v2
    v_sub_u32 v3, v{OL}, v2
    v_add_u32 v3, s89, v3
    v_cmp_gt_u32 vcc, 32, v1
    v_mov_b32 v2, {OOB}
    s_nop 0
    v_cndmask_b32 v{OA+1}, v2, v3, vcc
    """)

def qk(A, i, slot, dst, C):
    c = vr(C, 16) if i == 0 else vr(dst, 16)
    A(f"v_mfma_f32_32x32x16_bf16 {vr(dst,16)}, {vr(KF+slot*8+4*i,4)}, {vr(QF+4*i,4)}, {c}")
def pv(A, i, slot, Preg, first=False):
    c = "0" if first else vr(O, 16)
    A(f"v_mfma_f32_32x32x16_bf16 {vr(O,16)}, {vr(VF+slot*8+4*i,4)}, {vr(Preg+4*i,4)}, {c}")
def cvt(A, S, Pd, j):
    A(f"v_cvt_pk_bf16_f32 v{Pd+j}, v{S+2*j}, v{S+2*j+1}")
def rdK(A, b, slot):
    for i in range(2):
        A.lds(f"ds_read_b128 {vr(KF + slot*8 + 4*i, 4)}, v{AK} offset:{b*BLK + i*1024}", ('k', b))
def rdV(A, b, slot):
    for i in range(4):
        A.lds(f"ds_read_b64_tr_b16 {vr(VF + slot*8 + 2*i, 2)}, v{AV} offset:{b*BLK + i*384}", ('v', b))
def rdQ(A):
    for i in range(2):
        A.lds(f"ds_read_b128 {vr(QF + 4*i, 4)}, v{AQ} offset:{i*1024}", ('q', 0))
def maskQ(A):
    A(f"v_mov_b32 v{QF+4}, 0\nv_mov_b32 v{QF+5}, 0\ns_mov_b32 s88, -1\ns_mov_b32 s89, 0\nv_mov_b32 v{T0}, 0")
    A(f"v_cndmask_b32 v{QF+6}, v{T0}, v{QF+6}, s[88:89]\nv_cndmask_b32 v{QF+7}, v{T0}, v{QF+7}, s[88:89]\ns_nop 0")

def finish(A, osoff, tag, flagreg):
    A(f"s_nop 7\ns_nop 3\nv_rcp_f32 v{T0}, v{O+12}")
    A(f"v_add_f32 v{T1}, |v{O}|, |v{O+1}|")
    for r in range(2, 12):
        A(f"v_add_f32 v{T1}, v{T1}, |v{O+r}|")
    A(f"""
    v_cmp_le_f32 s[88:89], s84, v{O+12}
    v_cmp_ge_f32 s[90:91], s85, v{O+12}
    v_cmp_gt_f32 vcc, -v{NINF}, v{T1}
    """)
    for r in range(12):
        A(f"v_mul_f32 v{O+r}, v{O+r}, v{T0}")
    A(f"""
    s_and_b64 s[88:89], s[88:89], s[90:91]
    s_and_b64 s[88:89], s[88:89], vcc
    s_or_b32 s90, s{flagreg}, 0
    s_cbranch_scc1 P2_{tag}_ok
    s_cmp_eq_u64 s[88:89], exec
    s_cbranch_scc0 P2_{tag}_fb
    P2_{tag}_ok:
    """)
    for j in range(6):
        A(f"v_cvt_pk_bf16_f32 v{O+j}, v{O+2*j}, v{O+2*j+1}")
    A(f"s_mov_b32 s88, {osoff}")
    A(f"v_permlane32_swap_b32 v{O}, v{O+2}\nv_permlane32_swap_b32 v{O+1}, v{O+3}")
    A(f"buffer_store_dwordx2 {vr(O+4,2)}, v{OA+1}, s[24:27], s88 offen sc1")
    A(f"buffer_store_dwordx4 {vr(O,4)}, v{OA}, s[24:27], s88 offen sc1")

def maxblock(A, S, first):
    if first: A(f"v_max_f32 v{T1}, v{S}, v{S+1}")
    else: A(f"v_max3_f32 v{T1}, v{T1}, v{S}, v{S+1}")
    for r in range(2, 16, 2): A(f"v_max3_f32 v{T1}, v{T1}, v{S+r}, v{S+r+1}")
def rowmax_finish(A, back, flagreg, rebuild):
    A(f"""
    v_mov_b32 v{T0}, v{T1}
    s_nop 1
    v_permlane32_swap_b32 v{T1}, v{T0}
    s_nop 1
    v_max_f32 v{T1}, v{T1}, v{T0}
    v_sub_f32 v{NEGM}, 0, v{T1}
    s_mov_b32 s{flagreg}, 2
    """)
    rebuild()
    A(f"s_waitcnt lgkmcnt(0)\ns_branch {back}")

def dma_patterns(A):
    A(f"""
    v_and_b32 v3, 15, v1
    v_bfe_u32 v4, v1, 4, 1
    v_lshlrev_b32 v6, 3, v4
    v_mul_u32_u24 v4, 768, v4
    v_lshl_add_u32 v5, v3, 4, v4
    v_lshl_add_u32 v6, v3, 4, v6
    v_add_u32 v6, 504, v6
    v_cmp_gt_u32 vcc, 32, v1
    v_add_u32 v7, 256, v5
    v_add_u32 v8, {2*QK_TILE}, v5
    v_add_u32 v9, {2*QK_TILE}, v7
    v_add_u32 v10, {2*QK_TILE}, v6
    v_cndmask_b32 v12, v7, v5, vcc
    v_cndmask_b32 v13, v8, v6, vcc
    v_cndmask_b32 v14, v10, v9, vcc
    s_mov_b32 s12, 0x15555556
    """)
    for ty in range(3):
        A(f"""
        v_add_u32 v3, {ty*64}, v1
        v_mul_hi_u32 v4, v3, s12
        v_mul_u32_u24 v5, 12, v4
        v_sub_u32 v5, v3, v5
        v_lshrrev_b32 v6, 2, v5
        v_and_b32 v5, 3, v5
        v_lshl_add_u32 v5, v4, 2, v5
        v_lshrrev_b32 v7, 5, v5
        v_mul_u32_u24 v7, 1280, v7
        v_lshrrev_b32 v9, 1, v6
        v_mul_u32_u24 v9, 760, v9
        v_sub_u32 v9, 768, v9
        v_bfe_u32 v8, v5, 4, 1
        v_mad_u32_u24 v7, v8, v9, v7
        v_and_b32 v5, 15, v5
        v_lshl_add_u32 v7, v5, 4, v7
        v_lshl_add_u32 v{15+ty}, v6, 8, v7
        """)

P3COORD = """s_and_b32 s12, s2, 3
    s_lshl_b32 s9, s12, 2
    s_bfe_u32 s12, s2, 0x20003
    s_add_u32 s9, s9, s12
    s_lshr_b32 s10, s2, 5
    s_lshr_b32 s11, s10, 1"""
P3COORD = P3COORD.replace("s_lshr_b32 s11, s10, 1", "s_mov_b32 s11, 2")
def cb_init(A):
    A("s_cmp_eq_u32 s4, 0\ns_cselect_b64 s[88:89], exec, 0\ns_nop 1")
    for r in range(16): A(f"v_cndmask_b32 v{CB+r}, v{NEGM}, v{NINF}, s[88:89]")
def wo_patterns(A, quads):
    A("s_mov_b32 s12, 0x1999999a")
    for i in range(5):
        A(f"""
        v_add_u32 v8, {i*64}, v1
        v_mul_hi_u32 v9, v8, s12
        v_mul_u32_u24 v10, 10, v9
        v_sub_u32 v10, v8, v10
        v_bfe_u32 v11, v9, 2, 2
        v_lshlrev_b32 v11, 3, v11
        v_bfe_u32 v12, v9, 4, 1
        v_lshl_add_u32 v11, v12, 2, v11
        v_and_b32 v12, 3, v9
        v_add_u32 v11, v11, v12
        v_lshrrev_b32 v12, 4, v11
        v_lshl_add_u32 v12, v12, 2, v11
        v_mul_u32_u24 v12, 1280, v12
        v_lshl_add_u32 v{WA+i}, v10, 4, v12
        """)
        if quads: A(f"""
        v_lshrrev_b32 v12, 2, v11
        v_lshl_add_u32 v12, v12, 4, v11
        v_add_u32 v12, 16, v12
        v_mul_u32_u24 v12, 1280, v12
        v_lshl_add_u32 v{WA+5+i}, v10, 4, v12
        """)
        else: A(f"v_mov_b32 v{WA+5+i}, v{WA+i}")
ROT = 4
HEADCODE = "s_and_b32 s3, s2, 7\ns_lshl_b32 s3, s3, 2\ns_bfe_u32 s4, s2, 0x20003\ns_or_b32 s3, s3, s4\ns_lshr_b32 s4, s2, 5"
ROTCODE = {
 10: """s_mul_i32 s12, s11, 5
    s_lshr_b32 s12, s12, 1
    s_mul_i32 s13, s10, 5
    s_lshr_b32 s13, s13, 2
    s_add_u32 s12, s12, s13
    s_cmp_ge_u32 s12, 10
    s_cselect_b32 s13, 10, 0
    s_sub_u32 s12, s12, s13""",
 1: "s_mov_b32 s12, 0",
 5: "s_add_u32 s12, s10, s7\ns_mul_i32 s13, s12, 52\ns_lshr_b32 s13, s13, 8\ns_mul_i32 s13, s13, 5\ns_sub_u32 s12, s12, s13\ns_lshl_b32 s12, s12, 1",
 6: "s_add_u32 s12, s6, s7\ns_mul_i32 s13, s12, 52\ns_lshr_b32 s13, s13, 8\ns_mul_i32 s13, s13, 5\ns_sub_u32 s12, s12, s13\ns_lshl_b32 s12, s12, 1",
 2: "s_add_u32 s12, s10, s11\ns_and_b32 s12, s12, 1\ns_mul_i32 s12, s12, 5",
 4: "s_add_u32 s12, s10, s11\ns_and_b32 s12, s12, 3\ns_mul_i32 s12, s12, 5\ns_lshr_b32 s12, s12, 1",
 3: "s_add_u32 s12, s10, s11\ns_mul_i32 s13, s12, 43\ns_lshr_b32 s13, s13, 7\ns_mul_i32 s13, s13, 3\ns_sub_u32 s12, s12, s13\ns_mul_i32 s12, s12, 7\ns_lshr_b32 s12, s12, 1",
}
def gen(A):
    A.begin(MAIN)
    if 'lst' in DBG: A("s_memtime s[98:99]")
    prologue(A, "K_end")
    if 'lst' not in DBG: stamp(A, 0)
    A("s_cmp_lt_u32 s28, 4\ns_cbranch_scc1 P1_consumer")
    A(f"""
    s_sub_u32 s29, s28, 4
    v_lshrrev_b32 v2, 5, v1
    v_and_b32 v3, 31, v1
    v_mul_u32_u24 v2, 15360, v2
    v_mul_u32_u24 v6, 26, v3
    v_lshrrev_b32 v6, 8, v6
    s_cmp_eq_u32 s5, 0
    s_cselect_b32 s15, 1120, 0
    s_cselect_b32 s14, 160, 480
    v_mul_lo_u32 v6, v6, s15
    v_lshl_add_u32 v2, v3, 4, v2
    v_add_u32 v2, v2, v6
    v_mov_b32 v4, {OOB}
    v_cmp_gt_u32 vcc, 30, v3
    v_lshrrev_b32 v5, 3, v1
    v_mul_u32_u24 v5, 1280, v5
    v_cndmask_b32 v8, v4, v2, vcc
    v_and_b32 v3, 7, v1
    v_lshrrev_b32 v4, 4, v1
    v_xor_b32 v3, v3, v4
    v_lshl_add_u32 v9, v3, 4, v5
    v_xor_b32 v3, 4, v3
    v_lshl_add_u32 v10, v3, 4, v5
    {ROTCODE[ROT]}
    s_mul_i32 s13, s29, {8*3840}
    s_mul_i32 s14, s7, s14
    s_add_u32 s13, s13, s14
    s_lshl_b32 s14, s6, 7
    s_lshl_b32 s15, s29, 5
    s_add_u32 s14, s14, s15
    s_mul_i32 s14, s14, 1280
    s_mul_i32 s30, s29, {4*PIECE}
    s_lshl_b32 s31, s29, 12
    s_add_u32 s31, s31, {XOFF}
    s_mul_i32 s26, s12, 245760
    s_add_u32 s26, s26, s13
    s_lshl_b32 s27, s12, 7
    s_add_u32 s27, s27, s14
    s_mov_b32 s25, 0
    s_mov_b32 s51, 0
    s_cmp_eq_u32 s5, 0
    {"s_memtime s[96:97]" if 'lst' in DBG else ""}
    s_waitcnt lgkmcnt(0)
    {"v_writelane_b32 v255, s96, 14" if 'lst' in DBG else ""}
    s_cselect_b32 s16, s32, s38
    s_cselect_b32 s17, s33, s39
    s_cselect_b32 s20, s34, s40
    s_cselect_b32 s21, s35, s41
    s_and_b32 s17, s17, 0xffff
    s_mov_b32 s18, 2621440
    s_mov_b32 s19, 0x20000
    s_and_b32 s21, s21, 0xffff
    s_mov_b32 s22, 2457600
    s_mov_b32 s23, 0x20000
    """.replace("s_cselect_b32 s14, 160, 480", "s_movk_i32 s14, 480\ns_cselect_b32 s14, 160, s14"))
    def wpiece(sub, r):
        A(f"s_add_u32 m0, s30, {(sub*16 + r)*PIECE}\ns_add_u32 s50, s26, {(32*sub + r)*3840}\nbuffer_load_dwordx4 v8, s[20:23], s50 offen lds")
    def xpiece(j):
        A(f"s_add_u32 m0, s31, {j*1024}\ns_add_u32 s50, s27, {j*8*1280}\nbuffer_load_dwordx4 v{9 + (j & 1)}, s[16:19], s50 offen lds")
    def F():
        xpiece(0); wpiece(0, 0); xpiece(1); wpiece(0, 1); xpiece(2); xpiece(3)
    def S():
        wpiece(0, 2); wpiece(0, 3)
        for r in range(4): wpiece(1, r)
    for d in DBG:
        if d.startswith('adel'): A(f"s_cmp_lg_u32 s5, 0\ns_cbranch_scc1 P1_lf\ns_sleep {d[4:]}")
    if 'lst' in DBG: stamp(A, 10); A("v_writelane_b32 v255, s98, 0")
    A("s_branch P1_lf")
    A("P1_lloop:")
    S()
    A(f"""
    s_add_u32 s12, s12, 1
    s_cmp_eq_u32 s12, 10
    s_cselect_b32 s12, 0, s12
    s_mul_i32 s26, s12, 245760
    s_add_u32 s26, s26, s13
    s_lshl_b32 s27, s12, 7
    s_add_u32 s27, s27, s14
    s_add_u32 s25, s25, 1
    s_cmp_eq_u32 s25, 3
    s_cselect_b32 s25, 0, s25
    s_mov_b32 s50, {SLOT}
    s_cselect_b32 s50, {-2*SLOT & 0xffffffff}, s50
    s_add_u32 s30, s30, s50
    s_add_u32 s31, s31, s50
    s_add_u32 s51, s51, 1
    s_cmp_eq_u32 s51, 10
    s_cbranch_scc1 P1_llast
    P1_lf:
    """)
    F()
    A("""
    s_cmp_eq_u32 s51, 0
    s_cbranch_scc1 P1_lloop
    """)
    if 'lst' in DBG and STAMP: A("s_cmp_lg_u32 s51, 1\ns_cbranch_scc1 LST1"); stamp(A, 11); A("LST1:")
    A("""
    s_waitcnt vmcnt(6)
    s_barrier
    LSTG
    s_branch P1_lloop
    P1_llast:
    s_waitcnt vmcnt(0)
    s_barrier
    """)
    stamp(A, 1)
    epoch_share(A)
    A(f"""
    s_bitcmp0_b32 s2, 2
    s_cselect_b32 s16, s36, s42
    s_cselect_b32 s17, s37, s43
    s_and_b32 s17, s17, 0xffff
    s_mov_b32 s18, 819200
    s_lshr_b32 s12, s2, 3
    s_lshl_b32 s12, s12, 2
    s_add_u32 s12, s12, s29
    s_mul_i32 s12, s12, 6400
    v_lshlrev_b32 v2, 7, v1
    v_mov_b32 v3, {OOB}
    v_cmp_gt_u32 vcc, 50, v1
    s_nop 1
    v_cndmask_b32 v2, v3, v2, vcc
    buffer_load_dword v254, v2, s[16:19], s12 offen
    buffer_load_dword v254, v2, s[16:19], s12 offen offset:64
    """)
    setup2(A)
    wo_patterns(A, False)
    dma_patterns(A)
    flag_srd(A)
    A(f"""
    {HEADCODE}
    """)
    build_CA(A)
    cb_init(A)
    A(f"""
    s_lshl_b32 s12, s4, 4
    s_add_u32 s12, s12, 128
    v_add_u32 v2, s12, v1
    v_lshlrev_b32 v2, 9, v2
    s_lshl_b32 s12, s3, 3
    s_and_b32 s13, s3, 24
    s_lshl_b32 s13, s13, 3
    s_add_u32 s12, s12, s13
    s_add_u32 s12, s12, {MB2}
    v_add_u32 v2, s12, v2
    v_mov_b32 v3, {OOB}
    v_cmp_gt_u32 vcc, 16, v1
    v_mov_b32 v58, v3
    v_mov_b32 v59, v3
    v_cndmask_b32 v19, v3, v2, vcc
    """)
    A(f"""
    v_cmp_lt_u32 vcc, 11, v1
    v_mov_b32 v2, 0
    v_mov_b32 v3, 1
    v_cndmask_b32 v2, v2, v3, vcc
    v_mul_u32_u24 v3, 12, v2
    v_sub_u32 v3, v1, v3
    s_mul_i32 s12, s7, 12
    v_add_u32 v3, s12, v3
    v_lshrrev_b32 v4, 5, v3
    v_and_b32 v3, 31, v3
    s_lshr_b32 s12, s6, 1
    v_add_u32 v5, s12, v2
    v_lshl_add_u32 v3, v5, 5, v3
    s_and_b32 s12, s6, 1
    s_add_u32 s12, s12, 2
    v_lshlrev_b32 v2, 1, v2
    v_sub_u32 v2, s12, v2
    v_lshl_add_u32 v2, v2, 4, v4
    v_lshlrev_b32 v2, 3, v2
    v_lshl_add_u32 v2, v3, 9, v2
    v_cmp_gt_u32 vcc, 8, v5
    v_cmp_gt_u32 s[88:89], 24, v1
    v_mov_b32 v3, {OOB}
    s_and_b64 vcc, vcc, s[88:89]
    s_cmp_lg_u32 s28, 4
    s_cselect_b64 vcc, 0, vcc
    s_nop 0
    v_cndmask_b32 v18, v3, v2, vcc
    """)
    A(f"""
    s_lshl_b32 s12, s4, 5
    s_add_u32 s12, s12, s3
    s_lshl_b32 s12, s12, 9
    s_lshl_b32 s13, s29, 7
    s_add_u32 s12, s12, s13
    s_add_u32 s40, s12, {FLAG_BASE + MB1}
    s_lshl_b32 s13, s29, 3
    s_mul_i32 s14, s3, {HS}
    s_lshl_b32 s15, s4, 4
    s_add_u32 s14, s14, s15
    s_add_u32 s14, s14, s13
    s_sub_u32 s14, s14, 16
    s_mul_i32 s26, s14, {QK_TILE}
    s_mul_i32 s27, s14, {V_TILE}
    s_add_u32 s27, s27, {V_OFF}
    s_add_u32 s15, s15, s13
    s_cmp_lt_u32 s15, 16
    s_cselect_b32 s26, 0x70000000, s26
    s_cselect_b32 s27, 0x70000000, s27
    s_cselect_b32 s31, 7, 0
    s_cmp_ge_u32 s29, 2
    s_cselect_b32 s30, 7, 6
    s_mul_i32 s25, s29, {4*BLK}
    """)
    A(f"""
    v_lshrrev_b32 v52, 2, v1
    v_mul_u32_u24 v52, 192, v52
    v_and_b32 v53, 3, v1
    v_lshl_add_u32 v52, v53, 4, v52
    s_add_u32 s12, s25, {L_BV + 136}
    v_add_u32 v53, s12, v52
    s_mul_i32 s12, s29, {HD}
    s_add_u32 s12, s12, {L_A + 9*BLK + 136}
    v_add_u32 v52, s12, v52
    v_mov_b32 v54, 0x3f803f80
    v_mov_b32 v55, 0x3f803f80
    s_mov_b64 s[46:47], s[36:37]
    s_cmp_eq_u32 s6, 0
    s_cselect_b32 s12, 8, {8 if 'nohalo' in DBG else 0}
    s_or_b32 s31, s31, s12
    s_cmp_eq_u32 s5, 0
    s_cselect_b32 s12, 8, 0
    s_or_b32 s30, s30, s12
    s_add_u32 s12, s48, {QKV_BYTES}
    s_addc_u32 s13, s49, 0
    """)
    srd(A, 20, 12, 13, QKV_BYTES)
    srd(A, 16, 48, 49, QKV_BYTES)
    A("s_barrier")
    epoch_read(A)
    stamp(A, 2)
    A("s_cmp_eq_u32 s5, 0\ns_cbranch_scc1 L_nf")
    flag_store(A, 18)
    A("L_nf:")
    A(f"""
    s_mov_b32 s11, 0
    PL_b:
    s_load_dwordx8 s[32:39], s[48:49], s40 glc
    PL_b2:
    s_add_u32 s11, s11, 1
    s_cmp_ge_u32 s11, {SPIN_LIMIT}
    s_cselect_b32 s12, 15, s31
    s_waitcnt lgkmcnt(0)
    s_cmp_eq_u64 s[32:33], s[0:1]
    s_cselect_b32 s13, 1, 0
    s_or_b32 s12, s12, s13
    s_cmp_eq_u64 s[34:35], s[0:1]
    s_cselect_b32 s13, 2, 0
    s_or_b32 s12, s12, s13
    s_cmp_eq_u64 s[36:37], s[0:1]
    s_cselect_b32 s13, 4, 0
    s_or_b32 s12, s12, s13
    s_cmp_eq_u64 s[38:39], s[0:1]
    s_cselect_b32 s13, 8, 0
    s_or_b32 s12, s12, s13
    s_and_b32 s12, s12, s30
    s_bitcmp1_b32 s12, 3
    s_cbranch_scc0 PB_h
    s_mov_b64 s[90:91], exec
    s_lshl_b32 s15, s7, 2
    s_add_u32 s15, s15, s29
    s_mul_i32 s15, s15, {HS}
    s_lshl_b32 s13, s6, 3
    s_add_u32 s15, s15, s13
    s_sub_u32 s15, s15, 2
    s_mul_i32 s14, s29, {HD}
    """)
    for (areg, tb, off, lds) in ((12, QK_TILE, K_OFF, 0), (15, V_TILE, V_OFF, 9 * BLK)):
        A(f"""
        s_mul_i32 s13, s15, {tb}
        s_add_u32 s13, s13, {off}
        s_cmp_eq_u32 s6, {'s6' if 'nohalo' in DBG else 0}
        s_cselect_b32 s13, 0x70000000, s13
        s_add_u32 m0, s14, {L_A + lds}
        s_nop 0
        buffer_load_dwordx4 v{areg}, s[16:19], s13 offen sc1 lds
        s_add_u32 m0, s14, {L_A + lds + 1024}
        s_mov_b32 exec_hi, 0
        buffer_load_dwordx4 v{areg+1}, s[16:19], s13 offen sc1 lds
        s_mov_b64 exec, s[90:91]
        """)
    A("PB_h:")
    for m, (areg, sreg, soff, tb, lds) in enumerate(((12, 26, 0, QK_TILE, L_BQ - 8 * BLK), (12, 26, K_OFF, QK_TILE, L_BK), (15, 27, 0, V_TILE, L_BV))):
        A(f"s_bitcmp1_b32 s12, {m}\ns_cbranch_scc0 PB_{m}")
        for u in range(2):
            A(f"s_add_u32 s13, s{sreg}, {soff + u*4*tb}")
            for ty in range(3):
                A(f"s_add_u32 m0, s25, {lds + u*3072 + ty*1024}\ns_nop 0\nbuffer_load_dwordx4 v{areg+ty}, s[20:23], s13 offen sc1 lds")
        A(f"PB_{m}:")
    A(f"""
    s_andn2_b32 s30, s30, s12
    s_bitcmp1_b32 s12, 3
    s_cbranch_scc0 L_nh
    s_mov_b32 s8, s25
    s_mov_b32 s9, s26
    s_mov_b32 s10, s27
    s_mov_b32 s15, s29
    s_mov_b32 s16, 0
    s_add_u32 s12, s48, {O_BASE}
    s_addc_u32 s13, s49, 0
    s_waitcnt vmcnt(0)
    ds_write_b64 v52, v[54:55]
    """)
    stamp(A, 3)
    A(f"""
    s_branch P2_a_enter
    L_Aret:
    s_mov_b32 s25, s8
    s_mov_b32 s26, s9
    s_mov_b32 s27, s10
    """)
    stamp(A, 4)
    A(f"""
    s_branch PL_b2
    L_nh:
    s_cmp_lg_u32 s30, 0
    s_cbranch_scc0 PD_b
    {f"s_sleep {PSLEEP}" if PSLEEP else ""}
    s_branch PL_b
    PD_b:
    """)
    stamp(A, 5)
    A("s_branch P2_pre")

    A("P1_consumer:")
    ACC = 8; WR = 128; XF = 168; AW0 = 184; AX0 = 185; AX1 = 186; AW = 187; AXa = 188; AXb = 189
    def acc(grp, t, rt): return ACC + ((grp * 5 + t) * 2 + rt) * 4
    if 'pf' in DBG:
        A(f"""
        s_cmp_eq_u32 s28, 1
        s_cbranch_scc0 PF_w
        s_lshl_b32 s12, s6, 2
        s_and_b32 s13, s7, 3
        s_add_u32 s12, s12, s13
        s_mul_i32 s12, s12, 40960
        v_lshlrev_b32 v2, 7, v1
        v_add_u32 v2, s12, v2
        s_movk_i32 s14, 8192
        s_cmp_eq_u32 s5, 0
        s_waitcnt lgkmcnt(0)
        s_cselect_b32 s12, s32, s38
        s_cselect_b32 s13, s33, s39
        s_branch PF_go
        PF_w:
        s_cmp_eq_u32 s28, 2
        s_cbranch_scc0 PF_end
        v_min_u32 v3, 59, v1
        v_mul_u32_u24 v4, 0x1112, v3
        v_lshrrev_b32 v4, 16, v4
        v_mul_u32_u24 v5, 15, v4
        v_sub_u32 v5, v3, v5
        v_mul_u32_u24 v6, 52, v5
        v_lshrrev_b32 v6, 8, v6
        s_cmp_eq_u32 s5, 0
        s_cselect_b32 s12, 640, 0
        s_movk_i32 s13, 1920
        s_cselect_b32 s13, 640, s13
        v_mul_lo_u32 v6, v6, s12
        v_lshl_add_u32 v2, v5, 7, v6
        v_mul_u32_u24 v4, 3840, v4
        v_add_u32 v2, v2, v4
        s_lshr_b32 s12, s7, 2
        s_mul_i32 s13, s13, s12
        s_lshr_b32 s12, s2, 3
        s_mul_i32 s12, s12, {20*3840}
        s_add_u32 s12, s12, s13
        v_add_u32 v2, s12, v2
        s_movk_i32 s14, 15360
        s_cmp_eq_u32 s5, 0
        s_waitcnt lgkmcnt(0)
        s_cselect_b32 s12, s34, s40
        s_cselect_b32 s13, s35, s41
        PF_go:
        """)
        for j in range(5):
            A(f"global_load_dword v254, v2, s[12:13]")
            if j < 4: A("v_add_u32 v2, s14, v2")
        A("PF_end:")
    epoch_get(A)
    A(f"""
    v_lshrrev_b32 v2, 2, v1
    v_mul_u32_u24 v2, {PIECE}, v2
    v_and_b32 v3, 3, v1
    v_mul_u32_u24 v3, 40, v3
    v_add_u32 v{AW0}, v2, v3
    v_and_b32 v2, 15, v1
    v_lshrrev_b32 v3, 4, v1
    v_lshrrev_b32 v4, 1, v2
    v_xor_b32 v3, v3, v4
    s_lshl_b32 s12, s28, 12
    s_add_u32 s12, s12, {XOFF}
    v_lshlrev_b32 v2, 7, v2
    v_add_u32 v2, s12, v2
    v_lshl_add_u32 v{AX0}, v3, 4, v2
    v_xor_b32 v3, 4, v3
    v_lshl_add_u32 v{AX1}, v3, 4, v2
    v_mov_b32 v{AW}, v{AW0}
    v_mov_b32 v{AXa}, v{AX0}
    v_mov_b32 v{AXb}, v{AX1}
    """)
    for r in range(ACC, XF + 16, 2):
        A(f"v_pk_mov_b32 v[{r}:{r+1}], 0, 0")
    setup2(A)
    build_CA(A)
    A(f"""
    s_waitcnt lgkmcnt(0)
    s_mul_i32 s12, s5, {QKV_BYTES}
    s_add_u32 s12, s48, s12
    s_addc_u32 s13, s49, 0
    """)
    srd(A, 16, 12, 13, QKV_BYTES)
    flag_srd(A)
    A(f"""
    v_and_b32 v2, 15, v1
    v_lshrrev_b32 v3, 4, v1
    s_lshl_b32 s12, s6, 3
    s_lshl_b32 s13, s28, 1
    s_add_u32 s12, s12, s13
    v_mul_u32_u24 v252, {HD}, v3
    v_mul_u32_u24 v3, {HS}, v3
    v_add_u32 v3, s12, v3
    v_mul_u32_u24 v4, {QK_TILE}, v3
    v_lshl_add_u32 v4, v2, 4, v4
    v_mov_b32 v7, {f32bits(SCALE_L2E)}
    v_mov_b32 v6, v7
    s_mul_i32 s13, s7, 12
    s_mul_i32 s12, s28, {BLK}
    s_add_u32 s12, s12, {L_A}
    v_add_u32 v252, s12, v252
    v_lshrrev_b32 v3, 2, v2
    v_mul_u32_u24 v3, 192, v3
    v_and_b32 v253, 3, v2
    v_lshl_add_u32 v3, v253, 4, v3
    v_add_u32 v253, v252, v3
    v_lshl_add_u32 v252, v2, 4, v252
    v_mov_b32 v2, 0
    v_mov_b32 v3, 0
    """)
    if 'tlb' in DBG:
        A(f"""
        s_cmp_lg_u32 s28, 1
        s_cbranch_scc1 P1_nt
        v_mul_u32_u24 v246, {0x80000 if 'tlb2' not in DBG else 0x68000}, v1
        v_mul_u32_u24 v247, 81920, v1
        global_load_dword v248, v246, s[48:49]
        global_load_dword v249, v247, s[44:45]
        P1_nt:
        """)
    A("s_mov_b32 s25, 0\ns_mov_b32 s51, 0")
    stamp(A, 1)
    units = [(sub, grp, t) for sub in range(2) for grp in range(3) for t in range(5)]
    def rd(u, hf):
        sub, grp, t = units[u]
        b = WR + (u % 10) * 4
        off = sub * 16 * PIECE + hf * 512 + grp * 160 + 8 * t
        A.lds(f"ds_read_b64_tr_b16 {vr(b + 2*hf, 2)}, v{AW} offset:{off}", ('w', u))
    def rdx(sub, rt):
        A.lds(f"ds_read_b128 {vr(XF + (sub*2+rt)*4, 4)}, v{AXa if sub == 0 else AXb} offset:{rt*2048}", ('x', sub))
    def mm(u, rt):
        sub, grp, t = units[u]
        b = WR + (u % 10) * 4
        a = acc(grp, t, rt)
        A(f"v_mfma_f32_16x16x32_bf16 {vr(a,4)}, {vr(b,4)}, {vr(XF + (sub*2+rt)*4, 4)}, {vr(a,4)}")
    L = P1_LOOK
    def body(emit):
        save = A.out
        if not emit: A.out = []
        for step in range(30):
            u = (step - L) % 30
            g_ = 1 if step >= L else 0
            tags = [('x', units[u][0]) if g_ else ('px', units[u][0]), ('w', u) if g_ else ('pw', u)]
            if WB and step % WB == 0:
                for d in range(1, WB):
                    if step + d < 30:
                        u2 = (step + d - L) % 30; g2 = step + d >= L
                        if not (g2 and u2 >= step): tags += [('x', units[u2][0]) if g2 else ('px', units[u2][0]), ('w', u2) if g2 else ('pw', u2)]
            A.lds_wait(*tags)
            mm(u, 0)
            if step == 0: rdx(0, 0)
            if step == L + 2: rdx(1, 0)
            rd(step, 0)
            if step == 26:
                A(f"s_add_u32 s25, s25, {SLOT}\ns_cmp_eq_u32 s25, {3*SLOT}\ns_cselect_b32 s25, 0, s25")
            if step == 27:
                A(f"v_add_u32 v{AXa}, s25, v{AX0}")
            if step == 28:
                A(f"v_add_u32 v{AXb}, s25, v{AX1}")
            mm(u, 1)
            if step == 0: rdx(0, 1)
            if step == L + 2: rdx(1, 1)
            rd(step, 1)
            if step == 28:
                A("s_add_u32 s51, s51, 1\ns_cmp_lt_u32 s51, 10")
        A(f"v_add_u32 v{AW}, s25, v{AW0}")
        A.lds_q = [('p' + t[0], t[1]) for t in A.lds_q]
        if not emit: A.out = save
    A.lds_q = []
    body(False)
    if P3AL:
        A("s_branch P1_cloop")
        A.out.append("    .p2align 10")
    A("P1_cloop:")
    A("s_barrier")
    if STAMP and 'stg' in DBG:
        A("s_memtime s[100:101]\ns_add_u32 m0, s51, 16\ns_waitcnt lgkmcnt(0)\nv_writelane_b32 v255, s100, m0")
    body(True)
    A("s_cbranch_scc1 P1_cloop")
    for u in range(30 - L, 30):
        A.lds_wait(('pw', u))
        mm(u, 0); mm(u, 1)
    stamp(A, 2)
    A("s_cmp_eq_u32 s5, 0\ns_cbranch_scc1 P1_epiA")
    def pack(grp, TB):
        for rt in range(2):
            T = TB + rt * 12
            for t in range(5):
                a = acc(grp, t, rt)
                A(f"v_cvt_pk_bf16_f32 v{T+2*t}, v{a}, v{a+1}\nv_cvt_pk_bf16_f32 v{T+2*t+1}, v{a+2}, v{a+3}")
    def store_qk(TB, soff):
        A(f"v_mov_b32 v{TB+10}, v{TB+20}\nv_mov_b32 v{TB+11}, v{TB+21}")
        for rt in range(2):
            T = TB + rt * 12
            A(f"buffer_store_dwordx4 {vr(T,4)}, v4, s[16:19], s{soff} offen offset:{rt*768} sc1")
            A(f"buffer_store_dwordx4 {vr(T+4,4)}, v4, s[16:19], s{soff} offen offset:{rt*768+256} sc1")
        A(f"buffer_store_dwordx4 {vr(TB+8,4)}, v4, s[16:19], s{soff} offen offset:512 sc1")
    def ones(TB):
        for rt in range(2):
            T = TB + rt * 12
            A(f"v_mov_b32 v{T+10}, 0x3f803f80\nv_mov_b32 v{T+11}, 0x3f803f80")
    def store_v(TB, soff):
        for rt in range(2):
            T = TB + rt * 12
            for p in range(3):
                A(f"buffer_store_dwordx4 {vr(T+4*p,4)}, v5, s[16:19], s{soff} offen offset:{rt*V_TILE+256*p} sc1")
    def scale(grp):
        for r in range(acc(grp, 0, 0), acc(grp, 0, 0) + 40, 2):
            A(f"v_pk_mul_f32 v[{r}:{r+1}], v[6:7], v[{r}:{r+1}]")
    TBS = [WR, 190, WR + 24]
    for grp in range(3):
        TB = TBS[grp]
        A(f"""
        s_add_u32 s14, s13, {4*grp}
        s_mul_i32 s20, s14, {HS*QK_TILE}
        s_cmp_ge_u32 s14, 32
        s_cbranch_scc1 P1_ns{grp}
        """)
        scale(grp)
        A(f"P1_ns{grp}:")
        pack(grp, TB)
        store_qk(TB, 20)
    stamp(A, 3)
    A("s_waitcnt vmcnt(0)\ns_barrier")
    stamp(A, 4)
    epoch_read(A)
    A("s_branch P2_cd")
    A("P1_epiA:\ns_nop 3")
    pack(1, TBS[1]); pack(2, TBS[2])
    A(f"""
    s_cmp_lg_u32 s28, {9 if 'nohalo' in DBG else 3}
    s_cbranch_scc1 P1_nh
    s_lshl_b32 s14, s7, 2
    s_mul_i32 s20, s14, {HS*QK_TILE}
    s_add_u32 s20, s20, {K_OFF}
    s_mul_i32 s21, s14, {HS*V_TILE}
    s_add_u32 s21, s21, {V_OFF}
    """)
    store_qk(TBS[1], 20); store_qk(TBS[2], 21)
    A("s_nop 1\nP1_nh:")
    ones(TBS[2])
    def img_qk(grp, base):
        for rt in range(2):
            T = TBS[grp] + rt * 12
            A(f"ds_write_b128 v252, {vr(T,4)} offset:{base + rt*256}")
            A(f"ds_write_b128 v252, {vr(T+4,4)} offset:{base + rt*256 + 512}")
            A(f"ds_write_b64 v252, {vr(T+8,2)} offset:{base + rt*256 + 1024 + 8}")
            A(f"ds_write_b64 v252, v[2:3] offset:{base + rt*256 + 1024}")
    img_qk(1, BLK)
    for rt in range(2):
        T = TBS[2] + rt * 12
        for p in range(3):
            A(f"ds_write_b128 v253, {vr(T+4*p,4)} offset:{10*BLK + rt*768 + p*64}")
    scale(0); pack(0, TBS[0])
    img_qk(0, 5 * BLK)
    A(f"""
    s_add_u32 s12, s48, {O_BASE}
    s_addc_u32 s13, s49, 0
    s_mov_b32 s15, s28
    s_mov_b32 s16, 1
    s_mov_b32 s40, {FLAG_BASE}
    """)
    stamp(A, 3)
    A("s_waitcnt lgkmcnt(0)\ns_barrier")
    stamp(A, 4)
    epoch_read(A)
    A(f"""
    s_cmp_lg_u32 s28, {9 if 'nohalo' in DBG else 3}
    s_cbranch_scc1 P2_a_enter
    s_and_b32 s21, s6, {3 if 'mix' in DBG else 7}
    s_cmp_eq_u32 s21, {3 if 'mix' in DBG else 7}
    s_cselect_b32 s21, {-22 if 'mix' in DBG else -52 if 'mix2' in DBG else -54}, 8
    s_add_u32 s21, s21, s2
    s_and_b32 s20, s21, 7
    s_lshl_b32 s20, s20, 2
    s_bfe_u32 s22, s21, 0x20003
    s_or_b32 s20, s20, s22
    s_andn2_b32 s21, s21, 31
    s_or_b32 s21, s21, s20
    s_lshl_b32 s21, s21, 9
    s_add_u32 s21, s21, {MB1 + 24}
    s_cmp_lt_u32 s6, 15
    s_cselect_b32 s21, s21, {OOB}
    v_min_u32 v2, 3, v1
    v_lshlrev_b32 v2, 7, v2
    v_add_u32 v2, s21, v2
    s_waitcnt vmcnt(0)
    """)
    flag_store(A, 2)
    A("P2_a_enter:")
    srd(A, 24, 12, 13, 2 * O_BYTES)
    A(f"""
    s_mul_i32 s14, s15, {HD}
    s_add_u32 s14, s14, {L_A}
    s_lshl_b32 s12, s7, 2
    s_add_u32 s15, s15, s12
    P2_a_unit:
    s_mul_i32 s12, s16, {BLK}
    s_add_u32 s12, s12, s14
    v_add_u32 v{AK}, s12, v{LK}
    s_add_u32 s13, s12, {9*BLK}
    v_add_u32 v{AV}, s13, v{LV}
    v_add_u32 v{AQ}, {5*BLK}, v{AK}
    s_lshl_b32 s12, s6, 3
    s_lshl_b32 s13, s16, 1
    s_add_u32 s17, s12, s13
    s_or_b32 s87, s6, s16
    P2_a_start:
    """)
    A.lds_q = []
    rdQ(A); rdK(A, 0, 0); rdK(A, 1, 1); rdV(A, 0, 0); rdV(A, 1, 1)
    oaddr(A, 15, 17)
    A.lds_wait(('q', 0))
    maskQ(A)
    A.lds_wait(('k', 0))
    qk(A, 0, 0, SA, CA); qk(A, 1, 0, SA, CA)
    A.lds_wait(('k', 1))
    qk(A, 0, 1, SB, CA); qk(A, 1, 1, SB, CA)
    A("s_cmp_eq_u32 s87, 0\ns_nop 7\ns_cbranch_scc1 P2_a_inv")
    A("P2_a_val:\ns_nop 3")
    for r in range(16):
        A(f"v_cndmask_b32 v{SA+r}, v{SA+r}, v{SB+r}, s[{MS+2*r}:{MS+2*r+1}]")
    A("s_cmp_eq_u32 s92, 1\ns_cbranch_scc1 P2_a_max")
    for r in range(16): A(f"v_exp_f32 v{SA+r}, v{SA+r}")
    A("s_nop 0")
    for j in range(8): cvt(A, SA, PA, j)
    for j in range(8):
        A(f"v_and_b32 v{PB+j}, v{PA+j}, v{PM+j}\nv_bfi_b32 v{PA+j}, v{PM+j}, 0, v{PA+j}")
    A.lds_wait(('v', 1))
    A("s_cmp_lg_u32 s16, 0\ns_cbranch_scc1 P2_a_np\ns_load_dwordx8 s[32:39], s[48:49], s40 glc\nP2_a_np:")
    pv(A, 0, 0, PA, True); pv(A, 1, 0, PA); pv(A, 0, 1, PB); pv(A, 1, 1, PB)
    finish(A, 0, 'a', 92)
    A("s_cmp_lg_u32 s92, 0\ns_cbranch_scc1 P2_a_rst")
    if 'nohalo' in DBG:
        A("""
        P2_a_next:
        s_cmp_eq_u32 s16, 3
        s_cbranch_scc1 L_Aret
        s_xor_b32 s16, s16, 3
        s_cmp_lg_u32 s16, 1
        s_cbranch_scc1 P2_a_unit
        """)
    else:
        A("""
        P2_a_next:
        s_cmp_eq_u32 s16, 0
        s_cbranch_scc1 L_Aret
        s_add_u32 s16, s16, 1
        s_cmp_lt_u32 s16, 4
        s_cbranch_scc1 P2_a_unit
        """)
    stamp(A, 5)
    A("P2_cd:")
    A(f"{HEADCODE}\ns_mov_b64 s[46:47], s[36:37]")
    OF = 60; ACC3 = 16; WR3 = 220; AW3 = 8; TO = 56; TW = 57
    def of(ks, rt): return OF + (ks * 2 + rt) * 4
    wo_patterns(A, True)
    A(f"""
    {P3COORD}
    s_bfe_u32 s8, s2, 0x10002
    s_lshl_b32 s12, s9, 3
    s_add_u32 s12, s12, s10
    s_lshl_b32 s12, s12, 9
    s_add_u32 s12, s12, {MB2}
    s_cmp_eq_u32 s8, 0
    s_cselect_b32 s12, s12, {OOB}
    v_and_b32 v13, 7, v1
    v_lshlrev_b32 v13, 3, v13
    v_add_u32 v13, s12, v13
    v_and_b32 v12, 3, v1
    v_lshlrev_b32 v12, 3, v12
    s_lshl_b32 s12, s9, 3
    s_lshl_b32 s14, s28, 1
    s_add_u32 s12, s12, s14
    s_mul_i32 s15, s12, 20480
    s_mul_i32 s21, s8, {O_BYTES}
    s_add_u32 s15, s15, s21
    v_lshlrev_b32 v7, 4, v1
    v_add_u32 v7, s15, v7
    v_add_u32 v6, 20480, v7
    v_and_b32 v2, 15, v1
    v_lshlrev_b32 v2, 3, v2
    v_sub_u32 v11, v7, v2
    v_add_u32 v11, 4096, v11
    v_add_u32 v15, 20480, v11
    v_lshrrev_b32 v9, 2, v1
    v_mul_u32_u24 v9, 160, v9
    v_and_b32 v10, 3, v1
    v_lshlrev_b32 v10, 3, v10
    v_add_u32 v{AW3}, v9, v10
    v_add_u32 v{AW3}, {L_WO}, v{AW3}
    v_add_u32 v{AW3+1}, 51200, v{AW3}
    v_and_b32 v2, 15, v1
    v_lshrrev_b32 v3, 4, v1
    s_lshl_b32 s12, s9, 7
    s_lshl_b32 s14, s28, 5
    s_add_u32 s12, s12, s14
    v_add_u32 v2, s12, v2
    v_mul_u32_u24 v2, 2560, v2
    s_mul_i32 s14, s8, 1280
    s_mul_i32 s20, s10, 160
    s_add_u32 s14, s14, s20
    v_add_u32 v2, s14, v2
    v_lshl_add_u32 v59, v3, 3, v2
    v_and_b32 v5, 1, v3
    v_lshl_add_u32 v2, v5, 5, v2
    v_lshrrev_b32 v5, 1, v3
    v_lshl_add_u32 v58, v5, 4, v2
    v_mov_b32 v19, {OOB}
    v_mov_b32 v53, v12
    """)
    cb_init(A)
    A("P2_pre:")
    A(f"""
    s_lshl_b32 s12, s6, 9
    s_add_u32 s12, s12, s7
    s_lshl_b32 s12, s12, 3
    s_add_u32 s12, s12, {MB2}
    s_cmp_eq_u32 s5, 0
    s_cselect_b32 s12, s12, {OOB}
    s_cmp_eq_u32 s28, 4
    s_cselect_b32 s12, s12, {OOB}
    v_min_u32 v18, 7, v1
    v_lshlrev_b32 v18, 9, v18
    v_add_u32 v18, s12, v18
    s_bfe_u32 s5, s2, 0x10002
    s_add_u32 s12, s48, {O_BASE}
    s_addc_u32 s13, s49, 0
    """)
    srd(A, 24, 12, 13, 2 * O_BYTES)
    A(f"""
    s_mul_i32 s12, s28, {BLK}
    s_add_u32 s13, s12, {L_BK}
    v_add_u32 v{AK}, s13, v{LK}
    s_add_u32 s13, s12, {L_BQ}
    v_add_u32 v{AQ}, s13, v{LK}
    s_add_u32 s13, s12, {L_BV}
    v_add_u32 v{AV}, s13, v{LV}
    s_sub_u32 s86, 8, s28
    s_cmp_eq_u32 s4, 0
    s_cselect_b32 s86, s86, -1
    s_lshl_b32 s12, s4, 4
    s_lshl_b32 s13, s28, 1
    s_add_u32 s17, s12, s13
    """)
    oaddr(A, 3, 17)
    A(f"""
    {P3COORD}
    s_cmp_eq_u32 s5, 0
    s_cselect_b32 s16, s46, s42
    s_cselect_b32 s17, s47, s43
    s_and_b32 s17, s17, 0xffff
    s_mov_b32 s18, 819200
    s_mov_b32 s19, 0x20000
    s_mul_i32 s20, s10, 160
    """)
    def wo_setup(n):
        if n < 2:
            A(f"""
            s_add_u32 s21, s28, {8*n}
            s_mul_i32 s22, s21, {40*1280}
            s_add_u32 s22, s22, s20
            s_lshr_b32 s23, s21, 2
            s_add_u32 s23, s23, s21
            s_mul_i32 s23, s23, 5120
            """)
        else:
            A(f"""
            s_mul_i32 s22, s28, {160*1280}
            s_add_u32 s22, s22, s20
            s_mul_i32 s23, s28, 25600
            s_add_u32 s23, s23, 20480
            """)
    def wo_piece(i, n):
        A(f"s_add_u32 m0, s23, {L_WO + i*1024}\ns_nop 0\nbuffer_load_dwordx4 v{WA+i+(5 if n == 2 else 0)}, s[16:19], s22 offen lds")
    if BAL is not None:
        A.out.append("    .p2align 5")
        for _ in range(((BAL - (20 if STAMP else 0)) % 32) // 4): A("s_nop 0")
    A(f"s_cmp_lt_u32 s28, 4\ns_cbranch_scc1 P2_bd\n{'s_setprio 1' if PRIO else ''}\ns_waitcnt vmcnt(0)\nds_write_b64 v53, v[54:55]\nds_write_b64 v53, v[54:55] offset:3072\nP2_bd:\ns_waitcnt vmcnt(0) lgkmcnt(0)\ns_barrier")
    stamp(A, 6)
    A.lds_q = []
    rdQ(A)
    rdK(A, 0, 0); rdK(A, 1, 1)
    flag_store(A, 18)
    A.lds_wait(('q', 0))
    maskQ(A)
    A("s_branch P2_b_go\nP2_b_start:")
    A.lds_q = []
    rdK(A, 0, 0); rdK(A, 1, 1)
    A("P2_b_go:")
    def cb_switch(b):
        A(f"s_cmp_lg_u32 s86, {b}\ns_cbranch_scc1 P2_cb{b}\ns_nop 7")
        for r in range(16): A(f"v_mov_b32 v{CB+r}, v{NEGM}")
        A(f"s_nop 1\nP2_cb{b}:")
    A.lds_wait(('k', 0))
    qk(A, 0, 0, S0, CB); qk(A, 1, 0, S0, CB)
    rdK(A, 2, 0)
    cb_switch(1)
    A.lds_wait(('k', 1))
    qk(A, 0, 1, SA, CB); qk(A, 1, 1, SA, CB)
    rdV(A, 1, 1)
    A("s_cmp_eq_u32 s93, 1\ns_cbranch_scc1 P2_b_max")
    cb_switch(2)
    A("s_nop 7")
    for b in range(1, 8):
        Sc, Sn = (SA, SB) if b % 2 == 1 else (SB, SA)
        Pc, Pp = (PA, PB) if b % 2 == 1 else (PB, PA)
        wn, wh = (b - 1) // 2, (b - 1) % 2
        dow = b <= 6
        if b == PRIO: A("s_setprio 0")
        if dow and wn == 2: A(f"s_cmp_ge_u32 s28, 4\ns_cbranch_scc1 P2_nw{b}")
        if dow:
            if wh == 0: wo_setup(wn)
            for i in (range(0, 3) if wh == 0 else range(3, 5)): wo_piece(i, wn)
        if dow and wn == 2: A(f"P2_nw{b}:")
        A.lds_wait(('k', b + 1))
        qk(A, 0, (b + 1) % 2, Sn, CB)
        for r in range(0, 4): A(f"v_exp_f32 v{Sc+r}, v{Sc+r}")
        qk(A, 1, (b + 1) % 2, Sn, CB)
        if b + 2 <= 8: rdK(A, b + 2, b % 2)
        for r in range(4, 8): A(f"v_exp_f32 v{Sc+r}, v{Sc+r}")
        if b > 1:
            A.lds_wait(('v', b - 1))
            pv(A, 0, (b - 1) % 2, Pp, first=(b == 2))
        if b * 10 + 5 == PRIO: A("s_setprio 0")
        for r in range(8, 12): A(f"v_exp_f32 v{Sc+r}, v{Sc+r}")
        if b > 1:
            pv(A, 1, (b - 1) % 2, Pp)
        nb = b + 1 if b < 7 else 0
        rdV(A, nb, (b + 1) % 2)
        for r in range(12, 16): A(f"v_exp_f32 v{Sc+r}, v{Sc+r}")
        for j in range(8): cvt(A, Sc, Pc, j)
        if b + 2 <= 8: cb_switch(b + 2)
    if PRIO == 8: A("s_setprio 0")
    for r in range(16):
        A(f"v_cndmask_b32 v{S0+r}, v{S0+r}, v{SB+r}, s[{MS+2*r}:{MS+2*r+1}]")
        if r == 3:
            A.lds_wait(('v', 7)); pv(A, 0, 1, PA)
        if r == 11:
            pv(A, 1, 1, PA); rdV(A, 8, 1)
    for r in range(16): A(f"v_exp_f32 v{S0+r}, v{S0+r}")
    A("s_nop 0")
    for j in range(8): cvt(A, S0, PB, j)
    for j in range(8):
        A(f"v_and_b32 v{P2+j}, v{PB+j}, v{PM+j}\nv_bfi_b32 v{PB+j}, v{PM+j}, 0, v{PB+j}")
    A.lds_wait(('v', 8))
    A("s_nop 0")
    pv(A, 0, 0, PB); pv(A, 1, 0, PB); pv(A, 0, 1, P2); pv(A, 1, 1, P2)
    finish(A, O_BYTES, 'b', 93)
    stamp(A, 7)
    A(f"""
    s_cmp_lt_u32 s28, 4
    s_cbranch_scc1 P3
    s_waitcnt vmcnt(0)
    s_barrier
    """)
    stamp(A, 8)
    A("s_cmp_lg_u32 s28, 4\ns_cbranch_scc1 H_poll")
    flag_store(A, 19)
    A(f"""
    H_poll:
    s_lshl_b32 s12, s5, 7
    s_lshl_b32 s13, s9, 3
    s_add_u32 s12, s12, s13
    s_add_u32 s12, s12, s10
    s_lshl_b32 s12, s12, 9
    s_add_u32 s12, s12, {FLAG_BASE + MB2}
    s_and_b32 s13, s28, 3
    s_lshl_b32 s13, s13, 7
    s_mul_i32 s13, s13, s5
    s_add_u32 s40, s12, s13
    s_mov_b32 s94, 0
    s_and_b32 s12, s28, 3
    s_lshl_b32 s12, s12, 3
    v_mov_b32 v2, s12
    H_loop:
    s_load_dwordx16 s[52:67], s[48:49], s40 glc
    s_add_u32 s94, s94, 1
    s_cmp_ge_u32 s94, {SPIN_LIMIT}
    s_waitcnt lgkmcnt(0)
    s_cbranch_scc1 H_done
    s_xor_b64 s[88:89], s[52:53], s[0:1]
    """)
    for i in range(1, 8):
        A(f"s_xor_b64 s[90:91], s[{52+2*i}:{53+2*i}], s[0:1]\ns_or_b64 s[88:89], s[88:89], s[90:91]")
    A(f"""
    s_cbranch_scc1 H_loop
    H_done:
    ds_write_b64 v2, v[{EP}:{EP+1}]
    s_waitcnt lgkmcnt(0)
    """)
    stamp(A, 9)
    A("s_branch K_end2")
    A("P2_a_inv:\ns_nop 3")
    for r in range(16): A(f"v_mov_b32 v{SA+r}, v{NINF}")
    A("s_branch P2_a_val")
    A(f"P2_a_rst:\ns_mov_b32 s92, 0\nv_mov_b32 v{NEGM}, 0")
    build_CA(A)
    A("s_branch P2_a_next")
    A("P2_a_fb:\ns_mov_b32 s92, 1\ns_waitcnt lgkmcnt(0)\ns_branch P2_a_start")
    A("P2_a_max:")
    maxblock(A, SA, True)
    rowmax_finish(A, "P2_a_start", 92, lambda: build_CA(A))
    A("P2_b_fb:\ns_mov_b32 s93, 1")
    cb_init(A)
    A("s_branch P2_b_start")
    A("P2_b_max:")
    A("s_waitcnt lgkmcnt(0)\ns_nop 7\ns_nop 3")
    A.lds_q = []
    maxblock(A, SA, True)
    for b in range(2, 9):
        A(f"s_cmp_lg_u32 s86, {b}\ns_cbranch_scc1 P2_mcb{b}")
        for r in range(16): A(f"v_mov_b32 v{CB+r}, v{NEGM}")
        A(f"P2_mcb{b}:")
        rdK(A, b, 0)
        A.lds_drain()
        qk(A, 0, 0, SA, CB); qk(A, 1, 0, SA, CB)
        A("s_nop 7\ns_nop 7")
        if b == 8:
            for r in range(16):
                A(f"v_cndmask_b32 v{SA+r}, v{S0+r}, v{SA+r}, s[{MS+2*r}:{MS+2*r+1}]")
        maxblock(A, SA, False)
    rowmax_finish(A, "P2_b_start", 93, lambda: cb_init(A))
    grp3 = lambda i: (i + 2) & 3
    def pick(i):
        return ["v_cmp_eq_u64 vcc, s[0:1], v[4:5]", "s_nop 1\ns_or_b32 s22, s22, vcc_lo",
                f"s_bitcmp1_b32 s22, {grp3(i)}\ns_cselect_b32 s23, 1, 0\ns_cselect_b32 s30, {grp3(i)*5120}, s21"]
    def ldo(i):
        l = []
        for ks in range(4):
            for rt in range(2):
                l.append(f"buffer_load_dwordx4 {vr(of(i*5+ks,rt),4)}, v{7-rt}, s[24:27], s30 offen offset:{ks*1024} sc1")
        for rt in range(2):
            for hf in range(2):
                l.append(f"buffer_load_dwordx2 {vr(of(i*5+4,rt)+2*hf,2)}, v{(11,15)[rt]}, s[24:27], s30 offen offset:{hf*128} sc1")
        return l
    def rd3(n, hf):
        i, ks, t = n // 25, (n % 25) // 5, n % 5
        b = WR3 + (n % 8) * 4
        off = (grp3(i) & 1) * 25600 + (ks * 32 + hf * 16) * 160 + 32 * t
        A.lds(f"ds_read_b64_tr_b16 {vr(b+2*hf,2)}, v{AW3 + (grp3(i) >> 1)} offset:{off}", ('w', n))
    LA = 6
    def acquire(i):
        A(f"P3_acq{i}:\nds_read_b64 v[4:5], v12\ns_waitcnt lgkmcnt(0)")
        for x in pick(i): A(x)
        A(f"s_cbranch_scc0 P3_acq{i}")
        for x in ldo(i): A(x)
    for i in range(1, 1 + NACQ):
        acquire(i); A(f"s_branch P3_go{i}")
    A("P3:")
    srd(A, 16, 44, 45, 2048 * 1280 * 2)
    A(f"""
    buffer_load_dwordx2 v[4:5], v13, s[96:99], 0 offen sc1
    s_mov_b32 s21, 0x70000000
    s_waitcnt vmcnt(1)
    s_barrier
    """)
    stamp(A, 8)
    A.lds_q = []
    for n in range(LA): rd3(n, 0); rd3(n, 1)
    A("""
    s_waitcnt vmcnt(0)
    v_cmp_ne_u64 vcc, s[0:1], v[4:5]
    s_nop 1
    s_cmp_eq_u64 vcc, 0
    s_cselect_b32 s22, 0xff, 0
    """)
    acquire(0)
    A.lds_q = []
    stamp(A, 9)
    fill = []; nxt = 0
    for n in range(100):
        i, ks, t = n // 25, (n % 25) // 5, n % 5
        if n % 25 == 0:
            nxt = 0
            if i < 3:
                A.lds_wait(('f', i)); fill = pick(i + 1) + ldo(i + 1)
                if i == 0:
                    for x in fill: A(x)
                    fill = []; nxt = 12
        if t == 0 and STAMP and 'p3s' in DBG and n >= 25:
            A(f"s_memtime s[100:101]\ns_waitcnt lgkmcnt(0)\nv_writelane_b32 v255, s100, {14 + n//5 - 5}")
        if t == 0:
            A(f"s_waitcnt vmcnt({(10 - 2*ks if ks < 4 else 0) + nxt})")
        if n % 2 == 0:
            A.lds_wait(('w', n), ('w', n + 1))
        b = WR3 + (n % 8) * 4
        for rt in range(2):
            a = ACC3 + (t * 2 + rt) * 4
            A(f"v_mfma_f32_16x16x32_bf16 {vr(a,4)}, {vr(b,4)}, {vr(of(i*5+ks,rt),4)}, {vr(a,4) if n >= 5 else 0}")
            if n + LA < 100:
                if (n + LA) % 25 == 0 and rt == 0 and i < 2: A.lds("ds_read_b64 v[4:5], v12", ('f', i + 1))
                rd3(n + LA, rt)
            if fill:
                x = fill.pop(0)
                A(x.replace("s_nop 1\n", ""))
                if x.startswith("buffer_load"): nxt += 1
        if n % 25 == 24 and i < 3:
            assert not fill
            A(f"s_cmp_eq_u32 s23, 0\ns_cbranch_scc1 P3_acq{i+1}\nP3_go{i+1}:")
    stamp(A, 10)
    A("s_mov_b32 s12, 40960")
    for rt in range(2):
        T = OF + rt * 12
        for t in range(5):
            a = ACC3 + (t * 2 + rt) * 4
            A(f"v_cvt_pk_bf16_f32 v{T+2*t}, v{a}, v{a+1}\nv_cvt_pk_bf16_f32 v{T+2*t+1}, v{a+2}, v{a+3}")
        for j in (0, 1, 4, 5): A(f"v_permlane16_swap_b32 v{T+j}, v{T+j+2}")
        so = "s12" if rt else "0"
        A(f"buffer_store_dwordx4 {vr(T,4)}, v58, s[16:19], {so} offen {OUT_FLAGS}")
        A(f"buffer_store_dwordx4 {vr(T+4,4)}, v58, s[16:19], {so} offen offset:64 {OUT_FLAGS}")
        A(f"buffer_store_dwordx2 {vr(T+8,2)}, v59, s[16:19], {so} offen offset:128 {OUT_FLAGS}")
    stamp(A, 11)
    A("K_end2:")
    for d in DBG:
        if d.startswith('pad'):
            A(f"""
            s_cmp_lt_u32 s28, 4
            s_cbranch_scc1 PADE
            v_readfirstlane_b32 s12, v{EP}
            PADL:
            s_memrealtime s[14:15]
            s_waitcnt lgkmcnt(0)
            s_sub_u32 s13, s14, s12
            s_cmp_lt_u32 s13, {int(d[3:])*100}
            s_cbranch_scc1 PADL
            PADE:
            """)
    stamp_flush(A, 12, 0)
    A("K_end:\ns_endpgm")
    for i in range(1 + NACQ, 4):
        acquire(i); A(f"s_branch P3_go{i}")
    A("K_last:")
    A.end(256, 102, 256, 512, LDS_TOTAL)

P3_DEPTH = 8
PSLEEP = 0
BAL = 16
NACQ = 0 if '--stamp' in sys.argv else 2
P3AL = '--nop3al' not in sys.argv
STATIC = True
ALIGN = None
WB = 2
CPF_SH = 3
PRIO = 6
SECT = True
OUT_FLAGS = ""

if __name__ == '__main__':
    if '--stamp' in sys.argv: STAMP = True
    for a in sys.argv[1:]:
        if a.startswith('--dbg='): DBG.update(a[6:].split(','))
        if a.startswith('--rot='): ROT = int(a[6:])
        if a.startswith('--bal='): BAL = int(a[6:])
        if a.startswith('--al='): ALIGN = int(a[5:])
        if a.startswith('--wb='): WB = int(a[5:])
        if a.startswith('--look='): P1_LOOK = int(a[7:])
        if a.startswith('--prio='): PRIO = int(a[7:])
        if a.startswith('--psleep='): PSLEEP = int(a[9:])
        if a.startswith('--out='): OUT_FLAGS = a[6:].replace('+', ' ')
    A = Asm()
    gen(A)
    t = A.text()
    t = t.replace("    LSTG\n", "    s_memtime s[100:101]\n    s_add_u32 m0, s51, 15\n    s_waitcnt lgkmcnt(0)\n    v_writelane_b32 v255, s100, m0\n" if (STAMP and 'lstg' in DBG) else "")
    import subprocess, re, os
    open('_g3.s', 'w').write(t.replace('CODE_BYTES', '0x1234').replace('CPF_OFF', '0x1234'))
    subprocess.run(['clang', '-x', 'assembler', '-target', 'amdgcn-amd-amdhsa', '-mcpu=gfx950', '-c', '_g3.s', '-o', '_g3.o'], check=True)
    nm = subprocess.run(['llvm-objdump', '-t', '_g3.o'], capture_output=True, text=True).stdout
    end = int(re.search(r'^([0-9a-f]+) .* K_last$', nm, re.M).group(1), 16)
    sys.stderr.write(f"code bytes {end}\n")
    m = re.search(r'^([0-9a-f]+) .* CPF_pc$', nm, re.M)
    pc = int(m.group(1), 16) if m else 0
    sys.stdout.write(t.replace('CODE_BYTES', str(end - 64)))
```

```python
import sys, math, struct

REF = 'concat_heads__sliding_local_dilated__sliding_block__prompt.s.ref'
HDR = [l for l in open(REF).read().split('\n')
       if l.startswith(';') and '@launch' not in l and 'Override' not in l and 'grid=ceil' not in l]
MAIN = "concat_heads__sliding_local_dilated__sliding_block__prompt_kernel"

QK_TILE = 640
V_TILE = 640
HS = 128
for _a in sys.argv[1:]:
    if _a.startswith('--hs='): HS = int(_a[5:])
K_OFF = 32 * HS * QK_TILE
V_OFF = 2 * K_OFF
QKV_BYTES = V_OFF + 32 * HS * V_TILE
O_BASE = 18 << 20
assert 2 * QKV_BYTES <= O_BASE
O_BYTES = 2048 * 640 * 2
FLAG_BASE = 24 << 20
MB1 = 0; MB2 = 131072; MB_BYTES = 262144
OOB = 0x7ffff000

STAMP = False
DBG = set()
STAMP_OFF = 30 << 20
FUSED = False

def f32bits(x): return struct.unpack('<I', struct.pack('<f', x))[0]
SCALE_L2E = (20 ** -0.5) * math.log2(math.e)

NOTES = """;
;           (buffer_load ... lds), waves 0-3 run the MFMAs.  Q is scaled by Dh^-0.5 * log2(e).
;"""

class Asm:
    def __init__(self):
        self.out = []; self.kernels = []; self.launches = []; self.lds_q = []
    def __call__(self, s):
        for l in s.split('\n'):
            l = l.strip()
            if not l: continue
            if 'noload' in DBG and l.startswith('buffer_load') and ' lds' in l: continue
            if 'nomfma' in DBG and l.startswith('v_mfma'): continue
            if 'nods' in DBG and l.startswith('ds_read'): continue
            if 'nowait' in DBG and l.startswith('s_waitcnt lgkmcnt(') and not l.endswith('(0)'): continue
            if 'halfds' in DBG and l.startswith('ds_read_b64_tr') and (int(l.split('[')[1].split(':')[0]) % 4 == 2): continue
            if 'nobar' in DBG and l.startswith('s_barrier'): continue
            if 'nostore' in DBG and l.startswith('buffer_store') and 's[8:11]' not in l: continue
            self.out.append(l if l.endswith(':') else '    ' + l)
    def begin(self, name):
        self.out.append(f".globl {name}\n.p2align 8\n.type {name},@function\n{name}:")
        self.cur = name
    def end(self, vgpr, sgpr, grid, block, lds):
        self.kernels.append((self.cur, vgpr, sgpr))
        self.launches.append((self.cur, grid, block, lds))
    def lds(self, s, tag):
        self(s); self.lds_q.append(tag)
    def lds_wait(self, *tags):
        idx = [i for i, t in enumerate(self.lds_q) if t in tags]
        if not idx: return
        n = len(self.lds_q) - 1 - idx[-1]
        assert n <= 15, n
        self(f"s_waitcnt lgkmcnt({n})")
        self.lds_q = self.lds_q[idx[-1] + 1:]
    def lds_drain(self):
        self("s_waitcnt lgkmcnt(0)"); self.lds_q = []
    def text(self, order=None):
        o = list(HDR)
        ls = self.launches if order is None else [l for n in order for l in self.launches if l[0] == n]
        if len(ls) == 1 and ls[0][0] == MAIN:
            (n, g, b, lds) = ls[0]
            o.append(f"; @launch grid=({g},1,1) block=({b},1,1) lds={lds}")
        else:
            for (n, g, b, lds) in ls:
                o.append(f"; @launch kernel={n} grid=({g},1,1) block=({b},1,1) lds={lds}")
        o.append(NOTES)
        o.append('.amdgcn_target "amdgcn-amd-amdhsa--gfx950"\n.text')
        o += self.out
        o.append('.section .rodata,"a"')
        for (n, vgpr, sgpr) in self.kernels:
            o.append(f""".p2align 6
.amdhsa_kernel {n}
  .amdhsa_next_free_vgpr {vgpr}
  .amdhsa_next_free_sgpr {sgpr}
  .amdhsa_accum_offset {(vgpr + 3) // 4 * 4}
  .amdhsa_group_segment_fixed_size 0
  .amdhsa_kernarg_size 72
  .amdhsa_user_sgpr_count 2
  .amdhsa_user_sgpr_kernarg_segment_ptr 1
  .amdhsa_system_sgpr_workgroup_id_x 1
.end_amdhsa_kernel""")
        return '\n'.join(o) + '\n'

def vr(a, n=1): return f"v{a}" if n == 1 else f"v[{a}:{a+n-1}]"

def stamp(A, i):
    if STAMP and i < 100:
        A(f"s_memtime s[100:101]\ns_waitcnt lgkmcnt(0)\nv_writelane_b32 v255, s100, {i}")
        A.lds_q = []
        if i == 0:
            A("s_memrealtime s[100:101]\ns_waitcnt lgkmcnt(0)\nv_writelane_b32 v255, s100, 31")
def stamp_flush(A, n, kidx):
    if not STAMP: return
    A("s_waitcnt lgkmcnt(0) vmcnt(0)")
    stamp(A, n)
    A(f"""
    s_memrealtime s[100:101]
    s_waitcnt lgkmcnt(0)
    v_writelane_b32 v255, s100, {n+1}
    s_add_u32 s4, s48, {STAMP_OFF + kidx*524288}
    s_addc_u32 s5, s49, 0
    s_mov_b32 s8, s4
    s_and_b32 s9, s5, 0xffff
    s_mov_b32 s10, 524288
    s_mov_b32 s11, 0x20000
    s_lshl_b32 s6, s2, 4
    s_add_u32 s6, s6, s28
    s_lshl_b32 s6, s6, 7
    v_lshlrev_b32 v0, 2, v1
    v_add_u32 v0, s6, v0
    v_mov_b32 v2, {OOB}
    v_cmp_gt_u32 vcc, 32, v1
    s_nop 1
    v_cndmask_b32 v0, v2, v0, vcc
    buffer_store_dword v255, v0, s[8:11], 0 offen
    """)

def srd(A, d, lo, hi, nbytes):
    A(f"s_mov_b32 s{d}, s{lo}\ns_and_b32 s{d+1}, s{hi}, 0xffff\ns_mov_b32 s{d+2}, {nbytes}\ns_mov_b32 s{d+3}, 0x20000")

MAPCODE = {
 'split': """s_lshr_b32 s5, s3, 2
    s_bfe_u32 s6, s3, 0x10001
    s_and_b32 s7, s3, 1
    s_and_b32 s10, s4, 7
    s_lshr_b32 s11, s4, 3
    s_lshl_b32 s6, s6, 3
    s_add_u32 s6, s6, s10
    s_lshl_b32 s7, s7, 2
    s_add_u32 s7, s7, s11""",
 'mix': """s_lshr_b32 s5, s4, 4
    s_lshr_b32 s6, s3, 1
    s_and_b32 s7, s3, 1
    s_and_b32 s10, s4, 3
    s_bfe_u32 s11, s4, 0x20002
    s_lshl_b32 s6, s6, 2
    s_add_u32 s6, s6, s10
    s_lshl_b32 s7, s7, 2
    s_add_u32 s7, s7, s11""",
 'mix2': """s_lshr_b32 s5, s4, 4
    s_lshr_b32 s6, s3, 2
    s_and_b32 s7, s3, 3
    s_and_b32 s10, s4, 7
    s_bfe_u32 s11, s4, 0x10003
    s_lshl_b32 s6, s6, 3
    s_add_u32 s6, s6, s10
    s_lshl_b32 s7, s7, 1
    s_add_u32 s7, s7, s11
    s_lshl_b32 s11, s11, 1""",
}
def prologue(A, endlabel):
    if 'early' in DBG: A("s_memrealtime s[94:95]")
    A(f"""
    s_cmp_ge_u32 s2, 256
    s_cbranch_scc1 {endlabel}
    s_load_dwordx16 s[32:47], s[0:1], 0
    s_load_dwordx2 s[48:49], s[0:1], 64
    s_getpc_b64 s[50:51]
    v_lshrrev_b32 v2, 6, v0
    s_andn2_b32 s3, s2, 7
    {"v_lshlrev_b32 v3, 6, v0" if 'cpfall' in DBG else "v_add_lshl_u32 v3, v2, s3, 7"}
    v_min_u32 v3, CODE_BYTES, v3
    v_and_b32 v1, 63, v0
    global_load_dword v254, v3, s[50:51]
    s_and_b32 s3, s2, 7
    s_lshr_b32 s4, s2, 3
    v_readfirstlane_b32 s28, v2
    {MAPCODE['mix' if 'mix' in DBG else 'mix2' if 'mix2' in DBG else 'split']}
    """)

PIECE = 1056
P1_LOOK = 5
XOFF = 32 * PIECE
SLOT = XOFF + 16384
P1_LDS = 3 * SLOT
LDS_TOTAL = 163840
BLK = 1536
HD = 14 * BLK
L_BK = 0; L_BV = 16 * BLK; L_WO = 32 * BLK; L_BQ = L_WO + 102400
assert L_BQ + 8 * BLK == LDS_TOTAL
L_A = SLOT
EP_LDS = 140000
HF_LDS = EP_LDS + 64
assert L_A + 4 * HD <= EP_LDS
EP = 250
SPIN_LIMIT = 1 << 17
PM = 214; QD = 222; NINF = 223; LK = 224; LV = 225; OL = 226; NEGM = 227; T0 = 228; T1 = 229; CA = 230
MS = 52
QF = 20; AK = 28; AV = 29; AQ = 30; OA = 32; WA = 36
CB = 80; S0 = 96; SA = 112; SB = 128; PA = 144; PB = 152; KF = 160; VF = 176; O = 192; P2 = 64

def flag_srd(A):
    A(f"s_add_u32 s94, s48, {FLAG_BASE}\ns_addc_u32 s95, s49, 0")
    srd(A, 96, 94, 95, MB_BYTES)

def dbg_srd(A):
    A("s_mov_b32 s96, s46\ns_and_b32 s97, s47, 0xffff\ns_mov_b32 s98, 256\ns_mov_b32 s99, 0x20000")

def epoch_get(A):
    A(f"""
    s_or_b32 s96, s28, s2
    s_cbranch_scc1 EP_skip
    {"" if 'early' in DBG else "s_memrealtime s[94:95]"}
    v_mov_b32 v252, 0
    s_waitcnt lgkmcnt(0)
    """)
    dbg_srd(A)
    A(f"""
    s_or_b32 s94, s94, 1
    v_mov_b32 v{EP}, s94
    v_mov_b32 v{EP+1}, s95
    s_nop 0
    buffer_store_dwordx2 v[{EP}:{EP+1}], v252, s[96:99], 0 offen sc1
    EP_skip:
    """)

def epoch_share(A):
    A(f"""
    s_cmp_lg_u32 s28, 4
    s_cbranch_scc1 EP_skip2
    """)
    dbg_srd(A)
    A(f"""
    v_mov_b32 v252, 0
    s_mov_b32 s94, 0
    EP_spin:
    buffer_load_dwordx2 v[{EP}:{EP+1}], v252, s[96:99], 0 offen sc1
    s_add_u32 s94, s94, 1
    s_waitcnt vmcnt(0)
    v_readfirstlane_b32 s95, v{EP}
    s_cmp_ge_u32 s94, {SPIN_LIMIT}
    s_cbranch_scc1 EP_got
    s_cmp_eq_u32 s95, 0
    s_cbranch_scc1 EP_spin
    EP_got:
    v_mov_b32 v252, {EP_LDS}
    s_nop 0
    ds_write_b64 v252, v[{EP}:{EP+1}]
    s_waitcnt lgkmcnt(0)
    EP_skip2:
    """)

def epoch_read(A):
    A(f"v_mov_b32 v252, {EP_LDS}\ns_nop 0\nds_read_b64 v[{EP}:{EP+1}], v252\ns_waitcnt lgkmcnt(0)")
    A(f"v_readfirstlane_b32 s0, v{EP}\nv_readfirstlane_b32 s1, v{EP+1}")

def flag_store(A, vaddr):
    A(f"buffer_store_dwordx2 v[{EP}:{EP+1}], v{vaddr}, s[96:99], 0 offen sc1")

def poll(A, vaddr, vtmp, tag):
    A(f"""
    s_mov_b32 s94, 0
    PL_{tag}:
    buffer_load_dwordx2 v[{vtmp}:{vtmp+1}], v{vaddr}, s[96:99], 0 offen sc1
    s_waitcnt vmcnt(0)
    v_cmp_ne_u64 vcc, v[{vtmp}:{vtmp+1}], v[{EP}:{EP+1}]
    s_add_u32 s94, s94, 1
    s_nop 0
    s_cmp_eq_u64 vcc, 0
    s_cbranch_scc1 PD_{tag}
    s_sleep 1
    s_cmp_lt_u32 s94, {SPIN_LIMIT}
    s_cbranch_scc1 PL_{tag}
    PD_{tag}:
    """)

def setup2(A):
    A(f"""
    v_lshrrev_b32 v5, 5, v1
    v_and_b32 v2, 31, v1
    v_lshlrev_b32 v3, 2, v5
    v_sub_u32 v{QD}, v2, v3
    v_mov_b32 v{NINF}, 0xff800000
    v_mov_b32 v{NEGM}, 0
    v_lshlrev_b32 v{LK}, 4, v1
    """)
    for r in range(16):
        kc = (r & 3) + 8 * (r >> 2)
        A(f"v_cmp_le_i32 s[{MS+2*r}:{MS+2*r+1}], {kc}, v{QD}")
    A("v_mov_b32 v2, 0xffff\nv_mov_b32 v3, 0xffff0000\nv_mov_b32 v4, 0")
    for j in range(8):
        A(f"v_cndmask_b32 v6, v4, v2, s[{MS+4*j}:{MS+4*j+1}]")
        A(f"v_cndmask_b32 v7, v4, v3, s[{MS+4*j+2}:{MS+4*j+3}]")
        A(f"v_or_b32 v{PM+j}, v6, v7")
    A(f"""
    v_and_b32 v3, 3, v1
    v_bfe_u32 v4, v1, 2, 2
    v_lshrrev_b32 v7, 1, v3
    v_lshlrev_b32 v7, 6, v7
    v_and_b32 v6, 1, v3
    v_lshl_add_u32 v7, v6, 3, v7
    v_min_u32 v6, 1, v3
    v_lshlrev_b32 v6, 3, v6
    v_add_u32 v6, 128, v6
    v_bfe_u32 v2, v1, 4, 1
    v_cmp_eq_u32 vcc, 0, v2
    v_mul_u32_u24 v2, 20480, v2
    v_and_b32 v3, 15, v1
    v_cndmask_b32 v7, v6, v7, vcc
    v_lshl_add_u32 v7, v4, 4, v7
    v_mul_u32_u24 v6, 192, v5
    v_add_u32 v{LV}, v7, v6
    v_lshl_add_u32 v{OL}, v3, 4, v2
    s_mov_b32 s84, {f32bits(2.0**-64)}
    s_mov_b32 s85, {f32bits(2.0**64)}
    s_mov_b32 s92, 0
    s_mov_b32 s93, 0
    """)

def build_CA(A):
    for r in range(16):
        kc = (r & 3) + 8 * (r >> 2)
        A(f"v_subrev_u32 v{T0}, {kc}, v{QD}\nv_and_b32 v{T0}, 17, v{T0}\nv_cmp_eq_u32 s[88:89], 0, v{T0}\ns_nop 1\nv_cndmask_b32 v{CA+r}, v{NINF}, v{NEGM}, s[88:89]")

def oaddr(A, s_head, s_rt16):
    A(f"""
    s_lshr_b32 s88, s{s_head}, 3
    s_mul_i32 s88, s88, 5120
    s_mul_i32 s89, s{s_rt16}, 20480
    s_add_u32 s88, s88, s89
    s_and_b32 s89, s{s_head}, 7
    s_lshl_b32 s90, s89, 9
    s_add_u32 s90, s90, s88
    s_lshl_b32 s89, s89, 7
    s_add_u32 s89, s89, s88
    s_add_u32 s89, s89, 4096
    v_lshrrev_b32 v2, 5, v1
    v_lshl_add_u32 v2, v2, 8, v{OL}
    v_add_u32 v{OA}, s90, v2
    v_and_b32 v2, 15, v1
    v_lshlrev_b32 v2, 3, v2
    v_sub_u32 v3, v{OL}, v2
    v_add_u32 v3, s89, v3
    v_cmp_gt_u32 vcc, 32, v1
    v_mov_b32 v2, {OOB}
    s_nop 0
    v_cndmask_b32 v{OA+1}, v2, v3, vcc
    """)

def qk(A, i, slot, dst, C):
    c = vr(C, 16) if i == 0 else vr(dst, 16)
    A(f"v_mfma_f32_32x32x16_bf16 {vr(dst,16)}, {vr(KF+slot*8+4*i,4)}, {vr(QF+4*i,4)}, {c}")
def pv(A, i, slot, Preg, first=False):
    c = "0" if first else vr(O, 16)
    A(f"v_mfma_f32_32x32x16_bf16 {vr(O,16)}, {vr(VF+slot*8+4*i,4)}, {vr(Preg+4*i,4)}, {c}")
def cvt(A, S, Pd, j):
    A(f"v_cvt_pk_bf16_f32 v{Pd+j}, v{S+2*j}, v{S+2*j+1}")
def rdK(A, b, slot):
    for i in range(2):
        A.lds(f"ds_read_b128 {vr(KF + slot*8 + 4*i, 4)}, v{AK} offset:{b*BLK + i*1024}", ('k', b))
def rdV(A, b, slot):
    for i in range(4):
        A.lds(f"ds_read_b64_tr_b16 {vr(VF + slot*8 + 2*i, 2)}, v{AV} offset:{b*BLK + i*384}", ('v', b))
def rdQ(A):
    for i in range(2):
        A.lds(f"ds_read_b128 {vr(QF + 4*i, 4)}, v{AQ} offset:{i*1024}", ('q', 0))
def maskQ(A):
    A(f"v_mov_b32 v{QF+4}, 0\nv_mov_b32 v{QF+5}, 0\ns_mov_b32 s88, -1\ns_mov_b32 s89, 0\nv_mov_b32 v{T0}, 0")
    A(f"v_cndmask_b32 v{QF+6}, v{T0}, v{QF+6}, s[88:89]\nv_cndmask_b32 v{QF+7}, v{T0}, v{QF+7}, s[88:89]\ns_nop 0")

def finish(A, osoff, tag, flagreg):
    A(f"s_nop 7\ns_nop 3\nv_rcp_f32 v{T0}, v{O+12}")
    A(f"v_add_f32 v{T1}, |v{O}|, |v{O+1}|")
    for r in range(2, 12):
        A(f"v_add_f32 v{T1}, v{T1}, |v{O+r}|")
    A(f"""
    v_cmp_le_f32 s[88:89], s84, v{O+12}
    v_cmp_ge_f32 s[90:91], s85, v{O+12}
    v_cmp_gt_f32 vcc, -v{NINF}, v{T1}
    """)
    for r in range(12):
        A(f"v_mul_f32 v{O+r}, v{O+r}, v{T0}")
    A(f"""
    s_and_b64 s[88:89], s[88:89], s[90:91]
    s_and_b64 s[88:89], s[88:89], vcc
    s_or_b32 s90, s{flagreg}, 0
    s_cbranch_scc1 P2_{tag}_ok
    s_cmp_eq_u64 s[88:89], exec
    s_cbranch_scc0 P2_{tag}_fb
    P2_{tag}_ok:
    """)
    for j in range(6):
        A(f"v_cvt_pk_bf16_f32 v{O+j}, v{O+2*j}, v{O+2*j+1}")
    A(f"s_mov_b32 s88, {osoff}")
    A(f"v_permlane32_swap_b32 v{O}, v{O+2}\nv_permlane32_swap_b32 v{O+1}, v{O+3}")
    A(f"buffer_store_dwordx2 {vr(O+4,2)}, v{OA+1}, s[24:27], s88 offen sc1")
    A(f"buffer_store_dwordx4 {vr(O,4)}, v{OA}, s[24:27], s88 offen sc1")

def maxblock(A, S, first):
    if first: A(f"v_max_f32 v{T1}, v{S}, v{S+1}")
    else: A(f"v_max3_f32 v{T1}, v{T1}, v{S}, v{S+1}")
    for r in range(2, 16, 2): A(f"v_max3_f32 v{T1}, v{T1}, v{S+r}, v{S+r+1}")
def rowmax_finish(A, back, flagreg, rebuild):
    A(f"""
    v_mov_b32 v{T0}, v{T1}
    s_nop 1
    v_permlane32_swap_b32 v{T1}, v{T0}
    s_nop 1
    v_max_f32 v{T1}, v{T1}, v{T0}
    v_sub_f32 v{NEGM}, 0, v{T1}
    s_mov_b32 s{flagreg}, 2
    """)
    rebuild()
    A(f"s_waitcnt lgkmcnt(0)\ns_branch {back}")

def dma_patterns(A):
    A(f"""
    v_and_b32 v3, 15, v1
    v_bfe_u32 v4, v1, 4, 1
    v_lshlrev_b32 v6, 3, v4
    v_mul_u32_u24 v4, 768, v4
    v_lshl_add_u32 v5, v3, 4, v4
    v_lshl_add_u32 v6, v3, 4, v6
    v_add_u32 v6, 504, v6
    v_cmp_gt_u32 vcc, 32, v1
    v_add_u32 v7, 256, v5
    v_add_u32 v8, {2*QK_TILE}, v5
    v_add_u32 v9, {2*QK_TILE}, v7
    v_add_u32 v10, {2*QK_TILE}, v6
    v_cndmask_b32 v12, v7, v5, vcc
    v_cndmask_b32 v13, v8, v6, vcc
    v_cndmask_b32 v14, v10, v9, vcc
    s_mov_b32 s12, 0x15555556
    """)
    for ty in range(3):
        A(f"""
        v_add_u32 v3, {ty*64}, v1
        v_mul_hi_u32 v4, v3, s12
        v_mul_u32_u24 v5, 12, v4
        v_sub_u32 v5, v3, v5
        v_lshrrev_b32 v6, 2, v5
        v_and_b32 v5, 3, v5
        v_lshl_add_u32 v5, v4, 2, v5
        v_lshrrev_b32 v7, 5, v5
        v_mul_u32_u24 v7, 1280, v7
        v_lshrrev_b32 v9, 1, v6
        v_mul_u32_u24 v9, 760, v9
        v_sub_u32 v9, 768, v9
        v_bfe_u32 v8, v5, 4, 1
        v_mad_u32_u24 v7, v8, v9, v7
        v_and_b32 v5, 15, v5
        v_lshl_add_u32 v7, v5, 4, v7
        v_lshl_add_u32 v{15+ty}, v6, 8, v7
        """)

P3COORD = """s_and_b32 s12, s2, 3
    s_lshl_b32 s9, s12, 2
    s_bfe_u32 s12, s2, 0x20003
    s_add_u32 s9, s9, s12
    s_lshr_b32 s10, s2, 5
    s_lshr_b32 s11, s10, 1"""
P3COORD = P3COORD.replace("s_lshr_b32 s11, s10, 1", "s_mov_b32 s11, 2")
def cb_init(A):
    A("s_cmp_eq_u32 s4, 0\ns_cselect_b64 s[88:89], exec, 0\ns_nop 1")
    for r in range(16): A(f"v_cndmask_b32 v{CB+r}, v{NEGM}, v{NINF}, s[88:89]")
def wo_patterns(A, quads):
    A("s_mov_b32 s12, 0x1999999a")
    for i in range(5):
        A(f"""
        v_add_u32 v8, {i*64}, v1
        v_mul_hi_u32 v9, v8, s12
        v_mul_u32_u24 v10, 10, v9
        v_sub_u32 v10, v8, v10
        v_bfe_u32 v11, v9, 2, 2
        v_lshlrev_b32 v11, 3, v11
        v_bfe_u32 v12, v9, 4, 1
        v_lshl_add_u32 v11, v12, 2, v11
        v_and_b32 v12, 3, v9
        v_add_u32 v11, v11, v12
        v_lshrrev_b32 v12, 4, v11
        v_lshl_add_u32 v12, v12, 2, v11
        v_mul_u32_u24 v12, 1280, v12
        v_lshl_add_u32 v{WA+i}, v10, 4, v12
        """)
        if quads: A(f"""
        v_lshrrev_b32 v12, 2, v11
        v_lshl_add_u32 v12, v12, 4, v11
        v_add_u32 v12, 16, v12
        v_mul_u32_u24 v12, 1280, v12
        v_lshl_add_u32 v{WA+5+i}, v10, 4, v12
        """)
        else: A(f"v_mov_b32 v{WA+5+i}, v{WA+i}")
ROT = 4
HEADCODE = "s_and_b32 s3, s2, 7\ns_lshl_b32 s3, s3, 2\ns_bfe_u32 s4, s2, 0x20003\ns_or_b32 s3, s3, s4\ns_lshr_b32 s4, s2, 5"
ROTCODE = {
 10: """s_mul_i32 s12, s11, 5
    s_lshr_b32 s12, s12, 1
    s_mul_i32 s13, s10, 5
    s_lshr_b32 s13, s13, 2
    s_add_u32 s12, s12, s13
    s_cmp_ge_u32 s12, 10
    s_cselect_b32 s13, 10, 0
    s_sub_u32 s12, s12, s13""",
 1: "s_mov_b32 s12, 0",
 5: "s_add_u32 s12, s10, s7\ns_mul_i32 s13, s12, 52\ns_lshr_b32 s13, s13, 8\ns_mul_i32 s13, s13, 5\ns_sub_u32 s12, s12, s13\ns_lshl_b32 s12, s12, 1",
 6: "s_add_u32 s12, s6, s7\ns_mul_i32 s13, s12, 52\ns_lshr_b32 s13, s13, 8\ns_mul_i32 s13, s13, 5\ns_sub_u32 s12, s12, s13\ns_lshl_b32 s12, s12, 1",
 2: "s_add_u32 s12, s10, s11\ns_and_b32 s12, s12, 1\ns_mul_i32 s12, s12, 5",
 4: "s_add_u32 s12, s10, s11\ns_and_b32 s12, s12, 3\ns_mul_i32 s12, s12, 5\ns_lshr_b32 s12, s12, 1",
 3: "s_add_u32 s12, s10, s11\ns_mul_i32 s13, s12, 43\ns_lshr_b32 s13, s13, 7\ns_mul_i32 s13, s13, 3\ns_sub_u32 s12, s12, s13\ns_mul_i32 s12, s12, 7\ns_lshr_b32 s12, s12, 1",
}
def gen(A):
    A.begin(MAIN)
    if 'lst' in DBG: A("s_memtime s[98:99]")
    prologue(A, "K_end")
    if 'lst' not in DBG: stamp(A, 0)
    A("s_cmp_lt_u32 s28, 4\ns_cbranch_scc1 P1_consumer")
    A(f"""
    s_sub_u32 s29, s28, 4
    v_lshrrev_b32 v2, 5, v1
    v_and_b32 v3, 31, v1
    v_mul_u32_u24 v2, 15360, v2
    v_mul_u32_u24 v6, 26, v3
    v_lshrrev_b32 v6, 8, v6
    s_cmp_eq_u32 s5, 0
    s_cselect_b32 s15, 1120, 0
    s_cselect_b32 s14, 160, 480
    v_mul_lo_u32 v6, v6, s15
    v_lshl_add_u32 v2, v3, 4, v2
    v_add_u32 v2, v2, v6
    v_mov_b32 v4, {OOB}
    v_cmp_gt_u32 vcc, 30, v3
    v_lshrrev_b32 v5, 3, v1
    v_mul_u32_u24 v5, 1280, v5
    v_cndmask_b32 v8, v4, v2, vcc
    v_and_b32 v3, 7, v1
    v_lshrrev_b32 v4, 4, v1
    v_xor_b32 v3, v3, v4
    v_lshl_add_u32 v9, v3, 4, v5
    v_xor_b32 v3, 4, v3
    v_lshl_add_u32 v10, v3, 4, v5
    {ROTCODE[ROT]}
    s_mul_i32 s13, s29, {8*3840}
    s_mul_i32 s14, s7, s14
    s_add_u32 s13, s13, s14
    s_lshl_b32 s14, s6, 7
    s_lshl_b32 s15, s29, 5
    s_add_u32 s14, s14, s15
    s_mul_i32 s14, s14, 1280
    s_mul_i32 s30, s29, {4*PIECE}
    s_lshl_b32 s31, s29, 12
    s_add_u32 s31, s31, {XOFF}
    s_mul_i32 s26, s12, 245760
    s_add_u32 s26, s26, s13
    s_lshl_b32 s27, s12, 7
    s_add_u32 s27, s27, s14
    s_mov_b32 s25, 0
    s_mov_b32 s51, 0
    s_cmp_eq_u32 s5, 0
    {"s_memtime s[96:97]" if 'lst' in DBG else ""}
    s_waitcnt lgkmcnt(0)
    {"v_writelane_b32 v255, s96, 14" if 'lst' in DBG else ""}
    s_cselect_b32 s16, s32, s38
    s_cselect_b32 s17, s33, s39
    s_cselect_b32 s20, s34, s40
    s_cselect_b32 s21, s35, s41
    s_and_b32 s17, s17, 0xffff
    s_mov_b32 s18, 2621440
    s_mov_b32 s19, 0x20000
    s_and_b32 s21, s21, 0xffff
    s_mov_b32 s22, 2457600
    s_mov_b32 s23, 0x20000
    """.replace("s_cselect_b32 s14, 160, 480", "s_movk_i32 s14, 480\ns_cselect_b32 s14, 160, s14"))
    def wpiece(sub, r):
        A(f"s_add_u32 m0, s30, {(sub*16 + r)*PIECE}\ns_add_u32 s50, s26, {(32*sub + r)*3840}\nbuffer_load_dwordx4 v8, s[20:23], s50 offen lds")
    def xpiece(j):
        A(f"s_add_u32 m0, s31, {j*1024}\ns_add_u32 s50, s27, {j*8*1280}\nbuffer_load_dwordx4 v{9 + (j & 1)}, s[16:19], s50 offen lds")
    def F():
        xpiece(0); wpiece(0, 0); xpiece(1); wpiece(0, 1); xpiece(2); xpiece(3)
    def S():
        wpiece(0, 2); wpiece(0, 3)
        for r in range(4): wpiece(1, r)
    for d in DBG:
        if d.startswith('adel'): A(f"s_cmp_lg_u32 s5, 0\ns_cbranch_scc1 P1_lf\ns_sleep {d[4:]}")
    if 'lst' in DBG: stamp(A, 10); A("v_writelane_b32 v255, s98, 0")
    A("s_branch P1_lf")
    A("P1_lloop:")
    S()
    A(f"""
    s_add_u32 s12, s12, 1
    s_cmp_eq_u32 s12, 10
    s_cselect_b32 s12, 0, s12
    s_mul_i32 s26, s12, 245760
    s_add_u32 s26, s26, s13
    s_lshl_b32 s27, s12, 7
    s_add_u32 s27, s27, s14
    s_add_u32 s25, s25, 1
    s_cmp_eq_u32 s25, 3
    s_cselect_b32 s25, 0, s25
    s_mov_b32 s50, {SLOT}
    s_cselect_b32 s50, {-2*SLOT & 0xffffffff}, s50
    s_add_u32 s30, s30, s50
    s_add_u32 s31, s31, s50
    s_add_u32 s51, s51, 1
    s_cmp_eq_u32 s51, 10
    s_cbranch_scc1 P1_llast
    P1_lf:
    """)
    F()
    A("""
    s_cmp_eq_u32 s51, 0
    s_cbranch_scc1 P1_lloop
    """)
    if 'lst' in DBG and STAMP: A("s_cmp_lg_u32 s51, 1\ns_cbranch_scc1 LST1"); stamp(A, 11); A("LST1:")
    A("""
    s_waitcnt vmcnt(6)
    s_barrier
    LSTG
    s_branch P1_lloop
    P1_llast:
    s_waitcnt vmcnt(0)
    s_barrier
    """)
    stamp(A, 1)
    epoch_share(A)
    A(f"""
    s_bitcmp0_b32 s2, 2
    s_cselect_b32 s16, s36, s42
    s_cselect_b32 s17, s37, s43
    s_and_b32 s17, s17, 0xffff
    s_mov_b32 s18, 819200
    s_lshr_b32 s12, s2, 3
    s_lshl_b32 s12, s12, 2
    s_add_u32 s12, s12, s29
    s_mul_i32 s12, s12, 6400
    v_lshlrev_b32 v2, 7, v1
    v_mov_b32 v3, {OOB}
    v_cmp_gt_u32 vcc, 50, v1
    s_nop 1
    v_cndmask_b32 v2, v3, v2, vcc
    buffer_load_dword v254, v2, s[16:19], s12 offen
    buffer_load_dword v254, v2, s[16:19], s12 offen offset:64
    """)
    setup2(A)
    wo_patterns(A, False)
    dma_patterns(A)
    flag_srd(A)
    A(f"""
    {HEADCODE}
    """)
    build_CA(A)
    cb_init(A)
    A(f"""
    s_lshl_b32 s12, s4, 4
    s_add_u32 s12, s12, 128
    v_add_u32 v2, s12, v1
    v_lshlrev_b32 v2, 9, v2
    s_lshl_b32 s12, s3, 3
    s_and_b32 s13, s3, 24
    s_lshl_b32 s13, s13, 3
    s_add_u32 s12, s12, s13
    s_add_u32 s12, s12, {MB2}
    v_add_u32 v2, s12, v2
    v_mov_b32 v3, {OOB}
    v_cmp_gt_u32 vcc, 16, v1
    v_mov_b32 v58, v3
    v_mov_b32 v59, v3
    v_cndmask_b32 v19, v3, v2, vcc
    """)
    A(f"""
    v_cmp_lt_u32 vcc, 11, v1
    v_mov_b32 v2, 0
    v_mov_b32 v3, 1
    v_cndmask_b32 v2, v2, v3, vcc
    v_mul_u32_u24 v3, 12, v2
    v_sub_u32 v3, v1, v3
    s_mul_i32 s12, s7, 12
    v_add_u32 v3, s12, v3
    v_lshrrev_b32 v4, 5, v3
    v_and_b32 v3, 31, v3
    s_lshr_b32 s12, s6, 1
    v_add_u32 v5, s12, v2
    v_lshl_add_u32 v3, v5, 5, v3
    s_and_b32 s12, s6, 1
    s_add_u32 s12, s12, 2
    v_lshlrev_b32 v2, 1, v2
    v_sub_u32 v2, s12, v2
    v_lshl_add_u32 v2, v2, 4, v4
    v_lshlrev_b32 v2, 3, v2
    v_lshl_add_u32 v2, v3, 9, v2
    v_cmp_gt_u32 vcc, 8, v5
    v_cmp_gt_u32 s[88:89], 24, v1
    v_mov_b32 v3, {OOB}
    s_and_b64 vcc, vcc, s[88:89]
    s_cmp_lg_u32 s28, 4
    s_cselect_b64 vcc, 0, vcc
    s_nop 0
    v_cndmask_b32 v18, v3, v2, vcc
    """)
    A(f"""
    s_lshl_b32 s12, s4, 5
    s_add_u32 s12, s12, s3
    s_lshl_b32 s12, s12, 9
    s_lshl_b32 s13, s29, 7
    s_add_u32 s12, s12, s13
    s_add_u32 s40, s12, {FLAG_BASE + MB1}
    s_lshl_b32 s13, s29, 3
    s_mul_i32 s14, s3, {HS}
    s_lshl_b32 s15, s4, 4
    s_add_u32 s14, s14, s15
    s_add_u32 s14, s14, s13
    s_sub_u32 s14, s14, 16
    s_mul_i32 s26, s14, {QK_TILE}
    s_mul_i32 s27, s14, {V_TILE}
    s_add_u32 s27, s27, {V_OFF}
    s_add_u32 s15, s15, s13
    s_cmp_lt_u32 s15, 16
    s_cselect_b32 s26, 0x70000000, s26
    s_cselect_b32 s27, 0x70000000, s27
    s_cselect_b32 s31, 7, 0
    s_cmp_ge_u32 s29, 2
    s_cselect_b32 s30, 7, 6
    s_mul_i32 s25, s29, {4*BLK}
    """)
    A(f"""
    v_lshrrev_b32 v52, 2, v1
    v_mul_u32_u24 v52, 192, v52
    v_and_b32 v53, 3, v1
    v_lshl_add_u32 v52, v53, 4, v52
    s_add_u32 s12, s25, {L_BV + 136}
    v_add_u32 v53, s12, v52
    s_mul_i32 s12, s29, {HD}
    s_add_u32 s12, s12, {L_A + 9*BLK + 136}
    v_add_u32 v52, s12, v52
    v_mov_b32 v54, 0x3f803f80
    v_mov_b32 v55, 0x3f803f80
    s_mov_b64 s[46:47], s[36:37]
    s_cmp_eq_u32 s6, 0
    s_cselect_b32 s12, 8, {8 if 'nohalo' in DBG else 0}
    s_or_b32 s31, s31, s12
    s_cmp_eq_u32 s5, 0
    s_cselect_b32 s12, 8, 0
    s_or_b32 s30, s30, s12
    s_add_u32 s12, s48, {QKV_BYTES}
    s_addc_u32 s13, s49, 0
    """)
    srd(A, 20, 12, 13, QKV_BYTES)
    srd(A, 16, 48, 49, QKV_BYTES)
    A("s_barrier")
    epoch_read(A)
    stamp(A, 2)
    A("s_cmp_eq_u32 s5, 0\ns_cbranch_scc1 L_nf")
    flag_store(A, 18)
    A("L_nf:")
    A(f"""
    s_mov_b32 s11, 0
    PL_b:
    s_load_dwordx8 s[32:39], s[48:49], s40 glc
    PL_b2:
    s_add_u32 s11, s11, 1
    s_cmp_ge_u32 s11, {SPIN_LIMIT}
    s_cselect_b32 s12, 15, s31
    s_waitcnt lgkmcnt(0)
    s_cmp_eq_u64 s[32:33], s[0:1]
    s_cselect_b32 s13, 1, 0
    s_or_b32 s12, s12, s13
    s_cmp_eq_u64 s[34:35], s[0:1]
    s_cselect_b32 s13, 2, 0
    s_or_b32 s12, s12, s13
    s_cmp_eq_u64 s[36:37], s[0:1]
    s_cselect_b32 s13, 4, 0
    s_or_b32 s12, s12, s13
    s_cmp_eq_u64 s[38:39], s[0:1]
    s_cselect_b32 s13, 8, 0
    s_or_b32 s12, s12, s13
    s_and_b32 s12, s12, s30
    s_bitcmp1_b32 s12, 3
    s_cbranch_scc0 PB_h
    s_mov_b64 s[90:91], exec
    s_lshl_b32 s15, s7, 2
    s_add_u32 s15, s15, s29
    s_mul_i32 s15, s15, {HS}
    s_lshl_b32 s13, s6, 3
    s_add_u32 s15, s15, s13
    s_sub_u32 s15, s15, 2
    s_mul_i32 s14, s29, {HD}
    """)
    for (areg, tb, off, lds) in ((12, QK_TILE, K_OFF, 0), (15, V_TILE, V_OFF, 9 * BLK)):
        A(f"""
        s_mul_i32 s13, s15, {tb}
        s_add_u32 s13, s13, {off}
        s_cmp_eq_u32 s6, {'s6' if 'nohalo' in DBG else 0}
        s_cselect_b32 s13, 0x70000000, s13
        s_add_u32 m0, s14, {L_A + lds}
        s_nop 0
        buffer_load_dwordx4 v{areg}, s[16:19], s13 offen sc1 lds
        s_add_u32 m0, s14, {L_A + lds + 1024}
        s_mov_b32 exec_hi, 0
        buffer_load_dwordx4 v{areg+1}, s[16:19], s13 offen sc1 lds
        s_mov_b64 exec, s[90:91]
        """)
    A("PB_h:")
    for m, (areg, sreg, soff, tb, lds) in enumerate(((12, 26, 0, QK_TILE, L_BQ - 8 * BLK), (12, 26, K_OFF, QK_TILE, L_BK), (15, 27, 0, V_TILE, L_BV))):
        A(f"s_bitcmp1_b32 s12, {m}\ns_cbranch_scc0 PB_{m}")
        for u in range(2):
            A(f"s_add_u32 s13, s{sreg}, {soff + u*4*tb}")
            for ty in range(3):
                A(f"s_add_u32 m0, s25, {lds + u*3072 + ty*1024}\ns_nop 0\nbuffer_load_dwordx4 v{areg+ty}, s[20:23], s13 offen sc1 lds")
        A(f"PB_{m}:")
    A(f"""
    s_andn2_b32 s30, s30, s12
    s_bitcmp1_b32 s12, 3
    s_cbranch_scc0 L_nh
    s_mov_b32 s8, s25
    s_mov_b32 s9, s26
    s_mov_b32 s10, s27
    s_mov_b32 s15, s29
    s_mov_b32 s16, 0
    s_add_u32 s12, s48, {O_BASE}
    s_addc_u32 s13, s49, 0
    s_waitcnt vmcnt(0)
    ds_write_b64 v52, v[54:55]
    """)
    stamp(A, 3)
    A(f"""
    s_branch P2_a_enter
    L_Aret:
    s_mov_b32 s25, s8
    s_mov_b32 s26, s9
    s_mov_b32 s27, s10
    """)
    stamp(A, 4)
    A(f"""
    s_branch PL_b2
    L_nh:
    s_cmp_lg_u32 s30, 0
    s_cbranch_scc0 PD_b
    {f"s_sleep {PSLEEP}" if PSLEEP else ""}
    s_branch PL_b
    PD_b:
    """)
    stamp(A, 5)
    A("s_branch P2_pre")

    A("P1_consumer:")
    ACC = 8; WR = 128; XF = 168; AW0 = 184; AX0 = 185; AX1 = 186; AW = 187; AXa = 188; AXb = 189
    def acc(grp, t, rt): return ACC + ((grp * 5 + t) * 2 + rt) * 4
    if 'pf' in DBG:
        A(f"""
        s_cmp_eq_u32 s28, 1
        s_cbranch_scc0 PF_w
        s_lshl_b32 s12, s6, 2
        s_and_b32 s13, s7, 3
        s_add_u32 s12, s12, s13
        s_mul_i32 s12, s12, 40960
        v_lshlrev_b32 v2, 7, v1
        v_add_u32 v2, s12, v2
        s_movk_i32 s14, 8192
        s_cmp_eq_u32 s5, 0
        s_waitcnt lgkmcnt(0)
        s_cselect_b32 s12, s32, s38
        s_cselect_b32 s13, s33, s39
        s_branch PF_go
        PF_w:
        s_cmp_eq_u32 s28, 2
        s_cbranch_scc0 PF_end
        v_min_u32 v3, 59, v1
        v_mul_u32_u24 v4, 0x1112, v3
        v_lshrrev_b32 v4, 16, v4
        v_mul_u32_u24 v5, 15, v4
        v_sub_u32 v5, v3, v5
        v_mul_u32_u24 v6, 52, v5
        v_lshrrev_b32 v6, 8, v6
        s_cmp_eq_u32 s5, 0
        s_cselect_b32 s12, 640, 0
        s_movk_i32 s13, 1920
        s_cselect_b32 s13, 640, s13
        v_mul_lo_u32 v6, v6, s12
        v_lshl_add_u32 v2, v5, 7, v6
        v_mul_u32_u24 v4, 3840, v4
        v_add_u32 v2, v2, v4
        s_lshr_b32 s12, s7, 2
        s_mul_i32 s13, s13, s12
        s_lshr_b32 s12, s2, 3
        s_mul_i32 s12, s12, {20*3840}
        s_add_u32 s12, s12, s13
        v_add_u32 v2, s12, v2
        s_movk_i32 s14, 15360
        s_cmp_eq_u32 s5, 0
        s_waitcnt lgkmcnt(0)
        s_cselect_b32 s12, s34, s40
        s_cselect_b32 s13, s35, s41
        PF_go:
        """)
        for j in range(5):
            A(f"global_load_dword v254, v2, s[12:13]")
            if j < 4: A("v_add_u32 v2, s14, v2")
        A("PF_end:")
    epoch_get(A)
    A(f"""
    v_lshrrev_b32 v2, 2, v1
    v_mul_u32_u24 v2, {PIECE}, v2
    v_and_b32 v3, 3, v1
    v_mul_u32_u24 v3, 40, v3
    v_add_u32 v{AW0}, v2, v3
    v_and_b32 v2, 15, v1
    v_lshrrev_b32 v3, 4, v1
    v_lshrrev_b32 v4, 1, v2
    v_xor_b32 v3, v3, v4
    s_lshl_b32 s12, s28, 12
    s_add_u32 s12, s12, {XOFF}
    v_lshlrev_b32 v2, 7, v2
    v_add_u32 v2, s12, v2
    v_lshl_add_u32 v{AX0}, v3, 4, v2
    v_xor_b32 v3, 4, v3
    v_lshl_add_u32 v{AX1}, v3, 4, v2
    v_mov_b32 v{AW}, v{AW0}
    v_mov_b32 v{AXa}, v{AX0}
    v_mov_b32 v{AXb}, v{AX1}
    """)
    for r in range(ACC, XF + 16, 2):
        A(f"v_pk_mov_b32 v[{r}:{r+1}], 0, 0")
    setup2(A)
    build_CA(A)
    A(f"""
    s_waitcnt lgkmcnt(0)
    s_mul_i32 s12, s5, {QKV_BYTES}
    s_add_u32 s12, s48, s12
    s_addc_u32 s13, s49, 0
    """)
    srd(A, 16, 12, 13, QKV_BYTES)
    flag_srd(A)
    A(f"""
    v_and_b32 v2, 15, v1
    v_lshrrev_b32 v3, 4, v1
    s_lshl_b32 s12, s6, 3
    s_lshl_b32 s13, s28, 1
    s_add_u32 s12, s12, s13
    v_mul_u32_u24 v252, {HD}, v3
    v_mul_u32_u24 v3, {HS}, v3
    v_add_u32 v3, s12, v3
    v_mul_u32_u24 v4, {QK_TILE}, v3
    v_lshl_add_u32 v4, v2, 4, v4
    v_mov_b32 v7, {f32bits(SCALE_L2E)}
    v_mov_b32 v6, v7
    s_mul_i32 s13, s7, 12
    s_mul_i32 s12, s28, {BLK}
    s_add_u32 s12, s12, {L_A}
    v_add_u32 v252, s12, v252
    v_lshrrev_b32 v3, 2, v2
    v_mul_u32_u24 v3, 192, v3
    v_and_b32 v253, 3, v2
    v_lshl_add_u32 v3, v253, 4, v3
    v_add_u32 v253, v252, v3
    v_lshl_add_u32 v252, v2, 4, v252
    v_mov_b32 v2, 0
    v_mov_b32 v3, 0
    """)
    if 'tlb' in DBG:
        A(f"""
        s_cmp_lg_u32 s28, 1
        s_cbranch_scc1 P1_nt
        v_mul_u32_u24 v246, {0x80000 if 'tlb2' not in DBG else 0x68000}, v1
        v_mul_u32_u24 v247, 81920, v1
        global_load_dword v248, v246, s[48:49]
        global_load_dword v249, v247, s[44:45]
        P1_nt:
        """)
    A("s_mov_b32 s25, 0\ns_mov_b32 s51, 0\ns_sub_u32 s24, 10, s5")
    stamp(A, 1)
    units = [(sub, grp, t) for sub in range(2) for grp in range(3) for t in range(5)]
    def rd(u, hf):
        sub, grp, t = units[u]
        b = WR + (u % 10) * 4
        off = sub * 16 * PIECE + hf * 512 + grp * 160 + 8 * t
        A.lds(f"ds_read_b64_tr_b16 {vr(b + 2*hf, 2)}, v{AW} offset:{off}", ('w', u))
    def rdx(sub, rt):
        A.lds(f"ds_read_b128 {vr(XF + (sub*2+rt)*4, 4)}, v{AXa if sub == 0 else AXb} offset:{rt*2048}", ('x', sub))
    def mm(u, rt):
        sub, grp, t = units[u]
        b = WR + (u % 10) * 4
        a = acc(grp, t, rt)
        A(f"v_mfma_f32_16x16x32_bf16 {vr(a,4)}, {vr(b,4)}, {vr(XF + (sub*2+rt)*4, 4)}, {vr(a,4)}")
    L = P1_LOOK
    def body(emit):
        save = A.out
        if not emit: A.out = []
        for step in range(30):
            u = (step - L) % 30
            g_ = 1 if step >= L else 0
            tags = [('x', units[u][0]) if g_ else ('px', units[u][0]), ('w', u) if g_ else ('pw', u)]
            if WB and step % WB == 0:
                for d in range(1, WB):
                    if step + d < 30:
                        u2 = (step + d - L) % 30; g2 = step + d >= L
                        if not (g2 and u2 >= step): tags += [('x', units[u2][0]) if g2 else ('px', units[u2][0]), ('w', u2) if g2 else ('pw', u2)]
            A.lds_wait(*tags)
            mm(u, 0)
            if step == 0: rdx(0, 0)
            if step == L + 2: rdx(1, 0)
            rd(step, 0)
            if step == 26:
                A(f"s_add_u32 s25, s25, {SLOT}\ns_cmp_eq_u32 s25, {3*SLOT}\ns_cselect_b32 s25, 0, s25")
            if step == 27:
                A(f"v_add_u32 v{AXa}, s25, v{AX0}")
            if step == 28:
                A(f"v_add_u32 v{AXb}, s25, v{AX1}")
            mm(u, 1)
            if step == 0: rdx(0, 1)
            if step == L + 2: rdx(1, 1)
            rd(step, 1)
            if step == 28:
                A("s_add_u32 s51, s51, 1\ns_cmp_lt_u32 s51, s24")
        A(f"v_add_u32 v{AW}, s25, v{AW0}")
        A.lds_q = [('p' + t[0], t[1]) for t in A.lds_q]
        if not emit: A.out = save
    A.lds_q = []
    body(False)
    if P3AL:
        A("s_branch P1_cloop")
        A.out.append("    .p2align 10")
    A("P1_cloop:")
    A("s_barrier")
    if STAMP and 'stg' in DBG:
        A("s_memtime s[100:101]\ns_add_u32 m0, s51, 16\ns_waitcnt lgkmcnt(0)\nv_writelane_b32 v255, s100, m0")
    body(True)
    A("s_cbranch_scc1 P1_cloop")
    q_loop = list(A.lds_q)
    A("s_cmp_eq_u32 s5, 0\ns_cbranch_scc1 P1_epiA")
    def pack(grp, TB):
        for rt in range(2):
            T = TB + rt * 12
            for t in range(5):
                a = acc(grp, t, rt)
                A(f"v_cvt_pk_bf16_f32 v{T+2*t}, v{a}, v{a+1}\nv_cvt_pk_bf16_f32 v{T+2*t+1}, v{a+2}, v{a+3}")
    def store_qk(TB, soff):
        A(f"v_mov_b32 v{TB+10}, v{TB+20}\nv_mov_b32 v{TB+11}, v{TB+21}")
        for rt in range(2):
            T = TB + rt * 12
            A(f"buffer_store_dwordx4 {vr(T,4)}, v4, s[16:19], s{soff} offen offset:{rt*768} sc1")
            A(f"buffer_store_dwordx4 {vr(T+4,4)}, v4, s[16:19], s{soff} offen offset:{rt*768+256} sc1")
        A(f"buffer_store_dwordx4 {vr(TB+8,4)}, v4, s[16:19], s{soff} offen offset:512 sc1")
    def ones(TB):
        for rt in range(2):
            T = TB + rt * 12
            A(f"v_mov_b32 v{T+10}, 0x3f803f80\nv_mov_b32 v{T+11}, 0x3f803f80")
    def store_v(TB, soff):
        for rt in range(2):
            T = TB + rt * 12
            for p in range(3):
                A(f"buffer_store_dwordx4 {vr(T+4*p,4)}, v5, s[16:19], s{soff} offen offset:{rt*V_TILE+256*p} sc1")
    def scale(grp):
        for r in range(acc(grp, 0, 0), acc(grp, 0, 0) + 40, 2):
            A(f"v_pk_mul_f32 v[{r}:{r+1}], v[6:7], v[{r}:{r+1}]")
    TBS = [WR, 190, WR + 24]
    A("s_barrier")
    order = [sub*15 + grp*5 + t for grp in range(3) for sub in range(2) for t in range(5)]
    TB2 = [190, ACC, ACC + 40]
    def epi(grp):
        TB = TB2[grp]; l = []
        sc = "\n".join(f"v_pk_mul_f32 v[{r}:{r+1}], v[6:7], v[{r}:{r+1}]" for r in range(acc(grp, 0, 0), acc(grp, 0, 0) + 40, 2))
        l.append(f"s_add_u32 s14, s13, {4*grp}\ns_mul_i32 s20, s14, {HS*QK_TILE}\ns_cmp_ge_u32 s14, 32\ns_cbranch_scc1 P1_ns{grp}\n{sc}\nP1_ns{grp}:")
        for rt in range(2):
            T = TB + rt * 12
            for t in range(5):
                a = acc(grp, t, rt); d = TB + 10 if (rt == 1 and t == 4) else T + 2*t
                l += [f"v_cvt_pk_bf16_f32 v{d}, v{a}, v{a+1}", f"v_cvt_pk_bf16_f32 v{d+1}, v{a+2}, v{a+3}"]
                if t == 1: l.append(f"buffer_store_dwordx4 {vr(T,4)}, v4, s[16:19], s20 offen offset:{rt*768} sc1")
                if t == 3: l.append(f"buffer_store_dwordx4 {vr(T+4,4)}, v4, s[16:19], s20 offen offset:{rt*768+256} sc1")
        l.append(f"buffer_store_dwordx4 {vr(TB+8,4)}, v4, s[16:19], s20 offen offset:512 sc1")
        return l
    def rd2(k, hf):
        sub, grp, t = units[order[k]]
        off = sub * 16 * PIECE + hf * 512 + grp * 160 + 8 * t
        A.lds(f"ds_read_b64_tr_b16 {vr(WR + (k % 10) * 4 + 2*hf, 2)}, v{AW} offset:{off}", ('w', k))
    def mm2(k, rt):
        sub, grp, t = units[order[k]]
        a = acc(grp, t, rt)
        A(f"v_mfma_f32_16x16x32_bf16 {vr(a,4)}, {vr(WR + (k % 10) * 4,4)}, {vr(XF + (sub*2+rt)*4, 4)}, {vr(a,4)}")
    fill = []
    for step in range(30 + L):
        k = step - L
        if k < 0: A.lds_wait(('px', 1), ('pw', 30 + k))
        else: A.lds_wait(('x', units[order[k]][0]), ('w', k))
        if k in (12, 22): fill = epi(k // 10 - 1)
        for rt in range(2):
            if k < 0: mm(30 + k, rt)
            else: mm2(k, rt)
            if step == 0: rdx(0, rt)
            if step == L + 1: rdx(1, rt)
            if step < 30: rd2(step, rt)
            for _ in range(2):
                if fill: A(fill.pop(0))
    assert not fill
    stamp(A, 2)
    A("s_nop 7")
    for x in epi(2): A(x)
    stamp(A, 3)
    A("s_waitcnt vmcnt(0)\ns_barrier")
    stamp(A, 4)
    epoch_read(A)
    A("s_branch P2_cd")
    A("P1_epiA:")
    A.lds_q = list(q_loop)
    for u in range(30 - L, 30):
        A.lds_wait(('pw', u))
        mm(u, 0); mm(u, 1)
    stamp(A, 2)
    A("s_nop 3")
    pack(1, TBS[1]); pack(2, TBS[2])
    A(f"""
    s_cmp_lg_u32 s28, {9 if 'nohalo' in DBG else 3}
    s_cbranch_scc1 P1_nh
    s_lshl_b32 s14, s7, 2
    s_mul_i32 s20, s14, {HS*QK_TILE}
    s_add_u32 s20, s20, {K_OFF}
    s_mul_i32 s21, s14, {HS*V_TILE}
    s_add_u32 s21, s21, {V_OFF}
    """)
    store_qk(TBS[1], 20); store_qk(TBS[2], 21)
    A("s_nop 1\nP1_nh:")
    ones(TBS[2])
    def img_qk(grp, base):
        for rt in range(2):
            T = TBS[grp] + rt * 12
            A(f"ds_write_b128 v252, {vr(T,4)} offset:{base + rt*256}")
            A(f"ds_write_b128 v252, {vr(T+4,4)} offset:{base + rt*256 + 512}")
            A(f"ds_write_b64 v252, {vr(T+8,2)} offset:{base + rt*256 + 1024 + 8}")
            A(f"ds_write_b64 v252, v[2:3] offset:{base + rt*256 + 1024}")
    img_qk(1, BLK)
    for rt in range(2):
        T = TBS[2] + rt * 12
        for p in range(3):
            A(f"ds_write_b128 v253, {vr(T+4*p,4)} offset:{10*BLK + rt*768 + p*64}")
    scale(0); pack(0, TBS[0])
    img_qk(0, 5 * BLK)
    A(f"""
    s_add_u32 s12, s48, {O_BASE}
    s_addc_u32 s13, s49, 0
    s_mov_b32 s15, s28
    s_mov_b32 s16, 1
    s_mov_b32 s40, {FLAG_BASE}
    """)
    stamp(A, 3)
    A("s_waitcnt lgkmcnt(0)\ns_barrier")
    stamp(A, 4)
    epoch_read(A)
    A(f"""
    s_cmp_lg_u32 s28, {9 if 'nohalo' in DBG else 3}
    s_cbranch_scc1 P2_a_enter
    s_and_b32 s21, s6, {3 if 'mix' in DBG else 7}
    s_cmp_eq_u32 s21, {3 if 'mix' in DBG else 7}
    s_cselect_b32 s21, {-22 if 'mix' in DBG else -52 if 'mix2' in DBG else -54}, 8
    s_add_u32 s21, s21, s2
    s_and_b32 s20, s21, 7
    s_lshl_b32 s20, s20, 2
    s_bfe_u32 s22, s21, 0x20003
    s_or_b32 s20, s20, s22
    s_andn2_b32 s21, s21, 31
    s_or_b32 s21, s21, s20
    s_lshl_b32 s21, s21, 9
    s_add_u32 s21, s21, {MB1 + 24}
    s_cmp_lt_u32 s6, 15
    s_cselect_b32 s21, s21, {OOB}
    v_min_u32 v2, 3, v1
    v_lshlrev_b32 v2, 7, v2
    v_add_u32 v2, s21, v2
    s_waitcnt vmcnt(0)
    """)
    flag_store(A, 2)
    A("P2_a_enter:")
    srd(A, 24, 12, 13, 2 * O_BYTES)
    A(f"""
    s_mul_i32 s14, s15, {HD}
    s_add_u32 s14, s14, {L_A}
    s_lshl_b32 s12, s7, 2
    s_add_u32 s15, s15, s12
    P2_a_unit:
    s_mul_i32 s12, s16, {BLK}
    s_add_u32 s12, s12, s14
    v_add_u32 v{AK}, s12, v{LK}
    s_add_u32 s13, s12, {9*BLK}
    v_add_u32 v{AV}, s13, v{LV}
    v_add_u32 v{AQ}, {5*BLK}, v{AK}
    s_lshl_b32 s12, s6, 3
    s_lshl_b32 s13, s16, 1
    s_add_u32 s17, s12, s13
    s_or_b32 s87, s6, s16
    P2_a_start:
    """)
    A.lds_q = []
    rdQ(A); rdK(A, 0, 0); rdK(A, 1, 1); rdV(A, 0, 0); rdV(A, 1, 1)
    oaddr(A, 15, 17)
    A.lds_wait(('q', 0))
    maskQ(A)
    A.lds_wait(('k', 0))
    qk(A, 0, 0, SA, CA); qk(A, 1, 0, SA, CA)
    A.lds_wait(('k', 1))
    qk(A, 0, 1, SB, CA); qk(A, 1, 1, SB, CA)
    A("s_cmp_eq_u32 s87, 0\ns_nop 7\ns_cbranch_scc1 P2_a_inv")
    A("P2_a_val:\ns_nop 3")
    for r in range(16):
        A(f"v_cndmask_b32 v{SA+r}, v{SA+r}, v{SB+r}, s[{MS+2*r}:{MS+2*r+1}]")
    A("s_cmp_eq_u32 s92, 1\ns_cbranch_scc1 P2_a_max")
    for r in range(16): A(f"v_exp_f32 v{SA+r}, v{SA+r}")
    A("s_nop 0")
    for j in range(8): cvt(A, SA, PA, j)
    for j in range(8):
        A(f"v_and_b32 v{PB+j}, v{PA+j}, v{PM+j}\nv_bfi_b32 v{PA+j}, v{PM+j}, 0, v{PA+j}")
    A.lds_wait(('v', 1))
    A("s_cmp_lg_u32 s16, 0\ns_cbranch_scc1 P2_a_np\ns_load_dwordx8 s[32:39], s[48:49], s40 glc\nP2_a_np:")
    pv(A, 0, 0, PA, True); pv(A, 1, 0, PA); pv(A, 0, 1, PB); pv(A, 1, 1, PB)
    finish(A, 0, 'a', 92)
    A("s_cmp_lg_u32 s92, 0\ns_cbranch_scc1 P2_a_rst")
    if 'nohalo' in DBG:
        A("""
        P2_a_next:
        s_cmp_eq_u32 s16, 3
        s_cbranch_scc1 L_Aret
        s_xor_b32 s16, s16, 3
        s_cmp_lg_u32 s16, 1
        s_cbranch_scc1 P2_a_unit
        """)
    else:
        A("""
        P2_a_next:
        s_cmp_eq_u32 s16, 0
        s_cbranch_scc1 L_Aret
        s_add_u32 s16, s16, 1
        s_cmp_lt_u32 s16, 4
        s_cbranch_scc1 P2_a_unit
        """)
    stamp(A, 5)
    A("P2_cd:")
    A(f"{HEADCODE}\ns_mov_b64 s[46:47], s[36:37]")
    OF = 60; ACC3 = 16; WR3 = 220; AW3 = 8; TO = 56; TW = 57
    def of(ks, rt): return OF + (ks * 2 + rt) * 4
    wo_patterns(A, True)
    A(f"""
    {P3COORD}
    s_bfe_u32 s8, s2, 0x10002
    s_lshl_b32 s12, s9, 3
    s_add_u32 s12, s12, s10
    s_lshl_b32 s12, s12, 9
    s_add_u32 s12, s12, {MB2}
    s_cmp_eq_u32 s8, 0
    s_cselect_b32 s12, s12, {OOB}
    v_and_b32 v13, 7, v1
    v_lshlrev_b32 v13, 3, v13
    v_add_u32 v13, s12, v13
    v_and_b32 v12, 3, v1
    v_lshlrev_b32 v12, 3, v12
    s_lshl_b32 s12, s9, 3
    s_lshl_b32 s14, s28, 1
    s_add_u32 s12, s12, s14
    s_mul_i32 s15, s12, 20480
    s_mul_i32 s21, s8, {O_BYTES}
    s_add_u32 s15, s15, s21
    v_lshlrev_b32 v7, 4, v1
    v_add_u32 v7, s15, v7
    v_add_u32 v6, 20480, v7
    v_and_b32 v2, 15, v1
    v_lshlrev_b32 v2, 3, v2
    v_sub_u32 v11, v7, v2
    v_add_u32 v11, 4096, v11
    v_add_u32 v15, 20480, v11
    v_lshrrev_b32 v9, 2, v1
    v_mul_u32_u24 v9, 160, v9
    v_and_b32 v10, 3, v1
    v_lshlrev_b32 v10, 3, v10
    v_add_u32 v{AW3}, v9, v10
    v_add_u32 v{AW3}, {L_WO}, v{AW3}
    v_add_u32 v{AW3+1}, 51200, v{AW3}
    v_and_b32 v2, 15, v1
    v_lshrrev_b32 v3, 4, v1
    s_lshl_b32 s12, s9, 7
    s_lshl_b32 s14, s28, 5
    s_add_u32 s12, s12, s14
    v_add_u32 v2, s12, v2
    v_mul_u32_u24 v2, 2560, v2
    s_mul_i32 s14, s8, 1280
    s_mul_i32 s20, s10, 160
    s_add_u32 s14, s14, s20
    v_add_u32 v2, s14, v2
    v_lshl_add_u32 v59, v3, 3, v2
    v_and_b32 v5, 1, v3
    v_lshl_add_u32 v2, v5, 5, v2
    v_lshrrev_b32 v5, 1, v3
    v_lshl_add_u32 v58, v5, 4, v2
    v_mov_b32 v19, {OOB}
    v_mov_b32 v53, v12
    """)
    cb_init(A)
    A("P2_pre:")
    A(f"""
    s_lshl_b32 s12, s6, 9
    s_add_u32 s12, s12, s7
    s_lshl_b32 s12, s12, 3
    s_add_u32 s12, s12, {MB2}
    s_cmp_eq_u32 s5, 0
    s_cselect_b32 s12, s12, {OOB}
    s_cmp_eq_u32 s28, 4
    s_cselect_b32 s12, s12, {OOB}
    v_min_u32 v18, 7, v1
    v_lshlrev_b32 v18, 9, v18
    v_add_u32 v18, s12, v18
    s_bfe_u32 s5, s2, 0x10002
    s_add_u32 s12, s48, {O_BASE}
    s_addc_u32 s13, s49, 0
    """)
    srd(A, 24, 12, 13, 2 * O_BYTES)
    A(f"""
    s_mul_i32 s12, s28, {BLK}
    s_add_u32 s13, s12, {L_BK}
    v_add_u32 v{AK}, s13, v{LK}
    s_add_u32 s13, s12, {L_BQ}
    v_add_u32 v{AQ}, s13, v{LK}
    s_add_u32 s13, s12, {L_BV}
    v_add_u32 v{AV}, s13, v{LV}
    s_sub_u32 s86, 8, s28
    s_cmp_eq_u32 s4, 0
    s_cselect_b32 s86, s86, -1
    s_lshl_b32 s12, s4, 4
    s_lshl_b32 s13, s28, 1
    s_add_u32 s17, s12, s13
    """)
    oaddr(A, 3, 17)
    A(f"""
    {P3COORD}
    s_cmp_eq_u32 s5, 0
    s_cselect_b32 s16, s46, s42
    s_cselect_b32 s17, s47, s43
    s_and_b32 s17, s17, 0xffff
    s_mov_b32 s18, 819200
    s_mov_b32 s19, 0x20000
    s_mul_i32 s20, s10, 160
    """)
    def wo_setup(n):
        if n < 2:
            A(f"""
            s_add_u32 s21, s28, {8*n}
            s_mul_i32 s22, s21, {40*1280}
            s_add_u32 s22, s22, s20
            s_lshr_b32 s23, s21, 2
            s_add_u32 s23, s23, s21
            s_mul_i32 s23, s23, 5120
            """)
        else:
            A(f"""
            s_mul_i32 s22, s28, {160*1280}
            s_add_u32 s22, s22, s20
            s_mul_i32 s23, s28, 25600
            s_add_u32 s23, s23, 20480
            """)
    def wo_piece(i, n):
        A(f"s_add_u32 m0, s23, {L_WO + i*1024}\ns_nop 0\nbuffer_load_dwordx4 v{WA+i+(5 if n == 2 else 0)}, s[16:19], s22 offen lds")
    if BAL is not None:
        A.out.append("    .p2align 5")
        for _ in range(((BAL - (20 if STAMP else 0)) % 32) // 4): A("s_nop 0")
    A(f"s_cmp_lt_u32 s28, 4\ns_cbranch_scc1 P2_bd\n{'s_setprio 1' if PRIO else ''}\ns_waitcnt vmcnt(0)\nds_write_b64 v53, v[54:55]\nds_write_b64 v53, v[54:55] offset:3072\nP2_bd:\ns_waitcnt vmcnt(0) lgkmcnt(0)\ns_barrier")
    stamp(A, 6)
    A.lds_q = []
    rdQ(A)
    rdK(A, 0, 0); rdK(A, 1, 1)
    flag_store(A, 18)
    A.lds_wait(('q', 0))
    maskQ(A)
    A("s_branch P2_b_go\nP2_b_start:")
    A.lds_q = []
    rdK(A, 0, 0); rdK(A, 1, 1)
    A("P2_b_go:")
    def cb_switch(b):
        A(f"s_cmp_lg_u32 s86, {b}\ns_cbranch_scc1 P2_cb{b}\ns_nop 7")
        for r in range(16): A(f"v_mov_b32 v{CB+r}, v{NEGM}")
        A(f"s_nop 1\nP2_cb{b}:")
    A.lds_wait(('k', 0))
    qk(A, 0, 0, S0, CB); qk(A, 1, 0, S0, CB)
    rdK(A, 2, 0)
    cb_switch(1)
    A.lds_wait(('k', 1))
    qk(A, 0, 1, SA, CB); qk(A, 1, 1, SA, CB)
    rdV(A, 1, 1)
    A("s_cmp_eq_u32 s93, 1\ns_cbranch_scc1 P2_b_max")
    cb_switch(2)
    A("s_nop 7")
    for b in range(1, 8):
        Sc, Sn = (SA, SB) if b % 2 == 1 else (SB, SA)
        Pc, Pp = (PA, PB) if b % 2 == 1 else (PB, PA)
        wn, wh = (b - 1) // 2, (b - 1) % 2
        dow = b <= 6
        if b == PRIO: A("s_setprio 0")
        if dow and wn == 2: A(f"s_cmp_ge_u32 s28, 4\ns_cbranch_scc1 P2_nw{b}")
        if dow:
            if wh == 0: wo_setup(wn)
            for i in (range(0, 3) if wh == 0 else range(3, 5)): wo_piece(i, wn)
        if dow and wn == 2: A(f"P2_nw{b}:")
        A.lds_wait(('k', b + 1))
        qk(A, 0, (b + 1) % 2, Sn, CB)
        for r in range(0, 4): A(f"v_exp_f32 v{Sc+r}, v{Sc+r}")
        qk(A, 1, (b + 1) % 2, Sn, CB)
        if b + 2 <= 8: rdK(A, b + 2, b % 2)
        for r in range(4, 8): A(f"v_exp_f32 v{Sc+r}, v{Sc+r}")
        if b > 1:
            A.lds_wait(('v', b - 1))
            pv(A, 0, (b - 1) % 2, Pp, first=(b == 2))
        if b * 10 + 5 == PRIO: A("s_setprio 0")
        for r in range(8, 12): A(f"v_exp_f32 v{Sc+r}, v{Sc+r}")
        if b > 1:
            pv(A, 1, (b - 1) % 2, Pp)
        nb = b + 1 if b < 7 else 0
        rdV(A, nb, (b + 1) % 2)
        for r in range(12, 16): A(f"v_exp_f32 v{Sc+r}, v{Sc+r}")
        for j in range(8): cvt(A, Sc, Pc, j)
        if b + 2 <= 8: cb_switch(b + 2)
    if PRIO == 8: A("s_setprio 0")
    for r in range(16):
        A(f"v_cndmask_b32 v{S0+r}, v{S0+r}, v{SB+r}, s[{MS+2*r}:{MS+2*r+1}]")
        if r == 3:
            A.lds_wait(('v', 7)); pv(A, 0, 1, PA)
        if r == 11:
            pv(A, 1, 1, PA); rdV(A, 8, 1)
    for r in range(16): A(f"v_exp_f32 v{S0+r}, v{S0+r}")
    A("s_nop 0")
    for j in range(8): cvt(A, S0, PB, j)
    for j in range(8):
        A(f"v_and_b32 v{P2+j}, v{PB+j}, v{PM+j}\nv_bfi_b32 v{PB+j}, v{PM+j}, 0, v{PB+j}")
    A.lds_wait(('v', 8))
    A("s_nop 0")
    pv(A, 0, 0, PB); pv(A, 1, 0, PB); pv(A, 0, 1, P2); pv(A, 1, 1, P2)
    finish(A, O_BYTES, 'b', 93)
    stamp(A, 7)
    A(f"""
    s_cmp_lt_u32 s28, 4
    s_cbranch_scc1 P3
    s_waitcnt vmcnt(0)
    s_barrier
    """)
    stamp(A, 8)
    A("s_cmp_lg_u32 s28, 4\ns_cbranch_scc1 H_poll")
    flag_store(A, 19)
    A(f"""
    H_poll:
    s_lshl_b32 s12, s5, 7
    s_lshl_b32 s13, s9, 3
    s_add_u32 s12, s12, s13
    s_add_u32 s12, s12, s10
    s_lshl_b32 s12, s12, 9
    s_add_u32 s12, s12, {FLAG_BASE + MB2}
    s_and_b32 s13, s28, 3
    s_lshl_b32 s13, s13, 7
    s_mul_i32 s13, s13, s5
    s_add_u32 s40, s12, s13
    s_mov_b32 s94, 0
    s_and_b32 s12, s28, 3
    s_lshl_b32 s12, s12, 3
    v_mov_b32 v2, s12
    H_loop:
    s_load_dwordx16 s[52:67], s[48:49], s40 glc
    s_add_u32 s94, s94, 1
    s_cmp_ge_u32 s94, {SPIN_LIMIT}
    s_waitcnt lgkmcnt(0)
    s_cbranch_scc1 H_done
    s_xor_b64 s[88:89], s[52:53], s[0:1]
    """)
    for i in range(1, 8):
        A(f"s_xor_b64 s[90:91], s[{52+2*i}:{53+2*i}], s[0:1]\ns_or_b64 s[88:89], s[88:89], s[90:91]")
    A(f"""
    s_cbranch_scc1 H_loop
    H_done:
    ds_write_b64 v2, v[{EP}:{EP+1}]
    s_waitcnt lgkmcnt(0)
    """)
    stamp(A, 9)
    A("s_branch K_end2")
    grp3 = lambda i: (i + 2) & 3
    def pick(i):
        return ["v_cmp_eq_u64 vcc, s[0:1], v[4:5]", "s_nop 1\ns_or_b32 s22, s22, vcc_lo",
                f"s_bitcmp1_b32 s22, {grp3(i)}\ns_cselect_b32 s23, 1, 0\ns_cselect_b32 s30, {grp3(i)*5120}, s21"]
    def ldo(i):
        l = []
        for ks in range(4):
            for rt in range(2):
                l.append(f"buffer_load_dwordx4 {vr(of(i*5+ks,rt),4)}, v{7-rt}, s[24:27], s30 offen offset:{ks*1024} sc1")
        for rt in range(2):
            for hf in range(2):
                l.append(f"buffer_load_dwordx2 {vr(of(i*5+4,rt)+2*hf,2)}, v{(11,15)[rt]}, s[24:27], s30 offen offset:{hf*128} sc1")
        return l
    def rd3(n, hf):
        i, ks, t = n // 25, (n % 25) // 5, n % 5
        b = WR3 + (n % 8) * 4
        off = (grp3(i) & 1) * 25600 + (ks * 32 + hf * 16) * 160 + 32 * t
        A.lds(f"ds_read_b64_tr_b16 {vr(b+2*hf,2)}, v{AW3 + (grp3(i) >> 1)} offset:{off}", ('w', n))
    LA = 6
    def acquire(i):
        A(f"P3_acq{i}:\nds_read_b64 v[4:5], v12\ns_waitcnt lgkmcnt(0)")
        for x in pick(i): A(x)
        A(f"s_cbranch_scc0 P3_acq{i}")
        for x in ldo(i): A(x)
    for i in range(1, 1 + NACQ):
        acquire(i); A(f"s_branch P3_go{i}")
    A.out.append("    .fill P3PADW, 4, 0xbf800000")
    A("P3:")
    srd(A, 16, 44, 45, 2048 * 1280 * 2)
    A(f"""
    buffer_load_dwordx2 v[4:5], v13, s[96:99], 0 offen sc1
    s_mov_b32 s21, 0x70000000
    s_waitcnt vmcnt(1)
    s_barrier
    """)
    stamp(A, 8)
    A.lds_q = []
    for n in range(LA): rd3(n, 0); rd3(n, 1)
    A("""
    s_waitcnt vmcnt(0)
    v_cmp_ne_u64 vcc, s[0:1], v[4:5]
    s_nop 1
    s_cmp_eq_u64 vcc, 0
    s_cselect_b32 s22, 0xff, 0
    """)
    acquire(0)
    A.lds_q = []
    stamp(A, 9)
    fill = []; nxt = 0
    for n in range(100):
        i, ks, t = n // 25, (n % 25) // 5, n % 5
        if n % 25 == 0:
            nxt = 0
            if i < 3:
                A.lds_wait(('f', i)); fill = pick(i + 1) + ldo(i + 1)
                if i == 0:
                    for x in fill: A(x)
                    fill = []; nxt = 12
        if t == 0 and STAMP and 'p3s' in DBG and n >= 25:
            A(f"s_memtime s[100:101]\ns_waitcnt lgkmcnt(0)\nv_writelane_b32 v255, s100, {14 + n//5 - 5}")
        if t == 0:
            A(f"s_waitcnt vmcnt({(10 - 2*ks if ks < 4 else 0) + nxt})")
        if n % 2 == 0:
            A.lds_wait(('w', n), ('w', n + 1))
        b = WR3 + (n % 8) * 4
        for rt in range(2):
            a = ACC3 + (t * 2 + rt) * 4
            A(f"v_mfma_f32_16x16x32_bf16 {vr(a,4)}, {vr(b,4)}, {vr(of(i*5+ks,rt),4)}, {vr(a,4) if n >= 5 else 0}")
            if n + LA < 100:
                if (n + LA) % 25 == 0 and rt == 0 and i < 2: A.lds("ds_read_b64 v[4:5], v12", ('f', i + 1))
                rd3(n + LA, rt)
            if fill:
                x = fill.pop(0)
                A(x.replace("s_nop 1\n", ""))
                if x.startswith("buffer_load"): nxt += 1
        if n % 25 == 24 and i < 3:
            assert not fill
            A(f"s_cmp_eq_u32 s23, 0\ns_cbranch_scc1 P3_acq{i+1}\nP3_go{i+1}:")
    stamp(A, 10)
    A("s_mov_b32 s12, 40960")
    for rt in range(2):
        T = OF + rt * 12
        for t in range(5):
            a = ACC3 + (t * 2 + rt) * 4
            A(f"v_cvt_pk_bf16_f32 v{T+2*t}, v{a}, v{a+1}\nv_cvt_pk_bf16_f32 v{T+2*t+1}, v{a+2}, v{a+3}")
        for j in (0, 1, 4, 5): A(f"v_permlane16_swap_b32 v{T+j}, v{T+j+2}")
        so = "s12" if rt else "0"
        A(f"buffer_store_dwordx4 {vr(T,4)}, v58, s[16:19], {so} offen {OUT_FLAGS}")
        A(f"buffer_store_dwordx4 {vr(T+4,4)}, v58, s[16:19], {so} offen offset:64 {OUT_FLAGS}")
        A(f"buffer_store_dwordx2 {vr(T+8,2)}, v59, s[16:19], {so} offen offset:128 {OUT_FLAGS}")
    stamp(A, 11)
    A("K_end2:")
    for d in DBG:
        if d.startswith('pad'):
            A(f"""
            s_cmp_lt_u32 s28, 4
            s_cbranch_scc1 PADE
            v_readfirstlane_b32 s12, v{EP}
            PADL:
            s_memrealtime s[14:15]
            s_waitcnt lgkmcnt(0)
            s_sub_u32 s13, s14, s12
            s_cmp_lt_u32 s13, {int(d[3:])*100}
            s_cbranch_scc1 PADL
            PADE:
            """)
    stamp_flush(A, 12, 0)
    A("K_end:\ns_endpgm")
    for i in range(1 + NACQ, 4):
        acquire(i); A(f"s_branch P3_go{i}")
    A("P2_a_inv:\ns_nop 3")
    for r in range(16): A(f"v_mov_b32 v{SA+r}, v{NINF}")
    A("s_branch P2_a_val")
    A(f"P2_a_rst:\ns_mov_b32 s92, 0\nv_mov_b32 v{NEGM}, 0")
    build_CA(A)
    A("s_branch P2_a_next")
    A("P2_a_fb:\ns_mov_b32 s92, 1\ns_waitcnt lgkmcnt(0)\ns_branch P2_a_start")
    A("P2_a_max:")
    maxblock(A, SA, True)
    rowmax_finish(A, "P2_a_start", 92, lambda: build_CA(A))
    A("P2_b_fb:\ns_mov_b32 s93, 1")
    cb_init(A)
    A("s_branch P2_b_start")
    A("P2_b_max:")
    A("s_waitcnt lgkmcnt(0)\ns_nop 7\ns_nop 3")
    A.lds_q = []
    maxblock(A, SA, True)
    for b in range(2, 9):
        A(f"s_cmp_lg_u32 s86, {b}\ns_cbranch_scc1 P2_mcb{b}")
        for r in range(16): A(f"v_mov_b32 v{CB+r}, v{NEGM}")
        A(f"P2_mcb{b}:")
        rdK(A, b, 0)
        A.lds_drain()
        qk(A, 0, 0, SA, CB); qk(A, 1, 0, SA, CB)
        A("s_nop 7\ns_nop 7")
        if b == 8:
            for r in range(16):
                A(f"v_cndmask_b32 v{SA+r}, v{S0+r}, v{SA+r}, s[{MS+2*r}:{MS+2*r+1}]")
        maxblock(A, SA, False)
    rowmax_finish(A, "P2_b_start", 93, lambda: cb_init(A))
    A("K_last:")
    A.end(256, 102, 256, 512, LDS_TOTAL)

P3_DEPTH = 8
PSLEEP = 0
BAL = 16
NACQ = 3
P3AL = '--nop3al' not in sys.argv
STATIC = True
ALIGN = None
WB = 2
CPF_SH = 3
PRIO = 6
SECT = True
OUT_FLAGS = ""

if __name__ == '__main__':
    if '--stamp' in sys.argv: STAMP = True
    for a in sys.argv[1:]:
        if a.startswith('--dbg='): DBG.update(a[6:].split(','))
        if a.startswith('--rot='): ROT = int(a[6:])
        if a.startswith('--bal='): BAL = int(a[6:])
        if a.startswith('--al='): ALIGN = int(a[5:])
        if a.startswith('--wb='): WB = int(a[5:])
        if a.startswith('--look='): P1_LOOK = int(a[7:])
        if a.startswith('--prio='): PRIO = int(a[7:])
        if a.startswith('--psleep='): PSLEEP = int(a[9:])
        if a.startswith('--out='): OUT_FLAGS = a[6:].replace('+', ' ')
    A = Asm()
    gen(A)
    t = A.text()
    t = t.replace("    LSTG\n", "    s_memtime s[100:101]\n    s_add_u32 m0, s51, 15\n    s_waitcnt lgkmcnt(0)\n    v_writelane_b32 v255, s100, m0\n" if (STAMP and 'lstg' in DBG) else "")
    import subprocess, re, os
    def syms(txt):
        open('_g3.s', 'w').write(txt.replace('CODE_BYTES', '0x1234'))
        subprocess.run(['clang', '-x', 'assembler', '-target', 'amdgcn-amd-amdhsa', '-mcpu=gfx950', '-c', '_g3.s', '-o', '_g3.o'], check=True)
        nm = subprocess.run(['llvm-objdump', '-t', '_g3.o'], capture_output=True, text=True).stdout
        return lambda n: int(re.search(r'^([0-9a-f]+) .* ' + n + '$', nm, re.M).group(1), 16)
    g = syms(t.replace('P3PADW', '0'))
    padw = ((0xec0 - (0x40 if STAMP else 0) - g('P3')) % 0x1000) // 4
    t = t.replace('    .fill P3PADW, 4, 0xbf800000\n', '    s_nop 0\n' * padw)
    g = syms(t)
    end = g('K_last')
    sys.stderr.write(f"code bytes {end} " + " ".join(f"{n}={g(n):x}" for n in ('P1_cloop','P1_epiA','P2_a_unit','P2_cd','P2_bd','P2_b_ok','P3_acq1','P3','K_end2')) + "\n")
    sys.stdout.write(t.replace('CODE_BYTES', str(end - 64)))
```

```python
import sys, math, struct

REF = 'concat_heads__sliding_local_dilated__sliding_block__prompt.s.ref'
HDR = [l for l in open(REF).read().split('\n')
       if l.startswith(';') and '@launch' not in l and 'Override' not in l and 'grid=ceil' not in l]
MAIN = "concat_heads__sliding_local_dilated__sliding_block__prompt_kernel"

QK_TILE = 640
V_TILE = 640
HS = 128
for _a in sys.argv[1:]:
    if _a.startswith('--hs='): HS = int(_a[5:])
K_OFF = 32 * HS * QK_TILE
V_OFF = 2 * K_OFF
QKV_BYTES = V_OFF + 32 * HS * V_TILE
O_BASE = 18 << 20
assert 2 * QKV_BYTES <= O_BASE
O_BYTES = 2048 * 640 * 2
FLAG_BASE = 24 << 20
MB1 = 0; MB2 = 131072; MB_BYTES = 262144
OOB = 0x7ffff000

STAMP = False
DBG = set()
STAMP_OFF = 30 << 20
FUSED = False

def f32bits(x): return struct.unpack('<I', struct.pack('<f', x))[0]
SCALE_L2E = (20 ** -0.5) * math.log2(math.e)

NOTES = """;
;           (buffer_load ... lds), waves 0-3 run the MFMAs.  Q is scaled by Dh^-0.5 * log2(e).
;"""

class Asm:
    def __init__(self):
        self.out = []; self.kernels = []; self.launches = []; self.lds_q = []
    def __call__(self, s):
        for l in s.split('\n'):
            l = l.strip()
            if not l: continue
            if 'noload' in DBG and l.startswith('buffer_load') and ' lds' in l: continue
            if 'nomfma' in DBG and l.startswith('v_mfma'): continue
            if 'nods' in DBG and l.startswith('ds_read'): continue
            if 'nowait' in DBG and l.startswith('s_waitcnt lgkmcnt(') and not l.endswith('(0)'): continue
            if 'halfds' in DBG and l.startswith('ds_read_b64_tr') and (int(l.split('[')[1].split(':')[0]) % 4 == 2): continue
            if 'nobar' in DBG and l.startswith('s_barrier'): continue
            if 'nostore' in DBG and l.startswith('buffer_store') and 's[8:11]' not in l: continue
            self.out.append(l if l.endswith(':') else '    ' + l)
    def begin(self, name):
        self.out.append(f".globl {name}\n.p2align 8\n.type {name},@function\n{name}:")
        self.cur = name
    def end(self, vgpr, sgpr, grid, block, lds):
        self.kernels.append((self.cur, vgpr, sgpr))
        self.launches.append((self.cur, grid, block, lds))
    def lds(self, s, tag):
        self(s); self.lds_q.append(tag)
    def lds_wait(self, *tags):
        idx = [i for i, t in enumerate(self.lds_q) if t in tags]
        if not idx: return
        n = len(self.lds_q) - 1 - idx[-1]
        assert n <= 15, n
        self(f"s_waitcnt lgkmcnt({n})")
        self.lds_q = self.lds_q[idx[-1] + 1:]
    def lds_drain(self):
        self("s_waitcnt lgkmcnt(0)"); self.lds_q = []
    def text(self, order=None):
        o = list(HDR)
        ls = self.launches if order is None else [l for n in order for l in self.launches if l[0] == n]
        if len(ls) == 1 and ls[0][0] == MAIN:
            (n, g, b, lds) = ls[0]
            o.append(f"; @launch grid=({g},1,1) block=({b},1,1) lds={lds}")
        else:
            for (n, g, b, lds) in ls:
                o.append(f"; @launch kernel={n} grid=({g},1,1) block=({b},1,1) lds={lds}")
        o.append(NOTES)
        o.append('.amdgcn_target "amdgcn-amd-amdhsa--gfx950"\n.text')
        o += self.out
        o.append('.section .rodata,"a"')
        for (n, vgpr, sgpr) in self.kernels:
            o.append(f""".p2align 6
.amdhsa_kernel {n}
  .amdhsa_next_free_vgpr {vgpr}
  .amdhsa_next_free_sgpr {sgpr}
  .amdhsa_accum_offset {(vgpr + 3) // 4 * 4}
  .amdhsa_group_segment_fixed_size 0
  .amdhsa_kernarg_size 72
  .amdhsa_user_sgpr_count 2
  .amdhsa_user_sgpr_kernarg_segment_ptr 1
  .amdhsa_system_sgpr_workgroup_id_x 1
.end_amdhsa_kernel""")
        return '\n'.join(o) + '\n'

def vr(a, n=1): return f"v{a}" if n == 1 else f"v[{a}:{a+n-1}]"

def stamp(A, i):
    if STAMP and i < 100:
        A(f"s_memtime s[100:101]\ns_waitcnt lgkmcnt(0)\nv_writelane_b32 v255, s100, {i}")
        A.lds_q = []
        if i == 0:
            A("s_memrealtime s[100:101]\ns_waitcnt lgkmcnt(0)\nv_writelane_b32 v255, s100, 31")
def stamp_flush(A, n, kidx):
    if not STAMP: return
    A("s_waitcnt lgkmcnt(0) vmcnt(0)")
    stamp(A, n)
    A(f"""
    s_memrealtime s[100:101]
    s_waitcnt lgkmcnt(0)
    v_writelane_b32 v255, s100, {n+1}
    s_add_u32 s4, s48, {STAMP_OFF + kidx*524288}
    s_addc_u32 s5, s49, 0
    s_mov_b32 s8, s4
    s_and_b32 s9, s5, 0xffff
    s_mov_b32 s10, 524288
    s_mov_b32 s11, 0x20000
    s_lshl_b32 s6, s2, 4
    s_add_u32 s6, s6, s28
    s_lshl_b32 s6, s6, 7
    v_lshlrev_b32 v0, 2, v1
    v_add_u32 v0, s6, v0
    v_mov_b32 v2, {OOB}
    v_cmp_gt_u32 vcc, 32, v1
    s_nop 1
    v_cndmask_b32 v0, v2, v0, vcc
    buffer_store_dword v255, v0, s[8:11], 0 offen
    """)

def srd(A, d, lo, hi, nbytes):
    A(f"s_mov_b32 s{d}, s{lo}\ns_and_b32 s{d+1}, s{hi}, 0xffff\ns_mov_b32 s{d+2}, {nbytes}\ns_mov_b32 s{d+3}, 0x20000")

MAPCODE = {
 'split': """s_lshr_b32 s5, s3, 2
    s_bfe_u32 s6, s3, 0x10001
    s_and_b32 s7, s3, 1
    s_and_b32 s10, s4, 7
    s_lshr_b32 s11, s4, 3
    s_lshl_b32 s6, s6, 3
    s_add_u32 s6, s6, s10
    s_lshl_b32 s7, s7, 2
    s_add_u32 s7, s7, s11""",
 'mix': """s_lshr_b32 s5, s4, 4
    s_lshr_b32 s6, s3, 1
    s_and_b32 s7, s3, 1
    s_and_b32 s10, s4, 3
    s_bfe_u32 s11, s4, 0x20002
    s_lshl_b32 s6, s6, 2
    s_add_u32 s6, s6, s10
    s_lshl_b32 s7, s7, 2
    s_add_u32 s7, s7, s11""",
 'mix2': """s_lshr_b32 s5, s4, 4
    s_lshr_b32 s6, s3, 2
    s_and_b32 s7, s3, 3
    s_and_b32 s10, s4, 7
    s_bfe_u32 s11, s4, 0x10003
    s_lshl_b32 s6, s6, 3
    s_add_u32 s6, s6, s10
    s_lshl_b32 s7, s7, 1
    s_add_u32 s7, s7, s11
    s_lshl_b32 s11, s11, 1""",
}
def prologue(A, endlabel):
    if 'early' in DBG: A("s_memrealtime s[94:95]")
    A(f"""
    s_cmp_ge_u32 s2, 256
    s_cbranch_scc1 {endlabel}
    s_load_dwordx16 s[32:47], s[0:1], 0
    s_load_dwordx2 s[48:49], s[0:1], 64
    s_getpc_b64 s[50:51]
    v_lshrrev_b32 v2, 6, v0
    s_andn2_b32 s3, s2, 7
    {"v_lshlrev_b32 v3, 6, v0" if 'cpfall' in DBG else "v_add_lshl_u32 v3, v2, s3, 7"}
    v_min_u32 v3, CODE_BYTES, v3
    v_and_b32 v1, 63, v0
    global_load_dword v254, v3, s[50:51]
    s_and_b32 s3, s2, 7
    s_lshr_b32 s4, s2, 3
    v_readfirstlane_b32 s28, v2
    {MAPCODE['mix' if 'mix' in DBG else 'mix2' if 'mix2' in DBG else 'split']}
    """)

PIECE = 1056
P1_LOOK = 5
XOFF = 32 * PIECE
SLOT = XOFF + 16384
P1_LDS = 3 * SLOT
LDS_TOTAL = 163840
BLK = 1536
HD = 14 * BLK
L_BK = 0; L_BV = 16 * BLK; L_WO = 32 * BLK; L_BQ = L_WO + 102400
assert L_BQ + 8 * BLK == LDS_TOTAL
L_A = SLOT
EP_LDS = 140000
HF_LDS = EP_LDS + 64
assert L_A + 4 * HD <= EP_LDS
EP = 250
SPIN_LIMIT = 1 << 17
PM = 214; QD = 222; NINF = 223; LK = 224; LV = 225; OL = 226; NEGM = 227; T0 = 228; T1 = 229; CA = 230
MS = 52
QF = 20; AK = 28; AV = 29; AQ = 30; OA = 32; WA = 36
CB = 80; S0 = 96; SA = 112; SB = 128; PA = 144; PB = 152; KF = 160; VF = 176; O = 192; P2 = 64

def flag_srd(A):
    A(f"s_add_u32 s94, s48, {FLAG_BASE}\ns_addc_u32 s95, s49, 0")
    srd(A, 96, 94, 95, MB_BYTES)

def dbg_srd(A):
    A("s_mov_b32 s96, s46\ns_and_b32 s97, s47, 0xffff\ns_mov_b32 s98, 256\ns_mov_b32 s99, 0x20000")

def epoch_get(A):
    A(f"""
    s_or_b32 s96, s28, s2
    s_cbranch_scc1 EP_skip
    {"" if 'early' in DBG else "s_memrealtime s[94:95]"}
    v_mov_b32 v252, 0
    s_waitcnt lgkmcnt(0)
    """)
    dbg_srd(A)
    A(f"""
    s_or_b32 s94, s94, 1
    v_mov_b32 v{EP}, s94
    v_mov_b32 v{EP+1}, s95
    s_nop 0
    buffer_store_dwordx2 v[{EP}:{EP+1}], v252, s[96:99], 0 offen sc1
    EP_skip:
    """)

def epoch_share(A):
    A(f"""
    s_cmp_lg_u32 s28, 4
    s_cbranch_scc1 EP_skip2
    """)
    dbg_srd(A)
    A(f"""
    v_mov_b32 v252, 0
    s_mov_b32 s94, 0
    EP_spin:
    buffer_load_dwordx2 v[{EP}:{EP+1}], v252, s[96:99], 0 offen sc1
    s_add_u32 s94, s94, 1
    s_waitcnt vmcnt(0)
    v_readfirstlane_b32 s95, v{EP}
    s_cmp_ge_u32 s94, {SPIN_LIMIT}
    s_cbranch_scc1 EP_got
    s_cmp_eq_u32 s95, 0
    s_cbranch_scc1 EP_spin
    EP_got:
    v_mov_b32 v252, {EP_LDS}
    s_nop 0
    ds_write_b64 v252, v[{EP}:{EP+1}]
    s_waitcnt lgkmcnt(0)
    EP_skip2:
    """)

def epoch_read(A):
    A(f"v_mov_b32 v252, {EP_LDS}\ns_nop 0\nds_read_b64 v[{EP}:{EP+1}], v252\ns_waitcnt lgkmcnt(0)")
    A(f"v_readfirstlane_b32 s0, v{EP}\nv_readfirstlane_b32 s1, v{EP+1}")

def flag_store(A, vaddr):
    A(f"buffer_store_dwordx2 v[{EP}:{EP+1}], v{vaddr}, s[96:99], 0 offen sc1")

def poll(A, vaddr, vtmp, tag):
    A(f"""
    s_mov_b32 s94, 0
    PL_{tag}:
    buffer_load_dwordx2 v[{vtmp}:{vtmp+1}], v{vaddr}, s[96:99], 0 offen sc1
    s_waitcnt vmcnt(0)
    v_cmp_ne_u64 vcc, v[{vtmp}:{vtmp+1}], v[{EP}:{EP+1}]
    s_add_u32 s94, s94, 1
    s_nop 0
    s_cmp_eq_u64 vcc, 0
    s_cbranch_scc1 PD_{tag}
    s_sleep 1
    s_cmp_lt_u32 s94, {SPIN_LIMIT}
    s_cbranch_scc1 PL_{tag}
    PD_{tag}:
    """)

def setup2(A):
    A(f"""
    v_lshrrev_b32 v5, 5, v1
    v_and_b32 v2, 31, v1
    v_lshlrev_b32 v3, 2, v5
    v_sub_u32 v{QD}, v2, v3
    v_mov_b32 v{NINF}, 0xff800000
    v_mov_b32 v{NEGM}, 0
    v_lshlrev_b32 v{LK}, 4, v1
    """)
    for r in range(16):
        kc = (r & 3) + 8 * (r >> 2)
        A(f"v_cmp_le_i32 s[{MS+2*r}:{MS+2*r+1}], {kc}, v{QD}")
    A("v_mov_b32 v2, 0xffff\nv_mov_b32 v3, 0xffff0000\nv_mov_b32 v4, 0")
    for j in range(8):
        A(f"v_cndmask_b32 v6, v4, v2, s[{MS+4*j}:{MS+4*j+1}]")
        A(f"v_cndmask_b32 v7, v4, v3, s[{MS+4*j+2}:{MS+4*j+3}]")
        A(f"v_or_b32 v{PM+j}, v6, v7")
    A(f"""
    v_and_b32 v3, 3, v1
    v_bfe_u32 v4, v1, 2, 2
    v_lshrrev_b32 v7, 1, v3
    v_lshlrev_b32 v7, 6, v7
    v_and_b32 v6, 1, v3
    v_lshl_add_u32 v7, v6, 3, v7
    v_min_u32 v6, 1, v3
    v_lshlrev_b32 v6, 3, v6
    v_add_u32 v6, 128, v6
    v_bfe_u32 v2, v1, 4, 1
    v_cmp_eq_u32 vcc, 0, v2
    v_mul_u32_u24 v2, 20480, v2
    v_and_b32 v3, 15, v1
    v_cndmask_b32 v7, v6, v7, vcc
    v_lshl_add_u32 v7, v4, 4, v7
    v_mul_u32_u24 v6, 192, v5
    v_add_u32 v{LV}, v7, v6
    v_lshl_add_u32 v{OL}, v3, 4, v2
    s_mov_b32 s84, {f32bits(2.0**-64)}
    s_mov_b32 s85, {f32bits(2.0**64)}
    s_mov_b32 s92, 0
    s_mov_b32 s93, 0
    """)

def build_CA(A):
    for r in range(16):
        kc = (r & 3) + 8 * (r >> 2)
        A(f"v_subrev_u32 v{T0}, {kc}, v{QD}\nv_and_b32 v{T0}, 17, v{T0}\nv_cmp_eq_u32 s[88:89], 0, v{T0}\ns_nop 1\nv_cndmask_b32 v{CA+r}, v{NINF}, v{NEGM}, s[88:89]")

def oaddr(A, s_head, s_rt16):
    A(f"""
    s_lshr_b32 s88, s{s_head}, 3
    s_mul_i32 s88, s88, 5120
    s_mul_i32 s89, s{s_rt16}, 20480
    s_add_u32 s88, s88, s89
    s_and_b32 s89, s{s_head}, 7
    s_lshl_b32 s90, s89, 9
    s_add_u32 s90, s90, s88
    s_lshl_b32 s89, s89, 7
    s_add_u32 s89, s89, s88
    s_add_u32 s89, s89, 4096
    v_lshrrev_b32 v2, 5, v1
    v_lshl_add_u32 v2, v2, 8, v{OL}
    v_add_u32 v{OA}, s90, v2
    v_and_b32 v2, 15, v1
    v_lshlrev_b32 v2, 3, v2
    v_sub_u32 v3, v{OL}, v2
    v_add_u32 v3, s89, v3
    v_cmp_gt_u32 vcc, 32, v1
    v_mov_b32 v2, {OOB}
    s_nop 0
    v_cndmask_b32 v{OA+1}, v2, v3, vcc
    """)

def qk(A, i, slot, dst, C):
    c = vr(C, 16) if i == 0 else vr(dst, 16)
    A(f"v_mfma_f32_32x32x16_bf16 {vr(dst,16)}, {vr(KF+slot*8+4*i,4)}, {vr(QF+4*i,4)}, {c}")
def pv(A, i, slot, Preg, first=False):
    c = "0" if first else vr(O, 16)
    A(f"v_mfma_f32_32x32x16_bf16 {vr(O,16)}, {vr(VF+slot*8+4*i,4)}, {vr(Preg+4*i,4)}, {c}")
def cvt(A, S, Pd, j):
    A(f"v_cvt_pk_bf16_f32 v{Pd+j}, v{S+2*j}, v{S+2*j+1}")
def rdK(A, b, slot):
    for i in range(2):
        A.lds(f"ds_read_b128 {vr(KF + slot*8 + 4*i, 4)}, v{AK} offset:{b*BLK + i*1024}", ('k', b))
def rdV(A, b, slot):
    for i in range(4):
        A.lds(f"ds_read_b64_tr_b16 {vr(VF + slot*8 + 2*i, 2)}, v{AV} offset:{b*BLK + i*384}", ('v', b))
def rdQ(A):
    for i in range(2):
        A.lds(f"ds_read_b128 {vr(QF + 4*i, 4)}, v{AQ} offset:{i*1024}", ('q', 0))
def maskQ(A):
    A(f"v_mov_b32 v{QF+4}, 0\nv_mov_b32 v{QF+5}, 0\ns_mov_b32 s88, -1\ns_mov_b32 s89, 0\nv_mov_b32 v{T0}, 0")
    A(f"v_cndmask_b32 v{QF+6}, v{T0}, v{QF+6}, s[88:89]\nv_cndmask_b32 v{QF+7}, v{T0}, v{QF+7}, s[88:89]\ns_nop 0")

def finish(A, osoff, tag, flagreg):
    A(f"s_nop 7\ns_nop 3\nv_rcp_f32 v{T0}, v{O+12}")
    A(f"v_add_f32 v{T1}, |v{O}|, |v{O+1}|")
    for r in range(2, 12):
        A(f"v_add_f32 v{T1}, v{T1}, |v{O+r}|")
    A(f"""
    v_cmp_le_f32 s[88:89], s84, v{O+12}
    v_cmp_ge_f32 s[90:91], s85, v{O+12}
    v_cmp_gt_f32 vcc, -v{NINF}, v{T1}
    """)
    for r in range(12):
        A(f"v_mul_f32 v{O+r}, v{O+r}, v{T0}")
    A(f"""
    s_and_b64 s[88:89], s[88:89], s[90:91]
    s_and_b64 s[88:89], s[88:89], vcc
    s_or_b32 s90, s{flagreg}, 0
    s_cbranch_scc1 P2_{tag}_ok
    s_cmp_eq_u64 s[88:89], exec
    s_cbranch_scc0 P2_{tag}_fb
    P2_{tag}_ok:
    """)
    for j in range(6):
        A(f"v_cvt_pk_bf16_f32 v{O+j}, v{O+2*j}, v{O+2*j+1}")
    A(f"s_mov_b32 s88, {osoff}")
    A(f"v_permlane32_swap_b32 v{O}, v{O+2}\nv_permlane32_swap_b32 v{O+1}, v{O+3}")
    A(f"buffer_store_dwordx2 {vr(O+4,2)}, v{OA+1}, s[24:27], s88 offen sc1")
    A(f"buffer_store_dwordx4 {vr(O,4)}, v{OA}, s[24:27], s88 offen sc1")

def maxblock(A, S, first):
    if first: A(f"v_max_f32 v{T1}, v{S}, v{S+1}")
    else: A(f"v_max3_f32 v{T1}, v{T1}, v{S}, v{S+1}")
    for r in range(2, 16, 2): A(f"v_max3_f32 v{T1}, v{T1}, v{S+r}, v{S+r+1}")
def rowmax_finish(A, back, flagreg, rebuild):
    A(f"""
    v_mov_b32 v{T0}, v{T1}
    s_nop 1
    v_permlane32_swap_b32 v{T1}, v{T0}
    s_nop 1
    v_max_f32 v{T1}, v{T1}, v{T0}
    v_sub_f32 v{NEGM}, 0, v{T1}
    s_mov_b32 s{flagreg}, 2
    """)
    rebuild()
    A(f"s_waitcnt lgkmcnt(0)\ns_branch {back}")

def dma_patterns(A):
    A(f"""
    v_and_b32 v3, 15, v1
    v_bfe_u32 v4, v1, 4, 1
    v_lshlrev_b32 v6, 3, v4
    v_mul_u32_u24 v4, 768, v4
    v_lshl_add_u32 v5, v3, 4, v4
    v_lshl_add_u32 v6, v3, 4, v6
    v_add_u32 v6, 504, v6
    v_cmp_gt_u32 vcc, 32, v1
    v_add_u32 v7, 256, v5
    v_add_u32 v8, {2*QK_TILE}, v5
    v_add_u32 v9, {2*QK_TILE}, v7
    v_add_u32 v10, {2*QK_TILE}, v6
    v_cndmask_b32 v12, v7, v5, vcc
    v_cndmask_b32 v13, v8, v6, vcc
    v_cndmask_b32 v14, v10, v9, vcc
    s_mov_b32 s12, 0x15555556
    """)
    for ty in range(3):
        A(f"""
        v_add_u32 v3, {ty*64}, v1
        v_mul_hi_u32 v4, v3, s12
        v_mul_u32_u24 v5, 12, v4
        v_sub_u32 v5, v3, v5
        v_lshrrev_b32 v6, 2, v5
        v_and_b32 v5, 3, v5
        v_lshl_add_u32 v5, v4, 2, v5
        v_lshrrev_b32 v7, 5, v5
        v_mul_u32_u24 v7, 1280, v7
        v_lshrrev_b32 v9, 1, v6
        v_mul_u32_u24 v9, 760, v9
        v_sub_u32 v9, 768, v9
        v_bfe_u32 v8, v5, 4, 1
        v_mad_u32_u24 v7, v8, v9, v7
        v_and_b32 v5, 15, v5
        v_lshl_add_u32 v7, v5, 4, v7
        v_lshl_add_u32 v{15+ty}, v6, 8, v7
        """)

P3COORD = """s_and_b32 s12, s2, 3
    s_lshl_b32 s9, s12, 2
    s_bfe_u32 s12, s2, 0x20003
    s_add_u32 s9, s9, s12
    s_lshr_b32 s10, s2, 5
    s_lshr_b32 s11, s10, 1"""
P3COORD = P3COORD.replace("s_lshr_b32 s11, s10, 1", "s_mov_b32 s11, 2")
def cb_init(A):
    A("s_cmp_eq_u32 s4, 0\ns_cselect_b64 s[88:89], exec, 0\ns_nop 1")
    for r in range(16): A(f"v_cndmask_b32 v{CB+r}, v{NEGM}, v{NINF}, s[88:89]")
def wo_patterns(A, quads):
    A("s_mov_b32 s12, 0x1999999a")
    for i in range(5):
        A(f"""
        v_add_u32 v8, {i*64}, v1
        v_mul_hi_u32 v9, v8, s12
        v_mul_u32_u24 v10, 10, v9
        v_sub_u32 v10, v8, v10
        v_bfe_u32 v11, v9, 2, 2
        v_lshlrev_b32 v11, 3, v11
        v_bfe_u32 v12, v9, 4, 1
        v_lshl_add_u32 v11, v12, 2, v11
        v_and_b32 v12, 3, v9
        v_add_u32 v11, v11, v12
        v_lshrrev_b32 v12, 4, v11
        v_lshl_add_u32 v12, v12, 2, v11
        v_mul_u32_u24 v12, 1280, v12
        v_lshl_add_u32 v{WA+i}, v10, 4, v12
        """)
        if quads: A(f"""
        v_lshrrev_b32 v12, 2, v11
        v_lshl_add_u32 v12, v12, 4, v11
        v_add_u32 v12, 16, v12
        v_mul_u32_u24 v12, 1280, v12
        v_lshl_add_u32 v{WA+5+i}, v10, 4, v12
        """)
        else: A(f"v_mov_b32 v{WA+5+i}, v{WA+i}")
ROT = 4
HEADCODE = "s_and_b32 s3, s2, 7\ns_lshl_b32 s3, s3, 2\ns_bfe_u32 s4, s2, 0x20003\ns_or_b32 s3, s3, s4\ns_lshr_b32 s4, s2, 5"
ROTCODE = {
 10: """s_mul_i32 s12, s11, 5
    s_lshr_b32 s12, s12, 1
    s_mul_i32 s13, s10, 5
    s_lshr_b32 s13, s13, 2
    s_add_u32 s12, s12, s13
    s_cmp_ge_u32 s12, 10
    s_cselect_b32 s13, 10, 0
    s_sub_u32 s12, s12, s13""",
 1: "s_mov_b32 s12, 0",
 5: "s_add_u32 s12, s10, s7\ns_mul_i32 s13, s12, 52\ns_lshr_b32 s13, s13, 8\ns_mul_i32 s13, s13, 5\ns_sub_u32 s12, s12, s13\ns_lshl_b32 s12, s12, 1",
 6: "s_add_u32 s12, s6, s7\ns_mul_i32 s13, s12, 52\ns_lshr_b32 s13, s13, 8\ns_mul_i32 s13, s13, 5\ns_sub_u32 s12, s12, s13\ns_lshl_b32 s12, s12, 1",
 2: "s_add_u32 s12, s10, s11\ns_and_b32 s12, s12, 1\ns_mul_i32 s12, s12, 5",
 4: "s_add_u32 s12, s10, s11\ns_and_b32 s12, s12, 3\ns_mul_i32 s12, s12, 5\ns_lshr_b32 s12, s12, 1",
 3: "s_add_u32 s12, s10, s11\ns_mul_i32 s13, s12, 43\ns_lshr_b32 s13, s13, 7\ns_mul_i32 s13, s13, 3\ns_sub_u32 s12, s12, s13\ns_mul_i32 s12, s12, 7\ns_lshr_b32 s12, s12, 1",
}
def gen(A):
    A.begin(MAIN)
    if 'lst' in DBG: A("s_memtime s[98:99]")
    prologue(A, "K_end")
    if 'lst' not in DBG: stamp(A, 0)
    A("s_cmp_lt_u32 s28, 4\ns_cbranch_scc1 P1_consumer")
    A(f"""
    s_sub_u32 s29, s28, 4
    v_lshrrev_b32 v2, 5, v1
    v_and_b32 v3, 31, v1
    v_mul_u32_u24 v2, 15360, v2
    v_mul_u32_u24 v6, 26, v3
    v_lshrrev_b32 v6, 8, v6
    s_cmp_eq_u32 s5, 0
    s_cselect_b32 s15, 1120, 0
    s_cselect_b32 s14, 160, 480
    v_mul_lo_u32 v6, v6, s15
    v_lshl_add_u32 v2, v3, 4, v2
    v_add_u32 v2, v2, v6
    v_mov_b32 v4, {OOB}
    v_cmp_gt_u32 vcc, 30, v3
    v_lshrrev_b32 v5, 3, v1
    v_mul_u32_u24 v5, 1280, v5
    v_cndmask_b32 v8, v4, v2, vcc
    v_and_b32 v3, 7, v1
    v_lshrrev_b32 v4, 4, v1
    v_xor_b32 v3, v3, v4
    v_lshl_add_u32 v9, v3, 4, v5
    v_xor_b32 v3, 4, v3
    v_lshl_add_u32 v10, v3, 4, v5
    {ROTCODE[ROT]}
    s_mul_i32 s13, s29, {8*3840}
    s_mul_i32 s14, s7, s14
    s_add_u32 s13, s13, s14
    s_lshl_b32 s14, s6, 7
    s_lshl_b32 s15, s29, 5
    s_add_u32 s14, s14, s15
    s_mul_i32 s14, s14, 1280
    s_mul_i32 s30, s29, {4*PIECE}
    s_lshl_b32 s31, s29, 12
    s_add_u32 s31, s31, {XOFF}
    s_mul_i32 s26, s12, 245760
    s_add_u32 s26, s26, s13
    s_lshl_b32 s27, s12, 7
    s_add_u32 s27, s27, s14
    s_mov_b32 s25, 0
    s_mov_b32 s51, 0
    s_cmp_eq_u32 s5, 0
    {"s_memtime s[96:97]" if 'lst' in DBG else ""}
    s_waitcnt lgkmcnt(0)
    {"v_writelane_b32 v255, s96, 14" if 'lst' in DBG else ""}
    s_cselect_b32 s16, s32, s38
    s_cselect_b32 s17, s33, s39
    s_cselect_b32 s20, s34, s40
    s_cselect_b32 s21, s35, s41
    s_and_b32 s17, s17, 0xffff
    s_mov_b32 s18, 2621440
    s_mov_b32 s19, 0x20000
    s_and_b32 s21, s21, 0xffff
    s_mov_b32 s22, 2457600
    s_mov_b32 s23, 0x20000
    """.replace("s_cselect_b32 s14, 160, 480", "s_movk_i32 s14, 480\ns_cselect_b32 s14, 160, s14"))
    def wpiece(sub, r):
        A(f"s_add_u32 m0, s30, {(sub*16 + r)*PIECE}\ns_add_u32 s50, s26, {(32*sub + r)*3840}\nbuffer_load_dwordx4 v8, s[20:23], s50 offen lds")
    def xpiece(j):
        A(f"s_add_u32 m0, s31, {j*1024}\ns_add_u32 s50, s27, {j*8*1280}\nbuffer_load_dwordx4 v{9 + (j & 1)}, s[16:19], s50 offen lds")
    def F():
        xpiece(0); wpiece(0, 0); xpiece(1); wpiece(0, 1); xpiece(2); xpiece(3)
    def S():
        wpiece(0, 2); wpiece(0, 3)
        for r in range(4): wpiece(1, r)
    for d in DBG:
        if d.startswith('adel'): A(f"s_cmp_lg_u32 s5, 0\ns_cbranch_scc1 P1_lf\ns_sleep {d[4:]}")
    if 'lst' in DBG: stamp(A, 10); A("v_writelane_b32 v255, s98, 0")
    A("s_branch P1_lf")
    A("P1_lloop:")
    S()
    A(f"""
    s_add_u32 s12, s12, 1
    s_cmp_eq_u32 s12, 10
    s_cselect_b32 s12, 0, s12
    s_mul_i32 s26, s12, 245760
    s_add_u32 s26, s26, s13
    s_lshl_b32 s27, s12, 7
    s_add_u32 s27, s27, s14
    s_add_u32 s25, s25, 1
    s_cmp_eq_u32 s25, 3
    s_cselect_b32 s25, 0, s25
    s_mov_b32 s50, {SLOT}
    s_cselect_b32 s50, {-2*SLOT & 0xffffffff}, s50
    s_add_u32 s30, s30, s50
    s_add_u32 s31, s31, s50
    s_add_u32 s51, s51, 1
    s_cmp_eq_u32 s51, 10
    s_cbranch_scc1 P1_llast
    P1_lf:
    """)
    F()
    A("""
    s_cmp_eq_u32 s51, 0
    s_cbranch_scc1 P1_lloop
    """)
    if 'lst' in DBG and STAMP: A("s_cmp_lg_u32 s51, 1\ns_cbranch_scc1 LST1"); stamp(A, 11); A("LST1:")
    A("""
    s_waitcnt vmcnt(6)
    s_barrier
    LSTG
    s_branch P1_lloop
    P1_llast:
    s_waitcnt vmcnt(0)
    s_barrier
    """)
    stamp(A, 1)
    epoch_share(A)
    A(f"""
    s_bitcmp0_b32 s2, 2
    s_cselect_b32 s16, s36, s42
    s_cselect_b32 s17, s37, s43
    s_and_b32 s17, s17, 0xffff
    s_mov_b32 s18, 819200
    s_lshr_b32 s12, s2, 3
    s_lshl_b32 s12, s12, 2
    s_add_u32 s12, s12, s29
    s_mul_i32 s12, s12, 6400
    v_lshlrev_b32 v2, 7, v1
    v_mov_b32 v3, {OOB}
    v_cmp_gt_u32 vcc, 50, v1
    s_nop 1
    v_cndmask_b32 v2, v3, v2, vcc
    buffer_load_dword v254, v2, s[16:19], s12 offen
    buffer_load_dword v254, v2, s[16:19], s12 offen offset:64
    """)
    setup2(A)
    wo_patterns(A, False)
    dma_patterns(A)
    flag_srd(A)
    A(f"""
    {HEADCODE}
    """)
    build_CA(A)
    cb_init(A)
    A(f"""
    s_lshl_b32 s12, s4, 4
    s_add_u32 s12, s12, 128
    v_add_u32 v2, s12, v1
    v_lshlrev_b32 v2, 9, v2
    s_lshl_b32 s12, s3, 3
    s_and_b32 s13, s3, 24
    s_lshl_b32 s13, s13, 3
    s_add_u32 s12, s12, s13
    s_add_u32 s12, s12, {MB2}
    v_add_u32 v2, s12, v2
    v_mov_b32 v3, {OOB}
    v_cmp_gt_u32 vcc, 16, v1
    v_mov_b32 v58, v3
    v_mov_b32 v59, v3
    v_cndmask_b32 v19, v3, v2, vcc
    """)
    A(f"""
    v_cmp_lt_u32 vcc, 11, v1
    v_mov_b32 v2, 0
    v_mov_b32 v3, 1
    v_cndmask_b32 v2, v2, v3, vcc
    v_mul_u32_u24 v3, 12, v2
    v_sub_u32 v3, v1, v3
    s_mul_i32 s12, s7, 12
    v_add_u32 v3, s12, v3
    v_lshrrev_b32 v4, 5, v3
    v_and_b32 v3, 31, v3
    s_lshr_b32 s12, s6, 1
    v_add_u32 v5, s12, v2
    v_lshl_add_u32 v3, v5, 5, v3
    s_and_b32 s12, s6, 1
    s_add_u32 s12, s12, 2
    v_lshlrev_b32 v2, 1, v2
    v_sub_u32 v2, s12, v2
    v_lshl_add_u32 v2, v2, 4, v4
    v_lshlrev_b32 v2, 3, v2
    v_lshl_add_u32 v2, v3, 9, v2
    v_cmp_gt_u32 vcc, 8, v5
    v_cmp_gt_u32 s[88:89], 24, v1
    v_mov_b32 v3, {OOB}
    s_and_b64 vcc, vcc, s[88:89]
    s_cmp_lg_u32 s28, 4
    s_cselect_b64 vcc, 0, vcc
    s_nop 0
    v_cndmask_b32 v18, v3, v2, vcc
    """)
    A(f"""
    s_lshl_b32 s12, s4, 5
    s_add_u32 s12, s12, s3
    s_lshl_b32 s12, s12, 9
    s_lshl_b32 s13, s29, 7
    s_add_u32 s12, s12, s13
    s_add_u32 s40, s12, {FLAG_BASE + MB1}
    s_lshl_b32 s13, s29, 3
    s_mul_i32 s14, s3, {HS}
    s_lshl_b32 s15, s4, 4
    s_add_u32 s14, s14, s15
    s_add_u32 s14, s14, s13
    s_sub_u32 s14, s14, 16
    s_mul_i32 s26, s14, {QK_TILE}
    s_mul_i32 s27, s14, {V_TILE}
    s_add_u32 s27, s27, {V_OFF}
    s_add_u32 s15, s15, s13
    s_cmp_lt_u32 s15, 16
    s_cselect_b32 s26, 0x70000000, s26
    s_cselect_b32 s27, 0x70000000, s27
    s_cselect_b32 s31, 7, 0
    s_cmp_ge_u32 s29, 2
    s_cselect_b32 s30, 7, 6
    s_mul_i32 s25, s29, {4*BLK}
    """)
    A(f"""
    v_lshrrev_b32 v52, 2, v1
    v_mul_u32_u24 v52, 192, v52
    v_and_b32 v53, 3, v1
    v_lshl_add_u32 v52, v53, 4, v52
    s_add_u32 s12, s25, {L_BV + 136}
    v_add_u32 v53, s12, v52
    s_mul_i32 s12, s29, {HD}
    s_add_u32 s12, s12, {L_A + 9*BLK + 136}
    v_add_u32 v52, s12, v52
    v_mov_b32 v54, 0x3f803f80
    v_mov_b32 v55, 0x3f803f80
    s_mov_b64 s[46:47], s[36:37]
    s_cmp_eq_u32 s6, 0
    s_cselect_b32 s12, 8, {8 if 'nohalo' in DBG else 0}
    s_or_b32 s31, s31, s12
    s_cmp_eq_u32 s5, 0
    s_cselect_b32 s12, 8, 0
    s_or_b32 s30, s30, s12
    s_add_u32 s12, s48, {QKV_BYTES}
    s_addc_u32 s13, s49, 0
    """)
    srd(A, 20, 12, 13, QKV_BYTES)
    srd(A, 16, 48, 49, QKV_BYTES)
    A("s_barrier")
    epoch_read(A)
    stamp(A, 2)
    A("s_cmp_eq_u32 s5, 0\ns_cbranch_scc1 L_nf")
    flag_store(A, 18)
    A("L_nf:")
    A(f"""
    s_mov_b32 s11, 0
    PL_b:
    s_load_dwordx8 s[32:39], s[48:49], s40 glc
    PL_b2:
    s_add_u32 s11, s11, 1
    s_cmp_ge_u32 s11, {SPIN_LIMIT}
    s_cselect_b32 s12, 15, s31
    s_waitcnt lgkmcnt(0)
    s_cmp_eq_u64 s[32:33], s[0:1]
    s_cselect_b32 s13, 1, 0
    s_or_b32 s12, s12, s13
    s_cmp_eq_u64 s[34:35], s[0:1]
    s_cselect_b32 s13, 2, 0
    s_or_b32 s12, s12, s13
    s_cmp_eq_u64 s[36:37], s[0:1]
    s_cselect_b32 s13, 4, 0
    s_or_b32 s12, s12, s13
    s_cmp_eq_u64 s[38:39], s[0:1]
    s_cselect_b32 s13, 8, 0
    s_or_b32 s12, s12, s13
    s_and_b32 s12, s12, s30
    s_bitcmp1_b32 s12, 3
    s_cbranch_scc0 PB_h
    s_mov_b64 s[90:91], exec
    s_lshl_b32 s15, s7, 2
    s_add_u32 s15, s15, s29
    s_mul_i32 s15, s15, {HS}
    s_lshl_b32 s13, s6, 3
    s_add_u32 s15, s15, s13
    s_sub_u32 s15, s15, 2
    s_mul_i32 s14, s29, {HD}
    """)
    for (areg, tb, off, lds) in ((12, QK_TILE, K_OFF, 0), (15, V_TILE, V_OFF, 9 * BLK)):
        A(f"""
        s_mul_i32 s13, s15, {tb}
        s_add_u32 s13, s13, {off}
        s_cmp_eq_u32 s6, {'s6' if 'nohalo' in DBG else 0}
        s_cselect_b32 s13, 0x70000000, s13
        s_add_u32 m0, s14, {L_A + lds}
        s_nop 0
        buffer_load_dwordx4 v{areg}, s[16:19], s13 offen sc1 lds
        s_add_u32 m0, s14, {L_A + lds + 1024}
        s_mov_b32 exec_hi, 0
        buffer_load_dwordx4 v{areg+1}, s[16:19], s13 offen sc1 lds
        s_mov_b64 exec, s[90:91]
        """)
    A("PB_h:")
    for m, (areg, sreg, soff, tb, lds) in enumerate(((12, 26, 0, QK_TILE, L_BQ - 8 * BLK), (12, 26, K_OFF, QK_TILE, L_BK), (15, 27, 0, V_TILE, L_BV))):
        A(f"s_bitcmp1_b32 s12, {m}\ns_cbranch_scc0 PB_{m}")
        for u in range(2):
            A(f"s_add_u32 s13, s{sreg}, {soff + u*4*tb}")
            for ty in range(3):
                A(f"s_add_u32 m0, s25, {lds + u*3072 + ty*1024}\ns_nop 0\nbuffer_load_dwordx4 v{areg+ty}, s[20:23], s13 offen sc1 lds")
        A(f"PB_{m}:")
    A(f"""
    s_andn2_b32 s30, s30, s12
    s_bitcmp1_b32 s12, 3
    s_cbranch_scc0 L_nh
    s_mov_b32 s8, s25
    s_mov_b32 s9, s26
    s_mov_b32 s10, s27
    s_mov_b32 s15, s29
    s_mov_b32 s16, 0
    s_add_u32 s12, s48, {O_BASE}
    s_addc_u32 s13, s49, 0
    s_waitcnt vmcnt(0)
    ds_write_b64 v52, v[54:55]
    """)
    stamp(A, 3)
    A(f"""
    s_branch P2_a_enter
    L_Aret:
    s_mov_b32 s25, s8
    s_mov_b32 s26, s9
    s_mov_b32 s27, s10
    """)
    stamp(A, 4)
    A(f"""
    s_branch PL_b2
    L_nh:
    s_cmp_lg_u32 s30, 0
    s_cbranch_scc0 PD_b
    {f"s_sleep {PSLEEP}" if PSLEEP else ""}
    s_branch PL_b
    PD_b:
    """)
    stamp(A, 5)
    A("s_branch P2_pre")

    A("P1_consumer:")
    ACC = 8; WR = 128; XF = 168; AW0 = 184; AX0 = 185; AX1 = 186; AW = 187; AXa = 188; AXb = 189
    def acc(grp, t, rt): return ACC + ((grp * 5 + t) * 2 + rt) * 4
    if 'pf' in DBG:
        A(f"""
        s_cmp_eq_u32 s28, 1
        s_cbranch_scc0 PF_w
        s_lshl_b32 s12, s6, 2
        s_and_b32 s13, s7, 3
        s_add_u32 s12, s12, s13
        s_mul_i32 s12, s12, 40960
        v_lshlrev_b32 v2, 7, v1
        v_add_u32 v2, s12, v2
        s_movk_i32 s14, 8192
        s_cmp_eq_u32 s5, 0
        s_waitcnt lgkmcnt(0)
        s_cselect_b32 s12, s32, s38
        s_cselect_b32 s13, s33, s39
        s_branch PF_go
        PF_w:
        s_cmp_eq_u32 s28, 2
        s_cbranch_scc0 PF_end
        v_min_u32 v3, 59, v1
        v_mul_u32_u24 v4, 0x1112, v3
        v_lshrrev_b32 v4, 16, v4
        v_mul_u32_u24 v5, 15, v4
        v_sub_u32 v5, v3, v5
        v_mul_u32_u24 v6, 52, v5
        v_lshrrev_b32 v6, 8, v6
        s_cmp_eq_u32 s5, 0
        s_cselect_b32 s12, 640, 0
        s_movk_i32 s13, 1920
        s_cselect_b32 s13, 640, s13
        v_mul_lo_u32 v6, v6, s12
        v_lshl_add_u32 v2, v5, 7, v6
        v_mul_u32_u24 v4, 3840, v4
        v_add_u32 v2, v2, v4
        s_lshr_b32 s12, s7, 2
        s_mul_i32 s13, s13, s12
        s_lshr_b32 s12, s2, 3
        s_mul_i32 s12, s12, {20*3840}
        s_add_u32 s12, s12, s13
        v_add_u32 v2, s12, v2
        s_movk_i32 s14, 15360
        s_cmp_eq_u32 s5, 0
        s_waitcnt lgkmcnt(0)
        s_cselect_b32 s12, s34, s40
        s_cselect_b32 s13, s35, s41
        PF_go:
        """)
        for j in range(5):
            A(f"global_load_dword v254, v2, s[12:13]")
            if j < 4: A("v_add_u32 v2, s14, v2")
        A("PF_end:")
    if HOP: A("s_cmp_eq_u32 s28, 2\ns_cbranch_scc1 HOP1\nHOP6:")
    epoch_get(A)
    A(f"""
    v_lshrrev_b32 v2, 2, v1
    v_mul_u32_u24 v2, {PIECE}, v2
    v_and_b32 v3, 3, v1
    v_mul_u32_u24 v3, 40, v3
    v_add_u32 v{AW0}, v2, v3
    v_and_b32 v2, 15, v1
    v_lshrrev_b32 v3, 4, v1
    v_lshrrev_b32 v4, 1, v2
    v_xor_b32 v3, v3, v4
    s_lshl_b32 s12, s28, 12
    s_add_u32 s12, s12, {XOFF}
    v_lshlrev_b32 v2, 7, v2
    v_add_u32 v2, s12, v2
    v_lshl_add_u32 v{AX0}, v3, 4, v2
    v_xor_b32 v3, 4, v3
    v_lshl_add_u32 v{AX1}, v3, 4, v2
    v_mov_b32 v{AW}, v{AW0}
    v_mov_b32 v{AXa}, v{AX0}
    v_mov_b32 v{AXb}, v{AX1}
    """)
    for r in range(ACC, XF + 16, 2):
        A(f"v_pk_mov_b32 v[{r}:{r+1}], 0, 0")
    setup2(A)
    build_CA(A)
    A(f"""
    s_waitcnt lgkmcnt(0)
    s_mul_i32 s12, s5, {QKV_BYTES}
    s_add_u32 s12, s48, s12
    s_addc_u32 s13, s49, 0
    """)
    srd(A, 16, 12, 13, QKV_BYTES)
    flag_srd(A)
    A(f"""
    v_and_b32 v2, 15, v1
    v_lshrrev_b32 v3, 4, v1
    s_lshl_b32 s12, s6, 3
    s_lshl_b32 s13, s28, 1
    s_add_u32 s12, s12, s13
    v_mul_u32_u24 v252, {HD}, v3
    v_mul_u32_u24 v3, {HS}, v3
    v_add_u32 v3, s12, v3
    v_mul_u32_u24 v4, {QK_TILE}, v3
    v_lshl_add_u32 v4, v2, 4, v4
    v_mov_b32 v7, {f32bits(SCALE_L2E)}
    v_mov_b32 v6, v7
    s_mul_i32 s13, s7, 12
    s_mul_i32 s12, s28, {BLK}
    s_add_u32 s12, s12, {L_A}
    v_add_u32 v252, s12, v252
    v_lshrrev_b32 v3, 2, v2
    v_mul_u32_u24 v3, 192, v3
    v_and_b32 v253, 3, v2
    v_lshl_add_u32 v3, v253, 4, v3
    v_add_u32 v253, v252, v3
    v_lshl_add_u32 v252, v2, 4, v252
    v_mov_b32 v2, 0
    v_mov_b32 v3, 0
    """)
    if 'tlb' in DBG:
        A(f"""
        s_cmp_lg_u32 s28, 1
        s_cbranch_scc1 P1_nt
        v_mul_u32_u24 v246, {0x80000 if 'tlb2' not in DBG else 0x68000}, v1
        v_mul_u32_u24 v247, 81920, v1
        global_load_dword v248, v246, s[48:49]
        global_load_dword v249, v247, s[44:45]
        P1_nt:
        """)
    A("s_mov_b32 s25, 0\ns_mov_b32 s51, 0")
    stamp(A, 1)
    units = [(sub, grp, t) for sub in range(2) for grp in range(3) for t in range(5)]
    def rd(u, hf):
        sub, grp, t = units[u]
        b = WR + (u % 10) * 4
        off = sub * 16 * PIECE + hf * 512 + grp * 160 + 8 * t
        A.lds(f"ds_read_b64_tr_b16 {vr(b + 2*hf, 2)}, v{AW} offset:{off}", ('w', u))
    def rdx(sub, rt):
        A.lds(f"ds_read_b128 {vr(XF + (sub*2+rt)*4, 4)}, v{AXa if sub == 0 else AXb} offset:{rt*2048}", ('x', sub))
    def mm(u, rt):
        sub, grp, t = units[u]
        b = WR + (u % 10) * 4
        a = acc(grp, t, rt)
        A(f"v_mfma_f32_16x16x32_bf16 {vr(a,4)}, {vr(b,4)}, {vr(XF + (sub*2+rt)*4, 4)}, {vr(a,4)}")
    L = P1_LOOK
    def body(emit):
        save = A.out
        if not emit: A.out = []
        for step in range(30):
            u = (step - L) % 30
            g_ = 1 if step >= L else 0
            tags = [('x', units[u][0]) if g_ else ('px', units[u][0]), ('w', u) if g_ else ('pw', u)]
            if WB and step % WB == 0:
                for d in range(1, WB):
                    if step + d < 30:
                        u2 = (step + d - L) % 30; g2 = step + d >= L
                        if not (g2 and u2 >= step): tags += [('x', units[u2][0]) if g2 else ('px', units[u2][0]), ('w', u2) if g2 else ('pw', u2)]
            A.lds_wait(*tags)
            mm(u, 0)
            if step == 0: rdx(0, 0)
            if step == L + 2: rdx(1, 0)
            rd(step, 0)
            if step == 26:
                A(f"s_add_u32 s25, s25, {SLOT}\ns_cmp_eq_u32 s25, {3*SLOT}\ns_cselect_b32 s25, 0, s25")
            if step == 27:
                A(f"v_add_u32 v{AXa}, s25, v{AX0}")
            if step == 28:
                A(f"v_add_u32 v{AXb}, s25, v{AX1}")
            mm(u, 1)
            if step == 0: rdx(0, 1)
            if step == L + 2: rdx(1, 1)
            rd(step, 1)
            if step == 28:
                A("s_add_u32 s51, s51, 1\ns_cmp_lt_u32 s51, 10")
        A(f"v_add_u32 v{AW}, s25, v{AW0}")
        A.lds_q = [('p' + t[0], t[1]) for t in A.lds_q]
        if not emit: A.out = save
    A.lds_q = []
    body(False)
    if P3AL:
        A("s_branch P1_cloop")
        A.out.append("    .p2align 10")
    A("P1_cloop:")
    A("s_barrier")
    if STAMP and 'stg' in DBG:
        A("s_memtime s[100:101]\ns_add_u32 m0, s51, 16\ns_waitcnt lgkmcnt(0)\nv_writelane_b32 v255, s100, m0")
    body(True)
    A("s_cbranch_scc1 P1_cloop")
    for u in range(30 - L, 30):
        A.lds_wait(('pw', u))
        mm(u, 0); mm(u, 1)
    stamp(A, 2)
    A("s_cmp_eq_u32 s5, 0\ns_cbranch_scc1 P1_epiA")
    def pack(grp, TB):
        for rt in range(2):
            T = TB + rt * 12
            for t in range(5):
                a = acc(grp, t, rt)
                A(f"v_cvt_pk_bf16_f32 v{T+2*t}, v{a}, v{a+1}\nv_cvt_pk_bf16_f32 v{T+2*t+1}, v{a+2}, v{a+3}")
    def store_qk(TB, soff):
        A(f"v_mov_b32 v{TB+10}, v{TB+20}\nv_mov_b32 v{TB+11}, v{TB+21}")
        for rt in range(2):
            T = TB + rt * 12
            A(f"buffer_store_dwordx4 {vr(T,4)}, v4, s[16:19], s{soff} offen offset:{rt*768} sc1")
            A(f"buffer_store_dwordx4 {vr(T+4,4)}, v4, s[16:19], s{soff} offen offset:{rt*768+256} sc1")
        A(f"buffer_store_dwordx4 {vr(TB+8,4)}, v4, s[16:19], s{soff} offen offset:512 sc1")
    def ones(TB):
        for rt in range(2):
            T = TB + rt * 12
            A(f"v_mov_b32 v{T+10}, 0x3f803f80\nv_mov_b32 v{T+11}, 0x3f803f80")
    def store_v(TB, soff):
        for rt in range(2):
            T = TB + rt * 12
            for p in range(3):
                A(f"buffer_store_dwordx4 {vr(T+4*p,4)}, v5, s[16:19], s{soff} offen offset:{rt*V_TILE+256*p} sc1")
    def scale(grp):
        for r in range(acc(grp, 0, 0), acc(grp, 0, 0) + 40, 2):
            A(f"v_pk_mul_f32 v[{r}:{r+1}], v[6:7], v[{r}:{r+1}]")
    TBS = [WR, 190, WR + 24]
    for grp in range(3):
        TB = TBS[grp]
        A(f"""
        s_add_u32 s14, s13, {4*grp}
        s_mul_i32 s20, s14, {HS*QK_TILE}
        s_cmp_ge_u32 s14, 32
        s_cbranch_scc1 P1_ns{grp}
        """)
        scale(grp)
        A(f"P1_ns{grp}:")
        pack(grp, TB)
        store_qk(TB, 20)
    stamp(A, 3)
    A("s_waitcnt vmcnt(0)\ns_barrier")
    stamp(A, 4)
    epoch_read(A)
    A("s_branch P2_cd")
    if HOP: A("HOP1:\ns_branch HOP2")
    A("P1_epiA:\ns_nop 3")
    pack(1, TBS[1]); pack(2, TBS[2])
    A(f"""
    s_cmp_lg_u32 s28, {9 if 'nohalo' in DBG else 3}
    s_cbranch_scc1 P1_nh
    s_lshl_b32 s14, s7, 2
    s_mul_i32 s20, s14, {HS*QK_TILE}
    s_add_u32 s20, s20, {K_OFF}
    s_mul_i32 s21, s14, {HS*V_TILE}
    s_add_u32 s21, s21, {V_OFF}
    """)
    store_qk(TBS[1], 20); store_qk(TBS[2], 21)
    A("s_nop 1\nP1_nh:")
    ones(TBS[2])
    def img_qk(grp, base):
        for rt in range(2):
            T = TBS[grp] + rt * 12
            A(f"ds_write_b128 v252, {vr(T,4)} offset:{base + rt*256}")
            A(f"ds_write_b128 v252, {vr(T+4,4)} offset:{base + rt*256 + 512}")
            A(f"ds_write_b64 v252, {vr(T+8,2)} offset:{base + rt*256 + 1024 + 8}")
            A(f"ds_write_b64 v252, v[2:3] offset:{base + rt*256 + 1024}")
    img_qk(1, BLK)
    for rt in range(2):
        T = TBS[2] + rt * 12
        for p in range(3):
            A(f"ds_write_b128 v253, {vr(T+4*p,4)} offset:{10*BLK + rt*768 + p*64}")
    scale(0); pack(0, TBS[0])
    img_qk(0, 5 * BLK)
    A(f"""
    s_add_u32 s12, s48, {O_BASE}
    s_addc_u32 s13, s49, 0
    s_mov_b32 s15, s28
    s_mov_b32 s16, 1
    s_mov_b32 s40, {FLAG_BASE}
    """)
    stamp(A, 3)
    A("s_waitcnt lgkmcnt(0)\ns_barrier")
    stamp(A, 4)
    epoch_read(A)
    A(f"""
    s_cmp_lg_u32 s28, {9 if 'nohalo' in DBG else 3}
    s_cbranch_scc1 P2_a_enter
    s_and_b32 s21, s6, {3 if 'mix' in DBG else 7}
    s_cmp_eq_u32 s21, {3 if 'mix' in DBG else 7}
    s_cselect_b32 s21, {-22 if 'mix' in DBG else -52 if 'mix2' in DBG else -54}, 8
    s_add_u32 s21, s21, s2
    s_and_b32 s20, s21, 7
    s_lshl_b32 s20, s20, 2
    s_bfe_u32 s22, s21, 0x20003
    s_or_b32 s20, s20, s22
    s_andn2_b32 s21, s21, 31
    s_or_b32 s21, s21, s20
    s_lshl_b32 s21, s21, 9
    s_add_u32 s21, s21, {MB1 + 24}
    s_cmp_lt_u32 s6, 15
    s_cselect_b32 s21, s21, {OOB}
    v_min_u32 v2, 3, v1
    v_lshlrev_b32 v2, 7, v2
    v_add_u32 v2, s21, v2
    s_waitcnt vmcnt(0)
    """)
    flag_store(A, 2)
    A("P2_a_enter:")
    srd(A, 24, 12, 13, 2 * O_BYTES)
    A(f"""
    s_mul_i32 s14, s15, {HD}
    s_add_u32 s14, s14, {L_A}
    s_lshl_b32 s12, s7, 2
    s_add_u32 s15, s15, s12
    P2_a_unit:
    s_mul_i32 s12, s16, {BLK}
    s_add_u32 s12, s12, s14
    v_add_u32 v{AK}, s12, v{LK}
    s_add_u32 s13, s12, {9*BLK}
    v_add_u32 v{AV}, s13, v{LV}
    v_add_u32 v{AQ}, {5*BLK}, v{AK}
    s_lshl_b32 s12, s6, 3
    s_lshl_b32 s13, s16, 1
    s_add_u32 s17, s12, s13
    s_or_b32 s87, s6, s16
    P2_a_start:
    """)
    A.lds_q = []
    rdQ(A); rdK(A, 0, 0); rdK(A, 1, 1); rdV(A, 0, 0); rdV(A, 1, 1)
    oaddr(A, 15, 17)
    A.lds_wait(('q', 0))
    maskQ(A)
    A.lds_wait(('k', 0))
    qk(A, 0, 0, SA, CA); qk(A, 1, 0, SA, CA)
    A.lds_wait(('k', 1))
    qk(A, 0, 1, SB, CA); qk(A, 1, 1, SB, CA)
    A("s_cmp_eq_u32 s87, 0\ns_nop 7\ns_cbranch_scc1 P2_a_inv")
    A("P2_a_val:\ns_nop 3")
    for r in range(16):
        A(f"v_cndmask_b32 v{SA+r}, v{SA+r}, v{SB+r}, s[{MS+2*r}:{MS+2*r+1}]")
    A("s_cmp_eq_u32 s92, 1\ns_cbranch_scc1 P2_a_max")
    for r in range(16): A(f"v_exp_f32 v{SA+r}, v{SA+r}")
    A("s_nop 0")
    for j in range(8): cvt(A, SA, PA, j)
    for j in range(8):
        A(f"v_and_b32 v{PB+j}, v{PA+j}, v{PM+j}\nv_bfi_b32 v{PA+j}, v{PM+j}, 0, v{PA+j}")
    A.lds_wait(('v', 1))
    A("s_cmp_lg_u32 s16, 0\ns_cbranch_scc1 P2_a_np\ns_load_dwordx8 s[32:39], s[48:49], s40 glc\nP2_a_np:")
    pv(A, 0, 0, PA, True); pv(A, 1, 0, PA); pv(A, 0, 1, PB); pv(A, 1, 1, PB)
    finish(A, 0, 'a', 92)
    A("s_cmp_lg_u32 s92, 0\ns_cbranch_scc1 P2_a_rst")
    if 'nohalo' in DBG:
        A("""
        P2_a_next:
        s_cmp_eq_u32 s16, 3
        s_cbranch_scc1 L_Aret
        s_xor_b32 s16, s16, 3
        s_cmp_lg_u32 s16, 1
        s_cbranch_scc1 P2_a_unit
        """)
    else:
        A("""
        P2_a_next:
        s_cmp_eq_u32 s16, 0
        s_cbranch_scc1 L_Aret
        s_add_u32 s16, s16, 1
        s_cmp_lt_u32 s16, 4
        s_cbranch_scc1 P2_a_unit
        """)
    stamp(A, 5)
    A("P2_cd:")
    A(f"{HEADCODE}\ns_mov_b64 s[46:47], s[36:37]")
    OF = 60; ACC3 = 16; WR3 = 220; AW3 = 8; TO = 56; TW = 57
    def of(ks, rt): return OF + (ks * 2 + rt) * 4
    wo_patterns(A, True)
    A(f"""
    {P3COORD}
    s_bfe_u32 s8, s2, 0x10002
    s_lshl_b32 s12, s9, 3
    s_add_u32 s12, s12, s10
    s_lshl_b32 s12, s12, 9
    s_add_u32 s12, s12, {MB2}
    s_cmp_eq_u32 s8, 0
    s_cselect_b32 s12, s12, {OOB}
    v_and_b32 v13, 7, v1
    v_lshlrev_b32 v13, 3, v13
    v_add_u32 v13, s12, v13
    v_and_b32 v12, 3, v1
    v_lshlrev_b32 v12, 3, v12
    s_lshl_b32 s12, s9, 3
    s_lshl_b32 s14, s28, 1
    s_add_u32 s12, s12, s14
    s_mul_i32 s15, s12, 20480
    s_mul_i32 s21, s8, {O_BYTES}
    s_add_u32 s15, s15, s21
    v_lshlrev_b32 v7, 4, v1
    v_add_u32 v7, s15, v7
    v_add_u32 v6, 20480, v7
    v_and_b32 v2, 15, v1
    v_lshlrev_b32 v2, 3, v2
    v_sub_u32 v11, v7, v2
    v_add_u32 v11, 4096, v11
    v_add_u32 v15, 20480, v11
    v_lshrrev_b32 v9, 2, v1
    v_mul_u32_u24 v9, 160, v9
    v_and_b32 v10, 3, v1
    v_lshlrev_b32 v10, 3, v10
    v_add_u32 v{AW3}, v9, v10
    v_add_u32 v{AW3}, {L_WO}, v{AW3}
    v_add_u32 v{AW3+1}, 51200, v{AW3}
    v_and_b32 v2, 15, v1
    v_lshrrev_b32 v3, 4, v1
    s_lshl_b32 s12, s9, 7
    s_lshl_b32 s14, s28, 5
    s_add_u32 s12, s12, s14
    v_add_u32 v2, s12, v2
    v_mul_u32_u24 v2, 2560, v2
    s_mul_i32 s14, s8, 1280
    s_mul_i32 s20, s10, 160
    s_add_u32 s14, s14, s20
    v_add_u32 v2, s14, v2
    v_lshl_add_u32 v59, v3, 3, v2
    v_and_b32 v5, 1, v3
    v_lshl_add_u32 v2, v5, 5, v2
    v_lshrrev_b32 v5, 1, v3
    v_lshl_add_u32 v58, v5, 4, v2
    v_mov_b32 v19, {OOB}
    v_mov_b32 v53, v12
    """)
    cb_init(A)
    A("P2_pre:")
    A(f"""
    s_lshl_b32 s12, s6, 9
    s_add_u32 s12, s12, s7
    s_lshl_b32 s12, s12, 3
    s_add_u32 s12, s12, {MB2}
    s_cmp_eq_u32 s5, 0
    s_cselect_b32 s12, s12, {OOB}
    s_cmp_eq_u32 s28, 4
    s_cselect_b32 s12, s12, {OOB}
    v_min_u32 v18, 7, v1
    v_lshlrev_b32 v18, 9, v18
    v_add_u32 v18, s12, v18
    s_bfe_u32 s5, s2, 0x10002
    s_add_u32 s12, s48, {O_BASE}
    s_addc_u32 s13, s49, 0
    """)
    srd(A, 24, 12, 13, 2 * O_BYTES)
    A(f"""
    s_mul_i32 s12, s28, {BLK}
    s_add_u32 s13, s12, {L_BK}
    v_add_u32 v{AK}, s13, v{LK}
    s_add_u32 s13, s12, {L_BQ}
    v_add_u32 v{AQ}, s13, v{LK}
    s_add_u32 s13, s12, {L_BV}
    v_add_u32 v{AV}, s13, v{LV}
    s_sub_u32 s86, 8, s28
    s_cmp_eq_u32 s4, 0
    s_cselect_b32 s86, s86, -1
    s_lshl_b32 s12, s4, 4
    s_lshl_b32 s13, s28, 1
    s_add_u32 s17, s12, s13
    """)
    oaddr(A, 3, 17)
    A(f"""
    {P3COORD}
    s_cmp_eq_u32 s5, 0
    s_cselect_b32 s16, s46, s42
    s_cselect_b32 s17, s47, s43
    s_and_b32 s17, s17, 0xffff
    s_mov_b32 s18, 819200
    s_mov_b32 s19, 0x20000
    s_mul_i32 s20, s10, 160
    """)
    def wo_setup(n):
        if n < 2:
            A(f"""
            s_add_u32 s21, s28, {8*n}
            s_mul_i32 s22, s21, {40*1280}
            s_add_u32 s22, s22, s20
            s_lshr_b32 s23, s21, 2
            s_add_u32 s23, s23, s21
            s_mul_i32 s23, s23, 5120
            """)
        else:
            A(f"""
            s_mul_i32 s22, s28, {160*1280}
            s_add_u32 s22, s22, s20
            s_mul_i32 s23, s28, 25600
            s_add_u32 s23, s23, 20480
            """)
    def wo_piece(i, n):
        A(f"s_add_u32 m0, s23, {L_WO + i*1024}\ns_nop 0\nbuffer_load_dwordx4 v{WA+i+(5 if n == 2 else 0)}, s[16:19], s22 offen lds")
    if BAL is not None:
        A.out.append("    .p2align 5")
        for _ in range(((BAL - (20 if STAMP else 0)) % 32) // 4): A("s_nop 0")
    A(f"s_cmp_lt_u32 s28, 4\ns_cbranch_scc1 P2_bd\n{'s_setprio 1' if PRIO else ''}\ns_waitcnt vmcnt(0)\nds_write_b64 v53, v[54:55]\nds_write_b64 v53, v[54:55] offset:3072\nP2_bd:\ns_waitcnt vmcnt(0) lgkmcnt(0)\ns_barrier")
    stamp(A, 6)
    A.lds_q = []
    rdQ(A)
    rdK(A, 0, 0); rdK(A, 1, 1)
    flag_store(A, 18)
    A.lds_wait(('q', 0))
    maskQ(A)
    A("s_branch P2_b_go")
    if HOP: A("HOP2:\ns_branch HOP3")
    A("P2_b_start:")
    A.lds_q = []
    rdK(A, 0, 0); rdK(A, 1, 1)
    A("P2_b_go:")
    def cb_switch(b):
        A(f"s_cmp_lg_u32 s86, {b}\ns_cbranch_scc1 P2_cb{b}\ns_nop 7")
        for r in range(16): A(f"v_mov_b32 v{CB+r}, v{NEGM}")
        A(f"s_nop 1\nP2_cb{b}:")
    A.lds_wait(('k', 0))
    qk(A, 0, 0, S0, CB); qk(A, 1, 0, S0, CB)
    rdK(A, 2, 0)
    cb_switch(1)
    A.lds_wait(('k', 1))
    qk(A, 0, 1, SA, CB); qk(A, 1, 1, SA, CB)
    rdV(A, 1, 1)
    A("s_cmp_eq_u32 s93, 1\ns_cbranch_scc1 P2_b_max")
    cb_switch(2)
    A("s_nop 7")
    for b in range(1, 8):
        Sc, Sn = (SA, SB) if b % 2 == 1 else (SB, SA)
        Pc, Pp = (PA, PB) if b % 2 == 1 else (PB, PA)
        wn, wh = (b - 1) // 2, (b - 1) % 2
        dow = b <= 6
        if b == PRIO: A("s_setprio 0")
        if dow and wn == 2: A(f"s_cmp_ge_u32 s28, 4\ns_cbranch_scc1 P2_nw{b}")
        if dow:
            if wh == 0: wo_setup(wn)
            for i in (range(0, 3) if wh == 0 else range(3, 5)): wo_piece(i, wn)
        if dow and wn == 2: A(f"P2_nw{b}:")
        A.lds_wait(('k', b + 1))
        qk(A, 0, (b + 1) % 2, Sn, CB)
        for r in range(0, 4): A(f"v_exp_f32 v{Sc+r}, v{Sc+r}")
        qk(A, 1, (b + 1) % 2, Sn, CB)
        if b + 2 <= 8: rdK(A, b + 2, b % 2)
        for r in range(4, 8): A(f"v_exp_f32 v{Sc+r}, v{Sc+r}")
        if b > 1:
            A.lds_wait(('v', b - 1))
            pv(A, 0, (b - 1) % 2, Pp, first=(b == 2))
        if b * 10 + 5 == PRIO: A("s_setprio 0")
        for r in range(8, 12): A(f"v_exp_f32 v{Sc+r}, v{Sc+r}")
        if b > 1:
            pv(A, 1, (b - 1) % 2, Pp)
        nb = b + 1 if b < 7 else 0
        rdV(A, nb, (b + 1) % 2)
        for r in range(12, 16): A(f"v_exp_f32 v{Sc+r}, v{Sc+r}")
        for j in range(8): cvt(A, Sc, Pc, j)
        if b + 2 <= 8: cb_switch(b + 2)
    if PRIO == 8: A("s_setprio 0")
    for r in range(16):
        A(f"v_cndmask_b32 v{S0+r}, v{S0+r}, v{SB+r}, s[{MS+2*r}:{MS+2*r+1}]")
        if r == 3:
            A.lds_wait(('v', 7)); pv(A, 0, 1, PA)
        if r == 11:
            pv(A, 1, 1, PA); rdV(A, 8, 1)
    for r in range(16): A(f"v_exp_f32 v{S0+r}, v{S0+r}")
    A("s_nop 0")
    for j in range(8): cvt(A, S0, PB, j)
    for j in range(8):
        A(f"v_and_b32 v{P2+j}, v{PB+j}, v{PM+j}\nv_bfi_b32 v{PB+j}, v{PM+j}, 0, v{PB+j}")
    A.lds_wait(('v', 8))
    A("s_nop 0")
    pv(A, 0, 0, PB); pv(A, 1, 0, PB); pv(A, 0, 1, P2); pv(A, 1, 1, P2)
    finish(A, O_BYTES, 'b', 93)
    stamp(A, 7)
    A(f"""
    s_cmp_lt_u32 s28, 4
    s_cbranch_scc1 P3
    s_waitcnt vmcnt(0)
    s_barrier
    """)
    stamp(A, 8)
    A("s_cmp_lg_u32 s28, 4\ns_cbranch_scc1 H_poll")
    flag_store(A, 19)
    A(f"""
    H_poll:
    s_lshl_b32 s12, s5, 7
    s_lshl_b32 s13, s9, 3
    s_add_u32 s12, s12, s13
    s_add_u32 s12, s12, s10
    s_lshl_b32 s12, s12, 9
    s_add_u32 s12, s12, {FLAG_BASE + MB2}
    s_and_b32 s13, s28, 3
    s_lshl_b32 s13, s13, 7
    s_mul_i32 s13, s13, s5
    s_add_u32 s40, s12, s13
    s_mov_b32 s94, 0
    s_and_b32 s12, s28, 3
    s_lshl_b32 s12, s12, 3
    v_mov_b32 v2, s12
    H_loop:
    s_load_dwordx16 s[52:67], s[48:49], s40 glc
    s_add_u32 s94, s94, 1
    s_cmp_ge_u32 s94, {SPIN_LIMIT}
    s_waitcnt lgkmcnt(0)
    s_cbranch_scc1 H_done
    s_xor_b64 s[88:89], s[52:53], s[0:1]
    """)
    for i in range(1, 8):
        A(f"s_xor_b64 s[90:91], s[{52+2*i}:{53+2*i}], s[0:1]\ns_or_b64 s[88:89], s[88:89], s[90:91]")
    A(f"""
    s_cbranch_scc1 H_loop
    H_done:
    ds_write_b64 v2, v[{EP}:{EP+1}]
    s_waitcnt lgkmcnt(0)
    """)
    stamp(A, 9)
    A("s_branch K_end2")
    if HOP: A("HOP3:\ns_branch HOP4")
    A("P2_a_inv:\ns_nop 3")
    for r in range(16): A(f"v_mov_b32 v{SA+r}, v{NINF}")
    A("s_branch P2_a_val")
    A(f"P2_a_rst:\ns_mov_b32 s92, 0\nv_mov_b32 v{NEGM}, 0")
    build_CA(A)
    A("s_branch P2_a_next")
    A("P2_a_fb:\ns_mov_b32 s92, 1\ns_waitcnt lgkmcnt(0)\ns_branch P2_a_start")
    A("P2_a_max:")
    maxblock(A, SA, True)
    rowmax_finish(A, "P2_a_start", 92, lambda: build_CA(A))
    A("P2_b_fb:\ns_mov_b32 s93, 1")
    cb_init(A)
    A("s_branch P2_b_start")
    A("P2_b_max:")
    A("s_waitcnt lgkmcnt(0)\ns_nop 7\ns_nop 3")
    A.lds_q = []
    maxblock(A, SA, True)
    for b in range(2, 9):
        A(f"s_cmp_lg_u32 s86, {b}\ns_cbranch_scc1 P2_mcb{b}")
        for r in range(16): A(f"v_mov_b32 v{CB+r}, v{NEGM}")
        A(f"P2_mcb{b}:")
        rdK(A, b, 0)
        A.lds_drain()
        qk(A, 0, 0, SA, CB); qk(A, 1, 0, SA, CB)
        A("s_nop 7\ns_nop 7")
        if b == 8:
            for r in range(16):
                A(f"v_cndmask_b32 v{SA+r}, v{S0+r}, v{SA+r}, s[{MS+2*r}:{MS+2*r+1}]")
        maxblock(A, SA, False)
    rowmax_finish(A, "P2_b_start", 93, lambda: cb_init(A))
    grp3 = lambda i: (i + 2) & 3
    def pick(i):
        return ["v_cmp_eq_u64 vcc, s[0:1], v[4:5]", "s_nop 1\ns_or_b32 s22, s22, vcc_lo",
                f"s_bitcmp1_b32 s22, {grp3(i)}\ns_cselect_b32 s23, 1, 0\ns_cselect_b32 s30, {grp3(i)*5120}, s21"]
    def ldo(i):
        l = []
        for ks in range(4):
            for rt in range(2):
                l.append(f"buffer_load_dwordx4 {vr(of(i*5+ks,rt),4)}, v{7-rt}, s[24:27], s30 offen offset:{ks*1024} sc1")
        for rt in range(2):
            for hf in range(2):
                l.append(f"buffer_load_dwordx2 {vr(of(i*5+4,rt)+2*hf,2)}, v{(11,15)[rt]}, s[24:27], s30 offen offset:{hf*128} sc1")
        return l
    def rd3(n, hf):
        i, ks, t = n // 25, (n % 25) // 5, n % 5
        b = WR3 + (n % 8) * 4
        off = (grp3(i) & 1) * 25600 + (ks * 32 + hf * 16) * 160 + 32 * t
        A.lds(f"ds_read_b64_tr_b16 {vr(b+2*hf,2)}, v{AW3 + (grp3(i) >> 1)} offset:{off}", ('w', n))
    LA = 6
    def acquire(i):
        A(f"P3_acq{i}:\nds_read_b64 v[4:5], v12\ns_waitcnt lgkmcnt(0)")
        for x in pick(i): A(x)
        A(f"s_cbranch_scc0 P3_acq{i}")
        for x in ldo(i): A(x)
    for i in range(1, 1 + NACQ):
        acquire(i); A(f"s_branch P3_go{i}")
    A("P3:")
    srd(A, 16, 44, 45, 2048 * 1280 * 2)
    A(f"""
    buffer_load_dwordx2 v[4:5], v13, s[96:99], 0 offen sc1
    s_mov_b32 s21, 0x70000000
    s_waitcnt vmcnt(1)
    s_barrier
    """)
    stamp(A, 8)
    A.lds_q = []
    for n in range(LA): rd3(n, 0); rd3(n, 1)
    A("""
    s_waitcnt vmcnt(0)
    v_cmp_ne_u64 vcc, s[0:1], v[4:5]
    s_nop 1
    s_cmp_eq_u64 vcc, 0
    s_cselect_b32 s22, 0xff, 0
    """)
    acquire(0)
    A.lds_q = []
    stamp(A, 9)
    fill = []; nxt = 0
    for n in range(100):
        i, ks, t = n // 25, (n % 25) // 5, n % 5
        if n % 25 == 0:
            nxt = 0
            if i < 3:
                A.lds_wait(('f', i)); fill = pick(i + 1) + ldo(i + 1)
                if i == 0:
                    for x in fill: A(x)
                    fill = []; nxt = 12
        if t == 0 and STAMP and 'p3s' in DBG and n >= 25:
            A(f"s_memtime s[100:101]\ns_waitcnt lgkmcnt(0)\nv_writelane_b32 v255, s100, {14 + n//5 - 5}")
        if t == 0:
            A(f"s_waitcnt vmcnt({(10 - 2*ks if ks < 4 else 0) + nxt})")
        if n % 2 == 0:
            A.lds_wait(('w', n), ('w', n + 1))
        b = WR3 + (n % 8) * 4
        for rt in range(2):
            a = ACC3 + (t * 2 + rt) * 4
            A(f"v_mfma_f32_16x16x32_bf16 {vr(a,4)}, {vr(b,4)}, {vr(of(i*5+ks,rt),4)}, {vr(a,4) if n >= 5 else 0}")
            if n + LA < 100:
                if (n + LA) % 25 == 0 and rt == 0 and i < 2: A.lds("ds_read_b64 v[4:5], v12", ('f', i + 1))
                rd3(n + LA, rt)
            if fill:
                x = fill.pop(0)
                A(x.replace("s_nop 1\n", ""))
                if x.startswith("buffer_load"): nxt += 1
        if n % 25 == 24 and i < 3:
            assert not fill
            A(f"s_cmp_eq_u32 s23, 0\ns_cbranch_scc1 P3_acq{i+1}\nP3_go{i+1}:")
    stamp(A, 10)
    A("s_mov_b32 s12, 40960")
    for rt in range(2):
        T = OF + rt * 12
        for t in range(5):
            a = ACC3 + (t * 2 + rt) * 4
            A(f"v_cvt_pk_bf16_f32 v{T+2*t}, v{a}, v{a+1}\nv_cvt_pk_bf16_f32 v{T+2*t+1}, v{a+2}, v{a+3}")
        for j in (0, 1, 4, 5): A(f"v_permlane16_swap_b32 v{T+j}, v{T+j+2}")
        so = "s12" if rt else "0"
        A(f"buffer_store_dwordx4 {vr(T,4)}, v58, s[16:19], {so} offen {OUT_FLAGS}")
        A(f"buffer_store_dwordx4 {vr(T+4,4)}, v58, s[16:19], {so} offen offset:64 {OUT_FLAGS}")
        A(f"buffer_store_dwordx2 {vr(T+8,2)}, v59, s[16:19], {so} offen offset:128 {OUT_FLAGS}")
    stamp(A, 11)
    A("K_end2:")
    for d in DBG:
        if d.startswith('pad'):
            A(f"""
            s_cmp_lt_u32 s28, 4
            s_cbranch_scc1 PADE
            v_readfirstlane_b32 s12, v{EP}
            PADL:
            s_memrealtime s[14:15]
            s_waitcnt lgkmcnt(0)
            s_sub_u32 s13, s14, s12
            s_cmp_lt_u32 s13, {int(d[3:])*100}
            s_cbranch_scc1 PADL
            PADE:
            """)
    stamp_flush(A, 12, 0)
    A("K_end:\ns_endpgm")
    if HOP: A("HOP4:\ns_branch HOP5")
    for i in range(1 + NACQ, 4):
        acquire(i); A(f"s_branch P3_go{i}")
    if HOP: A("HOP5:\ns_branch HOP6")
    A("K_last:")
    A.end(256, 102, 256, 512, LDS_TOTAL)

P3_DEPTH = 8
PSLEEP = 0
HOP = '--hop' in sys.argv
BAL = 12 if HOP else 16
NACQ = 0 if '--stamp' in sys.argv else 2
P3AL = '--nop3al' not in sys.argv
STATIC = True
ALIGN = None
WB = 2
CPF_SH = 3
PRIO = 6
SECT = True
OUT_FLAGS = ""

if __name__ == '__main__':
    if '--stamp' in sys.argv: STAMP = True
    for a in sys.argv[1:]:
        if a.startswith('--dbg='): DBG.update(a[6:].split(','))
        if a.startswith('--rot='): ROT = int(a[6:])
        if a.startswith('--bal='): BAL = int(a[6:])
        if a.startswith('--al='): ALIGN = int(a[5:])
        if a.startswith('--wb='): WB = int(a[5:])
        if a.startswith('--look='): P1_LOOK = int(a[7:])
        if a.startswith('--prio='): PRIO = int(a[7:])
        if a.startswith('--psleep='): PSLEEP = int(a[9:])
        if a.startswith('--out='): OUT_FLAGS = a[6:].replace('+', ' ')
    A = Asm()
    gen(A)
    t = A.text()
    t = t.replace("    LSTG\n", "    s_memtime s[100:101]\n    s_add_u32 m0, s51, 15\n    s_waitcnt lgkmcnt(0)\n    v_writelane_b32 v255, s100, m0\n" if (STAMP and 'lstg' in DBG) else "")
    import subprocess, re, os
    open('_g3.s', 'w').write(t.replace('CODE_BYTES', '0x1234').replace('CPF_OFF', '0x1234'))
    subprocess.run(['clang', '-x', 'assembler', '-target', 'amdgcn-amd-amdhsa', '-mcpu=gfx950', '-c', '_g3.s', '-o', '_g3.o'], check=True)
    nm = subprocess.run(['llvm-objdump', '-t', '_g3.o'], capture_output=True, text=True).stdout
    end = int(re.search(r'^([0-9a-f]+) .* K_last$', nm, re.M).group(1), 16)
    sys.stderr.write(f"code bytes {end}\n")
    m = re.search(r'^([0-9a-f]+) .* CPF_pc$', nm, re.M)
    pc = int(m.group(1), 16) if m else 0
    sys.stdout.write(t.replace('CODE_BYTES', str(end - 64)))
```

```python
import sys, math, struct

REF = 'concat_heads__sliding_local_dilated__sliding_block__prompt.s.ref'
HDR = [l for l in open(REF).read().split('\n')
       if l.startswith(';') and '@launch' not in l and 'Override' not in l and 'grid=ceil' not in l]
MAIN = "concat_heads__sliding_local_dilated__sliding_block__prompt_kernel"

QK_TILE = 640
V_TILE = 640
HS = 128
for _a in sys.argv[1:]:
    if _a.startswith('--hs='): HS = int(_a[5:])
K_OFF = 32 * HS * QK_TILE
V_OFF = 2 * K_OFF
QKV_BYTES = V_OFF + 32 * HS * V_TILE
O_BASE = 18 << 20
assert 2 * QKV_BYTES <= O_BASE
O_BYTES = 2048 * 640 * 2
FLAG_BASE = 24 << 20
MB1 = 0; MB2 = 131072; MB_BYTES = 262144
OOB = 0x7ffff000

STAMP = False
DBG = set()
STAMP_OFF = 30 << 20
FUSED = False

def f32bits(x): return struct.unpack('<I', struct.pack('<f', x))[0]
SCALE_L2E = (20 ** -0.5) * math.log2(math.e)

NOTES = """;
;           (buffer_load ... lds), waves 0-3 run the MFMAs.  Q is scaled by Dh^-0.5 * log2(e).
;"""

class Asm:
    def __init__(self):
        self.out = []; self.kernels = []; self.launches = []; self.lds_q = []
    def __call__(self, s):
        for l in s.split('\n'):
            l = l.strip()
            if not l: continue
            if 'noload' in DBG and l.startswith('buffer_load') and ' lds' in l: continue
            if 'nomfma' in DBG and l.startswith('v_mfma'): continue
            if 'nods' in DBG and l.startswith('ds_read'): continue
            if 'nowait' in DBG and l.startswith('s_waitcnt lgkmcnt(') and not l.endswith('(0)'): continue
            if 'halfds' in DBG and l.startswith('ds_read_b64_tr') and (int(l.split('[')[1].split(':')[0]) % 4 == 2): continue
            if 'nobar' in DBG and l.startswith('s_barrier'): continue
            if 'nostore' in DBG and l.startswith('buffer_store') and 's[8:11]' not in l: continue
            self.out.append(l if l.endswith(':') else '    ' + l)
    def begin(self, name):
        self.out.append(f".globl {name}\n.p2align 8\n.type {name},@function\n{name}:")
        self.cur = name
    def end(self, vgpr, sgpr, grid, block, lds):
        self.kernels.append((self.cur, vgpr, sgpr))
        self.launches.append((self.cur, grid, block, lds))
    def lds(self, s, tag):
        self(s); self.lds_q.append(tag)
    def lds_wait(self, *tags):
        idx = [i for i, t in enumerate(self.lds_q) if t in tags]
        if not idx: return
        n = len(self.lds_q) - 1 - idx[-1]
        assert n <= 15, n
        self(f"s_waitcnt lgkmcnt({n})")
        self.lds_q = self.lds_q[idx[-1] + 1:]
    def lds_drain(self):
        self("s_waitcnt lgkmcnt(0)"); self.lds_q = []
    def text(self, order=None):
        o = list(HDR)
        ls = self.launches if order is None else [l for n in order for l in self.launches if l[0] == n]
        if len(ls) == 1 and ls[0][0] == MAIN:
            (n, g, b, lds) = ls[0]
            o.append(f"; @launch grid=({g},1,1) block=({b},1,1) lds={lds}")
        else:
            for (n, g, b, lds) in ls:
                o.append(f"; @launch kernel={n} grid=({g},1,1) block=({b},1,1) lds={lds}")
        o.append(NOTES)
        o.append('.amdgcn_target "amdgcn-amd-amdhsa--gfx950"\n.text')
        o += self.out
        o.append('.section .rodata,"a"')
        for (n, vgpr, sgpr) in self.kernels:
            o.append(f""".p2align 6
.amdhsa_kernel {n}
  .amdhsa_next_free_vgpr {vgpr}
  .amdhsa_next_free_sgpr {sgpr}
  .amdhsa_accum_offset {(vgpr + 3) // 4 * 4}
  .amdhsa_group_segment_fixed_size 0
  .amdhsa_kernarg_size 72
  .amdhsa_user_sgpr_count 2
  .amdhsa_user_sgpr_kernarg_segment_ptr 1
  .amdhsa_system_sgpr_workgroup_id_x 1
.end_amdhsa_kernel""")
        return '\n'.join(o) + '\n'

def vr(a, n=1): return f"v{a}" if n == 1 else f"v[{a}:{a+n-1}]"

def stamp(A, i):
    if STAMP and i < 100:
        A(f"s_memtime s[100:101]\ns_waitcnt lgkmcnt(0)\nv_writelane_b32 v255, s100, {i}")
        A.lds_q = []
        if i == 0:
            A("s_memrealtime s[100:101]\ns_waitcnt lgkmcnt(0)\nv_writelane_b32 v255, s100, 31")
def stamp_flush(A, n, kidx):
    if not STAMP: return
    A("s_waitcnt lgkmcnt(0) vmcnt(0)")
    stamp(A, n)
    A(f"""
    s_memrealtime s[100:101]
    s_waitcnt lgkmcnt(0)
    v_writelane_b32 v255, s100, {n+1}
    s_add_u32 s4, s48, {STAMP_OFF + kidx*524288}
    s_addc_u32 s5, s49, 0
    s_mov_b32 s8, s4
    s_and_b32 s9, s5, 0xffff
    s_mov_b32 s10, 524288
    s_mov_b32 s11, 0x20000
    s_lshl_b32 s6, s2, 4
    s_add_u32 s6, s6, s28
    s_lshl_b32 s6, s6, 7
    v_lshlrev_b32 v0, 2, v1
    v_add_u32 v0, s6, v0
    v_mov_b32 v2, {OOB}
    v_cmp_gt_u32 vcc, 32, v1
    s_nop 1
    v_cndmask_b32 v0, v2, v0, vcc
    buffer_store_dword v255, v0, s[8:11], 0 offen
    """)

def srd(A, d, lo, hi, nbytes):
    A(f"s_mov_b32 s{d}, s{lo}\ns_and_b32 s{d+1}, s{hi}, 0xffff\ns_mov_b32 s{d+2}, {nbytes}\ns_mov_b32 s{d+3}, 0x20000")

MAPCODE = {
 'split': """s_lshr_b32 s5, s3, 2
    s_bfe_u32 s6, s3, 0x10001
    s_and_b32 s7, s3, 1
    s_and_b32 s10, s4, 7
    s_lshr_b32 s11, s4, 3
    s_lshl_b32 s6, s6, 3
    s_add_u32 s6, s6, s10
    s_lshl_b32 s7, s7, 2
    s_add_u32 s7, s7, s11""",
 'mix': """s_lshr_b32 s5, s4, 4
    s_lshr_b32 s6, s3, 1
    s_and_b32 s7, s3, 1
    s_and_b32 s10, s4, 3
    s_bfe_u32 s11, s4, 0x20002
    s_lshl_b32 s6, s6, 2
    s_add_u32 s6, s6, s10
    s_lshl_b32 s7, s7, 2
    s_add_u32 s7, s7, s11""",
 'mix2': """s_lshr_b32 s5, s4, 4
    s_lshr_b32 s6, s3, 2
    s_and_b32 s7, s3, 3
    s_and_b32 s10, s4, 7
    s_bfe_u32 s11, s4, 0x10003
    s_lshl_b32 s6, s6, 3
    s_add_u32 s6, s6, s10
    s_lshl_b32 s7, s7, 1
    s_add_u32 s7, s7, s11
    s_lshl_b32 s11, s11, 1""",
}
def prologue(A, endlabel):
    if 'early' in DBG: A("s_memrealtime s[94:95]")
    A(f"""
    s_cmp_ge_u32 s2, 256
    s_cbranch_scc1 {endlabel}
    s_load_dwordx16 s[32:47], s[0:1], 0
    s_load_dwordx2 s[48:49], s[0:1], 64
    s_getpc_b64 s[50:51]
    v_lshrrev_b32 v2, 6, v0
    s_andn2_b32 s3, s2, 7
    {"v_lshlrev_b32 v3, 6, v0" if 'cpfall' in DBG else "v_add_lshl_u32 v3, v2, s3, 7"}
    v_min_u32 v3, CODE_BYTES, v3
    v_and_b32 v1, 63, v0
    global_load_dword v254, v3, s[50:51]
    s_and_b32 s3, s2, 7
    s_lshr_b32 s4, s2, 3
    v_readfirstlane_b32 s28, v2
    {MAPCODE['mix' if 'mix' in DBG else 'mix2' if 'mix2' in DBG else 'split']}
    """)

PIECE = 1056
P1_LOOK = 5
XOFF = 32 * PIECE
SLOT = XOFF + 16384
P1_LDS = 3 * SLOT
LDS_TOTAL = 163840
BLK = 1536
HD = 14 * BLK
L_BK = 0; L_BV = 16 * BLK; L_WO = 32 * BLK; L_BQ = L_WO + 102400
assert L_BQ + 8 * BLK == LDS_TOTAL
L_A = SLOT
EP_LDS = 140000
HF_LDS = EP_LDS + 64
assert L_A + 4 * HD <= EP_LDS
EP = 250
SPIN_LIMIT = 1 << 17
PM = 214; QD = 222; NINF = 223; LK = 224; LV = 225; OL = 226; NEGM = 227; T0 = 228; T1 = 229; CA = 230
MS = 52
QF = 20; AK = 28; AV = 29; AQ = 30; OA = 32; WA = 36
CB = 80; S0 = 96; SA = 112; SB = 128; PA = 144; PB = 152; KF = 160; VF = 176; O = 192; P2 = 64

def flag_srd(A):
    A(f"s_add_u32 s94, s48, {FLAG_BASE}\ns_addc_u32 s95, s49, 0")
    srd(A, 96, 94, 95, MB_BYTES)

def dbg_srd(A):
    A("s_mov_b32 s96, s46\ns_and_b32 s97, s47, 0xffff\ns_mov_b32 s98, 256\ns_mov_b32 s99, 0x20000")

def epoch_get(A):
    A(f"""
    s_or_b32 s96, s28, s2
    s_cbranch_scc1 EP_skip
    {"" if 'early' in DBG else "s_memrealtime s[94:95]"}
    v_mov_b32 v252, 0
    s_waitcnt lgkmcnt(0)
    """)
    dbg_srd(A)
    A(f"""
    s_or_b32 s94, s94, 1
    v_mov_b32 v{EP}, s94
    v_mov_b32 v{EP+1}, s95
    s_nop 0
    buffer_store_dwordx2 v[{EP}:{EP+1}], v252, s[96:99], 0 offen sc1
    EP_skip:
    """)

def epoch_share(A):
    A(f"""
    s_cmp_lg_u32 s28, 4
    s_cbranch_scc1 EP_skip2
    """)
    dbg_srd(A)
    A(f"""
    v_mov_b32 v252, 0
    s_mov_b32 s94, 0
    EP_spin:
    buffer_load_dwordx2 v[{EP}:{EP+1}], v252, s[96:99], 0 offen sc1
    s_add_u32 s94, s94, 1
    s_waitcnt vmcnt(0)
    v_readfirstlane_b32 s95, v{EP}
    s_cmp_ge_u32 s94, {SPIN_LIMIT}
    s_cbranch_scc1 EP_got
    s_cmp_eq_u32 s95, 0
    s_cbranch_scc1 EP_spin
    EP_got:
    v_mov_b32 v252, {EP_LDS}
    s_nop 0
    ds_write_b64 v252, v[{EP}:{EP+1}]
    s_waitcnt lgkmcnt(0)
    EP_skip2:
    """)

def epoch_read(A):
    A(f"v_mov_b32 v252, {EP_LDS}\ns_nop 0\nds_read_b64 v[{EP}:{EP+1}], v252\ns_waitcnt lgkmcnt(0)")
    A(f"v_readfirstlane_b32 s0, v{EP}\nv_readfirstlane_b32 s1, v{EP+1}")

def flag_store(A, vaddr):
    A(f"buffer_store_dwordx2 v[{EP}:{EP+1}], v{vaddr}, s[96:99], 0 offen sc1")

def poll(A, vaddr, vtmp, tag):
    A(f"""
    s_mov_b32 s94, 0
    PL_{tag}:
    buffer_load_dwordx2 v[{vtmp}:{vtmp+1}], v{vaddr}, s[96:99], 0 offen sc1
    s_waitcnt vmcnt(0)
    v_cmp_ne_u64 vcc, v[{vtmp}:{vtmp+1}], v[{EP}:{EP+1}]
    s_add_u32 s94, s94, 1
    s_nop 0
    s_cmp_eq_u64 vcc, 0
    s_cbranch_scc1 PD_{tag}
    s_sleep 1
    s_cmp_lt_u32 s94, {SPIN_LIMIT}
    s_cbranch_scc1 PL_{tag}
    PD_{tag}:
    """)

def setup2(A):
    A(f"""
    v_lshrrev_b32 v5, 5, v1
    v_and_b32 v2, 31, v1
    v_lshlrev_b32 v3, 2, v5
    v_sub_u32 v{QD}, v2, v3
    v_mov_b32 v{NINF}, 0xff800000
    v_mov_b32 v{NEGM}, 0
    v_lshlrev_b32 v{LK}, 4, v1
    """)
    for r in range(16):
        kc = (r & 3) + 8 * (r >> 2)
        A(f"v_cmp_le_i32 s[{MS+2*r}:{MS+2*r+1}], {kc}, v{QD}")
    A("v_mov_b32 v2, 0xffff\nv_mov_b32 v3, 0xffff0000\nv_mov_b32 v4, 0")
    for j in range(8):
        A(f"v_cndmask_b32 v6, v4, v2, s[{MS+4*j}:{MS+4*j+1}]")
        A(f"v_cndmask_b32 v7, v4, v3, s[{MS+4*j+2}:{MS+4*j+3}]")
        A(f"v_or_b32 v{PM+j}, v6, v7")
    A(f"""
    v_and_b32 v3, 3, v1
    v_bfe_u32 v4, v1, 2, 2
    v_lshrrev_b32 v7, 1, v3
    v_lshlrev_b32 v7, 6, v7
    v_and_b32 v6, 1, v3
    v_lshl_add_u32 v7, v6, 3, v7
    v_min_u32 v6, 1, v3
    v_lshlrev_b32 v6, 3, v6
    v_add_u32 v6, 128, v6
    v_bfe_u32 v2, v1, 4, 1
    v_cmp_eq_u32 vcc, 0, v2
    v_mul_u32_u24 v2, 20480, v2
    v_and_b32 v3, 15, v1
    v_cndmask_b32 v7, v6, v7, vcc
    v_lshl_add_u32 v7, v4, 4, v7
    v_mul_u32_u24 v6, 192, v5
    v_add_u32 v{LV}, v7, v6
    v_lshl_add_u32 v{OL}, v3, 4, v2
    s_mov_b32 s84, {f32bits(2.0**-64)}
    s_mov_b32 s85, {f32bits(2.0**64)}
    s_mov_b32 s92, 0
    s_mov_b32 s93, 0
    """)

def build_CA(A):
    for r in range(16):
        kc = (r & 3) + 8 * (r >> 2)
        A(f"v_subrev_u32 v{T0}, {kc}, v{QD}\nv_and_b32 v{T0}, 17, v{T0}\nv_cmp_eq_u32 s[88:89], 0, v{T0}\ns_nop 1\nv_cndmask_b32 v{CA+r}, v{NINF}, v{NEGM}, s[88:89]")

def oaddr(A, s_head, s_rt16):
    A(f"""
    s_lshr_b32 s88, s{s_head}, 3
    s_mul_i32 s88, s88, 5120
    s_mul_i32 s89, s{s_rt16}, 20480
    s_add_u32 s88, s88, s89
    s_and_b32 s89, s{s_head}, 7
    s_lshl_b32 s90, s89, 9
    s_add_u32 s90, s90, s88
    s_lshl_b32 s89, s89, 7
    s_add_u32 s89, s89, s88
    s_add_u32 s89, s89, 4096
    v_lshrrev_b32 v2, 5, v1
    v_lshl_add_u32 v2, v2, 8, v{OL}
    v_add_u32 v{OA}, s90, v2
    v_and_b32 v2, 15, v1
    v_lshlrev_b32 v2, 3, v2
    v_sub_u32 v3, v{OL}, v2
    v_add_u32 v3, s89, v3
    v_cmp_gt_u32 vcc, 32, v1
    v_mov_b32 v2, {OOB}
    s_nop 0
    v_cndmask_b32 v{OA+1}, v2, v3, vcc
    """)

def qk(A, i, slot, dst, C):
    c = vr(C, 16) if i == 0 else vr(dst, 16)
    A(f"v_mfma_f32_32x32x16_bf16 {vr(dst,16)}, {vr(KF+slot*8+4*i,4)}, {vr(QF+4*i,4)}, {c}")
def pv(A, i, slot, Preg, first=False):
    c = "0" if first else vr(O, 16)
    A(f"v_mfma_f32_32x32x16_bf16 {vr(O,16)}, {vr(VF+slot*8+4*i,4)}, {vr(Preg+4*i,4)}, {c}")
def cvt(A, S, Pd, j):
    A(f"v_cvt_pk_bf16_f32 v{Pd+j}, v{S+2*j}, v{S+2*j+1}")
def rdK(A, b, slot):
    for i in range(2):
        A.lds(f"ds_read_b128 {vr(KF + slot*8 + 4*i, 4)}, v{AK} offset:{b*BLK + i*1024}", ('k', b))
def rdV(A, b, slot):
    for i in range(4):
        A.lds(f"ds_read_b64_tr_b16 {vr(VF + slot*8 + 2*i, 2)}, v{AV} offset:{b*BLK + i*384}", ('v', b))
def rdQ(A):
    for i in range(2):
        A.lds(f"ds_read_b128 {vr(QF + 4*i, 4)}, v{AQ} offset:{i*1024}", ('q', 0))
def maskQ(A):
    A(f"v_mov_b32 v{QF+4}, 0\nv_mov_b32 v{QF+5}, 0\ns_mov_b32 s88, -1\ns_mov_b32 s89, 0\nv_mov_b32 v{T0}, 0")
    A(f"v_cndmask_b32 v{QF+6}, v{T0}, v{QF+6}, s[88:89]\nv_cndmask_b32 v{QF+7}, v{T0}, v{QF+7}, s[88:89]\ns_nop 0")

def finish(A, osoff, tag, flagreg):
    A(f"s_nop 7\ns_nop 3\nv_rcp_f32 v{T0}, v{O+12}")
    A(f"v_add_f32 v{T1}, |v{O}|, |v{O+1}|")
    for r in range(2, 12):
        A(f"v_add_f32 v{T1}, v{T1}, |v{O+r}|")
    A(f"""
    v_cmp_le_f32 s[88:89], s84, v{O+12}
    v_cmp_ge_f32 s[90:91], s85, v{O+12}
    v_cmp_gt_f32 vcc, -v{NINF}, v{T1}
    """)
    for r in range(12):
        A(f"v_mul_f32 v{O+r}, v{O+r}, v{T0}")
    A(f"""
    s_and_b64 s[88:89], s[88:89], s[90:91]
    s_and_b64 s[88:89], s[88:89], vcc
    s_or_b32 s90, s{flagreg}, 0
    s_cbranch_scc1 P2_{tag}_ok
    s_cmp_eq_u64 s[88:89], exec
    s_cbranch_scc0 P2_{tag}_fb
    P2_{tag}_ok:
    """)
    for j in range(6):
        A(f"v_cvt_pk_bf16_f32 v{O+j}, v{O+2*j}, v{O+2*j+1}")
    A(f"s_mov_b32 s88, {osoff}")
    A(f"v_permlane32_swap_b32 v{O}, v{O+2}\nv_permlane32_swap_b32 v{O+1}, v{O+3}")
    A(f"buffer_store_dwordx2 {vr(O+4,2)}, v{OA+1}, s[24:27], s88 offen sc1")
    A(f"buffer_store_dwordx4 {vr(O,4)}, v{OA}, s[24:27], s88 offen sc1")

def maxblock(A, S, first):
    if first: A(f"v_max_f32 v{T1}, v{S}, v{S+1}")
    else: A(f"v_max3_f32 v{T1}, v{T1}, v{S}, v{S+1}")
    for r in range(2, 16, 2): A(f"v_max3_f32 v{T1}, v{T1}, v{S+r}, v{S+r+1}")
def rowmax_finish(A, back, flagreg, rebuild):
    A(f"""
    v_mov_b32 v{T0}, v{T1}
    s_nop 1
    v_permlane32_swap_b32 v{T1}, v{T0}
    s_nop 1
    v_max_f32 v{T1}, v{T1}, v{T0}
    v_sub_f32 v{NEGM}, 0, v{T1}
    s_mov_b32 s{flagreg}, 2
    """)
    rebuild()
    A(f"s_waitcnt lgkmcnt(0)\ns_branch {back}")

def dma_patterns(A):
    A(f"""
    v_and_b32 v3, 15, v1
    v_bfe_u32 v4, v1, 4, 1
    v_lshlrev_b32 v6, 3, v4
    v_mul_u32_u24 v4, 768, v4
    v_lshl_add_u32 v5, v3, 4, v4
    v_lshl_add_u32 v6, v3, 4, v6
    v_add_u32 v6, 504, v6
    v_cmp_gt_u32 vcc, 32, v1
    v_add_u32 v7, 256, v5
    v_add_u32 v8, {2*QK_TILE}, v5
    v_add_u32 v9, {2*QK_TILE}, v7
    v_add_u32 v10, {2*QK_TILE}, v6
    v_cndmask_b32 v12, v7, v5, vcc
    v_cndmask_b32 v13, v8, v6, vcc
    v_cndmask_b32 v14, v10, v9, vcc
    s_mov_b32 s12, 0x15555556
    """)
    for ty in range(3):
        A(f"""
        v_add_u32 v3, {ty*64}, v1
        v_mul_hi_u32 v4, v3, s12
        v_mul_u32_u24 v5, 12, v4
        v_sub_u32 v5, v3, v5
        v_lshrrev_b32 v6, 2, v5
        v_and_b32 v5, 3, v5
        v_lshl_add_u32 v5, v4, 2, v5
        v_lshrrev_b32 v7, 5, v5
        v_mul_u32_u24 v7, 1280, v7
        v_lshrrev_b32 v9, 1, v6
        v_mul_u32_u24 v9, 760, v9
        v_sub_u32 v9, 768, v9
        v_bfe_u32 v8, v5, 4, 1
        v_mad_u32_u24 v7, v8, v9, v7
        v_and_b32 v5, 15, v5
        v_lshl_add_u32 v7, v5, 4, v7
        v_lshl_add_u32 v{15+ty}, v6, 8, v7
        """)

P3COORD = """s_and_b32 s12, s2, 3
    s_lshl_b32 s9, s12, 2
    s_bfe_u32 s12, s2, 0x20003
    s_add_u32 s9, s9, s12
    s_lshr_b32 s10, s2, 5
    s_lshr_b32 s11, s10, 1"""
P3COORD = P3COORD.replace("s_lshr_b32 s11, s10, 1", "s_mov_b32 s11, 2")
def cb_init(A):
    A("s_cmp_eq_u32 s4, 0\ns_cselect_b64 s[88:89], exec, 0\ns_nop 1")
    for r in range(16): A(f"v_cndmask_b32 v{CB+r}, v{NEGM}, v{NINF}, s[88:89]")
def wo_patterns(A, quads):
    A("s_mov_b32 s12, 0x1999999a")
    for i in range(5):
        A(f"""
        v_add_u32 v8, {i*64}, v1
        v_mul_hi_u32 v9, v8, s12
        v_mul_u32_u24 v10, 10, v9
        v_sub_u32 v10, v8, v10
        v_bfe_u32 v11, v9, 2, 2
        v_lshlrev_b32 v11, 3, v11
        v_bfe_u32 v7, v9, 4, 1
        v_lshl_add_u32 v11, v7, 2, v11
        v_and_b32 v7, 3, v9
        v_add_u32 v11, v11, v7
        v_lshrrev_b32 v7, 4, v11
        v_lshl_add_u32 v7, v7, 2, v11
        v_mul_u32_u24 v7, 1280, v7
        v_lshl_add_u32 v{WA+i}, v10, 4, v7
        """)
        if quads: A(f"""
        v_lshrrev_b32 v7, 2, v11
        v_lshl_add_u32 v7, v7, 4, v11
        v_add_u32 v7, 16, v7
        v_mul_u32_u24 v7, 1280, v7
        v_lshl_add_u32 v{WA+5+i}, v10, 4, v7
        """)
        else: A(f"v_mov_b32 v{WA+5+i}, v{WA+i}")
ROT = 4
HEADCODE = "s_and_b32 s3, s2, 7\ns_lshl_b32 s3, s3, 2\ns_bfe_u32 s4, s2, 0x20003\ns_or_b32 s3, s3, s4\ns_lshr_b32 s4, s2, 5"
ROTCODE = {
 10: """s_mul_i32 s12, s11, 5
    s_lshr_b32 s12, s12, 1
    s_mul_i32 s13, s10, 5
    s_lshr_b32 s13, s13, 2
    s_add_u32 s12, s12, s13
    s_cmp_ge_u32 s12, 10
    s_cselect_b32 s13, 10, 0
    s_sub_u32 s12, s12, s13""",
 1: "s_mov_b32 s12, 0",
 5: "s_add_u32 s12, s10, s7\ns_mul_i32 s13, s12, 52\ns_lshr_b32 s13, s13, 8\ns_mul_i32 s13, s13, 5\ns_sub_u32 s12, s12, s13\ns_lshl_b32 s12, s12, 1",
 6: "s_add_u32 s12, s6, s7\ns_mul_i32 s13, s12, 52\ns_lshr_b32 s13, s13, 8\ns_mul_i32 s13, s13, 5\ns_sub_u32 s12, s12, s13\ns_lshl_b32 s12, s12, 1",
 2: "s_add_u32 s12, s10, s11\ns_and_b32 s12, s12, 1\ns_mul_i32 s12, s12, 5",
 4: "s_add_u32 s12, s10, s11\ns_and_b32 s12, s12, 3\ns_mul_i32 s12, s12, 5\ns_lshr_b32 s12, s12, 1",
 3: "s_add_u32 s12, s10, s11\ns_mul_i32 s13, s12, 43\ns_lshr_b32 s13, s13, 7\ns_mul_i32 s13, s13, 3\ns_sub_u32 s12, s12, s13\ns_mul_i32 s12, s12, 7\ns_lshr_b32 s12, s12, 1",
}
def gen(A):
    A.begin(MAIN)
    if 'lst' in DBG: A("s_memtime s[98:99]")
    prologue(A, "K_end")
    if 'lst' not in DBG: stamp(A, 0)
    A("s_cmp_lt_u32 s28, 4\ns_cbranch_scc1 P1_consumer")
    A(f"""
    s_sub_u32 s29, s28, 4
    v_lshrrev_b32 v2, 5, v1
    v_and_b32 v3, 31, v1
    v_mul_u32_u24 v2, 15360, v2
    v_mul_u32_u24 v6, 26, v3
    v_lshrrev_b32 v6, 8, v6
    s_cmp_eq_u32 s5, 0
    s_cselect_b32 s15, 1120, 0
    s_cselect_b32 s14, 160, 480
    v_mul_lo_u32 v6, v6, s15
    v_lshl_add_u32 v2, v3, 4, v2
    v_add_u32 v2, v2, v6
    v_mov_b32 v4, {OOB}
    v_cmp_gt_u32 vcc, 30, v3
    v_lshrrev_b32 v5, 3, v1
    v_mul_u32_u24 v5, 1280, v5
    v_cndmask_b32 v8, v4, v2, vcc
    v_and_b32 v3, 7, v1
    v_lshrrev_b32 v4, 4, v1
    v_xor_b32 v3, v3, v4
    v_lshl_add_u32 v9, v3, 4, v5
    v_xor_b32 v3, 4, v3
    v_lshl_add_u32 v10, v3, 4, v5
    {ROTCODE[ROT]}
    s_mul_i32 s13, s29, {8*3840}
    s_mul_i32 s14, s7, s14
    s_add_u32 s13, s13, s14
    s_lshl_b32 s14, s6, 7
    s_lshl_b32 s15, s29, 5
    s_add_u32 s14, s14, s15
    s_mul_i32 s14, s14, 1280
    s_mul_i32 s30, s29, {4*PIECE}
    s_lshl_b32 s31, s29, 12
    s_add_u32 s31, s31, {XOFF}
    s_mul_i32 s26, s12, 245760
    s_add_u32 s26, s26, s13
    s_lshl_b32 s27, s12, 7
    s_add_u32 s27, s27, s14
    s_mov_b32 s25, 0
    s_mov_b32 s51, 0
    s_cmp_eq_u32 s5, 0
    {"s_memtime s[96:97]" if 'lst' in DBG else ""}
    s_waitcnt lgkmcnt(0)
    {"v_writelane_b32 v255, s96, 14" if 'lst' in DBG else ""}
    s_cselect_b32 s16, s32, s38
    s_cselect_b32 s17, s33, s39
    s_cselect_b32 s20, s34, s40
    s_cselect_b32 s21, s35, s41
    s_and_b32 s17, s17, 0xffff
    s_mov_b32 s18, 2621440
    s_mov_b32 s19, 0x20000
    s_and_b32 s21, s21, 0xffff
    s_mov_b32 s22, 2457600
    s_mov_b32 s23, 0x20000
    """.replace("s_cselect_b32 s14, 160, 480", "s_movk_i32 s14, 480\ns_cselect_b32 s14, 160, s14"))
    def wpiece(sub, r):
        A(f"s_add_u32 m0, s30, {(sub*16 + r)*PIECE}\ns_add_u32 s50, s26, {(32*sub + r)*3840}\nbuffer_load_dwordx4 v8, s[20:23], s50 offen lds")
    def xpiece(j):
        A(f"s_add_u32 m0, s31, {j*1024}\ns_add_u32 s50, s27, {j*8*1280}\nbuffer_load_dwordx4 v{9 + (j & 1)}, s[16:19], s50 offen lds")
    def F():
        xpiece(0); wpiece(0, 0); xpiece(1); wpiece(0, 1); xpiece(2); xpiece(3)
    def S():
        wpiece(0, 2); wpiece(0, 3)
        for r in range(4): wpiece(1, r)
    for d in DBG:
        if d.startswith('adel'): A(f"s_cmp_lg_u32 s5, 0\ns_cbranch_scc1 P1_lf\ns_sleep {d[4:]}")
    if 'lst' in DBG: stamp(A, 10); A("v_writelane_b32 v255, s98, 0")
    A("s_branch P1_lf")
    A("P1_lloop:")
    S()
    A(f"""
    s_add_u32 s12, s12, 1
    s_cmp_eq_u32 s12, 10
    s_cselect_b32 s12, 0, s12
    s_mul_i32 s26, s12, 245760
    s_add_u32 s26, s26, s13
    s_lshl_b32 s27, s12, 7
    s_add_u32 s27, s27, s14
    s_add_u32 s25, s25, 1
    s_cmp_eq_u32 s25, 3
    s_cselect_b32 s25, 0, s25
    s_mov_b32 s50, {SLOT}
    s_cselect_b32 s50, {-2*SLOT & 0xffffffff}, s50
    s_add_u32 s30, s30, s50
    s_add_u32 s31, s31, s50
    s_add_u32 s51, s51, 1
    s_cmp_eq_u32 s51, 10
    s_cbranch_scc1 P1_llast
    P1_lf:
    """)
    F()
    A("""
    s_cmp_eq_u32 s51, 0
    s_cbranch_scc1 P1_lloop
    """)
    if 'lst' in DBG and STAMP: A("s_cmp_lg_u32 s51, 1\ns_cbranch_scc1 LST1"); stamp(A, 11); A("LST1:")
    A("""
    s_waitcnt vmcnt(6)
    s_barrier
    LSTG
    s_branch P1_lloop
    P1_llast:
    s_waitcnt vmcnt(0)
    s_barrier
    """)
    stamp(A, 1)
    epoch_share(A)
    A(f"""
    s_bitcmp0_b32 s2, 2
    s_cselect_b32 s16, s36, s42
    s_cselect_b32 s17, s37, s43
    s_and_b32 s17, s17, 0xffff
    s_mov_b32 s18, 819200
    s_lshr_b32 s12, s2, 3
    s_lshl_b32 s12, s12, 2
    s_add_u32 s12, s12, s29
    s_mul_i32 s12, s12, 6400
    v_lshlrev_b32 v2, 7, v1
    v_mov_b32 v3, {OOB}
    v_cmp_gt_u32 vcc, 50, v1
    s_nop 1
    v_cndmask_b32 v2, v3, v2, vcc
    buffer_load_dword v254, v2, s[16:19], s12 offen
    buffer_load_dword v254, v2, s[16:19], s12 offen offset:64
    """)
    setup2(A)
    dma_patterns(A)
    flag_srd(A)
    A(f"""
    {HEADCODE}
    """)
    build_CA(A)
    A(f"""
    v_cmp_lt_u32 vcc, 11, v1
    v_mov_b32 v2, 0
    v_mov_b32 v3, 1
    v_cndmask_b32 v2, v2, v3, vcc
    v_mul_u32_u24 v3, 12, v2
    v_sub_u32 v3, v1, v3
    s_mul_i32 s12, s7, 12
    v_add_u32 v3, s12, v3
    v_lshrrev_b32 v4, 5, v3
    v_and_b32 v3, 31, v3
    s_lshr_b32 s12, s6, 1
    v_add_u32 v5, s12, v2
    v_lshl_add_u32 v3, v5, 5, v3
    s_and_b32 s12, s6, 1
    s_add_u32 s12, s12, 2
    v_lshlrev_b32 v2, 1, v2
    v_sub_u32 v2, s12, v2
    v_lshl_add_u32 v2, v2, 4, v4
    v_lshlrev_b32 v2, 3, v2
    v_lshl_add_u32 v2, v3, 9, v2
    v_cmp_gt_u32 vcc, 8, v5
    v_cmp_gt_u32 s[88:89], 24, v1
    v_mov_b32 v3, {OOB}
    s_and_b64 vcc, vcc, s[88:89]
    s_cmp_lg_u32 s28, 4
    s_cselect_b64 vcc, 0, vcc
    s_nop 0
    v_cndmask_b32 v18, v3, v2, vcc
    """)
    A(f"""
    s_lshl_b32 s12, s4, 5
    s_add_u32 s12, s12, s3
    s_lshl_b32 s12, s12, 9
    s_lshl_b32 s13, s29, 7
    s_add_u32 s12, s12, s13
    s_add_u32 s40, s12, {FLAG_BASE + MB1}
    s_lshl_b32 s13, s29, 3
    s_mul_i32 s14, s3, {HS}
    s_lshl_b32 s15, s4, 4
    s_add_u32 s14, s14, s15
    s_add_u32 s14, s14, s13
    s_sub_u32 s14, s14, 16
    s_mul_i32 s26, s14, {QK_TILE}
    s_mul_i32 s27, s14, {V_TILE}
    s_add_u32 s27, s27, {V_OFF}
    s_add_u32 s15, s15, s13
    s_cmp_lt_u32 s15, 16
    s_cselect_b32 s26, 0x70000000, s26
    s_cselect_b32 s27, 0x70000000, s27
    s_cselect_b32 s31, 7, 0
    s_cmp_ge_u32 s29, 2
    s_cselect_b32 s30, 7, 6
    s_mul_i32 s25, s29, {4*BLK}
    """)
    A(f"""
    v_lshrrev_b32 v52, 2, v1
    v_mul_u32_u24 v52, 192, v52
    v_and_b32 v53, 3, v1
    v_lshl_add_u32 v52, v53, 4, v52
    s_add_u32 s12, s25, {L_BV + 136}
    v_add_u32 v53, s12, v52
    s_mul_i32 s12, s29, {HD}
    s_add_u32 s12, s12, {L_A + 9*BLK + 136}
    v_add_u32 v52, s12, v52
    v_mov_b32 v54, 0x3f803f80
    v_mov_b32 v55, 0x3f803f80
    s_mov_b64 s[46:47], s[36:37]
    s_cmp_eq_u32 s6, 0
    s_cselect_b32 s12, 8, {8 if 'nohalo' in DBG else 0}
    s_or_b32 s31, s31, s12
    s_cmp_eq_u32 s5, 0
    s_cselect_b32 s12, 8, 0
    s_or_b32 s30, s30, s12
    s_add_u32 s12, s48, {QKV_BYTES}
    s_addc_u32 s13, s49, 0
    """)
    srd(A, 20, 12, 13, QKV_BYTES)
    srd(A, 16, 48, 49, QKV_BYTES)
    A("s_cmp_eq_u32 s5, 0\ns_cbranch_scc0 L_x1\ns_barrier\nL_x1:")
    wo_patterns(A, False)
    cb_init(A)
    A(f"""
    s_lshl_b32 s12, s4, 4
    s_add_u32 s12, s12, 128
    v_add_u32 v2, s12, v1
    v_lshlrev_b32 v2, 9, v2
    s_lshl_b32 s12, s3, 3
    s_and_b32 s13, s3, 24
    s_lshl_b32 s13, s13, 3
    s_add_u32 s12, s12, s13
    s_add_u32 s12, s12, {MB2}
    v_add_u32 v2, s12, v2
    v_mov_b32 v3, {OOB}
    v_cmp_gt_u32 vcc, 16, v1
    v_mov_b32 v58, v3
    v_mov_b32 v59, v3
    v_cndmask_b32 v19, v3, v2, vcc
    """)
    A("s_cmp_eq_u32 s5, 0\ns_cbranch_scc1 L_x2\ns_barrier\nL_x2:")
    epoch_read(A)
    stamp(A, 2)
    A("s_cmp_eq_u32 s5, 0\ns_cbranch_scc1 L_nf")
    flag_store(A, 18)
    A("L_nf:")
    A(f"""
    s_mov_b32 s11, 0
    PL_b:
    s_load_dwordx8 s[32:39], s[48:49], s40 glc
    PL_b2:
    s_add_u32 s11, s11, 1
    s_cmp_ge_u32 s11, {SPIN_LIMIT}
    s_cselect_b32 s12, 15, s31
    s_waitcnt lgkmcnt(0)
    s_cmp_eq_u64 s[32:33], s[0:1]
    s_cselect_b32 s13, 1, 0
    s_or_b32 s12, s12, s13
    s_cmp_eq_u64 s[34:35], s[0:1]
    s_cselect_b32 s13, 2, 0
    s_or_b32 s12, s12, s13
    s_cmp_eq_u64 s[36:37], s[0:1]
    s_cselect_b32 s13, 4, 0
    s_or_b32 s12, s12, s13
    s_cmp_eq_u64 s[38:39], s[0:1]
    s_cselect_b32 s13, 8, 0
    s_or_b32 s12, s12, s13
    s_and_b32 s12, s12, s30
    s_bitcmp1_b32 s12, 3
    s_cbranch_scc0 PB_h
    s_mov_b64 s[90:91], exec
    s_lshl_b32 s15, s7, 2
    s_add_u32 s15, s15, s29
    s_mul_i32 s15, s15, {HS}
    s_lshl_b32 s13, s6, 3
    s_add_u32 s15, s15, s13
    s_sub_u32 s15, s15, 2
    s_mul_i32 s14, s29, {HD}
    """)
    for (areg, tb, off, lds) in ((12, QK_TILE, K_OFF, 0), (15, V_TILE, V_OFF, 9 * BLK)):
        A(f"""
        s_mul_i32 s13, s15, {tb}
        s_add_u32 s13, s13, {off}
        s_cmp_eq_u32 s6, {'s6' if 'nohalo' in DBG else 0}
        s_cselect_b32 s13, 0x70000000, s13
        s_add_u32 m0, s14, {L_A + lds}
        s_nop 0
        buffer_load_dwordx4 v{areg}, s[16:19], s13 offen sc1 lds
        s_add_u32 m0, s14, {L_A + lds + 1024}
        s_mov_b32 exec_hi, 0
        buffer_load_dwordx4 v{areg+1}, s[16:19], s13 offen sc1 lds
        s_mov_b64 exec, s[90:91]
        """)
    A("PB_h:")
    for m, (areg, sreg, soff, tb, lds) in enumerate(((12, 26, 0, QK_TILE, L_BQ - 8 * BLK), (12, 26, K_OFF, QK_TILE, L_BK), (15, 27, 0, V_TILE, L_BV))):
        A(f"s_bitcmp1_b32 s12, {m}\ns_cbranch_scc0 PB_{m}")
        for u in range(2):
            A(f"s_add_u32 s13, s{sreg}, {soff + u*4*tb}")
            for ty in range(3):
                A(f"s_add_u32 m0, s25, {lds + u*3072 + ty*1024}\ns_nop 0\nbuffer_load_dwordx4 v{areg+ty}, s[20:23], s13 offen sc1 lds")
        A(f"PB_{m}:")
    A(f"""
    s_andn2_b32 s30, s30, s12
    s_bitcmp1_b32 s12, 3
    s_cbranch_scc0 L_nh
    s_mov_b32 s8, s25
    s_mov_b32 s9, s26
    s_mov_b32 s10, s27
    s_mov_b32 s15, s29
    s_mov_b32 s16, 0
    s_add_u32 s12, s48, {O_BASE}
    s_addc_u32 s13, s49, 0
    s_waitcnt vmcnt(0)
    ds_write_b64 v52, v[54:55]
    """)
    stamp(A, 3)
    A(f"""
    s_branch P2_a_enter
    L_Aret:
    s_mov_b32 s25, s8
    s_mov_b32 s26, s9
    s_mov_b32 s27, s10
    """)
    stamp(A, 4)
    A(f"""
    s_branch PL_b2
    L_nh:
    s_cmp_lg_u32 s30, 0
    s_cbranch_scc0 PD_b
    {f"s_sleep {PSLEEP}" if PSLEEP else ""}
    s_branch PL_b
    PD_b:
    """)
    stamp(A, 5)
    A("s_branch P2_pre")

    A("P1_consumer:")
    ACC = 8; WR = 128; XF = 168; AW0 = 184; AX0 = 185; AX1 = 186; AW = 187; AXa = 188; AXb = 189
    def acc(grp, t, rt): return ACC + ((grp * 5 + t) * 2 + rt) * 4
    if 'pf' in DBG:
        A(f"""
        s_cmp_eq_u32 s28, 1
        s_cbranch_scc0 PF_w
        s_lshl_b32 s12, s6, 2
        s_and_b32 s13, s7, 3
        s_add_u32 s12, s12, s13
        s_mul_i32 s12, s12, 40960
        v_lshlrev_b32 v2, 7, v1
        v_add_u32 v2, s12, v2
        s_movk_i32 s14, 8192
        s_cmp_eq_u32 s5, 0
        s_waitcnt lgkmcnt(0)
        s_cselect_b32 s12, s32, s38
        s_cselect_b32 s13, s33, s39
        s_branch PF_go
        PF_w:
        s_cmp_eq_u32 s28, 2
        s_cbranch_scc0 PF_end
        v_min_u32 v3, 59, v1
        v_mul_u32_u24 v4, 0x1112, v3
        v_lshrrev_b32 v4, 16, v4
        v_mul_u32_u24 v5, 15, v4
        v_sub_u32 v5, v3, v5
        v_mul_u32_u24 v6, 52, v5
        v_lshrrev_b32 v6, 8, v6
        s_cmp_eq_u32 s5, 0
        s_cselect_b32 s12, 640, 0
        s_movk_i32 s13, 1920
        s_cselect_b32 s13, 640, s13
        v_mul_lo_u32 v6, v6, s12
        v_lshl_add_u32 v2, v5, 7, v6
        v_mul_u32_u24 v4, 3840, v4
        v_add_u32 v2, v2, v4
        s_lshr_b32 s12, s7, 2
        s_mul_i32 s13, s13, s12
        s_lshr_b32 s12, s2, 3
        s_mul_i32 s12, s12, {20*3840}
        s_add_u32 s12, s12, s13
        v_add_u32 v2, s12, v2
        s_movk_i32 s14, 15360
        s_cmp_eq_u32 s5, 0
        s_waitcnt lgkmcnt(0)
        s_cselect_b32 s12, s34, s40
        s_cselect_b32 s13, s35, s41
        PF_go:
        """)
        for j in range(5):
            A(f"global_load_dword v254, v2, s[12:13]")
            if j < 4: A("v_add_u32 v2, s14, v2")
        A("PF_end:")
    epoch_get(A)
    A(f"""
    v_lshrrev_b32 v2, 2, v1
    v_mul_u32_u24 v2, {PIECE}, v2
    v_and_b32 v3, 3, v1
    v_mul_u32_u24 v3, 40, v3
    v_add_u32 v{AW0}, v2, v3
    v_and_b32 v2, 15, v1
    v_lshrrev_b32 v3, 4, v1
    v_lshrrev_b32 v4, 1, v2
    v_xor_b32 v3, v3, v4
    s_lshl_b32 s12, s28, 12
    s_add_u32 s12, s12, {XOFF}
    v_lshlrev_b32 v2, 7, v2
    v_add_u32 v2, s12, v2
    v_lshl_add_u32 v{AX0}, v3, 4, v2
    v_xor_b32 v3, 4, v3
    v_lshl_add_u32 v{AX1}, v3, 4, v2
    v_mov_b32 v{AW}, v{AW0}
    v_mov_b32 v{AXa}, v{AX0}
    v_mov_b32 v{AXb}, v{AX1}
    """)
    for r in range(ACC, XF + 16, 2):
        A(f"v_pk_mov_b32 v[{r}:{r+1}], 0, 0")
    setup2(A)
    build_CA(A)
    A(f"""
    s_waitcnt lgkmcnt(0)
    s_mul_i32 s12, s5, {QKV_BYTES}
    s_add_u32 s12, s48, s12
    s_addc_u32 s13, s49, 0
    """)
    srd(A, 16, 12, 13, QKV_BYTES)
    flag_srd(A)
    A(f"""
    v_and_b32 v2, 15, v1
    v_lshrrev_b32 v3, 4, v1
    s_lshl_b32 s12, s6, 3
    s_lshl_b32 s13, s28, 1
    s_add_u32 s12, s12, s13
    v_mul_u32_u24 v252, {HD}, v3
    v_mul_u32_u24 v3, {HS}, v3
    v_add_u32 v3, s12, v3
    v_mul_u32_u24 v4, {QK_TILE}, v3
    v_lshl_add_u32 v4, v2, 4, v4
    v_mov_b32 v7, {f32bits(SCALE_L2E)}
    v_mov_b32 v6, v7
    s_mul_i32 s13, s7, 12
    s_mul_i32 s12, s28, {BLK}
    s_add_u32 s12, s12, {L_A}
    v_add_u32 v252, s12, v252
    v_lshrrev_b32 v3, 2, v2
    v_mul_u32_u24 v3, 192, v3
    v_and_b32 v253, 3, v2
    v_lshl_add_u32 v3, v253, 4, v3
    v_add_u32 v253, v252, v3
    v_lshl_add_u32 v252, v2, 4, v252
    v_mov_b32 v2, 0
    v_mov_b32 v3, 0
    """)
    if 'tlb' in DBG:
        A(f"""
        s_cmp_lg_u32 s28, 1
        s_cbranch_scc1 P1_nt
        v_mul_u32_u24 v246, {0x80000 if 'tlb2' not in DBG else 0x68000}, v1
        v_mul_u32_u24 v247, 81920, v1
        global_load_dword v248, v246, s[48:49]
        global_load_dword v249, v247, s[44:45]
        P1_nt:
        """)
    A("s_mov_b32 s25, 0\ns_mov_b32 s51, 0")
    stamp(A, 1)
    units = [(sub, grp, t) for sub in range(2) for grp in range(3) for t in range(5)]
    def rd(u, hf):
        sub, grp, t = units[u]
        b = WR + (u % 10) * 4
        off = sub * 16 * PIECE + hf * 512 + grp * 160 + 8 * t
        A.lds(f"ds_read_b64_tr_b16 {vr(b + 2*hf, 2)}, v{AW} offset:{off}", ('w', u))
    def rdx(sub, rt):
        A.lds(f"ds_read_b128 {vr(XF + (sub*2+rt)*4, 4)}, v{AXa if sub == 0 else AXb} offset:{rt*2048}", ('x', sub))
    def mm(u, rt):
        sub, grp, t = units[u]
        b = WR + (u % 10) * 4
        a = acc(grp, t, rt)
        A(f"v_mfma_f32_16x16x32_bf16 {vr(a,4)}, {vr(b,4)}, {vr(XF + (sub*2+rt)*4, 4)}, {vr(a,4)}")
    L = P1_LOOK
    def body(emit):
        save = A.out
        if not emit: A.out = []
        for step in range(30):
            u = (step - L) % 30
            g_ = 1 if step >= L else 0
            tags = [('x', units[u][0]) if g_ else ('px', units[u][0]), ('w', u) if g_ else ('pw', u)]
            if WB and step % WB == 0:
                for d in range(1, WB):
                    if step + d < 30:
                        u2 = (step + d - L) % 30; g2 = step + d >= L
                        if not (g2 and u2 >= step): tags += [('x', units[u2][0]) if g2 else ('px', units[u2][0]), ('w', u2) if g2 else ('pw', u2)]
            A.lds_wait(*tags)
            mm(u, 0)
            if step == 0: rdx(0, 0)
            if step == L + 2: rdx(1, 0)
            rd(step, 0)
            if step == 26:
                A(f"s_add_u32 s25, s25, {SLOT}\ns_cmp_eq_u32 s25, {3*SLOT}\ns_cselect_b32 s25, 0, s25")
            if step == 27:
                A(f"v_add_u32 v{AXa}, s25, v{AX0}")
            if step == 28:
                A(f"v_add_u32 v{AXb}, s25, v{AX1}")
            mm(u, 1)
            if step == 0: rdx(0, 1)
            if step == L + 2: rdx(1, 1)
            rd(step, 1)
            if step == 28:
                A("s_add_u32 s51, s51, 1\ns_cmp_lt_u32 s51, 10")
        A(f"v_add_u32 v{AW}, s25, v{AW0}")
        A.lds_q = [('p' + t[0], t[1]) for t in A.lds_q]
        if not emit: A.out = save
    A.lds_q = []
    body(False)
    if P3AL:
        A("s_branch P1_cloop")
        A.out.append("    .p2align 10")
    A("P1_cloop:")
    A("s_barrier")
    if STAMP and 'stg' in DBG:
        A("s_memtime s[100:101]\ns_add_u32 m0, s51, 16\ns_waitcnt lgkmcnt(0)\nv_writelane_b32 v255, s100, m0")
    body(True)
    A("s_cbranch_scc1 P1_cloop")
    for u in range(30 - L, 30):
        A.lds_wait(('pw', u))
        mm(u, 0); mm(u, 1)
    stamp(A, 2)
    A("s_cmp_eq_u32 s5, 0\ns_cbranch_scc1 P1_epiA")
    def pack(grp, TB):
        for rt in range(2):
            T = TB + rt * 12
            for t in range(5):
                a = acc(grp, t, rt)
                A(f"v_cvt_pk_bf16_f32 v{T+2*t}, v{a}, v{a+1}\nv_cvt_pk_bf16_f32 v{T+2*t+1}, v{a+2}, v{a+3}")
    def store_qk(TB, soff):
        A(f"v_mov_b32 v{TB+10}, v{TB+20}\nv_mov_b32 v{TB+11}, v{TB+21}")
        for rt in range(2):
            T = TB + rt * 12
            A(f"buffer_store_dwordx4 {vr(T,4)}, v4, s[16:19], s{soff} offen offset:{rt*768} sc1")
            A(f"buffer_store_dwordx4 {vr(T+4,4)}, v4, s[16:19], s{soff} offen offset:{rt*768+256} sc1")
        A(f"buffer_store_dwordx4 {vr(TB+8,4)}, v4, s[16:19], s{soff} offen offset:512 sc1")
    def ones(TB):
        for rt in range(2):
            T = TB + rt * 12
            A(f"v_mov_b32 v{T+10}, 0x3f803f80\nv_mov_b32 v{T+11}, 0x3f803f80")
    def store_v(TB, soff):
        for rt in range(2):
            T = TB + rt * 12
            for p in range(3):
                A(f"buffer_store_dwordx4 {vr(T+4*p,4)}, v5, s[16:19], s{soff} offen offset:{rt*V_TILE+256*p} sc1")
    def scale(grp):
        for r in range(acc(grp, 0, 0), acc(grp, 0, 0) + 40, 2):
            A(f"v_pk_mul_f32 v[{r}:{r+1}], v[6:7], v[{r}:{r+1}]")
    TBS = [WR, 190, WR + 24]
    for grp in range(3):
        TB = TBS[grp]
        A(f"""
        s_add_u32 s14, s13, {4*grp}
        s_mul_i32 s20, s14, {HS*QK_TILE}
        s_cmp_ge_u32 s14, 32
        s_cbranch_scc1 P1_ns{grp}
        """)
        scale(grp)
        A(f"P1_ns{grp}:")
        pack(grp, TB)
        store_qk(TB, 20)
    stamp(A, 3)
    A("s_waitcnt vmcnt(0)\ns_barrier")
    stamp(A, 4)
    epoch_read(A)
    A("s_branch P2_cd")
    A("P1_epiA:\ns_nop 3")
    pack(1, TBS[1]); pack(2, TBS[2])
    A(f"""
    s_cmp_lg_u32 s28, {9 if 'nohalo' in DBG else 3}
    s_cbranch_scc1 P1_nh
    s_lshl_b32 s14, s7, 2
    s_mul_i32 s20, s14, {HS*QK_TILE}
    s_add_u32 s20, s20, {K_OFF}
    s_mul_i32 s21, s14, {HS*V_TILE}
    s_add_u32 s21, s21, {V_OFF}
    """)
    store_qk(TBS[1], 20); store_qk(TBS[2], 21)
    A("s_nop 1\nP1_nh:")
    ones(TBS[2])
    def img_qk(grp, base):
        for rt in range(2):
            T = TBS[grp] + rt * 12
            A(f"ds_write_b128 v252, {vr(T,4)} offset:{base + rt*256}")
            A(f"ds_write_b128 v252, {vr(T+4,4)} offset:{base + rt*256 + 512}")
            A(f"ds_write_b64 v252, {vr(T+8,2)} offset:{base + rt*256 + 1024 + 8}")
            A(f"ds_write_b64 v252, v[2:3] offset:{base + rt*256 + 1024}")
    img_qk(1, BLK)
    for rt in range(2):
        T = TBS[2] + rt * 12
        for p in range(3):
            A(f"ds_write_b128 v253, {vr(T+4*p,4)} offset:{10*BLK + rt*768 + p*64}")
    scale(0); pack(0, TBS[0])
    img_qk(0, 5 * BLK)
    A(f"""
    s_add_u32 s12, s48, {O_BASE}
    s_addc_u32 s13, s49, 0
    s_mov_b32 s15, s28
    s_mov_b32 s16, 1
    s_mov_b32 s40, {FLAG_BASE}
    """)
    stamp(A, 3)
    A("s_waitcnt lgkmcnt(0)\ns_barrier")
    stamp(A, 4)
    epoch_read(A)
    A(f"""
    s_cmp_lg_u32 s28, {9 if 'nohalo' in DBG else 3}
    s_cbranch_scc1 P2_a_enter
    s_and_b32 s21, s6, {3 if 'mix' in DBG else 7}
    s_cmp_eq_u32 s21, {3 if 'mix' in DBG else 7}
    s_cselect_b32 s21, {-22 if 'mix' in DBG else -52 if 'mix2' in DBG else -54}, 8
    s_add_u32 s21, s21, s2
    s_and_b32 s20, s21, 7
    s_lshl_b32 s20, s20, 2
    s_bfe_u32 s22, s21, 0x20003
    s_or_b32 s20, s20, s22
    s_andn2_b32 s21, s21, 31
    s_or_b32 s21, s21, s20
    s_lshl_b32 s21, s21, 9
    s_add_u32 s21, s21, {MB1 + 24}
    s_cmp_lt_u32 s6, 15
    s_cselect_b32 s21, s21, {OOB}
    v_min_u32 v2, 3, v1
    v_lshlrev_b32 v2, 7, v2
    v_add_u32 v2, s21, v2
    s_waitcnt vmcnt(0)
    """)
    flag_store(A, 2)
    A("P2_a_enter:")
    srd(A, 24, 12, 13, 2 * O_BYTES)
    A(f"""
    s_mul_i32 s14, s15, {HD}
    s_add_u32 s14, s14, {L_A}
    s_lshl_b32 s12, s7, 2
    s_add_u32 s15, s15, s12
    P2_a_unit:
    s_mul_i32 s12, s16, {BLK}
    s_add_u32 s12, s12, s14
    v_add_u32 v{AK}, s12, v{LK}
    s_add_u32 s13, s12, {9*BLK}
    v_add_u32 v{AV}, s13, v{LV}
    v_add_u32 v{AQ}, {5*BLK}, v{AK}
    s_lshl_b32 s12, s6, 3
    s_lshl_b32 s13, s16, 1
    s_add_u32 s17, s12, s13
    s_or_b32 s87, s6, s16
    P2_a_start:
    """)
    A.lds_q = []
    rdQ(A); rdK(A, 0, 0); rdK(A, 1, 1); rdV(A, 0, 0); rdV(A, 1, 1)
    oaddr(A, 15, 17)
    A.lds_wait(('q', 0))
    maskQ(A)
    A.lds_wait(('k', 0))
    qk(A, 0, 0, SA, CA); qk(A, 1, 0, SA, CA)
    A.lds_wait(('k', 1))
    qk(A, 0, 1, SB, CA); qk(A, 1, 1, SB, CA)
    A("s_cmp_eq_u32 s87, 0\ns_nop 7\ns_cbranch_scc1 P2_a_inv")
    A("P2_a_val:\ns_nop 3")
    for r in range(16):
        A(f"v_cndmask_b32 v{SA+r}, v{SA+r}, v{SB+r}, s[{MS+2*r}:{MS+2*r+1}]")
    A("s_cmp_eq_u32 s92, 1\ns_cbranch_scc1 P2_a_max")
    for r in range(16): A(f"v_exp_f32 v{SA+r}, v{SA+r}")
    A("s_nop 0")
    for j in range(8): cvt(A, SA, PA, j)
    for j in range(8):
        A(f"v_and_b32 v{PB+j}, v{PA+j}, v{PM+j}\nv_bfi_b32 v{PA+j}, v{PM+j}, 0, v{PA+j}")
    A.lds_wait(('v', 1))
    A("s_cmp_lg_u32 s16, 0\ns_cbranch_scc1 P2_a_np\ns_load_dwordx8 s[32:39], s[48:49], s40 glc\nP2_a_np:")
    pv(A, 0, 0, PA, True); pv(A, 1, 0, PA); pv(A, 0, 1, PB); pv(A, 1, 1, PB)
    finish(A, 0, 'a', 92)
    A("s_cmp_lg_u32 s92, 0\ns_cbranch_scc1 P2_a_rst")
    if 'nohalo' in DBG:
        A("""
        P2_a_next:
        s_cmp_eq_u32 s16, 3
        s_cbranch_scc1 L_Aret
        s_xor_b32 s16, s16, 3
        s_cmp_lg_u32 s16, 1
        s_cbranch_scc1 P2_a_unit
        """)
    else:
        A("""
        P2_a_next:
        s_cmp_eq_u32 s16, 0
        s_cbranch_scc1 L_Aret
        s_add_u32 s16, s16, 1
        s_cmp_lt_u32 s16, 4
        s_cbranch_scc1 P2_a_unit
        """)
    stamp(A, 5)
    A("P2_cd:")
    A(f"{HEADCODE}\ns_mov_b64 s[46:47], s[36:37]")
    OF = 60; ACC3 = 16; WR3 = 220; AW3 = 8; TO = 56; TW = 57
    def of(ks, rt): return OF + (ks * 2 + rt) * 4
    wo_patterns(A, True)
    A(f"""
    {P3COORD}
    s_bfe_u32 s8, s2, 0x10002
    s_lshl_b32 s12, s9, 3
    s_add_u32 s12, s12, s10
    s_lshl_b32 s12, s12, 9
    s_add_u32 s12, s12, {MB2}
    s_cmp_eq_u32 s8, 0
    s_cselect_b32 s12, s12, {OOB}
    v_and_b32 v13, 7, v1
    v_lshlrev_b32 v13, 3, v13
    v_add_u32 v13, s12, v13
    v_and_b32 v12, 3, v1
    v_lshlrev_b32 v12, 3, v12
    s_lshl_b32 s12, s9, 3
    s_lshl_b32 s14, s28, 1
    s_add_u32 s12, s12, s14
    s_mul_i32 s15, s12, 20480
    s_mul_i32 s21, s8, {O_BYTES}
    s_add_u32 s15, s15, s21
    v_lshlrev_b32 v7, 4, v1
    v_add_u32 v7, s15, v7
    v_add_u32 v6, 20480, v7
    v_and_b32 v2, 15, v1
    v_lshlrev_b32 v2, 3, v2
    v_sub_u32 v11, v7, v2
    v_add_u32 v11, 4096, v11
    v_add_u32 v15, 20480, v11
    v_lshrrev_b32 v9, 2, v1
    v_mul_u32_u24 v9, 160, v9
    v_and_b32 v10, 3, v1
    v_lshlrev_b32 v10, 3, v10
    v_add_u32 v{AW3}, v9, v10
    v_add_u32 v{AW3}, {L_WO}, v{AW3}
    v_add_u32 v{AW3+1}, 51200, v{AW3}
    v_and_b32 v2, 15, v1
    v_lshrrev_b32 v3, 4, v1
    s_lshl_b32 s12, s9, 7
    s_lshl_b32 s14, s28, 5
    s_add_u32 s12, s12, s14
    v_add_u32 v2, s12, v2
    v_mul_u32_u24 v2, 2560, v2
    s_mul_i32 s14, s8, 1280
    s_mul_i32 s20, s10, 160
    s_add_u32 s14, s14, s20
    v_add_u32 v2, s14, v2
    v_lshl_add_u32 v59, v3, 3, v2
    v_and_b32 v5, 1, v3
    v_lshl_add_u32 v2, v5, 5, v2
    v_lshrrev_b32 v5, 1, v3
    v_lshl_add_u32 v58, v5, 4, v2
    v_mov_b32 v19, {OOB}
    v_mov_b32 v53, v12
    """)
    cb_init(A)
    A("P2_pre:")
    A(f"""
    s_lshl_b32 s12, s6, 9
    s_add_u32 s12, s12, s7
    s_lshl_b32 s12, s12, 3
    s_add_u32 s12, s12, {MB2}
    s_cmp_eq_u32 s5, 0
    s_cselect_b32 s12, s12, {OOB}
    s_cmp_eq_u32 s28, 4
    s_cselect_b32 s12, s12, {OOB}
    v_min_u32 v18, 7, v1
    v_lshlrev_b32 v18, 9, v18
    v_add_u32 v18, s12, v18
    s_bfe_u32 s5, s2, 0x10002
    s_add_u32 s12, s48, {O_BASE}
    s_addc_u32 s13, s49, 0
    """)
    srd(A, 24, 12, 13, 2 * O_BYTES)
    A(f"""
    s_mul_i32 s12, s28, {BLK}
    s_add_u32 s13, s12, {L_BK}
    v_add_u32 v{AK}, s13, v{LK}
    s_add_u32 s13, s12, {L_BQ}
    v_add_u32 v{AQ}, s13, v{LK}
    s_add_u32 s13, s12, {L_BV}
    v_add_u32 v{AV}, s13, v{LV}
    s_sub_u32 s86, 8, s28
    s_cmp_eq_u32 s4, 0
    s_cselect_b32 s86, s86, -1
    s_lshl_b32 s12, s4, 4
    s_lshl_b32 s13, s28, 1
    s_add_u32 s17, s12, s13
    """)
    oaddr(A, 3, 17)
    A(f"""
    {P3COORD}
    s_cmp_eq_u32 s5, 0
    s_cselect_b32 s16, s46, s42
    s_cselect_b32 s17, s47, s43
    s_and_b32 s17, s17, 0xffff
    s_mov_b32 s18, 819200
    s_mov_b32 s19, 0x20000
    s_mul_i32 s20, s10, 160
    """)
    def wo_setup(n):
        if n < 2:
            A(f"""
            s_add_u32 s21, s28, {8*n}
            s_mul_i32 s22, s21, {40*1280}
            s_add_u32 s22, s22, s20
            s_lshr_b32 s23, s21, 2
            s_add_u32 s23, s23, s21
            s_mul_i32 s23, s23, 5120
            """)
        else:
            A(f"""
            s_mul_i32 s22, s28, {160*1280}
            s_add_u32 s22, s22, s20
            s_mul_i32 s23, s28, 25600
            s_add_u32 s23, s23, 20480
            """)
    def wo_piece(i, n):
        A(f"s_add_u32 m0, s23, {L_WO + i*1024}\ns_nop 0\nbuffer_load_dwordx4 v{WA+i+(5 if n == 2 else 0)}, s[16:19], s22 offen lds")
    if BAL is not None:
        A.out.append("    .p2align 5")
        for _ in range(((BAL - (20 if STAMP else 0)) % 32) // 4): A("s_nop 0")
    A(f"s_cmp_lt_u32 s28, 4\ns_cbranch_scc1 P2_bd\n{'s_setprio 1' if PRIO else ''}\ns_waitcnt vmcnt(0)\nds_write_b64 v53, v[54:55]\nds_write_b64 v53, v[54:55] offset:3072\nP2_bd:\ns_waitcnt vmcnt(0) lgkmcnt(0)\ns_barrier")
    stamp(A, 6)
    A.lds_q = []
    rdQ(A)
    rdK(A, 0, 0); rdK(A, 1, 1)
    flag_store(A, 18)
    A.lds_wait(('q', 0))
    maskQ(A)
    A("s_branch P2_b_go\nP2_b_start:")
    A.lds_q = []
    rdK(A, 0, 0); rdK(A, 1, 1)
    A("P2_b_go:")
    def cb_switch(b):
        A(f"s_cmp_lg_u32 s86, {b}\ns_cbranch_scc1 P2_cb{b}\ns_nop 7")
        for r in range(16): A(f"v_mov_b32 v{CB+r}, v{NEGM}")
        A(f"s_nop 1\nP2_cb{b}:")
    A.lds_wait(('k', 0))
    qk(A, 0, 0, S0, CB); qk(A, 1, 0, S0, CB)
    rdK(A, 2, 0)
    cb_switch(1)
    A.lds_wait(('k', 1))
    qk(A, 0, 1, SA, CB); qk(A, 1, 1, SA, CB)
    rdV(A, 1, 1)
    A("s_cmp_eq_u32 s93, 1\ns_cbranch_scc1 P2_b_max")
    cb_switch(2)
    A("s_nop 7")
    for b in range(1, 8):
        Sc, Sn = (SA, SB) if b % 2 == 1 else (SB, SA)
        Pc, Pp = (PA, PB) if b % 2 == 1 else (PB, PA)
        wn, wh = (b - 1) // 2, (b - 1) % 2
        dow = b <= 6
        if b == PRIO: A("s_setprio 0")
        if dow and wn == 2: A(f"s_cmp_ge_u32 s28, 4\ns_cbranch_scc1 P2_nw{b}")
        if dow:
            if wh == 0: wo_setup(wn)
            for i in (range(0, 3) if wh == 0 else range(3, 5)): wo_piece(i, wn)
        if dow and wn == 2: A(f"P2_nw{b}:")
        A.lds_wait(('k', b + 1))
        qk(A, 0, (b + 1) % 2, Sn, CB)
        for r in range(0, 4): A(f"v_exp_f32 v{Sc+r}, v{Sc+r}")
        qk(A, 1, (b + 1) % 2, Sn, CB)
        if b + 2 <= 8: rdK(A, b + 2, b % 2)
        for r in range(4, 8): A(f"v_exp_f32 v{Sc+r}, v{Sc+r}")
        if b > 1:
            A.lds_wait(('v', b - 1))
            pv(A, 0, (b - 1) % 2, Pp, first=(b == 2))
        if b * 10 + 5 == PRIO: A("s_setprio 0")
        for r in range(8, 12): A(f"v_exp_f32 v{Sc+r}, v{Sc+r}")
        if b > 1:
            pv(A, 1, (b - 1) % 2, Pp)
        nb = b + 1 if b < 7 else 0
        rdV(A, nb, (b + 1) % 2)
        for r in range(12, 16): A(f"v_exp_f32 v{Sc+r}, v{Sc+r}")
        for j in range(8): cvt(A, Sc, Pc, j)
        if b + 2 <= 8: cb_switch(b + 2)
    if PRIO == 8: A("s_setprio 0")
    for r in range(16):
        A(f"v_cndmask_b32 v{S0+r}, v{S0+r}, v{SB+r}, s[{MS+2*r}:{MS+2*r+1}]")
        if r == 3:
            A.lds_wait(('v', 7)); pv(A, 0, 1, PA)
        if r == 11:
            pv(A, 1, 1, PA); rdV(A, 8, 1)
    for r in range(16): A(f"v_exp_f32 v{S0+r}, v{S0+r}")
    A("s_nop 0")
    for j in range(8): cvt(A, S0, PB, j)
    for j in range(8):
        A(f"v_and_b32 v{P2+j}, v{PB+j}, v{PM+j}\nv_bfi_b32 v{PB+j}, v{PM+j}, 0, v{PB+j}")
    A.lds_wait(('v', 8))
    A("s_nop 0")
    pv(A, 0, 0, PB); pv(A, 1, 0, PB); pv(A, 0, 1, P2); pv(A, 1, 1, P2)
    finish(A, O_BYTES, 'b', 93)
    stamp(A, 7)
    A(f"""
    s_cmp_lt_u32 s28, 4
    s_cbranch_scc1 P3
    s_waitcnt vmcnt(0)
    s_barrier
    """)
    stamp(A, 8)
    A("s_cmp_lg_u32 s28, 4\ns_cbranch_scc1 H_poll")
    flag_store(A, 19)
    A(f"""
    H_poll:
    s_lshl_b32 s12, s5, 7
    s_lshl_b32 s13, s9, 3
    s_add_u32 s12, s12, s13
    s_add_u32 s12, s12, s10
    s_lshl_b32 s12, s12, 9
    s_add_u32 s12, s12, {FLAG_BASE + MB2}
    s_and_b32 s13, s28, 3
    s_lshl_b32 s13, s13, 7
    s_mul_i32 s13, s13, s5
    s_add_u32 s40, s12, s13
    s_mov_b32 s94, 0
    s_and_b32 s12, s28, 3
    s_lshl_b32 s12, s12, 3
    v_mov_b32 v2, s12
    H_loop:
    s_load_dwordx16 s[52:67], s[48:49], s40 glc
    s_add_u32 s94, s94, 1
    s_cmp_ge_u32 s94, {SPIN_LIMIT}
    s_waitcnt lgkmcnt(0)
    s_cbranch_scc1 H_done
    s_xor_b64 s[88:89], s[52:53], s[0:1]
    """)
    for i in range(1, 8):
        A(f"s_xor_b64 s[90:91], s[{52+2*i}:{53+2*i}], s[0:1]\ns_or_b64 s[88:89], s[88:89], s[90:91]")
    A(f"""
    s_cbranch_scc1 H_loop
    H_done:
    ds_write_b64 v2, v[{EP}:{EP+1}]
    s_waitcnt lgkmcnt(0)
    """)
    stamp(A, 9)
    A("s_branch K_end2")
    A("P2_a_inv:\ns_nop 3")
    for r in range(16): A(f"v_mov_b32 v{SA+r}, v{NINF}")
    A("s_branch P2_a_val")
    A(f"P2_a_rst:\ns_mov_b32 s92, 0\nv_mov_b32 v{NEGM}, 0")
    build_CA(A)
    A("s_branch P2_a_next")
    A("P2_a_fb:\ns_mov_b32 s92, 1\ns_waitcnt lgkmcnt(0)\ns_branch P2_a_start")
    A("P2_a_max:")
    maxblock(A, SA, True)
    rowmax_finish(A, "P2_a_start", 92, lambda: build_CA(A))
    A("P2_b_fb:\ns_mov_b32 s93, 1")
    cb_init(A)
    A("s_branch P2_b_start")
    A("P2_b_max:")
    A("s_waitcnt lgkmcnt(0)\ns_nop 7\ns_nop 3")
    A.lds_q = []
    maxblock(A, SA, True)
    for b in range(2, 9):
        A(f"s_cmp_lg_u32 s86, {b}\ns_cbranch_scc1 P2_mcb{b}")
        for r in range(16): A(f"v_mov_b32 v{CB+r}, v{NEGM}")
        A(f"P2_mcb{b}:")
        rdK(A, b, 0)
        A.lds_drain()
        qk(A, 0, 0, SA, CB); qk(A, 1, 0, SA, CB)
        A("s_nop 7\ns_nop 7")
        if b == 8:
            for r in range(16):
                A(f"v_cndmask_b32 v{SA+r}, v{S0+r}, v{SA+r}, s[{MS+2*r}:{MS+2*r+1}]")
        maxblock(A, SA, False)
    rowmax_finish(A, "P2_b_start", 93, lambda: cb_init(A))
    grp3 = lambda i: (i + 2) & 3
    def pick(i):
        return ["v_cmp_eq_u64 vcc, s[0:1], v[4:5]", "s_nop 1\ns_or_b32 s22, s22, vcc_lo",
                f"s_bitcmp1_b32 s22, {grp3(i)}\ns_cselect_b32 s23, 1, 0\ns_cselect_b32 s30, {grp3(i)*5120}, s21"]
    def ldo(i):
        l = []
        for ks in range(4):
            for rt in range(2):
                l.append(f"buffer_load_dwordx4 {vr(of(i*5+ks,rt),4)}, v{7-rt}, s[24:27], s30 offen offset:{ks*1024} sc1")
        for rt in range(2):
            for hf in range(2):
                l.append(f"buffer_load_dwordx2 {vr(of(i*5+4,rt)+2*hf,2)}, v{(11,15)[rt]}, s[24:27], s30 offen offset:{hf*128} sc1")
        return l
    def rd3(n, hf):
        i, ks, t = n // 25, (n % 25) // 5, n % 5
        b = WR3 + (n % 8) * 4
        off = (grp3(i) & 1) * 25600 + (ks * 32 + hf * 16) * 160 + 32 * t
        A.lds(f"ds_read_b64_tr_b16 {vr(b+2*hf,2)}, v{AW3 + (grp3(i) >> 1)} offset:{off}", ('w', n))
    LA = 6
    def acquire(i):
        A(f"P3_acq{i}:\nds_read_b64 v[4:5], v12\ns_waitcnt lgkmcnt(0)")
        for x in pick(i): A(x)
        A(f"s_cbranch_scc0 P3_acq{i}")
        for x in ldo(i): A(x)
    for i in range(1, 1 + NACQ):
        acquire(i); A(f"s_branch P3_go{i}")
    A("P3:")
    srd(A, 16, 44, 45, 2048 * 1280 * 2)
    A(f"""
    buffer_load_dwordx2 v[4:5], v13, s[96:99], 0 offen sc1
    s_mov_b32 s21, 0x70000000
    s_waitcnt vmcnt(1)
    s_barrier
    """)
    stamp(A, 8)
    A.lds_q = []
    for n in range(LA): rd3(n, 0); rd3(n, 1)
    A("""
    s_waitcnt vmcnt(0)
    v_cmp_ne_u64 vcc, s[0:1], v[4:5]
    s_nop 1
    s_cmp_eq_u64 vcc, 0
    s_cselect_b32 s22, 0xff, 0
    """)
    acquire(0)
    A.lds_q = []
    stamp(A, 9)
    fill = []; nxt = 0
    for n in range(100):
        i, ks, t = n // 25, (n % 25) // 5, n % 5
        if n % 25 == 0:
            nxt = 0
            if i < 3:
                A.lds_wait(('f', i)); fill = pick(i + 1) + ldo(i + 1)
                if i == 0:
                    for x in fill: A(x)
                    fill = []; nxt = 12
        if t == 0 and STAMP and 'p3s' in DBG and n >= 25:
            A(f"s_memtime s[100:101]\ns_waitcnt lgkmcnt(0)\nv_writelane_b32 v255, s100, {14 + n//5 - 5}")
        if t == 0:
            A(f"s_waitcnt vmcnt({(10 - 2*ks if ks < 4 else 0) + nxt})")
        if n % 2 == 0:
            A.lds_wait(('w', n), ('w', n + 1))
        b = WR3 + (n % 8) * 4
        for rt in range(2):
            a = ACC3 + (t * 2 + rt) * 4
            A(f"v_mfma_f32_16x16x32_bf16 {vr(a,4)}, {vr(b,4)}, {vr(of(i*5+ks,rt),4)}, {vr(a,4) if n >= 5 else 0}")
            if n + LA < 100:
                if (n + LA) % 25 == 0 and rt == 0 and i < 2: A.lds("ds_read_b64 v[4:5], v12", ('f', i + 1))
                rd3(n + LA, rt)
            if fill:
                x = fill.pop(0)
                A(x.replace("s_nop 1\n", ""))
                if x.startswith("buffer_load"): nxt += 1
        if n % 25 == 24 and i < 3:
            assert not fill
            A(f"s_cmp_eq_u32 s23, 0\ns_cbranch_scc1 P3_acq{i+1}\nP3_go{i+1}:")
    stamp(A, 10)
    A("s_mov_b32 s12, 40960")
    for rt in range(2):
        T = OF + rt * 12
        for t in range(5):
            a = ACC3 + (t * 2 + rt) * 4
            A(f"v_cvt_pk_bf16_f32 v{T+2*t}, v{a}, v{a+1}\nv_cvt_pk_bf16_f32 v{T+2*t+1}, v{a+2}, v{a+3}")
        for j in (0, 1, 4, 5): A(f"v_permlane16_swap_b32 v{T+j}, v{T+j+2}")
        so = "s12" if rt else "0"
        A(f"buffer_store_dwordx4 {vr(T,4)}, v58, s[16:19], {so} offen {OUT_FLAGS}")
        A(f"buffer_store_dwordx4 {vr(T+4,4)}, v58, s[16:19], {so} offen offset:64 {OUT_FLAGS}")
        A(f"buffer_store_dwordx2 {vr(T+8,2)}, v59, s[16:19], {so} offen offset:128 {OUT_FLAGS}")
    stamp(A, 11)
    A("K_end2:")
    for d in DBG:
        if d.startswith('pad'):
            A(f"""
            s_cmp_lt_u32 s28, 4
            s_cbranch_scc1 PADE
            v_readfirstlane_b32 s12, v{EP}
            PADL:
            s_memrealtime s[14:15]
            s_waitcnt lgkmcnt(0)
            s_sub_u32 s13, s14, s12
            s_cmp_lt_u32 s13, {int(d[3:])*100}
            s_cbranch_scc1 PADL
            PADE:
            """)
    stamp_flush(A, 12, 0)
    A("K_end:\ns_endpgm")
    for i in range(1 + NACQ, 4):
        acquire(i); A(f"s_branch P3_go{i}")
    A("K_last:")
    A.end(256, 102, 256, 512, LDS_TOTAL)

P3_DEPTH = 8
PSLEEP = 0
BAL = 16
NACQ = 0 if '--stamp' in sys.argv else 2
P3AL = '--nop3al' not in sys.argv
STATIC = True
ALIGN = None
WB = 2
CPF_SH = 3
PRIO = 6
SECT = True
OUT_FLAGS = ""

if __name__ == '__main__':
    if '--stamp' in sys.argv: STAMP = True
    for a in sys.argv[1:]:
        if a.startswith('--dbg='): DBG.update(a[6:].split(','))
        if a.startswith('--rot='): ROT = int(a[6:])
        if a.startswith('--bal='): BAL = int(a[6:])
        if a.startswith('--al='): ALIGN = int(a[5:])
        if a.startswith('--wb='): WB = int(a[5:])
        if a.startswith('--look='): P1_LOOK = int(a[7:])
        if a.startswith('--prio='): PRIO = int(a[7:])
        if a.startswith('--psleep='): PSLEEP = int(a[9:])
        if a.startswith('--out='): OUT_FLAGS = a[6:].replace('+', ' ')
    A = Asm()
    gen(A)
    t = A.text()
    t = t.replace("    LSTG\n", "    s_memtime s[100:101]\n    s_add_u32 m0, s51, 15\n    s_waitcnt lgkmcnt(0)\n    v_writelane_b32 v255, s100, m0\n" if (STAMP and 'lstg' in DBG) else "")
    import subprocess, re, os
    open('_g3.s', 'w').write(t.replace('CODE_BYTES', '0x1234').replace('CPF_OFF', '0x1234'))
    subprocess.run(['clang', '-x', 'assembler', '-target', 'amdgcn-amd-amdhsa', '-mcpu=gfx950', '-c', '_g3.s', '-o', '_g3.o'], check=True)
    nm = subprocess.run(['llvm-objdump', '-t', '_g3.o'], capture_output=True, text=True).stdout
    end = int(re.search(r'^([0-9a-f]+) .* K_last$', nm, re.M).group(1), 16)
    sys.stderr.write(f"code bytes {end}\n")
    m = re.search(r'^([0-9a-f]+) .* CPF_pc$', nm, re.M)
    pc = int(m.group(1), 16) if m else 0
    sys.stdout.write(t.replace('CODE_BYTES', str(end - 64)))
```

```python
import sys, math, struct

REF = 'concat_heads__sliding_local_dilated__sliding_block__prompt.s.ref'
HDR = [l for l in open(REF).read().split('\n')
       if l.startswith(';') and '@launch' not in l and 'Override' not in l and 'grid=ceil' not in l]
MAIN = "concat_heads__sliding_local_dilated__sliding_block__prompt_kernel"

QK_TILE = 640
V_TILE = 640
HS = 128
for _a in sys.argv[1:]:
    if _a.startswith('--hs='): HS = int(_a[5:])
K_OFF = 32 * HS * QK_TILE
V_OFF = 2 * K_OFF
QKV_BYTES = V_OFF + 32 * HS * V_TILE
O_BASE = 18 << 20
assert 2 * QKV_BYTES <= O_BASE
O_BYTES = 2048 * 640 * 2
FLAG_BASE = 24 << 20
MB1 = 0; MB2 = 131072; MB_BYTES = 262144
OOB = 0x7ffff000

STAMP = False
DBG = set()
STAMP_OFF = 30 << 20
FUSED = False

def f32bits(x): return struct.unpack('<I', struct.pack('<f', x))[0]
SCALE_L2E = (20 ** -0.5) * math.log2(math.e)

NOTES = """;
;           (buffer_load ... lds), waves 0-3 run the MFMAs.  Q is scaled by Dh^-0.5 * log2(e).
;"""

class Asm:
    def __init__(self):
        self.out = []; self.kernels = []; self.launches = []; self.lds_q = []
    def __call__(self, s):
        for l in s.split('\n'):
            l = l.strip()
            if not l: continue
            if 'noload' in DBG and l.startswith('buffer_load') and ' lds' in l: continue
            if 'nomfma' in DBG and l.startswith('v_mfma'): continue
            if 'nods' in DBG and l.startswith('ds_read'): continue
            if 'nowait' in DBG and l.startswith('s_waitcnt lgkmcnt(') and not l.endswith('(0)'): continue
            if 'halfds' in DBG and l.startswith('ds_read_b64_tr') and (int(l.split('[')[1].split(':')[0]) % 4 == 2): continue
            if 'nobar' in DBG and l.startswith('s_barrier'): continue
            if 'nostore' in DBG and l.startswith('buffer_store') and 's[8:11]' not in l: continue
            self.out.append(l if l.endswith(':') else '    ' + l)
    def begin(self, name):
        self.out.append(f".globl {name}\n.p2align 8\n.type {name},@function\n{name}:")
        self.cur = name
    def end(self, vgpr, sgpr, grid, block, lds):
        self.kernels.append((self.cur, vgpr, sgpr))
        self.launches.append((self.cur, grid, block, lds))
    def lds(self, s, tag):
        self(s); self.lds_q.append(tag)
    def lds_wait(self, *tags):
        idx = [i for i, t in enumerate(self.lds_q) if t in tags]
        if not idx: return
        n = len(self.lds_q) - 1 - idx[-1]
        assert n <= 15, n
        self(f"s_waitcnt lgkmcnt({n})")
        self.lds_q = self.lds_q[idx[-1] + 1:]
    def lds_drain(self):
        self("s_waitcnt lgkmcnt(0)"); self.lds_q = []
    def text(self, order=None):
        o = list(HDR)
        ls = self.launches if order is None else [l for n in order for l in self.launches if l[0] == n]
        if len(ls) == 1 and ls[0][0] == MAIN:
            (n, g, b, lds) = ls[0]
            o.append(f"; @launch grid=({g},1,1) block=({b},1,1) lds={lds}")
        else:
            for (n, g, b, lds) in ls:
                o.append(f"; @launch kernel={n} grid=({g},1,1) block=({b},1,1) lds={lds}")
        o.append(NOTES)
        o.append('.amdgcn_target "amdgcn-amd-amdhsa--gfx950"\n.text')
        o += self.out
        o.append('.section .rodata,"a"')
        for (n, vgpr, sgpr) in self.kernels:
            o.append(f""".p2align 6
.amdhsa_kernel {n}
  .amdhsa_next_free_vgpr {vgpr}
  .amdhsa_next_free_sgpr {sgpr}
  .amdhsa_accum_offset {(vgpr + 3) // 4 * 4}
  .amdhsa_group_segment_fixed_size 0
  .amdhsa_kernarg_size 72
  .amdhsa_user_sgpr_count 2
  .amdhsa_user_sgpr_kernarg_segment_ptr 1
  .amdhsa_system_sgpr_workgroup_id_x 1
.end_amdhsa_kernel""")
        return '\n'.join(o) + '\n'

def vr(a, n=1): return f"v{a}" if n == 1 else f"v[{a}:{a+n-1}]"

def stamp(A, i):
    if STAMP and i < 100:
        A(f"s_memtime s[100:101]\ns_waitcnt lgkmcnt(0)\nv_writelane_b32 v255, s100, {i}")
        A.lds_q = []
        if i == 0:
            A("s_memrealtime s[100:101]\ns_waitcnt lgkmcnt(0)\nv_writelane_b32 v255, s100, 31")
def stamp_flush(A, n, kidx):
    if not STAMP: return
    A("s_waitcnt lgkmcnt(0) vmcnt(0)")
    stamp(A, n)
    A(f"""
    s_memrealtime s[100:101]
    s_waitcnt lgkmcnt(0)
    v_writelane_b32 v255, s100, {n+1}
    s_add_u32 s4, s48, {STAMP_OFF + kidx*524288}
    s_addc_u32 s5, s49, 0
    s_mov_b32 s8, s4
    s_and_b32 s9, s5, 0xffff
    s_mov_b32 s10, 524288
    s_mov_b32 s11, 0x20000
    s_lshl_b32 s6, s2, 4
    s_add_u32 s6, s6, s28
    s_lshl_b32 s6, s6, 7
    v_lshlrev_b32 v0, 2, v1
    v_add_u32 v0, s6, v0
    v_mov_b32 v2, {OOB}
    v_cmp_gt_u32 vcc, 32, v1
    s_nop 1
    v_cndmask_b32 v0, v2, v0, vcc
    buffer_store_dword v255, v0, s[8:11], 0 offen
    """)

def srd(A, d, lo, hi, nbytes):
    A(f"s_mov_b32 s{d}, s{lo}\ns_and_b32 s{d+1}, s{hi}, 0xffff\ns_mov_b32 s{d+2}, {nbytes}\ns_mov_b32 s{d+3}, 0x20000")

MAPCODE = {
 'split': """s_lshr_b32 s5, s3, 2
    s_bfe_u32 s6, s3, 0x10001
    s_and_b32 s7, s3, 1
    s_and_b32 s10, s4, 7
    s_lshr_b32 s11, s4, 3
    s_lshl_b32 s6, s6, 3
    s_add_u32 s6, s6, s10
    s_lshl_b32 s7, s7, 2
    s_add_u32 s7, s7, s11""",
 'mix': """s_lshr_b32 s5, s4, 4
    s_lshr_b32 s6, s3, 1
    s_and_b32 s7, s3, 1
    s_and_b32 s10, s4, 3
    s_bfe_u32 s11, s4, 0x20002
    s_lshl_b32 s6, s6, 2
    s_add_u32 s6, s6, s10
    s_lshl_b32 s7, s7, 2
    s_add_u32 s7, s7, s11""",
 'mix2': """s_lshr_b32 s5, s4, 4
    s_lshr_b32 s6, s3, 2
    s_and_b32 s7, s3, 3
    s_and_b32 s10, s4, 7
    s_bfe_u32 s11, s4, 0x10003
    s_lshl_b32 s6, s6, 3
    s_add_u32 s6, s6, s10
    s_lshl_b32 s7, s7, 1
    s_add_u32 s7, s7, s11
    s_lshl_b32 s11, s11, 1""",
}
def prologue(A, endlabel):
    if 'early' in DBG: A("s_memrealtime s[94:95]")
    A(f"""
    s_cmp_ge_u32 s2, 256
    s_cbranch_scc1 {endlabel}
    s_load_dwordx16 s[32:47], s[0:1], 0
    s_load_dwordx2 s[48:49], s[0:1], 64
    s_getpc_b64 s[50:51]
    v_lshrrev_b32 v2, 6, v0
    s_andn2_b32 s3, s2, 7
    {"v_lshlrev_b32 v3, 6, v0" if 'cpfall' in DBG else "v_add_lshl_u32 v3, v2, s3, 7"}
    v_min_u32 v3, CODE_BYTES, v3
    v_and_b32 v1, 63, v0
    global_load_dword v254, v3, s[50:51]
    s_and_b32 s3, s2, 7
    s_lshr_b32 s4, s2, 3
    v_readfirstlane_b32 s28, v2
    {MAPCODE['mix' if 'mix' in DBG else 'mix2' if 'mix2' in DBG else 'split']}
    """)

PIECE = 1056
P1_LOOK = 5
XOFF = 32 * PIECE
SLOT = XOFF + 16384
P1_LDS = 3 * SLOT
LDS_TOTAL = 163840
BLK = 1536
HD = 14 * BLK
L_BK = 0; L_BV = 16 * BLK; L_WO = 32 * BLK; L_BQ = L_WO + 102400
assert L_BQ + 8 * BLK == LDS_TOTAL
L_A = SLOT
EP_LDS = 140000
HF_LDS = EP_LDS + 64
assert L_A + 4 * HD <= EP_LDS
EP = 250
SPIN_LIMIT = 1 << 17
PM = 214; QD = 222; NINF = 223; LK = 224; LV = 225; OL = 226; NEGM = 227; T0 = 228; T1 = 229; CA = 230
MS = 52
QF = 20; AK = 28; AV = 29; AQ = 30; OA = 32; WA = 36
CB = 80; S0 = 96; SA = 112; SB = 128; PA = 144; PB = 152; KF = 160; VF = 176; O = 192; P2 = 64

def flag_srd(A):
    A(f"s_add_u32 s94, s48, {FLAG_BASE}\ns_addc_u32 s95, s49, 0")
    srd(A, 96, 94, 95, MB_BYTES)

def dbg_srd(A):
    A("s_mov_b32 s96, s46\ns_and_b32 s97, s47, 0xffff\ns_mov_b32 s98, 256\ns_mov_b32 s99, 0x20000")

def epoch_get(A):
    A(f"""
    s_or_b32 s96, s28, s2
    s_cbranch_scc1 EP_skip
    {"" if 'early' in DBG else "s_memrealtime s[94:95]"}
    v_mov_b32 v252, 0
    s_waitcnt lgkmcnt(0)
    """)
    dbg_srd(A)
    A(f"""
    s_or_b32 s94, s94, 1
    v_mov_b32 v{EP}, s94
    v_mov_b32 v{EP+1}, s95
    s_nop 0
    buffer_store_dwordx2 v[{EP}:{EP+1}], v252, s[96:99], 0 offen sc1
    EP_skip:
    """)

def epoch_share(A):
    A(f"""
    s_cmp_lg_u32 s28, 4
    s_cbranch_scc1 EP_skip2
    """)
    dbg_srd(A)
    A(f"""
    v_mov_b32 v252, 0
    s_mov_b32 s94, 0
    EP_spin:
    buffer_load_dwordx2 v[{EP}:{EP+1}], v252, s[96:99], 0 offen sc1
    s_add_u32 s94, s94, 1
    s_waitcnt vmcnt(0)
    v_readfirstlane_b32 s95, v{EP}
    s_cmp_ge_u32 s94, {SPIN_LIMIT}
    s_cbranch_scc1 EP_got
    s_cmp_eq_u32 s95, 0
    s_cbranch_scc1 EP_spin
    EP_got:
    v_mov_b32 v252, {EP_LDS}
    s_nop 0
    ds_write_b64 v252, v[{EP}:{EP+1}]
    s_waitcnt lgkmcnt(0)
    EP_skip2:
    """)

def epoch_read(A):
    A(f"v_mov_b32 v252, {EP_LDS}\ns_nop 0\nds_read_b64 v[{EP}:{EP+1}], v252\ns_waitcnt lgkmcnt(0)")
    A(f"v_readfirstlane_b32 s0, v{EP}\nv_readfirstlane_b32 s1, v{EP+1}")

def flag_store(A, vaddr):
    A(f"buffer_store_dwordx2 v[{EP}:{EP+1}], v{vaddr}, s[96:99], 0 offen sc1")

def poll(A, vaddr, vtmp, tag):
    A(f"""
    s_mov_b32 s94, 0
    PL_{tag}:
    buffer_load_dwordx2 v[{vtmp}:{vtmp+1}], v{vaddr}, s[96:99], 0 offen sc1
    s_waitcnt vmcnt(0)
    v_cmp_ne_u64 vcc, v[{vtmp}:{vtmp+1}], v[{EP}:{EP+1}]
    s_add_u32 s94, s94, 1
    s_nop 0
    s_cmp_eq_u64 vcc, 0
    s_cbranch_scc1 PD_{tag}
    s_sleep 1
    s_cmp_lt_u32 s94, {SPIN_LIMIT}
    s_cbranch_scc1 PL_{tag}
    PD_{tag}:
    """)

def setup2(A):
    A(f"""
    v_lshrrev_b32 v5, 5, v1
    v_and_b32 v2, 31, v1
    v_lshlrev_b32 v3, 2, v5
    v_sub_u32 v{QD}, v2, v3
    v_mov_b32 v{NINF}, 0xff800000
    v_mov_b32 v{NEGM}, 0
    v_lshlrev_b32 v{LK}, 4, v1
    """)
    for r in range(16):
        kc = (r & 3) + 8 * (r >> 2)
        A(f"v_cmp_le_i32 s[{MS+2*r}:{MS+2*r+1}], {kc}, v{QD}")
    A("v_mov_b32 v2, 0xffff\nv_mov_b32 v3, 0xffff0000\nv_mov_b32 v4, 0")
    for j in range(8):
        A(f"v_cndmask_b32 v6, v4, v2, s[{MS+4*j}:{MS+4*j+1}]")
        A(f"v_cndmask_b32 v7, v4, v3, s[{MS+4*j+2}:{MS+4*j+3}]")
        A(f"v_or_b32 v{PM+j}, v6, v7")
    A(f"""
    v_and_b32 v3, 3, v1
    v_bfe_u32 v4, v1, 2, 2
    v_lshrrev_b32 v7, 1, v3
    v_lshlrev_b32 v7, 6, v7
    v_and_b32 v6, 1, v3
    v_lshl_add_u32 v7, v6, 3, v7
    v_min_u32 v6, 1, v3
    v_lshlrev_b32 v6, 3, v6
    v_add_u32 v6, 128, v6
    v_bfe_u32 v2, v1, 4, 1
    v_cmp_eq_u32 vcc, 0, v2
    v_mul_u32_u24 v2, 20480, v2
    v_and_b32 v3, 15, v1
    v_cndmask_b32 v7, v6, v7, vcc
    v_lshl_add_u32 v7, v4, 4, v7
    v_mul_u32_u24 v6, 192, v5
    v_add_u32 v{LV}, v7, v6
    v_lshl_add_u32 v{OL}, v3, 4, v2
    s_mov_b32 s84, {f32bits(2.0**-64)}
    s_mov_b32 s85, {f32bits(2.0**64)}
    s_mov_b32 s92, 0
    s_mov_b32 s93, 0
    """)

def build_CA(A):
    for r in range(16):
        kc = (r & 3) + 8 * (r >> 2)
        A(f"v_subrev_u32 v{T0}, {kc}, v{QD}\nv_and_b32 v{T0}, 17, v{T0}\nv_cmp_eq_u32 s[88:89], 0, v{T0}\ns_nop 1\nv_cndmask_b32 v{CA+r}, v{NINF}, v{NEGM}, s[88:89]")

def oaddr(A, s_head, s_rt16):
    A(f"""
    s_lshr_b32 s88, s{s_head}, 3
    s_mul_i32 s88, s88, 5120
    s_mul_i32 s89, s{s_rt16}, 20480
    s_add_u32 s88, s88, s89
    s_and_b32 s89, s{s_head}, 7
    s_lshl_b32 s90, s89, 9
    s_add_u32 s90, s90, s88
    s_lshl_b32 s89, s89, 7
    s_add_u32 s89, s89, s88
    s_add_u32 s89, s89, 4096
    v_lshrrev_b32 v2, 5, v1
    v_lshl_add_u32 v2, v2, 8, v{OL}
    v_add_u32 v{OA}, s90, v2
    v_and_b32 v2, 15, v1
    v_lshlrev_b32 v2, 3, v2
    v_sub_u32 v3, v{OL}, v2
    v_add_u32 v3, s89, v3
    v_cmp_gt_u32 vcc, 32, v1
    v_mov_b32 v2, {OOB}
    s_nop 0
    v_cndmask_b32 v{OA+1}, v2, v3, vcc
    """)

def qk(A, i, slot, dst, C):
    c = vr(C, 16) if i == 0 else vr(dst, 16)
    A(f"v_mfma_f32_32x32x16_bf16 {vr(dst,16)}, {vr(KF+slot*8+4*i,4)}, {vr(QF+4*i,4)}, {c}")
def pv(A, i, slot, Preg, first=False):
    c = "0" if first else vr(O, 16)
    A(f"v_mfma_f32_32x32x16_bf16 {vr(O,16)}, {vr(VF+slot*8+4*i,4)}, {vr(Preg+4*i,4)}, {c}")
def cvt(A, S, Pd, j):
    A(f"v_cvt_pk_bf16_f32 v{Pd+j}, v{S+2*j}, v{S+2*j+1}")
def rdK(A, b, slot):
    for i in range(2):
        A.lds(f"ds_read_b128 {vr(KF + slot*8 + 4*i, 4)}, v{AK} offset:{b*BLK + i*1024}", ('k', b))
def rdV(A, b, slot):
    for i in range(4):
        A.lds(f"ds_read_b64_tr_b16 {vr(VF + slot*8 + 2*i, 2)}, v{AV} offset:{b*BLK + i*384}", ('v', b))
def rdQ(A):
    for i in range(2):
        A.lds(f"ds_read_b128 {vr(QF + 4*i, 4)}, v{AQ} offset:{i*1024}", ('q', 0))
def maskQ(A):
    A(f"v_mov_b32 v{QF+4}, 0\nv_mov_b32 v{QF+5}, 0\ns_mov_b32 s88, -1\ns_mov_b32 s89, 0\nv_mov_b32 v{T0}, 0")
    A(f"v_cndmask_b32 v{QF+6}, v{T0}, v{QF+6}, s[88:89]\nv_cndmask_b32 v{QF+7}, v{T0}, v{QF+7}, s[88:89]\ns_nop 0")

def finish(A, osoff, tag, flagreg):
    A(f"s_nop 7\ns_nop 3\nv_rcp_f32 v{T0}, v{O+12}")
    A(f"v_add_f32 v{T1}, |v{O}|, |v{O+1}|")
    for r in range(2, 12):
        A(f"v_add_f32 v{T1}, v{T1}, |v{O+r}|")
    A(f"""
    v_cmp_le_f32 s[88:89], s84, v{O+12}
    v_cmp_ge_f32 s[90:91], s85, v{O+12}
    v_cmp_gt_f32 vcc, -v{NINF}, v{T1}
    """)
    for r in range(12):
        A(f"v_mul_f32 v{O+r}, v{O+r}, v{T0}")
    A(f"""
    s_and_b64 s[88:89], s[88:89], s[90:91]
    s_and_b64 s[88:89], s[88:89], vcc
    s_or_b32 s90, s{flagreg}, 0
    s_cbranch_scc1 P2_{tag}_ok
    s_cmp_eq_u64 s[88:89], exec
    s_cbranch_scc0 P2_{tag}_fb
    P2_{tag}_ok:
    """)
    for j in range(6):
        A(f"v_cvt_pk_bf16_f32 v{O+j}, v{O+2*j}, v{O+2*j+1}")
    A(f"s_mov_b32 s88, {osoff}")
    A(f"v_permlane32_swap_b32 v{O}, v{O+2}\nv_permlane32_swap_b32 v{O+1}, v{O+3}")
    A(f"buffer_store_dwordx2 {vr(O+4,2)}, v{OA+1}, s[24:27], s88 offen sc1")
    A(f"buffer_store_dwordx4 {vr(O,4)}, v{OA}, s[24:27], s88 offen sc1")

def maxblock(A, S, first):
    if first: A(f"v_max_f32 v{T1}, v{S}, v{S+1}")
    else: A(f"v_max3_f32 v{T1}, v{T1}, v{S}, v{S+1}")
    for r in range(2, 16, 2): A(f"v_max3_f32 v{T1}, v{T1}, v{S+r}, v{S+r+1}")
def rowmax_finish(A, back, flagreg, rebuild):
    A(f"""
    v_mov_b32 v{T0}, v{T1}
    s_nop 1
    v_permlane32_swap_b32 v{T1}, v{T0}
    s_nop 1
    v_max_f32 v{T1}, v{T1}, v{T0}
    v_sub_f32 v{NEGM}, 0, v{T1}
    s_mov_b32 s{flagreg}, 2
    """)
    rebuild()
    A(f"s_waitcnt lgkmcnt(0)\ns_branch {back}")

def dma_patterns(A):
    A(f"""
    v_and_b32 v3, 15, v1
    v_bfe_u32 v4, v1, 4, 1
    v_lshlrev_b32 v6, 3, v4
    v_mul_u32_u24 v4, 768, v4
    v_lshl_add_u32 v5, v3, 4, v4
    v_lshl_add_u32 v6, v3, 4, v6
    v_add_u32 v6, 504, v6
    v_cmp_gt_u32 vcc, 32, v1
    v_add_u32 v7, 256, v5
    v_add_u32 v8, {2*QK_TILE}, v5
    v_add_u32 v9, {2*QK_TILE}, v7
    v_add_u32 v10, {2*QK_TILE}, v6
    v_cndmask_b32 v12, v7, v5, vcc
    v_cndmask_b32 v13, v8, v6, vcc
    v_cndmask_b32 v14, v10, v9, vcc
    s_mov_b32 s12, 0x15555556
    """)
    for ty in range(3):
        A(f"""
        v_add_u32 v3, {ty*64}, v1
        v_mul_hi_u32 v4, v3, s12
        v_mul_u32_u24 v5, 12, v4
        v_sub_u32 v5, v3, v5
        v_lshrrev_b32 v6, 2, v5
        v_and_b32 v5, 3, v5
        v_lshl_add_u32 v5, v4, 2, v5
        v_lshrrev_b32 v7, 5, v5
        v_mul_u32_u24 v7, 1280, v7
        v_lshrrev_b32 v9, 1, v6
        v_mul_u32_u24 v9, 760, v9
        v_sub_u32 v9, 768, v9
        v_bfe_u32 v8, v5, 4, 1
        v_mad_u32_u24 v7, v8, v9, v7
        v_and_b32 v5, 15, v5
        v_lshl_add_u32 v7, v5, 4, v7
        v_lshl_add_u32 v{15+ty}, v6, 8, v7
        """)

P3COORD = """s_and_b32 s12, s2, 3
    s_lshl_b32 s9, s12, 2
    s_bfe_u32 s12, s2, 0x20003
    s_add_u32 s9, s9, s12
    s_lshr_b32 s10, s2, 5
    s_lshr_b32 s11, s10, 1"""
P3COORD = P3COORD.replace("s_lshr_b32 s11, s10, 1", "s_mov_b32 s11, 2")
def cb_init(A):
    A("s_cmp_eq_u32 s4, 0\ns_cselect_b64 s[88:89], exec, 0\ns_nop 1")
    for r in range(16): A(f"v_cndmask_b32 v{CB+r}, v{NEGM}, v{NINF}, s[88:89]")
def wo_patterns(A, quads):
    A("s_mov_b32 s12, 0x1999999a")
    for i in range(5):
        A(f"""
        v_add_u32 v8, {i*64}, v1
        v_mul_hi_u32 v9, v8, s12
        v_mul_u32_u24 v10, 10, v9
        v_sub_u32 v10, v8, v10
        v_bfe_u32 v11, v9, 2, 2
        v_lshlrev_b32 v11, 3, v11
        v_bfe_u32 v7, v9, 4, 1
        v_lshl_add_u32 v11, v7, 2, v11
        v_and_b32 v7, 3, v9
        v_add_u32 v11, v11, v7
        v_lshrrev_b32 v7, 4, v11
        v_lshl_add_u32 v7, v7, 2, v11
        v_mul_u32_u24 v7, 1280, v7
        v_lshl_add_u32 v{WA+i}, v10, 4, v7
        """)
        if quads: A(f"""
        v_lshrrev_b32 v7, 2, v11
        v_lshl_add_u32 v7, v7, 4, v11
        v_add_u32 v7, 16, v7
        v_mul_u32_u24 v7, 1280, v7
        v_lshl_add_u32 v{WA+5+i}, v10, 4, v7
        """)
        else: A(f"v_mov_b32 v{WA+5+i}, v{WA+i}")
ROT = 4
HEADCODE = "s_and_b32 s3, s2, 7\ns_lshl_b32 s3, s3, 2\ns_bfe_u32 s4, s2, 0x20003\ns_or_b32 s3, s3, s4\ns_lshr_b32 s4, s2, 5"
ROTCODE = {
 10: """s_mul_i32 s12, s11, 5
    s_lshr_b32 s12, s12, 1
    s_mul_i32 s13, s10, 5
    s_lshr_b32 s13, s13, 2
    s_add_u32 s12, s12, s13
    s_cmp_ge_u32 s12, 10
    s_cselect_b32 s13, 10, 0
    s_sub_u32 s12, s12, s13""",
 1: "s_mov_b32 s12, 0",
 5: "s_add_u32 s12, s10, s7\ns_mul_i32 s13, s12, 52\ns_lshr_b32 s13, s13, 8\ns_mul_i32 s13, s13, 5\ns_sub_u32 s12, s12, s13\ns_lshl_b32 s12, s12, 1",
 6: "s_add_u32 s12, s6, s7\ns_mul_i32 s13, s12, 52\ns_lshr_b32 s13, s13, 8\ns_mul_i32 s13, s13, 5\ns_sub_u32 s12, s12, s13\ns_lshl_b32 s12, s12, 1",
 2: "s_add_u32 s12, s10, s11\ns_and_b32 s12, s12, 1\ns_mul_i32 s12, s12, 5",
 4: "s_add_u32 s12, s10, s11\ns_and_b32 s12, s12, 3\ns_mul_i32 s12, s12, 5\ns_lshr_b32 s12, s12, 1",
 3: "s_add_u32 s12, s10, s11\ns_mul_i32 s13, s12, 43\ns_lshr_b32 s13, s13, 7\ns_mul_i32 s13, s13, 3\ns_sub_u32 s12, s12, s13\ns_mul_i32 s12, s12, 7\ns_lshr_b32 s12, s12, 1",
}
def gen(A):
    A.begin(MAIN)
    if 'lst' in DBG: A("s_memtime s[98:99]")
    prologue(A, "K_end")
    if 'lst' not in DBG: stamp(A, 0)
    A("s_cmp_lt_u32 s28, 4\ns_cbranch_scc1 P1_consumer")
    A(f"""
    s_sub_u32 s29, s28, 4
    v_lshrrev_b32 v2, 5, v1
    v_and_b32 v3, 31, v1
    v_mul_u32_u24 v2, 15360, v2
    v_mul_u32_u24 v6, 26, v3
    v_lshrrev_b32 v6, 8, v6
    s_cmp_eq_u32 s5, 0
    s_cselect_b32 s15, 1120, 0
    s_cselect_b32 s14, 160, 480
    v_mul_lo_u32 v6, v6, s15
    v_lshl_add_u32 v2, v3, 4, v2
    v_add_u32 v2, v2, v6
    v_mov_b32 v4, {OOB}
    v_cmp_gt_u32 vcc, 30, v3
    v_lshrrev_b32 v5, 3, v1
    v_mul_u32_u24 v5, 1280, v5
    v_cndmask_b32 v8, v4, v2, vcc
    v_and_b32 v3, 7, v1
    v_lshrrev_b32 v4, 4, v1
    v_xor_b32 v3, v3, v4
    v_lshl_add_u32 v9, v3, 4, v5
    v_xor_b32 v3, 4, v3
    v_lshl_add_u32 v10, v3, 4, v5
    {ROTCODE[ROT]}
    s_mul_i32 s13, s29, {8*3840}
    s_mul_i32 s14, s7, s14
    s_add_u32 s13, s13, s14
    s_lshl_b32 s14, s6, 7
    s_lshl_b32 s15, s29, 5
    s_add_u32 s14, s14, s15
    s_mul_i32 s14, s14, 1280
    s_mul_i32 s30, s29, {4*PIECE}
    s_lshl_b32 s31, s29, 12
    s_add_u32 s31, s31, {XOFF}
    s_mul_i32 s26, s12, 245760
    s_add_u32 s26, s26, s13
    s_lshl_b32 s27, s12, 7
    s_add_u32 s27, s27, s14
    s_mov_b32 s25, 0
    s_mov_b32 s51, 0
    s_cmp_eq_u32 s5, 0
    {"s_memtime s[96:97]" if 'lst' in DBG else ""}
    s_waitcnt lgkmcnt(0)
    {"v_writelane_b32 v255, s96, 14" if 'lst' in DBG else ""}
    s_cselect_b32 s16, s32, s38
    s_cselect_b32 s17, s33, s39
    s_cselect_b32 s20, s34, s40
    s_cselect_b32 s21, s35, s41
    s_and_b32 s17, s17, 0xffff
    s_mov_b32 s18, 2621440
    s_mov_b32 s19, 0x20000
    s_and_b32 s21, s21, 0xffff
    s_mov_b32 s22, 2457600
    s_mov_b32 s23, 0x20000
    """.replace("s_cselect_b32 s14, 160, 480", "s_movk_i32 s14, 480\ns_cselect_b32 s14, 160, s14"))
    def wpiece(sub, r):
        A(f"s_add_u32 m0, s30, {(sub*16 + r)*PIECE}\ns_add_u32 s50, s26, {(32*sub + r)*3840}\nbuffer_load_dwordx4 v8, s[20:23], s50 offen lds")
    def xpiece(j):
        A(f"s_add_u32 m0, s31, {j*1024}\ns_add_u32 s50, s27, {j*8*1280}\nbuffer_load_dwordx4 v{9 + (j & 1)}, s[16:19], s50 offen lds")
    def F():
        xpiece(0); wpiece(0, 0); xpiece(1); wpiece(0, 1); xpiece(2); xpiece(3)
    def S():
        wpiece(0, 2); wpiece(0, 3)
        for r in range(4): wpiece(1, r)
    for d in DBG:
        if d.startswith('adel'): A(f"s_cmp_lg_u32 s5, 0\ns_cbranch_scc1 P1_lf\ns_sleep {d[4:]}")
    if 'lst' in DBG: stamp(A, 10); A("v_writelane_b32 v255, s98, 0")
    A("s_branch P1_lf")
    A("P1_lloop:")
    S()
    A(f"""
    s_add_u32 s12, s12, 1
    s_cmp_eq_u32 s12, 10
    s_cselect_b32 s12, 0, s12
    s_mul_i32 s26, s12, 245760
    s_add_u32 s26, s26, s13
    s_lshl_b32 s27, s12, 7
    s_add_u32 s27, s27, s14
    s_add_u32 s25, s25, 1
    s_cmp_eq_u32 s25, 3
    s_cselect_b32 s25, 0, s25
    s_mov_b32 s50, {SLOT}
    s_cselect_b32 s50, {-2*SLOT & 0xffffffff}, s50
    s_add_u32 s30, s30, s50
    s_add_u32 s31, s31, s50
    s_add_u32 s51, s51, 1
    s_cmp_eq_u32 s51, 10
    s_cbranch_scc1 P1_llast
    P1_lf:
    """)
    F()
    A("""
    s_cmp_eq_u32 s51, 0
    s_cbranch_scc1 P1_lloop
    """)
    if 'lst' in DBG and STAMP: A("s_cmp_lg_u32 s51, 1\ns_cbranch_scc1 LST1"); stamp(A, 11); A("LST1:")
    A("""
    s_waitcnt vmcnt(6)
    s_barrier
    LSTG
    s_branch P1_lloop
    P1_llast:
    s_waitcnt vmcnt(0)
    s_barrier
    """)
    stamp(A, 1)
    epoch_share(A)
    A(f"""
    s_bitcmp0_b32 s2, 2
    s_cselect_b32 s16, s36, s42
    s_cselect_b32 s17, s37, s43
    s_and_b32 s17, s17, 0xffff
    s_mov_b32 s18, 819200
    s_lshr_b32 s12, s2, 3
    s_lshl_b32 s12, s12, 2
    s_add_u32 s12, s12, s29
    s_mul_i32 s12, s12, 6400
    v_lshlrev_b32 v2, 7, v1
    v_mov_b32 v3, {OOB}
    v_cmp_gt_u32 vcc, 50, v1
    s_nop 1
    v_cndmask_b32 v2, v3, v2, vcc
    buffer_load_dword v254, v2, s[16:19], s12 offen
    buffer_load_dword v254, v2, s[16:19], s12 offen offset:64
    """)
    setup2(A)
    dma_patterns(A)
    flag_srd(A)
    A(f"""
    {HEADCODE}
    """)
    build_CA(A)
    A(f"""
    v_cmp_lt_u32 vcc, 11, v1
    v_mov_b32 v2, 0
    v_mov_b32 v3, 1
    v_cndmask_b32 v2, v2, v3, vcc
    v_mul_u32_u24 v3, 12, v2
    v_sub_u32 v3, v1, v3
    s_mul_i32 s12, s7, 12
    v_add_u32 v3, s12, v3
    v_lshrrev_b32 v4, 5, v3
    v_and_b32 v3, 31, v3
    s_lshr_b32 s12, s6, 1
    v_add_u32 v5, s12, v2
    v_lshl_add_u32 v3, v5, 5, v3
    s_and_b32 s12, s6, 1
    s_add_u32 s12, s12, 2
    v_lshlrev_b32 v2, 1, v2
    v_sub_u32 v2, s12, v2
    v_lshl_add_u32 v2, v2, 4, v4
    v_lshlrev_b32 v2, 3, v2
    v_lshl_add_u32 v2, v3, 9, v2
    v_cmp_gt_u32 vcc, 8, v5
    v_cmp_gt_u32 s[88:89], 24, v1
    v_mov_b32 v3, {OOB}
    s_and_b64 vcc, vcc, s[88:89]
    s_cmp_lg_u32 s28, 4
    s_cselect_b64 vcc, 0, vcc
    s_nop 0
    v_cndmask_b32 v18, v3, v2, vcc
    """)
    A(f"""
    s_lshl_b32 s12, s4, 5
    s_add_u32 s12, s12, s3
    s_lshl_b32 s12, s12, 9
    s_lshl_b32 s13, s29, 7
    s_add_u32 s12, s12, s13
    s_add_u32 s40, s12, {FLAG_BASE + MB1}
    s_lshl_b32 s13, s29, 3
    s_mul_i32 s14, s3, {HS}
    s_lshl_b32 s15, s4, 4
    s_add_u32 s14, s14, s15
    s_add_u32 s14, s14, s13
    s_sub_u32 s14, s14, 16
    s_mul_i32 s26, s14, {QK_TILE}
    s_mul_i32 s27, s14, {V_TILE}
    s_add_u32 s27, s27, {V_OFF}
    s_add_u32 s15, s15, s13
    s_cmp_lt_u32 s15, 16
    s_cselect_b32 s26, 0x70000000, s26
    s_cselect_b32 s27, 0x70000000, s27
    s_cselect_b32 s31, 7, 0
    s_cmp_ge_u32 s29, 2
    s_cselect_b32 s30, 7, 6
    s_mul_i32 s25, s29, {4*BLK}
    """)
    A(f"""
    v_lshrrev_b32 v52, 2, v1
    v_mul_u32_u24 v52, 192, v52
    v_and_b32 v53, 3, v1
    v_lshl_add_u32 v52, v53, 4, v52
    s_add_u32 s12, s25, {L_BV + 136}
    v_add_u32 v53, s12, v52
    s_mul_i32 s12, s29, {HD}
    s_add_u32 s12, s12, {L_A + 9*BLK + 136}
    v_add_u32 v52, s12, v52
    v_mov_b32 v54, 0x3f803f80
    v_mov_b32 v55, 0x3f803f80
    s_mov_b64 s[46:47], s[36:37]
    s_cmp_eq_u32 s6, 0
    s_cselect_b32 s12, 8, {8 if 'nohalo' in DBG else 0}
    s_or_b32 s31, s31, s12
    s_cmp_eq_u32 s5, 0
    s_cselect_b32 s12, 8, 0
    s_or_b32 s30, s30, s12
    s_add_u32 s12, s48, {QKV_BYTES}
    s_addc_u32 s13, s49, 0
    """)
    srd(A, 20, 12, 13, QKV_BYTES)
    srd(A, 16, 48, 49, QKV_BYTES)
    A("s_cmp_eq_u32 s5, 0\ns_cbranch_scc0 L_x1\ns_barrier\nL_x1:")
    wo_patterns(A, False)
    cb_init(A)
    A(f"""
    s_lshl_b32 s12, s4, 4
    s_add_u32 s12, s12, 128
    v_add_u32 v2, s12, v1
    v_lshlrev_b32 v2, 9, v2
    s_lshl_b32 s12, s3, 3
    s_and_b32 s13, s3, 24
    s_lshl_b32 s13, s13, 3
    s_add_u32 s12, s12, s13
    s_add_u32 s12, s12, {MB2}
    v_add_u32 v2, s12, v2
    v_mov_b32 v3, {OOB}
    v_cmp_gt_u32 vcc, 16, v1
    v_mov_b32 v58, v3
    v_mov_b32 v59, v3
    v_cndmask_b32 v19, v3, v2, vcc
    """)
    A("s_cmp_eq_u32 s5, 0\ns_cbranch_scc1 L_x2\ns_barrier")
    flag_store(A, 18)
    A("L_x2:")
    epoch_read(A)
    stamp(A, 2)
    A(f"""
    s_mov_b32 s11, 0
    PL_b:
    s_load_dwordx8 s[32:39], s[48:49], s40 glc
    PL_b2:
    s_add_u32 s11, s11, 1
    s_cmp_ge_u32 s11, {SPIN_LIMIT}
    s_cselect_b32 s12, 15, s31
    s_waitcnt lgkmcnt(0)
    s_cmp_eq_u64 s[32:33], s[0:1]
    s_cselect_b32 s13, 1, 0
    s_or_b32 s12, s12, s13
    s_cmp_eq_u64 s[34:35], s[0:1]
    s_cselect_b32 s13, 2, 0
    s_or_b32 s12, s12, s13
    s_cmp_eq_u64 s[36:37], s[0:1]
    s_cselect_b32 s13, 4, 0
    s_or_b32 s12, s12, s13
    s_cmp_eq_u64 s[38:39], s[0:1]
    s_cselect_b32 s13, 8, 0
    s_or_b32 s12, s12, s13
    s_and_b32 s12, s12, s30
    s_bitcmp1_b32 s12, 3
    s_cbranch_scc0 PB_h
    s_mov_b64 s[90:91], exec
    s_lshl_b32 s15, s7, 2
    s_add_u32 s15, s15, s29
    s_mul_i32 s15, s15, {HS}
    s_lshl_b32 s13, s6, 3
    s_add_u32 s15, s15, s13
    s_sub_u32 s15, s15, 2
    s_mul_i32 s14, s29, {HD}
    """)
    for (areg, tb, off, lds) in ((12, QK_TILE, K_OFF, 0), (15, V_TILE, V_OFF, 9 * BLK)):
        A(f"""
        s_mul_i32 s13, s15, {tb}
        s_add_u32 s13, s13, {off}
        s_cmp_eq_u32 s6, {'s6' if 'nohalo' in DBG else 0}
        s_cselect_b32 s13, 0x70000000, s13
        s_add_u32 m0, s14, {L_A + lds}
        s_nop 0
        buffer_load_dwordx4 v{areg}, s[16:19], s13 offen sc1 lds
        s_add_u32 m0, s14, {L_A + lds + 1024}
        s_mov_b32 exec_hi, 0
        buffer_load_dwordx4 v{areg+1}, s[16:19], s13 offen sc1 lds
        s_mov_b64 exec, s[90:91]
        """)
    A("PB_h:")
    for m, (areg, sreg, soff, tb, lds) in enumerate(((12, 26, 0, QK_TILE, L_BQ - 8 * BLK), (12, 26, K_OFF, QK_TILE, L_BK), (15, 27, 0, V_TILE, L_BV))):
        A(f"s_bitcmp1_b32 s12, {m}\ns_cbranch_scc0 PB_{m}")
        for u in range(2):
            A(f"s_add_u32 s13, s{sreg}, {soff + u*4*tb}")
            for ty in range(3):
                A(f"s_add_u32 m0, s25, {lds + u*3072 + ty*1024}\ns_nop 0\nbuffer_load_dwordx4 v{areg+ty}, s[20:23], s13 offen sc1 lds")
        A(f"PB_{m}:")
    A(f"""
    s_andn2_b32 s30, s30, s12
    s_bitcmp1_b32 s12, 3
    s_cbranch_scc0 L_nh
    s_mov_b32 s8, s25
    s_mov_b32 s9, s26
    s_mov_b32 s10, s27
    s_mov_b32 s15, s29
    s_mov_b32 s16, 0
    s_add_u32 s12, s48, {O_BASE}
    s_addc_u32 s13, s49, 0
    s_waitcnt vmcnt(0)
    ds_write_b64 v52, v[54:55]
    """)
    stamp(A, 3)
    A(f"""
    s_branch P2_a_enter
    L_Aret:
    s_mov_b32 s25, s8
    s_mov_b32 s26, s9
    s_mov_b32 s27, s10
    """)
    stamp(A, 4)
    A(f"""
    s_branch PL_b2
    L_nh:
    s_cmp_lg_u32 s30, 0
    s_cbranch_scc0 PD_b
    {f"s_sleep {PSLEEP}" if PSLEEP else ""}
    s_branch PL_b
    PD_b:
    """)
    stamp(A, 5)
    A("s_branch P2_pre")

    A("P1_consumer:")
    ACC = 8; WR = 128; XF = 168; AW0 = 184; AX0 = 185; AX1 = 186; AW = 187; AXa = 188; AXb = 189
    def acc(grp, t, rt): return ACC + ((grp * 5 + t) * 2 + rt) * 4
    if 'pf' in DBG:
        A(f"""
        s_cmp_eq_u32 s28, 1
        s_cbranch_scc0 PF_w
        s_lshl_b32 s12, s6, 2
        s_and_b32 s13, s7, 3
        s_add_u32 s12, s12, s13
        s_mul_i32 s12, s12, 40960
        v_lshlrev_b32 v2, 7, v1
        v_add_u32 v2, s12, v2
        s_movk_i32 s14, 8192
        s_cmp_eq_u32 s5, 0
        s_waitcnt lgkmcnt(0)
        s_cselect_b32 s12, s32, s38
        s_cselect_b32 s13, s33, s39
        s_branch PF_go
        PF_w:
        s_cmp_eq_u32 s28, 2
        s_cbranch_scc0 PF_end
        v_min_u32 v3, 59, v1
        v_mul_u32_u24 v4, 0x1112, v3
        v_lshrrev_b32 v4, 16, v4
        v_mul_u32_u24 v5, 15, v4
        v_sub_u32 v5, v3, v5
        v_mul_u32_u24 v6, 52, v5
        v_lshrrev_b32 v6, 8, v6
        s_cmp_eq_u32 s5, 0
        s_cselect_b32 s12, 640, 0
        s_movk_i32 s13, 1920
        s_cselect_b32 s13, 640, s13
        v_mul_lo_u32 v6, v6, s12
        v_lshl_add_u32 v2, v5, 7, v6
        v_mul_u32_u24 v4, 3840, v4
        v_add_u32 v2, v2, v4
        s_lshr_b32 s12, s7, 2
        s_mul_i32 s13, s13, s12
        s_lshr_b32 s12, s2, 3
        s_mul_i32 s12, s12, {20*3840}
        s_add_u32 s12, s12, s13
        v_add_u32 v2, s12, v2
        s_movk_i32 s14, 15360
        s_cmp_eq_u32 s5, 0
        s_waitcnt lgkmcnt(0)
        s_cselect_b32 s12, s34, s40
        s_cselect_b32 s13, s35, s41
        PF_go:
        """)
        for j in range(5):
            A(f"global_load_dword v254, v2, s[12:13]")
            if j < 4: A("v_add_u32 v2, s14, v2")
        A("PF_end:")
    epoch_get(A)
    A(f"""
    v_lshrrev_b32 v2, 2, v1
    v_mul_u32_u24 v2, {PIECE}, v2
    v_and_b32 v3, 3, v1
    v_mul_u32_u24 v3, 40, v3
    v_add_u32 v{AW0}, v2, v3
    v_and_b32 v2, 15, v1
    v_lshrrev_b32 v3, 4, v1
    v_lshrrev_b32 v4, 1, v2
    v_xor_b32 v3, v3, v4
    s_lshl_b32 s12, s28, 12
    s_add_u32 s12, s12, {XOFF}
    v_lshlrev_b32 v2, 7, v2
    v_add_u32 v2, s12, v2
    v_lshl_add_u32 v{AX0}, v3, 4, v2
    v_xor_b32 v3, 4, v3
    v_lshl_add_u32 v{AX1}, v3, 4, v2
    v_mov_b32 v{AW}, v{AW0}
    v_mov_b32 v{AXa}, v{AX0}
    v_mov_b32 v{AXb}, v{AX1}
    """)
    for r in range(ACC, XF + 16, 2):
        A(f"v_pk_mov_b32 v[{r}:{r+1}], 0, 0")
    setup2(A)
    build_CA(A)
    A(f"""
    s_waitcnt lgkmcnt(0)
    s_mul_i32 s12, s5, {QKV_BYTES}
    s_add_u32 s12, s48, s12
    s_addc_u32 s13, s49, 0
    """)
    srd(A, 16, 12, 13, QKV_BYTES)
    flag_srd(A)
    A(f"""
    v_and_b32 v2, 15, v1
    v_lshrrev_b32 v3, 4, v1
    s_lshl_b32 s12, s6, 3
    s_lshl_b32 s13, s28, 1
    s_add_u32 s12, s12, s13
    v_mul_u32_u24 v252, {HD}, v3
    v_mul_u32_u24 v3, {HS}, v3
    v_add_u32 v3, s12, v3
    v_mul_u32_u24 v4, {QK_TILE}, v3
    v_lshl_add_u32 v4, v2, 4, v4
    v_mov_b32 v7, {f32bits(SCALE_L2E)}
    v_mov_b32 v6, v7
    s_mul_i32 s13, s7, 12
    s_mul_i32 s12, s28, {BLK}
    s_add_u32 s12, s12, {L_A}
    v_add_u32 v252, s12, v252
    v_lshrrev_b32 v3, 2, v2
    v_mul_u32_u24 v3, 192, v3
    v_and_b32 v253, 3, v2
    v_lshl_add_u32 v3, v253, 4, v3
    v_add_u32 v253, v252, v3
    v_lshl_add_u32 v252, v2, 4, v252
    v_mov_b32 v2, 0
    v_mov_b32 v3, 0
    """)
    if 'tlb' in DBG:
        A(f"""
        s_cmp_lg_u32 s28, 1
        s_cbranch_scc1 P1_nt
        v_mul_u32_u24 v246, {0x80000 if 'tlb2' not in DBG else 0x68000}, v1
        v_mul_u32_u24 v247, 81920, v1
        global_load_dword v248, v246, s[48:49]
        global_load_dword v249, v247, s[44:45]
        P1_nt:
        """)
    A("s_mov_b32 s25, 0\ns_mov_b32 s51, 0")
    stamp(A, 1)
    units = [(sub, grp, t) for sub in range(2) for grp in range(3) for t in range(5)]
    def rd(u, hf):
        sub, grp, t = units[u]
        b = WR + (u % 10) * 4
        off = sub * 16 * PIECE + hf * 512 + grp * 160 + 8 * t
        A.lds(f"ds_read_b64_tr_b16 {vr(b + 2*hf, 2)}, v{AW} offset:{off}", ('w', u))
    def rdx(sub, rt):
        A.lds(f"ds_read_b128 {vr(XF + (sub*2+rt)*4, 4)}, v{AXa if sub == 0 else AXb} offset:{rt*2048}", ('x', sub))
    def mm(u, rt):
        sub, grp, t = units[u]
        b = WR + (u % 10) * 4
        a = acc(grp, t, rt)
        A(f"v_mfma_f32_16x16x32_bf16 {vr(a,4)}, {vr(b,4)}, {vr(XF + (sub*2+rt)*4, 4)}, {vr(a,4)}")
    L = P1_LOOK
    def body(emit):
        save = A.out
        if not emit: A.out = []
        for step in range(30):
            u = (step - L) % 30
            g_ = 1 if step >= L else 0
            tags = [('x', units[u][0]) if g_ else ('px', units[u][0]), ('w', u) if g_ else ('pw', u)]
            if WB and step % WB == 0:
                for d in range(1, WB):
                    if step + d < 30:
                        u2 = (step + d - L) % 30; g2 = step + d >= L
                        if not (g2 and u2 >= step): tags += [('x', units[u2][0]) if g2 else ('px', units[u2][0]), ('w', u2) if g2 else ('pw', u2)]
            A.lds_wait(*tags)
            mm(u, 0)
            if step == 0: rdx(0, 0)
            if step == L + 2: rdx(1, 0)
            rd(step, 0)
            if step == 26:
                A(f"s_add_u32 s25, s25, {SLOT}\ns_cmp_eq_u32 s25, {3*SLOT}\ns_cselect_b32 s25, 0, s25")
            if step == 27:
                A(f"v_add_u32 v{AXa}, s25, v{AX0}")
            if step == 28:
                A(f"v_add_u32 v{AXb}, s25, v{AX1}")
            mm(u, 1)
            if step == 0: rdx(0, 1)
            if step == L + 2: rdx(1, 1)
            rd(step, 1)
            if step == 28:
                A("s_add_u32 s51, s51, 1\ns_cmp_lt_u32 s51, 10")
        A(f"v_add_u32 v{AW}, s25, v{AW0}")
        A.lds_q = [('p' + t[0], t[1]) for t in A.lds_q]
        if not emit: A.out = save
    A.lds_q = []
    body(False)
    if P3AL:
        A("s_branch P1_cloop")
        A.out.append("    .p2align 10                ; code placement only (jumped over)")
    A("P1_cloop:")
    A("s_barrier")
    if STAMP and 'stg' in DBG:
        A("s_memtime s[100:101]\ns_add_u32 m0, s51, 16\ns_waitcnt lgkmcnt(0)\nv_writelane_b32 v255, s100, m0")
    body(True)
    A("s_cbranch_scc1 P1_cloop")
    for u in range(30 - L, 30):
        A.lds_wait(('pw', u))
        mm(u, 0); mm(u, 1)
    stamp(A, 2)
    A("s_cmp_eq_u32 s5, 0\ns_cbranch_scc1 P1_epiA")
    def pack(grp, TB):
        for rt in range(2):
            T = TB + rt * 12
            for t in range(5):
                a = acc(grp, t, rt)
                A(f"v_cvt_pk_bf16_f32 v{T+2*t}, v{a}, v{a+1}\nv_cvt_pk_bf16_f32 v{T+2*t+1}, v{a+2}, v{a+3}")
    def store_qk(TB, soff):
        A(f"v_mov_b32 v{TB+10}, v{TB+20}\nv_mov_b32 v{TB+11}, v{TB+21}")
        for rt in range(2):
            T = TB + rt * 12
            A(f"buffer_store_dwordx4 {vr(T,4)}, v4, s[16:19], s{soff} offen offset:{rt*768} sc1")
            A(f"buffer_store_dwordx4 {vr(T+4,4)}, v4, s[16:19], s{soff} offen offset:{rt*768+256} sc1")
        A(f"buffer_store_dwordx4 {vr(TB+8,4)}, v4, s[16:19], s{soff} offen offset:512 sc1")
    def ones(TB):
        for rt in range(2):
            T = TB + rt * 12
            A(f"v_mov_b32 v{T+10}, 0x3f803f80\nv_mov_b32 v{T+11}, 0x3f803f80")
    def store_v(TB, soff):
        for rt in range(2):
            T = TB + rt * 12
            for p in range(3):
                A(f"buffer_store_dwordx4 {vr(T+4*p,4)}, v5, s[16:19], s{soff} offen offset:{rt*V_TILE+256*p} sc1")
    def scale(grp):
        for r in range(acc(grp, 0, 0), acc(grp, 0, 0) + 40, 2):
            A(f"v_pk_mul_f32 v[{r}:{r+1}], v[6:7], v[{r}:{r+1}]")
    TBS = [WR, 190, WR + 24]
    for grp in range(3):
        TB = TBS[grp]
        A(f"""
        s_add_u32 s14, s13, {4*grp}
        s_mul_i32 s20, s14, {HS*QK_TILE}
        s_cmp_ge_u32 s14, 32
        s_cbranch_scc1 P1_ns{grp}
        """)
        scale(grp)
        A(f"P1_ns{grp}:")
        pack(grp, TB)
        store_qk(TB, 20)
    stamp(A, 3)
    A("s_waitcnt vmcnt(0)\ns_barrier")
    stamp(A, 4)
    epoch_read(A)
    A("s_branch P2_cd")
    A("P1_epiA:\ns_nop 3")
    pack(1, TBS[1]); pack(2, TBS[2])
    A(f"""
    s_cmp_lg_u32 s28, {9 if 'nohalo' in DBG else 3}
    s_cbranch_scc1 P1_nh
    s_lshl_b32 s14, s7, 2
    s_mul_i32 s20, s14, {HS*QK_TILE}
    s_add_u32 s20, s20, {K_OFF}
    s_mul_i32 s21, s14, {HS*V_TILE}
    s_add_u32 s21, s21, {V_OFF}
    """)
    store_qk(TBS[1], 20); store_qk(TBS[2], 21)
    A("s_nop 1\nP1_nh:")
    ones(TBS[2])
    def img_qk(grp, base):
        for rt in range(2):
            T = TBS[grp] + rt * 12
            A(f"ds_write_b128 v252, {vr(T,4)} offset:{base + rt*256}")
            A(f"ds_write_b128 v252, {vr(T+4,4)} offset:{base + rt*256 + 512}")
            A(f"ds_write_b64 v252, {vr(T+8,2)} offset:{base + rt*256 + 1024 + 8}")
            A(f"ds_write_b64 v252, v[2:3] offset:{base + rt*256 + 1024}")
    img_qk(1, BLK)
    for rt in range(2):
        T = TBS[2] + rt * 12
        for p in range(3):
            A(f"ds_write_b128 v253, {vr(T+4*p,4)} offset:{10*BLK + rt*768 + p*64}")
    scale(0); pack(0, TBS[0])
    img_qk(0, 5 * BLK)
    A(f"""
    s_add_u32 s12, s48, {O_BASE}
    s_addc_u32 s13, s49, 0
    s_mov_b32 s15, s28
    s_mov_b32 s16, 1
    s_mov_b32 s40, {FLAG_BASE}
    """)
    stamp(A, 3)
    A("s_waitcnt lgkmcnt(0)\ns_barrier")
    stamp(A, 4)
    epoch_read(A)
    A(f"""
    s_cmp_lg_u32 s28, {9 if 'nohalo' in DBG else 3}
    s_cbranch_scc1 P2_a_enter
    s_and_b32 s21, s6, {3 if 'mix' in DBG else 7}
    s_cmp_eq_u32 s21, {3 if 'mix' in DBG else 7}
    s_cselect_b32 s21, {-22 if 'mix' in DBG else -52 if 'mix2' in DBG else -54}, 8
    s_add_u32 s21, s21, s2
    s_and_b32 s20, s21, 7
    s_lshl_b32 s20, s20, 2
    s_bfe_u32 s22, s21, 0x20003
    s_or_b32 s20, s20, s22
    s_andn2_b32 s21, s21, 31
    s_or_b32 s21, s21, s20
    s_lshl_b32 s21, s21, 9
    s_add_u32 s21, s21, {MB1 + 24}
    s_cmp_lt_u32 s6, 15
    s_cselect_b32 s21, s21, {OOB}
    v_min_u32 v2, 3, v1
    v_lshlrev_b32 v2, 7, v2
    v_add_u32 v2, s21, v2
    s_waitcnt vmcnt(0)
    """)
    flag_store(A, 2)
    A("P2_a_enter:")
    srd(A, 24, 12, 13, 2 * O_BYTES)
    A(f"""
    s_mul_i32 s14, s15, {HD}
    s_add_u32 s14, s14, {L_A}
    s_lshl_b32 s12, s7, 2
    s_add_u32 s15, s15, s12
    P2_a_unit:
    s_mul_i32 s12, s16, {BLK}
    s_add_u32 s12, s12, s14
    v_add_u32 v{AK}, s12, v{LK}
    s_add_u32 s13, s12, {9*BLK}
    v_add_u32 v{AV}, s13, v{LV}
    v_add_u32 v{AQ}, {5*BLK}, v{AK}
    s_lshl_b32 s12, s6, 3
    s_lshl_b32 s13, s16, 1
    s_add_u32 s17, s12, s13
    s_or_b32 s87, s6, s16
    P2_a_start:
    """)
    A.lds_q = []
    rdQ(A); rdK(A, 0, 0); rdK(A, 1, 1); rdV(A, 0, 0); rdV(A, 1, 1)
    oaddr(A, 15, 17)
    A.lds_wait(('q', 0))
    maskQ(A)
    A.lds_wait(('k', 0))
    qk(A, 0, 0, SA, CA); qk(A, 1, 0, SA, CA)
    A.lds_wait(('k', 1))
    qk(A, 0, 1, SB, CA); qk(A, 1, 1, SB, CA)
    A("s_cmp_eq_u32 s87, 0\ns_nop 7\ns_cbranch_scc1 P2_a_inv")
    A("P2_a_val:\ns_nop 3")
    for r in range(16):
        A(f"v_cndmask_b32 v{SA+r}, v{SA+r}, v{SB+r}, s[{MS+2*r}:{MS+2*r+1}]")
    A("s_cmp_eq_u32 s92, 1\ns_cbranch_scc1 P2_a_max")
    for r in range(16): A(f"v_exp_f32 v{SA+r}, v{SA+r}")
    A("s_nop 0")
    for j in range(8): cvt(A, SA, PA, j)
    for j in range(8):
        A(f"v_and_b32 v{PB+j}, v{PA+j}, v{PM+j}\nv_bfi_b32 v{PA+j}, v{PM+j}, 0, v{PA+j}")
    A.lds_wait(('v', 1))
    A("s_cmp_lg_u32 s16, 0\ns_cbranch_scc1 P2_a_np\ns_load_dwordx8 s[32:39], s[48:49], s40 glc\nP2_a_np:")
    pv(A, 0, 0, PA, True); pv(A, 1, 0, PA); pv(A, 0, 1, PB); pv(A, 1, 1, PB)
    finish(A, 0, 'a', 92)
    A("s_cmp_lg_u32 s92, 0\ns_cbranch_scc1 P2_a_rst")
    if 'nohalo' in DBG:
        A("""
        P2_a_next:
        s_cmp_eq_u32 s16, 3
        s_cbranch_scc1 L_Aret
        s_xor_b32 s16, s16, 3
        s_cmp_lg_u32 s16, 1
        s_cbranch_scc1 P2_a_unit
        """)
    else:
        A("""
        P2_a_next:
        s_cmp_eq_u32 s16, 0
        s_cbranch_scc1 L_Aret
        s_add_u32 s16, s16, 1
        s_cmp_lt_u32 s16, 4
        s_cbranch_scc1 P2_a_unit
        """)
    stamp(A, 5)
    A("P2_cd:")
    A(f"{HEADCODE}\ns_mov_b64 s[46:47], s[36:37]")
    OF = 60; ACC3 = 16; WR3 = 220; AW3 = 8; TO = 56; TW = 57
    def of(ks, rt): return OF + (ks * 2 + rt) * 4
    wo_patterns(A, True)
    A(f"""
    {P3COORD}
    s_bfe_u32 s8, s2, 0x10002
    s_lshl_b32 s12, s9, 3
    s_add_u32 s12, s12, s10
    s_lshl_b32 s12, s12, 9
    s_add_u32 s12, s12, {MB2}
    s_cmp_eq_u32 s8, 0
    s_cselect_b32 s12, s12, {OOB}
    v_and_b32 v13, 7, v1
    v_lshlrev_b32 v13, 3, v13
    v_add_u32 v13, s12, v13
    v_and_b32 v12, 3, v1
    v_lshlrev_b32 v12, 3, v12
    s_lshl_b32 s12, s9, 3
    s_lshl_b32 s14, s28, 1
    s_add_u32 s12, s12, s14
    s_mul_i32 s15, s12, 20480
    s_mul_i32 s21, s8, {O_BYTES}
    s_add_u32 s15, s15, s21
    v_lshlrev_b32 v7, 4, v1
    v_add_u32 v7, s15, v7
    v_add_u32 v6, 20480, v7
    v_and_b32 v2, 15, v1
    v_lshlrev_b32 v2, 3, v2
    v_sub_u32 v11, v7, v2
    v_add_u32 v11, 4096, v11
    v_add_u32 v15, 20480, v11
    v_lshrrev_b32 v9, 2, v1
    v_mul_u32_u24 v9, 160, v9
    v_and_b32 v10, 3, v1
    v_lshlrev_b32 v10, 3, v10
    v_add_u32 v{AW3}, v9, v10
    v_add_u32 v{AW3}, {L_WO}, v{AW3}
    v_add_u32 v{AW3+1}, 51200, v{AW3}
    v_and_b32 v2, 15, v1
    v_lshrrev_b32 v3, 4, v1
    s_lshl_b32 s12, s9, 7
    s_lshl_b32 s14, s28, 5
    s_add_u32 s12, s12, s14
    v_add_u32 v2, s12, v2
    v_mul_u32_u24 v2, 2560, v2
    s_mul_i32 s14, s8, 1280
    s_mul_i32 s20, s10, 160
    s_add_u32 s14, s14, s20
    v_add_u32 v2, s14, v2
    v_lshl_add_u32 v59, v3, 3, v2
    v_and_b32 v5, 1, v3
    v_lshl_add_u32 v2, v5, 5, v2
    v_lshrrev_b32 v5, 1, v3
    v_lshl_add_u32 v58, v5, 4, v2
    v_mov_b32 v19, {OOB}
    v_mov_b32 v53, v12
    """)
    cb_init(A)
    A("P2_pre:")
    A(f"""
    s_lshl_b32 s12, s6, 9
    s_add_u32 s12, s12, s7
    s_lshl_b32 s12, s12, 3
    s_add_u32 s12, s12, {MB2}
    s_cmp_eq_u32 s5, 0
    s_cselect_b32 s12, s12, {OOB}
    s_cmp_eq_u32 s28, 4
    s_cselect_b32 s12, s12, {OOB}
    v_min_u32 v18, 7, v1
    v_lshlrev_b32 v18, 9, v18
    v_add_u32 v18, s12, v18
    s_bfe_u32 s5, s2, 0x10002
    s_add_u32 s12, s48, {O_BASE}
    s_addc_u32 s13, s49, 0
    """)
    srd(A, 24, 12, 13, 2 * O_BYTES)
    A(f"""
    s_mul_i32 s12, s28, {BLK}
    s_add_u32 s13, s12, {L_BK}
    v_add_u32 v{AK}, s13, v{LK}
    s_add_u32 s13, s12, {L_BQ}
    v_add_u32 v{AQ}, s13, v{LK}
    s_add_u32 s13, s12, {L_BV}
    v_add_u32 v{AV}, s13, v{LV}
    s_sub_u32 s86, 8, s28
    s_cmp_eq_u32 s4, 0
    s_cselect_b32 s86, s86, -1
    s_lshl_b32 s12, s4, 4
    s_lshl_b32 s13, s28, 1
    s_add_u32 s17, s12, s13
    """)
    oaddr(A, 3, 17)
    A(f"""
    {P3COORD}
    s_cmp_eq_u32 s5, 0
    s_cselect_b32 s16, s46, s42
    s_cselect_b32 s17, s47, s43
    s_and_b32 s17, s17, 0xffff
    s_mov_b32 s18, 819200
    s_mov_b32 s19, 0x20000
    s_mul_i32 s20, s10, 160
    """)
    def wo_setup(n):
        if n < 2:
            A(f"""
            s_add_u32 s21, s28, {8*n}
            s_mul_i32 s22, s21, {40*1280}
            s_add_u32 s22, s22, s20
            s_lshr_b32 s23, s21, 2
            s_add_u32 s23, s23, s21
            s_mul_i32 s23, s23, 5120
            """)
        else:
            A(f"""
            s_mul_i32 s22, s28, {160*1280}
            s_add_u32 s22, s22, s20
            s_mul_i32 s23, s28, 25600
            s_add_u32 s23, s23, 20480
            """)
    def wo_piece(i, n):
        A(f"s_add_u32 m0, s23, {L_WO + i*1024}\ns_nop 0\nbuffer_load_dwordx4 v{WA+i+(5 if n == 2 else 0)}, s[16:19], s22 offen lds")
    if BAL is not None:
        A.out.append("    .p2align 5                 ; code alignment of the attention unit (instruction fetch), runs while waiting for data")
        for _ in range(((BAL - (20 if STAMP else 0)) % 32) // 4): A("s_nop 0")
    A(f"s_cmp_lt_u32 s28, 4\ns_cbranch_scc1 P2_bd\n{'s_setprio 1' if PRIO else ''}\ns_waitcnt vmcnt(0)\nds_write_b64 v53, v[54:55]\nds_write_b64 v53, v[54:55] offset:3072\nP2_bd:\ns_waitcnt vmcnt(0) lgkmcnt(0)\ns_barrier")
    stamp(A, 6)
    A.lds_q = []
    rdQ(A)
    rdK(A, 0, 0); rdK(A, 1, 1)
    flag_store(A, 18)
    A.lds_wait(('q', 0))
    maskQ(A)
    A("s_branch P2_b_go\nP2_b_start:")
    A.lds_q = []
    rdK(A, 0, 0); rdK(A, 1, 1)
    A("P2_b_go:")
    def cb_switch(b):
        A(f"s_cmp_lg_u32 s86, {b}\ns_cbranch_scc1 P2_cb{b}\ns_nop 7")
        for r in range(16): A(f"v_mov_b32 v{CB+r}, v{NEGM}")
        A(f"s_nop 1\nP2_cb{b}:")
    A.lds_wait(('k', 0))
    qk(A, 0, 0, S0, CB); qk(A, 1, 0, S0, CB)
    rdK(A, 2, 0)
    cb_switch(1)
    A.lds_wait(('k', 1))
    qk(A, 0, 1, SA, CB); qk(A, 1, 1, SA, CB)
    rdV(A, 1, 1)
    A("s_cmp_eq_u32 s93, 1\ns_cbranch_scc1 P2_b_max")
    cb_switch(2)
    A("s_nop 7")
    for b in range(1, 8):
        Sc, Sn = (SA, SB) if b % 2 == 1 else (SB, SA)
        Pc, Pp = (PA, PB) if b % 2 == 1 else (PB, PA)
        wn, wh = (b - 1) // 2, (b - 1) % 2
        dow = b <= 6
        if b == PRIO: A("s_setprio 0")
        if dow and wn == 2: A(f"s_cmp_ge_u32 s28, 4\ns_cbranch_scc1 P2_nw{b}")
        if dow:
            if wh == 0: wo_setup(wn)
            for i in (range(0, 3) if wh == 0 else range(3, 5)): wo_piece(i, wn)
        if dow and wn == 2: A(f"P2_nw{b}:")
        A.lds_wait(('k', b + 1))
        qk(A, 0, (b + 1) % 2, Sn, CB)
        for r in range(0, 4): A(f"v_exp_f32 v{Sc+r}, v{Sc+r}")
        qk(A, 1, (b + 1) % 2, Sn, CB)
        if b + 2 <= 8: rdK(A, b + 2, b % 2)
        for r in range(4, 8): A(f"v_exp_f32 v{Sc+r}, v{Sc+r}")
        if b > 1:
            A.lds_wait(('v', b - 1))
            pv(A, 0, (b - 1) % 2, Pp, first=(b == 2))
        if b * 10 + 5 == PRIO: A("s_setprio 0")
        for r in range(8, 12): A(f"v_exp_f32 v{Sc+r}, v{Sc+r}")
        if b > 1:
            pv(A, 1, (b - 1) % 2, Pp)
        nb = b + 1 if b < 7 else 0
        rdV(A, nb, (b + 1) % 2)
        for r in range(12, 16): A(f"v_exp_f32 v{Sc+r}, v{Sc+r}")
        for j in range(8): cvt(A, Sc, Pc, j)
        if b + 2 <= 8: cb_switch(b + 2)
    if PRIO == 8: A("s_setprio 0")
    for r in range(16):
        A(f"v_cndmask_b32 v{S0+r}, v{S0+r}, v{SB+r}, s[{MS+2*r}:{MS+2*r+1}]")
        if r == 3:
            A.lds_wait(('v', 7)); pv(A, 0, 1, PA)
        if r == 11:
            pv(A, 1, 1, PA); rdV(A, 8, 1)
    for r in range(16): A(f"v_exp_f32 v{S0+r}, v{S0+r}")
    A("s_nop 0")
    for j in range(8): cvt(A, S0, PB, j)
    for j in range(8):
        A(f"v_and_b32 v{P2+j}, v{PB+j}, v{PM+j}\nv_bfi_b32 v{PB+j}, v{PM+j}, 0, v{PB+j}")
    A.lds_wait(('v', 8))
    A("s_nop 0")
    pv(A, 0, 0, PB); pv(A, 1, 0, PB); pv(A, 0, 1, P2); pv(A, 1, 1, P2)
    finish(A, O_BYTES, 'b', 93)
    stamp(A, 7)
    A(f"""
    s_cmp_lt_u32 s28, 4
    s_cbranch_scc1 P3
    s_waitcnt vmcnt(0)
    s_barrier
    """)
    stamp(A, 8)
    A("s_cmp_lg_u32 s28, 4\ns_cbranch_scc1 H_poll")
    flag_store(A, 19)
    A(f"""
    H_poll:
    s_lshl_b32 s12, s5, 7
    s_lshl_b32 s13, s9, 3
    s_add_u32 s12, s12, s13
    s_add_u32 s12, s12, s10
    s_lshl_b32 s12, s12, 9
    s_add_u32 s12, s12, {FLAG_BASE + MB2}
    s_and_b32 s13, s28, 3
    s_lshl_b32 s13, s13, 7
    s_mul_i32 s13, s13, s5
    s_add_u32 s40, s12, s13
    s_mov_b32 s94, 0
    s_and_b32 s12, s28, 3
    s_lshl_b32 s12, s12, 3
    v_mov_b32 v2, s12
    H_loop:
    s_load_dwordx16 s[52:67], s[48:49], s40 glc
    s_add_u32 s94, s94, 1
    s_cmp_ge_u32 s94, {SPIN_LIMIT}
    s_waitcnt lgkmcnt(0)
    s_cbranch_scc1 H_done
    s_xor_b64 s[88:89], s[52:53], s[0:1]
    """)
    for i in range(1, 8):
        A(f"s_xor_b64 s[90:91], s[{52+2*i}:{53+2*i}], s[0:1]\ns_or_b64 s[88:89], s[88:89], s[90:91]")
    A(f"""
    s_cbranch_scc1 H_loop
    H_done:
    ds_write_b64 v2, v[{EP}:{EP+1}]
    s_waitcnt lgkmcnt(0)
    """)
    stamp(A, 9)
    A("s_branch K_end2")
    A("P2_a_inv:\ns_nop 3")
    for r in range(16): A(f"v_mov_b32 v{SA+r}, v{NINF}")
    A("s_branch P2_a_val")
    A(f"P2_a_rst:\ns_mov_b32 s92, 0\nv_mov_b32 v{NEGM}, 0")
    build_CA(A)
    A("s_branch P2_a_next")
    A("P2_a_fb:\ns_mov_b32 s92, 1\ns_waitcnt lgkmcnt(0)\ns_branch P2_a_start")
    A("P2_a_max:")
    maxblock(A, SA, True)
    rowmax_finish(A, "P2_a_start", 92, lambda: build_CA(A))
    A("P2_b_fb:\ns_mov_b32 s93, 1")
    cb_init(A)
    A("s_branch P2_b_start")
    A("P2_b_max:")
    A("s_waitcnt lgkmcnt(0)\ns_nop 7\ns_nop 3")
    A.lds_q = []
    maxblock(A, SA, True)
    for b in range(2, 9):
        A(f"s_cmp_lg_u32 s86, {b}\ns_cbranch_scc1 P2_mcb{b}")
        for r in range(16): A(f"v_mov_b32 v{CB+r}, v{NEGM}")
        A(f"P2_mcb{b}:")
        rdK(A, b, 0)
        A.lds_drain()
        qk(A, 0, 0, SA, CB); qk(A, 1, 0, SA, CB)
        A("s_nop 7\ns_nop 7")
        if b == 8:
            for r in range(16):
                A(f"v_cndmask_b32 v{SA+r}, v{S0+r}, v{SA+r}, s[{MS+2*r}:{MS+2*r+1}]")
        maxblock(A, SA, False)
    rowmax_finish(A, "P2_b_start", 93, lambda: cb_init(A))
    grp3 = lambda i: (i + 2) & 3
    def pick(i):
        return ["v_cmp_eq_u64 vcc, s[0:1], v[4:5]", "s_nop 1\ns_or_b32 s22, s22, vcc_lo",
                f"s_bitcmp1_b32 s22, {grp3(i)}\ns_cselect_b32 s23, 1, 0\ns_cselect_b32 s30, {grp3(i)*5120}, s21"]
    def ldo(i):
        l = []
        for ks in range(4):
            for rt in range(2):
                l.append(f"buffer_load_dwordx4 {vr(of(i*5+ks,rt),4)}, v{7-rt}, s[24:27], s30 offen offset:{ks*1024} sc1")
        for rt in range(2):
            for hf in range(2):
                l.append(f"buffer_load_dwordx2 {vr(of(i*5+4,rt)+2*hf,2)}, v{(11,15)[rt]}, s[24:27], s30 offen offset:{hf*128} sc1")
        return l
    def rd3(n, hf):
        i, ks, t = n // 25, (n % 25) // 5, n % 5
        b = WR3 + (n % 8) * 4
        off = (grp3(i) & 1) * 25600 + (ks * 32 + hf * 16) * 160 + 32 * t
        A.lds(f"ds_read_b64_tr_b16 {vr(b+2*hf,2)}, v{AW3 + (grp3(i) >> 1)} offset:{off}", ('w', n))
    LA = 6
    def acquire(i):
        A(f"P3_acq{i}:\nds_read_b64 v[4:5], v12\ns_waitcnt lgkmcnt(0)")
        for x in pick(i): A(x)
        A(f"s_cbranch_scc0 P3_acq{i}")
        for x in ldo(i): A(x)
    for i in range(1, 1 + NACQ):
        acquire(i); A(f"s_branch P3_go{i}")
    A("P3:")
    srd(A, 16, 44, 45, 2048 * 1280 * 2)
    A(f"""
    buffer_load_dwordx2 v[4:5], v13, s[96:99], 0 offen sc1
    s_mov_b32 s21, 0x70000000
    s_waitcnt vmcnt(1)
    s_barrier
    """)
    stamp(A, 8)
    A.lds_q = []
    for n in range(LA): rd3(n, 0); rd3(n, 1)
    A("""
    s_waitcnt vmcnt(0)
    v_cmp_ne_u64 vcc, s[0:1], v[4:5]
    s_nop 1
    s_cmp_eq_u64 vcc, 0
    s_cselect_b32 s22, 0xff, 0
    """)
    acquire(0)
    A.lds_q = []
    stamp(A, 9)
    fill = []; nxt = 0
    for n in range(100):
        i, ks, t = n // 25, (n % 25) // 5, n % 5
        if n % 25 == 0:
            nxt = 0
            if i < 3:
                A.lds_wait(('f', i)); fill = pick(i + 1) + ldo(i + 1)
                if i == 0:
                    for x in fill: A(x)
                    fill = []; nxt = 12
        if t == 0 and STAMP and 'p3s' in DBG and n >= 25:
            A(f"s_memtime s[100:101]\ns_waitcnt lgkmcnt(0)\nv_writelane_b32 v255, s100, {14 + n//5 - 5}")
        if t == 0:
            A(f"s_waitcnt vmcnt({(10 - 2*ks if ks < 4 else 0) + nxt})")
        if n % 2 == 0:
            A.lds_wait(('w', n), ('w', n + 1))
        b = WR3 + (n % 8) * 4
        for rt in range(2):
            a = ACC3 + (t * 2 + rt) * 4
            A(f"v_mfma_f32_16x16x32_bf16 {vr(a,4)}, {vr(b,4)}, {vr(of(i*5+ks,rt),4)}, {vr(a,4) if n >= 5 else 0}")
            if n + LA < 100:
                if (n + LA) % 25 == 0 and rt == 0 and i < 2: A.lds("ds_read_b64 v[4:5], v12", ('f', i + 1))
                rd3(n + LA, rt)
            if fill:
                x = fill.pop(0)
                A(x.replace("s_nop 1\n", ""))
                if x.startswith("buffer_load"): nxt += 1
        if n % 25 == 24 and i < 3:
            assert not fill
            A(f"s_cmp_eq_u32 s23, 0\ns_cbranch_scc1 P3_acq{i+1}\nP3_go{i+1}:")
    stamp(A, 10)
    A("s_mov_b32 s12, 40960")
    for rt in range(2):
        T = OF + rt * 12
        for t in range(5):
            a = ACC3 + (t * 2 + rt) * 4
            A(f"v_cvt_pk_bf16_f32 v{T+2*t}, v{a}, v{a+1}\nv_cvt_pk_bf16_f32 v{T+2*t+1}, v{a+2}, v{a+3}")
        for j in (0, 1, 4, 5): A(f"v_permlane16_swap_b32 v{T+j}, v{T+j+2}")
        so = "s12" if rt else "0"
        A(f"buffer_store_dwordx4 {vr(T,4)}, v58, s[16:19], {so} offen {OUT_FLAGS}")
        A(f"buffer_store_dwordx4 {vr(T+4,4)}, v58, s[16:19], {so} offen offset:64 {OUT_FLAGS}")
        A(f"buffer_store_dwordx2 {vr(T+8,2)}, v59, s[16:19], {so} offen offset:128 {OUT_FLAGS}")
    stamp(A, 11)
    A("K_end2:")
    for d in DBG:
        if d.startswith('pad'):
            A(f"""
            s_cmp_lt_u32 s28, 4
            s_cbranch_scc1 PADE
            v_readfirstlane_b32 s12, v{EP}
            PADL:
            s_memrealtime s[14:15]
            s_waitcnt lgkmcnt(0)
            s_sub_u32 s13, s14, s12
            s_cmp_lt_u32 s13, {int(d[3:])*100}
            s_cbranch_scc1 PADL
            PADE:
            """)
    stamp_flush(A, 12, 0)
    A("K_end:\ns_endpgm")
    for i in range(1 + NACQ, 4):
        acquire(i); A(f"s_branch P3_go{i}")
    A("K_last:\ns_endpgm")
    A.end(256, 102, 256, 512, LDS_TOTAL)

P3_DEPTH = 8
PSLEEP = 0
BAL = 16
NACQ = 0 if '--stamp' in sys.argv else 2
P3AL = '--nop3al' not in sys.argv
STATIC = True
ALIGN = None
WB = 2
CPF_SH = 3
PRIO = 6
SECT = True
OUT_FLAGS = ""

if __name__ == '__main__':
    if '--stamp' in sys.argv: STAMP = True
    for a in sys.argv[1:]:
        if a.startswith('--dbg='): DBG.update(a[6:].split(','))
        if a.startswith('--rot='): ROT = int(a[6:])
        if a.startswith('--bal='): BAL = int(a[6:])
        if a.startswith('--al='): ALIGN = int(a[5:])
        if a.startswith('--wb='): WB = int(a[5:])
        if a.startswith('--look='): P1_LOOK = int(a[7:])
        if a.startswith('--prio='): PRIO = int(a[7:])
        if a.startswith('--psleep='): PSLEEP = int(a[9:])
        if a.startswith('--out='): OUT_FLAGS = a[6:].replace('+', ' ')
    A = Asm()
    gen(A)
    t = A.text()
    t = t.replace("    LSTG\n", "    s_memtime s[100:101]\n    s_add_u32 m0, s51, 15\n    s_waitcnt lgkmcnt(0)\n    v_writelane_b32 v255, s100, m0\n" if (STAMP and 'lstg' in DBG) else "")
    import subprocess, re, os
    open('_g3.s', 'w').write(t.replace('CODE_BYTES', '0x1234').replace('CPF_OFF', '0x1234'))
    subprocess.run(['clang', '-x', 'assembler', '-target', 'amdgcn-amd-amdhsa', '-mcpu=gfx950', '-c', '_g3.s', '-o', '_g3.o'], check=True)
    nm = subprocess.run(['llvm-objdump', '-t', '_g3.o'], capture_output=True, text=True).stdout
    end = int(re.search(r'^([0-9a-f]+) .* K_last$', nm, re.M).group(1), 16)
    sys.stderr.write(f"code bytes {end}\n")
    m = re.search(r'^([0-9a-f]+) .* CPF_pc$', nm, re.M)
    pc = int(m.group(1), 16) if m else 0
    sys.stdout.write(t.replace('CODE_BYTES', str(end - 64)))
```
